```python
import torch

def _softmax(x, axis=-1):
    return torch.softmax(x, dim=axis)

def _gelu(x):
    return torch.nn.functional.gelu(x, approximate='tanh')

def _silu(x):
    return torch.nn.functional.silu(x)

def _sigmoid(x):
    return torch.sigmoid(x)

def _layernorm(x, axis=-1, eps=1e-05):
    m = x.mean(dim=axis, keepdim=True)
    v = x.var(dim=axis, keepdim=True, unbiased=False)
    return (x - m) / torch.sqrt(v + eps)

def _scatter_add(tgt, idx, src, axis=0):
    return tgt.clone().index_add_(axis, idx, src)

def _segment_sum(src, seg, n):
    out = torch.zeros((n,) + src.shape[1:], dtype=src.dtype)
    return out.index_add_(0, seg, src)

def _pad(x, pw):
    flat = tuple((v for pair in reversed(pw) for v in pair))
    return torch.nn.functional.pad(x, flat)
kernel_name = 'adaLN_cond__ssm_conv_h3__mixer_s_mlp__prompt'

def setup_inputs():

    _w = lambda a: (lambda t: t.to(torch.bfloat16) if t.is_floating_point() else t)(torch.as_tensor(a))

    def _A_setup():
        B, S, D = (1, 2048, 640)
        ks = 4
        return {'q': _w((lambda *s: torch.randn(*s, dtype=torch.bfloat16) * 0.05)(B, S, D)), 'k': _w((lambda *s: torch.randn(*s, dtype=torch.bfloat16) * 0.8)(B, S, D)), 'v': _w((lambda *s: torch.randn(*s, dtype=torch.bfloat16) * 0.8)(B, S, D)), 'shift_k': _w((lambda *s: torch.randn(*s, dtype=torch.bfloat16) * 0.8)(D, ks) * 0.5), 'ssm_k': _w((lambda *s: torch.randn(*s, dtype=torch.bfloat16) * 0.8)(D, S) * (1.0 / S ** 0.5)), 'ssm_D': _w((lambda *s: torch.randn(*s, dtype=torch.bfloat16) * 0.8)(D))}
    _A_in = _A_setup()

    def _B_setup():
        B, S, D, F = (1, 2048, 640, 1728)
        return {'x': _w((lambda *s: torch.randn(*s, dtype=torch.bfloat16) * 0.05)(B, S, D)), 'w1': _w((lambda *s: torch.randn(*s, dtype=torch.bfloat16) * 3.2)(D, D) * D ** (-0.5)), 'w2': _w((lambda *s: torch.randn(*s, dtype=torch.bfloat16) * 3.2)(D, D) * D ** (-0.5)), 'w3': _w((lambda *s: torch.randn(*s, dtype=torch.bfloat16) * 3.2)(D, F) * D ** (-0.5)), 'w4': _w((lambda *s: torch.randn(*s, dtype=torch.bfloat16) * 3.2)(F, D) * F ** (-0.5))}
    _B_in = _B_setup()
    return {'A_q': _A_in['q'], 'A_k': _A_in['k'], 'A_v': _A_in['v'], 'A_shift_k': _A_in['shift_k'], 'A_ssm_k': _A_in['ssm_k'], 'A_ssm_D': _A_in['ssm_D'], 'B_x': _B_in['x'], 'B_w1': _B_in['w1'], 'B_w2': _B_in['w2'], 'B_w3': _B_in['w3'], 'B_w4': _B_in['w4'], 'c': _w((lambda *s: torch.randn(*s, dtype=torch.bfloat16) * 0.1)(1, 640) * 8.0), 'w_mod': _w((lambda *s: torch.randn(*s, dtype=torch.bfloat16) * 0.1)(640, 6 * 640) * 640 ** (-0.5) * 8.0)}

def reference(A_q, A_k, A_v, A_shift_k, A_ssm_k, A_ssm_D, B_x, B_w1, B_w2, B_w3, B_w4, c, w_mod):

    def _A_ref(q, k, v, shift_k, ssm_k, ssm_D):
        B, S, D = q.shape
        ks = shift_k.shape[-1]
        k_pad = _pad(k, ((0, 0), (ks - 1, 0), (0, 0)))
        k_shift = torch.zeros_like(k)
        for t in range(ks):
            k_shift = k_shift + k_pad[:, t:t + S, :] * shift_k[:, ks - 1 - t][None, None, :]
        kv = k_shift * v
        L = 2 * S
        kv_pad = _pad(kv, ((0, 0), (0, S), (0, 0)))
        kf_pad = _pad(ssm_k, ((0, 0), (0, S)))
        kv_f = (lambda x, axes=(-2, -1): torch.fft.rfft2(x.float(), dim=axes))(kv_pad[:, None, :, :], axes=(1, 2))
        kf_f = (lambda x, axes=(-2, -1): torch.fft.rfft2(x.float(), dim=axes))(kf_pad[:, None, :], axes=(1, 2))
        kf_f = (lambda x, *d: x.permute(*d))(kf_f, 1, 2, 0)
        y_f = kv_f * kf_f[None, :, :, :]
        y = (lambda x, s, axes=(-2, -1): torch.fft.irfft2(x, s=s, dim=axes).to(torch.bfloat16))(y_f, (1, L), axes=(1, 2))[:, 0, :S, :]
        y = y + kv * ssm_D[None, None, :]
        return q * y

    def _B_ref(x, w1, w2, w3, w4):
        B, S, D = x.shape
        h = _gelu(_layernorm(x, axis=-1) @ w1)
        c = D // 4
        g0 = _pad(h[:, :, 0 * c:1 * c], ((0, 0), (1, 0), (0, 0)))[:, :S, :]
        g1 = _pad(h[:, :, 1 * c:2 * c], ((0, 0), (0, 1), (0, 0)))[:, 1:, :]
        g2 = _pad(h[:, :, 2 * c:3 * c], ((0, 0), (2, 0), (0, 0)))[:, :S, :]
        g3 = _pad(h[:, :, 3 * c:], ((0, 0), (0, 2), (0, 0)))[:, 2:, :]
        hs = torch.concatenate([g0, g1, g2, g3], axis=-1) @ w2
        x1 = x + hs
        h2 = _gelu(_layernorm(x1, axis=-1) @ w3) @ w4
        return x1 + h2
    x = A_q
    mod = (_silu(c) @ w_mod).reshape(c.shape[0], 6, 1, -1)
    sa, ca, ga, sb, cb, gb = (mod[:, 0].clone(), mod[:, 1].clone(), mod[:, 2].clone(), mod[:, 3].clone(), mod[:, 4].clone(), mod[:, 5].clone())
    h = _layernorm(x, axis=-1) * (1 + ca) + sa
    x = x + ga * _A_ref(h, A_k, A_v, A_shift_k, A_ssm_k, A_ssm_D)
    h = _layernorm(x, axis=-1) * (1 + cb) + sb
    x = x + gb * _B_ref(h, B_w1, B_w2, B_w3, B_w4)
    return x
```

```python
S, D, F = 2048, 640, 1728
def _al(x, a=4096): return (x + a - 1) // a * a
_off = 0
def _alloc(n):
    global _off
    o = _off
    _off = _al(_off + n)
    return o
KVR_CH = 4352
KVR = _alloc(640 * KVR_CH + 8192)
KV4 = _alloc(160 * 2048 * 8)
YT  = _alloc(160 * 2048 * 8)
MODP = _alloc(4 * 3840 * 4)
MODF = _alloc(6 * 640 * 4)
CS3P = _alloc(2 * 1792 * 4)
CS1P = _alloc(2 * 1792 * 4)
XA = _alloc(S * D * 2)
HB = _alloc(S * D * 2)
H1 = _alloc(S * D * 2)
X1 = _alloc(S * D * 2)
H3 = _alloc(S * F * 2)
ST = _alloc(S * 16 * 2 * 4)
W1P = _alloc(40 * 20 * 1024)
W2P = _alloc(40 * 20 * 1024)
W3P = _alloc(16 * 7 * 20 * 1024)
W4P = _alloc(40 * 54 * 1024)
WS_END = _off

import os
CK3 = int(os.environ.get("CK3", 2)); CK4 = int(os.environ.get("CK4", 2)); CK5 = int(os.environ.get("CK5", 3))
```

```python
import os, struct
import layout as L
SZ_SD = 2048 * 640 * 2
C0 = -2.0 * 0.7978845608028654 * 1.4426950408889634
C1 = C0 * 0.044715
def fhex(x):
    return "0x%08x" % struct.unpack("<I", struct.pack("<f", x))[0]
E = lambda n, d: int(os.environ.get(n, d))
STOP = E("STOP", 9)
PROF = E("PROF", 0)
NSLOT = 152
SMALL = NSLOT * 1024
YL = 132 * 1024
MODL = 116 * 1024

def ln_finish(k, s1, s2, t, n):
    k(f"""
    v_mul_f32 v{s1}, {fhex(1.0/n)}, v{s1}
    v_mul_f32 v{s2}, {fhex(1.0/n)}, v{s2}
    v_fma_f32 v{s2}, -v{s1}, v{s1}, v{s2}
    v_max_f32 v{s2}, 0, v{s2}
    """)
    k.round2(s1, s2, t)
    k(f"""
    v_add_f32 v{s2}, {fhex(1e-5)}, v{s2}
    v_cvt_pk_bf16_f32 v{t}, v{s2}, v{s2}
    v_lshlrev_b32 v{s2}, 16, v{t}
    v_sqrt_f32 v{s2}, v{s2}
    s_nop 0
    v_cvt_pk_bf16_f32 v{t}, v{s2}, v{s2}
    v_lshlrev_b32 v{s2}, 16, v{t}
    v_rcp_f32 v{s2}, v{s2}
    s_nop 0
    v_mul_f32 v{s1}, v{s1}, v{s2}
    v_sub_f32 v{s1}, 0, v{s1}
    """)

def reduce16(k, a, b):
    for ctl in ("quad_perm:[1,0,3,2]", "quad_perm:[2,3,0,1]", "row_half_mirror", "row_mirror"):
        k("s_nop 0")
        k(f"v_add_f32_dpp v{a}, v{a}, v{a} {ctl} row_mask:0xf bank_mask:0xf")
        k(f"v_add_f32_dpp v{b}, v{b}, v{b} {ctl} row_mask:0xf bank_mask:0xf")

def reduce_g(k, a, b, t):
    for sw in ("v_permlane32_swap_b32", "v_permlane16_swap_b32"):
        k(f"""
        v_mov_b32 v{t}, v{a}
        v_mov_b32 v{t+1}, v{b}
        s_nop 1
        {sw} v{t}, v{a}
        {sw} v{t+1}, v{b}
        s_nop 0
        v_add_f32 v{a}, v{a}, v{t}
        v_add_f32 v{b}, v{b}, v{t+1}
        """)

def gelu4pk(k, vr, z, t, vc):
    for i in (0, 2):
        k(f"v_pk_mul_f32 {vr(t+i,2)}, {vr(z+i,2)}, {vr(z+i,2)}")
    for i in (0, 2):
        k(f"v_pk_fma_f32 {vr(t+i,2)}, {vr(t+i,2)}, {vr(vc,2)}, {vr(vc,2)} op_sel:[0,0,1] op_sel_hi:[1,0,1]")
    for i in (0, 2):
        k(f"v_pk_mul_f32 {vr(t+i,2)}, {vr(t+i,2)}, {vr(z+i,2)}")
    for i in range(4):
        k(f"v_exp_f32 v{t+i}, v{t+i}")
    for i in range(4):
        k(f"v_add_f32 v{t+i}, 1.0, v{t+i}")
    for i in range(4):
        k(f"v_rcp_f32 v{t+i}, v{t+i}")
    k("s_nop 0")
    for i in (0, 2):
        k(f"v_pk_mul_f32 {vr(z+i,2)}, {vr(z+i,2)}, {vr(t+i,2)}")

def ln_gelu_multi(k, vr, tiles, t, vc):
    n = len(tiles)
    T = lambda i: t + 4 * i
    for i, (z, cs, rs) in enumerate(tiles):
        for h in (0, 2):
            k(f"v_pk_mul_f32 {vr(T(i)+h,2)}, {vr(cs+h,2)}, {vr(rs,2)} op_sel_hi:[1,0]")
    for i, (z, cs, rs) in enumerate(tiles):
        for h in (0, 2):
            k(f"v_pk_fma_f32 {vr(z+h,2)}, {vr(z+h,2)}, {vr(rs,2)}, {vr(T(i)+h,2)} op_sel:[0,1,0] op_sel_hi:[1,1,1]")
    for i, (z, cs, rs) in enumerate(tiles):
        for h in (0, 2):
            k(f"v_pk_mul_f32 {vr(T(i)+h,2)}, {vr(z+h,2)}, {vr(z+h,2)}")
    for i, (z, cs, rs) in enumerate(tiles):
        for h in (0, 2):
            k(f"v_pk_fma_f32 {vr(T(i)+h,2)}, {vr(T(i)+h,2)}, {vr(vc,2)}, {vr(vc,2)} op_sel:[0,0,1] op_sel_hi:[1,0,1]")
    for i, (z, cs, rs) in enumerate(tiles):
        for h in (0, 2):
            k(f"v_pk_mul_f32 {vr(T(i)+h,2)}, {vr(T(i)+h,2)}, {vr(z+h,2)}")
    for i in range(n):
        for r in range(4): k(f"v_exp_f32 v{T(i)+r}, v{T(i)+r}")
    for i in range(n):
        for h in (0, 2): k(f"v_pk_add_f32 {vr(T(i)+h,2)}, {vr(T(i)+h,2)}, 1.0 op_sel_hi:[1,0]")
    for i in range(n):
        for r in range(4): k(f"v_rcp_f32 v{T(i)+r}, v{T(i)+r}")
    k("s_nop 0")
    for i, (z, cs, rs) in enumerate(tiles):
        for h in (0, 2):
            k(f"v_pk_mul_f32 {vr(z+h,2)}, {vr(z+h,2)}, {vr(T(i)+h,2)}")

def pack_tiles(k, zs):
    out = []
    i = 0
    prs = []
    while i < len(zs):
        if i + 1 < len(zs):
            a, b = zs[i], zs[i + 1]
            k(f"v_cvt_pk_bf16_f32 v{a}, v{a}, v{a+1}")
            k(f"v_cvt_pk_bf16_f32 v{a+1}, v{a+2}, v{a+3}")
            k(f"v_cvt_pk_bf16_f32 v{a+2}, v{b}, v{b+1}")
            k(f"v_cvt_pk_bf16_f32 v{a+3}, v{b+2}, v{b+3}")
            prs.append(a); out.append((a, 4, i)); i += 2
        else:
            a = zs[i]
            k(f"v_cvt_pk_bf16_f32 v{a}, v{a}, v{a+1}")
            k(f"v_cvt_pk_bf16_f32 v{a+1}, v{a+2}, v{a+3}")
            out.append((a, 2, i)); i += 1
    return out, prs

def swap_pairs(k, prs):
    k("s_nop 1")
    for a in prs:
        k(f"v_permlane16_swap_b32 v{a}, v{a+2}")
        k(f"v_permlane16_swap_b32 v{a+1}, v{a+3}")

class VQ:
    def __init__(self, k): self.k = k; self.q = []
    def op(self, text, tag=None):
        self.k(text); self.q.append(tag)
    def wait(self, tag):
        idx = [i for i, t in enumerate(self.q) if t == tag]
        if not idx: return
        n = len(self.q) - 1 - idx[-1]
        self.k(f"s_waitcnt vmcnt({min(n, 63)})")
        self.q = self.q[idx[-1] + 1:] if n <= 63 else self.q[-63:]
    def drain(self):
        self.k("s_waitcnt vmcnt(0)"); self.q = []
    def reset(self): self.q = []

def gen_chain(Kern, vr):
    k = Kern("k2_kernel", 256, 256, 163840, vgpr=256, sgpr=102, agpr=256)
    ar = lambda a, n: f"a[{a}:{a+n-1}]"
    vq = VQ(k)
    end = "k2_end"
    WS, QS, YS, OS = "s[12:15]", "s[16:19]", "s[20:23]", "s[24:27]"
    nst = [0]
    def stamp():
        if PROF:
            i = nst[0]; nst[0] += 1
            if PROF == 3:
                k(f"s_memtime s[{56+2*i}:{57+2*i}]"); nst[0] += 1
                k(f"s_memrealtime s[{58+2*i}:{59+2*i}]")
            else:
                k(f"{'s_memrealtime' if PROF == 2 else 's_memtime'} s[{56+2*i}:{57+2*i}]")
    def finish(label_end=True):
        k("s_waitcnt vmcnt(0) lgkmcnt(0)")
        if PROF == 2:
            k(f"""
            s_lshl_b32 s41, s2, 2
            s_add_u32 s41, s41, s30
            s_lshl_b32 s41, s41, 7
            s_add_u32 s41, s41, {48 << 20}
            v_mov_b32 v1, 0
            s_mov_b64 exec, 1
            """)
            for i in range(nst[0]):
                k(f"v_mov_b32 v2, s{56+2*i}")
                k(f"buffer_store_dword v2, v1, {WS}, s41 offen offset:{4*i}")
            k(f"v_mov_b32 v2, {nst[0]}")
            k(f"buffer_store_dword v2, v1, {WS}, s41 offen offset:124")
        elif PROF:
            l = k.newlab("prof")
            k(f"""
            s_cmp_lg_u32 s2, {E("PROFWG", 0)}
            s_cbranch_scc1 {l}
            s_cmp_lg_u32 s30, {E("PROFW", 0)}
            s_cbranch_scc1 {l}
            s_load_dwordx2 s[4:5], s[0:1], 112
            s_waitcnt lgkmcnt(0)
            s_mov_b32 s6, 256
            s_mov_b32 s7, 0x00020000
            v_mov_b32 v1, 0
            s_mov_b64 exec, 1
            """)
            for i in range(1, nst[0]):
                k(f"s_sub_u32 s41, s{56+2*i}, s{56 + (2 if (PROF == 3 and i % 2) else 0)}")
                k(f"v_mov_b32 v2, s41")
                k(f"buffer_store_dword v2, v1, s[4:7], 0 offen offset:{4*(i-1)}")
            k.lab(l)
        k("s_endpgm")

    k(f"""
    s_cmp_ge_u32 s2, 256
    s_cbranch_scc1 {end}
    s_load_dwordx2 s[4:5], s[0:1], 0
    s_load_dwordx2 s[6:7], s[0:1], 104
    s_load_dwordx2 s[8:9], s[0:1], 120
    s_getreg_b32 s42, hwreg(HW_REG_XCC_ID, 0, 4)
    v_lshrrev_b32 v2, 6, v0
    v_and_b32 v1, 63, v0
    v_readfirstlane_b32 s30, v2          ; wave
    s_and_b32 s28, s2, 7                 ; group
    s_lshr_b32 s29, s2, 3                ; member
    s_lshr_b32 s32, s29, 3
    s_and_b32 s33, s29, 7                ; j
    s_lshr_b32 s34, s29, 4
    s_and_b32 s35, s29, 15               ; j3
    s_mul_i32 s36, s28, {L.GS}
    s_add_u32 s36, s36, {L.GRP}
    s_lshl_b32 s37, s28, 13
    s_add_u32 s37, s37, {L.FLAGS}
    s_add_u32 s42, s42, 1
    s_mov_b32 s31, 0
    v_lshlrev_b32 v2, 4, v1              ; lane*16
    v_lshrrev_b32 v3, 4, v1              ; g
    v_and_b32 v4, 15, v1                 ; m
    v_lshrrev_b32 v8, 1, v3
    v_lshl_add_u32 v8, v8, 4, v4
    v_and_b32 v9, 1, v3
    v_lshl_add_u32 v8, v8, 1, v9
    v_lshlrev_b32 v8, 3, v8
    v_lshlrev_b32 v5, 7, v1
    v_and_b32 v9, 1, v3
    v_lshlrev_b32 v9, 1, v9
    v_lshrrev_b32 v10, 1, v3
    v_or_b32 v9, v9, v10
    v_lshlrev_b32 v9, 8, v9
    v_lshl_add_u32 v254, v4, 4, v9
    s_waitcnt lgkmcnt(0)
    """)
    stamp()
    k.srd(12, 8, 0x10000000); k.srd(16, 4, SZ_SD); k.srd(24, 6, SZ_SD)
    l = k.newlab()
    k(f"""
    s_cmp_lg_u32 s30, 0
    s_cbranch_scc1 {l}
    s_lshl_b32 s41, s29, 2
    s_add_u32 s41, s41, s37
    v_mov_b32 v9, s42
    v_mov_b32 v10, {L.F_XID}
    s_mov_b64 exec, 1
    buffer_store_dword v9, v10, {WS}, s41 offen sc1
    s_mov_b64 exec, -1
    """)
    k.lab(l)

    class Dma:
        def __init__(self, p0, n, srcbase_s, srcoff, sm, so):
            self.i = 0; self.n = n; self.sm = sm; self.so = so
            slot0 = p0 % NSLOT
            assert slot0 + 4 * n <= NSLOT
            k(f"""
            s_mul_i32 s{sm}, s30, {n*1024}
            s_add_u32 s{so}, s{sm}, s{srcbase_s}
            s_add_u32 s{so}, s{so}, {srcoff}
            s_add_u32 s{sm}, s{sm}, {slot0*1024}
            """)
        def left(self): return self.n - self.i
        def one(self, tag="w"):
            o = (self.i % 4) * 1024
            k(f"s_mov_b32 m0, s{self.sm}")
            k("s_nop 0")
            if not E("NOWD", 0): vq.op(f"buffer_load_dwordx4 v2, {WS}, s{self.so} offen offset:{o} lds", tag)
            self.i += 1
            if self.i % 4 == 0 and self.i < self.n:
                k(f"s_add_u32 s{self.sm}, s{self.sm}, 4096")
                k(f"s_add_u32 s{self.so}, s{self.so}, 4096")
        def some(self, n, tag="w"):
            for _ in range(min(n, self.left())): self.one(tag)
    class W4:
        def __init__(self): self.i = 0
        def left(self): return 64 - self.i
        def one(self, tag="w4"):
            i = self.i
            if not E("NOW4", 0): vq.op(f"buffer_load_dwordx4 {ar(4*i,4)}, v2, {WS}, s40 offen offset:{(i%4)*1024}", tag)
            self.i += 1
            if self.i % 4 == 0: k("s_add_u32 s40, s40, 4096")
            if self.i == 60:
                k("s_cmp_eq_u32 s30, 3")
                k(f"s_cselect_b32 s41, {60*1024}, 0")
                k("s_sub_u32 s40, s40, s41")
        def some(self, n):
            for _ in range(min(n, self.left())): self.one()
    k(f"""
    s_mul_i32 s44, s33, {100*1024}
    s_mul_i32 s45, s35, {140*1024}
    s_add_u32 s45, s45, {L.W3P}
    s_mul_i32 s40, s33, {280*1024}
    s_mul_i32 s41, s30, {70*1024}
    s_add_u32 s40, s40, s41
    s_add_u32 s40, s40, {L.W4P}
    """)
    w4 = W4()
    def small_vectors():
        lsm1 = k.newlab("sm"); lsm2 = k.newlab("sm"); lsm3 = k.newlab("sm")
        k(f"""
        s_cmp_eq_u32 s30, 1
        s_cbranch_scc1 {lsm1}
        s_cmp_ge_u32 s30, 2
        s_cbranch_scc1 {lsm2}
        s_mul_i32 s41, s33, 320
        s_add_u32 s41, s41, {L.CS1P}
        s_mov_b32 m0, {SMALL}
        s_mov_b64 exec, 0xfffff
        buffer_load_dwordx4 v2, {WS}, s41 offen lds
        s_add_u32 s41, s41, {1792*4}
        s_mov_b32 m0, {SMALL + 512}
        s_nop 0
        buffer_load_dwordx4 v2, {WS}, s41 offen lds
        s_branch {lsm3}
        """)
        k.lab(lsm1)
        k(f"""
        s_mul_i32 s41, s35, 448
        s_add_u32 s41, s41, {L.CS3P}
        s_mov_b32 m0, {SMALL + 1024}
        s_mov_b64 exec, 0xfffffff
        buffer_load_dwordx4 v2, {WS}, s41 offen lds
        s_add_u32 s41, s41, {1792*4}
        s_mov_b32 m0, {SMALL + 1536}
        s_nop 0
        buffer_load_dwordx4 v2, {WS}, s41 offen lds
        s_branch {lsm3}
        """)
        k.lab(lsm2)
        k(f"""
        s_mul_i32 s41, s33, 320
        s_add_u32 s41, s41, {L.MODF + 5*2560}
        s_mov_b32 m0, {SMALL + 2048}
        s_mov_b64 exec, 0xfffff
        buffer_load_dwordx4 v2, {WS}, s41 offen lds
        """)
        k.lab(lsm3)
        k("s_mov_b64 exec, -1")
        vq.q += ['sm']
    k(f"""
    s_lshl_b32 s46, s32, 2
    s_add_u32 s46, s46, s30
    s_mul_i32 s47, s46, 20480
    s_mul_i32 s41, s33, 2560
    s_add_u32 s47, s47, s41
    s_add_u32 s54, s47, s36
    s_lshl_b32 s55, s46, 7
    s_add_u32 s55, s55, s37
    s_mul_i32 s22, s28, 327680
    s_add_u32 s22, s22, s47
    s_add_u32 s22, s22, {L.KVR}
    """)
    def touch_h1s():
        k(f"s_add_u32 s47, s54, {L.G_H1S}")
        k("s_mov_b64 exec, 0xfffff")
        touch(47, 188)
        k("s_mov_b64 exec, -1")

    def poll(sbase, thr=None):
        lp = k.newlab("poll"); ld = k.newlab("go")
        k(f"s_mov_b32 s43, {E('SPIN', 200000)}")
        k.lab(lp)
        k(f"""
        buffer_load_dword v9, v7, {WS}, s{sbase} offen sc1
        s_waitcnt vmcnt(0)
        {"v_cmp_ne_u32 vcc, 0, v9" if thr is None else f"v_cmp_le_u32 vcc, v{thr}, v9"}
        s_sub_u32 s43, s43, 1
        s_cmp_eq_u64 vcc, -1
        s_cbranch_scc1 {ld}
        s_cmp_lg_u32 s43, 0
        s_cbranch_scc1 {lp}
        """)
        k.lab(ld)
        vq.reset()
    def xid_load(reg):
        k(f"v_and_b32 v{reg+1}, 31, v1")
        k(f"v_lshlrev_b32 v{reg+1}, 2, v{reg+1}")
        k(f"s_add_u32 s41, s37, {L.F_XID}")
        vq.op(f"buffer_load_dword v{reg}, v{reg+1}, {WS}, s41 offen sc1", "xid")
    def xid_eval(reg):
        vq.wait("xid")
        lp = k.newlab("xp"); ld = k.newlab("xd")
        k(f"s_mov_b32 s43, {E('SPIN', 200000)}")
        k.lab(lp)
        k(f"""
        v_cmp_ne_u32 vcc, 0, v{reg}
        s_sub_u32 s43, s43, 1
        s_cmp_eq_u64 vcc, -1
        s_cbranch_scc1 {ld}
        s_cmp_eq_u32 s43, 0
        s_cbranch_scc1 {ld}
        s_add_u32 s41, s37, {L.F_XID}
        buffer_load_dword v{reg}, v{reg+1}, {WS}, s41 offen sc1
        s_waitcnt vmcnt(0)
        s_branch {lp}
        """)
        k.lab(ld)
        k(f"""
        v_cmp_eq_u32 vcc, s42, v{reg}
        s_nop 1
        s_cmp_eq_u64 vcc, -1
        s_cselect_b32 s31, 1, 0
        """)
        if E("SLOW", 0): k("s_mov_b32 s31, 0")
    def stores(lst, flag_s, flag_off):
        ls = k.newlab("slow"); lj = k.newlab("sent")
        k(f"s_cmp_eq_u32 s31, 0")
        k(f"s_cbranch_scc1 {ls}")
        for sc in ("", " sc1"):
            dsc = " sc1" if E("MIXED", 0) else sc
            for t in lst:
                lines = t.strip("\n").split("\n")
                k("\n".join((x + dsc if x.strip().startswith("buffer_store") else x) for x in lines))
            k(f"""
            s_waitcnt vmcnt(0)
            v_mov_b32 v9, 1
            v_mov_b32 v10, {flag_off}
            s_mov_b64 exec, 1
            buffer_store_dword v9, v10, {WS}, s{flag_s} offen{sc}
            s_mov_b64 exec, -1
            """)
            if sc == "":
                k(f"s_branch {lj}")
                k.lab(ls)
        k.lab(lj)
        vq.reset(); vq.q.append("flag")
    def touch(sreg, dst=9):
        if E("NOTOUCH", 1): return
        k(f"s_cmp_eq_u32 s31, 0")
        k(f"s_cselect_b32 s41, {L.W1P}, s{sreg}")
        vq.op(f"buffer_load_dword v{dst}, v5, {WS}, s41 offen", "touch")

    XR, YR, XF, MT, T = 16, 36, 56, 96, 120
    w1 = Dma(0, 25, 44, L.W1P, 38, 39)
    nob0 = k.newlab("nob0"); join0 = k.newlab("join0")
    k(f"""
    s_cmp_ge_u32 s29, 18
    s_cbranch_scc1 {nob0}
    s_lshl_b32 s46, s28, 8
    s_lshl_b32 s47, s29, 4
    s_add_u32 s46, s46, s47
    s_sub_u32 s46, s46, 16               ; global row of tile row 0 (signed)
    s_lshl_b32 s47, s30, 2
    s_add_u32 s47, s47, s46              ; first row of the wave
    v_add_u32 v11, s47, v3               ; global row
    v_mul_lo_u32 v6, v11, s48
    """.replace("v_mul_lo_u32 v6, v11, s48", "s_movk_i32 s48, 1280\n    v_mul_lo_u32 v6, v11, s48"))
    k("v_lshl_add_u32 v6, v4, 4, v6")
    for t in range(5):
        vq.op(f"buffer_load_dwordx4 {vr(XR+4*t,4)}, v6, {QS}, 0 offen offset:{256*t}", "q")
    if E("PROFQ", 0): stamp()
    k(f"""
    s_mul_i32 s47, s29, 20480
    s_mul_i32 s48, s30, 5120
    s_add_u32 s47, s47, s48
    s_add_u32 s47, s47, s36
    v_add_u32 v12, s47, v2
    s_add_u32 s48, s48, {YL}
    s_mov_b32 m0, s48
    s_nop 0
    """)
    for i in range(4):
        vq.op(f"buffer_load_dwordx4 v12, {WS}, 0 offen offset:{1024*i} lds", "y")
    k(f"""
    s_add_u32 s48, s48, 4096
    s_mov_b32 m0, s48
    s_movk_i32 s47, 4096
    """)
    vq.op(f"buffer_load_dwordx4 v12, {WS}, s47 offen lds", "y")
    k(f"""
    s_lshl_b32 s47, s30, 12
    s_add_u32 s48, s47, {MODL}
    """)
    for i in range(4):
        k(f"""
        s_add_u32 s41, s47, {1024*i}
        s_min_u32 s41, s41, {15360 - 1024}
        s_add_u32 s41, s41, {L.MODF}
        s_add_u32 m0, s48, {1024*i}
        s_nop 0
        """)
        vq.op(f"buffer_load_dwordx4 v2, {WS}, s41 offen lds", "y")
    w4_b0 = E("NW40", 0)
    k(f"""
    v_lshl_add_u32 v15, s30, 2, v3
    v_lshrrev_b32 v7, 1, v15
    v_and_b32 v9, 7, v4
    v_xor_b32 v7, v7, v9
    v_and_b32 v9, 1, v15
    v_lshl_add_u32 v7, v7, 1, v9
    v_lshlrev_b32 v7, 3, v7
    v_lshl_add_u32 v7, v4, 8, v7
    v_add_u32 v7, {YL}, v7
    v_lshlrev_b32 v10, 5, v4
    v_add_u32 v10, {MODL}, v10
    v_lshrrev_b32 v12, 2, v4
    v_and_b32 v13, 3, v4
    v_lshl_add_u32 v13, v13, 4, v15
    v_lshlrev_b32 v13, 4, v13
    v_lshl_add_u32 v6, v12, 10, v13
    s_movk_i32 s48, 2048
    v_cmp_gt_u32 {"s[50:51]"}, s48, v11
    """)
    S1, S2, N1, N2, ONE = T, T + 1, T + 4, T + 5, T + 6
    k(f"""
    v_mov_b32 v{S1}, 0
    v_mov_b32 v{S2}, 0
    v_mov_b32 v{N1}, 0
    v_mov_b32 v{N2}, 0
    v_mov_b32 v{ONE}, 0x3f803f80
    """)
    vq.wait("q")
    stamp()
    for d in range(20):
        k(f"v_dot2_f32_bf16 v{S1}, v{XR+d}, v{ONE}, v{S1}")
        k(f"v_dot2_f32_bf16 v{S2}, v{XR+d}, v{XR+d}, v{S2}")
        k.unpack(XF + 2*d, XF + 2*d + 1, XR + d)
        if d == 2: small_vectors()
        if d >= 4 and d % 2 == 0 and w1.i < E("NW1A", 8): w1.one()
    k("s_nop 1")
    reduce16(k, S1, S2)
    ln_finish(k, S1, S2, T + 2, 640)
    if E("PROFB0", 0): stamp()
    vq.wait("y")
    if E("PROFB0", 0): stamp()
    k("s_barrier")
    for t in range(5):
        k(f"ds_read_b64 {vr(YR+4*t,2)}, v7 offset:{t*4096}")
        k(f"ds_read_b64 {vr(YR+4*t+2,2)}, v7 offset:{t*4096+128}")
    BC = "op_sel:[0,1,0] op_sel_hi:[1,1,0]"
    TP, TY, MT2 = 144, 152, 160
    MTB = lambda t: (MT if t % 2 == 0 else MT2)
    def modread(t, vecs):
        for vi, vec in enumerate(vecs):
            k(f"ds_read_b128 {vr(MTB(t)+8*vi,4)}, v10 offset:{vec*2560+t*512}")
            k(f"ds_read_b128 {vr(MTB(t)+8*vi+4,4)}, v10 offset:{vec*2560+t*512+16}")
    modread(0, (1, 0, 2))
    for t in range(5):
        M = MTB(t)
        if t < 4:
            modread(t + 1, (1, 0, 2)); k("s_waitcnt lgkmcnt(6)")
        else:
            k("s_waitcnt lgkmcnt(0)")
        D4 = range(4)
        e = lambda d: XF + 8*t + 2*d
        for _ in range((E("NW1B", 0) + 4) // 5):
            if w1.i < E("NW1A", 8) + E("NW1B", 0): w1.one()
        for d in D4: k.unpack(TY + 2*d, TY + 2*d + 1, YR + 4*t + d)
        for d in D4: k(f"v_pk_fma_f32 {vr(TP+2*d,2)}, {vr(e(d),2)}, {vr(S1,2)}, {vr(S1,2)} {BC}")
        for d in D4: k(f"v_pk_fma_f32 {vr(TP+2*d,2)}, {vr(TP+2*d,2)}, {vr(M+2*d,2)}, {vr(M+8+2*d,2)}")
        for _ in range((w4_b0 + 4) // 5):
            if w4.i < w4_b0: w4.one()
        for d in D4: k(f"v_pk_mul_f32 {vr(TP+2*d,2)}, {vr(TP+2*d,2)}, {vr(TY+2*d,2)}")
        for d in D4: k(f"v_pk_fma_f32 {vr(e(d),2)}, {vr(M+16+2*d,2)}, {vr(TP+2*d,2)}, {vr(e(d),2)}")
        for d in D4: k(f"v_cvt_pk_bf16_f32 v{XR+4*t+d}, v{e(d)}, v{e(d)+1}")
        for d in D4:
            if E("XARND", 0):
                k(f"v_lshlrev_b32 v{e(d)}, 16, v{XR+4*t+d}")
                k(f"v_and_b32 v{e(d)+1}, 0xffff0000, v{XR+4*t+d}")
            k(f"v_dot2_f32_bf16 v{N1}, v{XR+4*t+d}, v{ONE}, v{N1}")
            k(f"v_dot2_f32_bf16 v{N2}, v{XR+4*t+d}, v{XR+4*t+d}, v{N2}")
    if E("PROFB0", 0): stamp()
    xid_load(190)
    modread(0, (4, 3))
    k("s_nop 1")
    reduce16(k, N1, N2)
    ln_finish(k, N1, N2, T + 2, 640)
    k(f"v_mov_b32 v{S1}, 0")
    k(f"v_mov_b32 v{S2}, 0")
    for t in range(5):
        M = MTB(t)
        if t < 4:
            modread(t + 1, (4, 3)); k("s_waitcnt lgkmcnt(4)")
        else:
            k("s_waitcnt lgkmcnt(0)")
        e = lambda d: XF + 8*t + 2*d
        for d in range(4): k(f"v_pk_fma_f32 {vr(e(d),2)}, {vr(e(d),2)}, {vr(N1,2)}, {vr(N1,2)} {BC}")
        for d in range(4): k(f"v_pk_fma_f32 {vr(e(d),2)}, {vr(e(d),2)}, {vr(M+2*d,2)}, {vr(M+8+2*d,2)}")
        for d in range(4): k(f"v_cvt_pk_bf16_f32 v{YR+4*t+d}, v{e(d)}, v{e(d)+1}")
        for d in range(4):
            k(f"v_dot2_f32_bf16 v{S1}, v{YR+4*t+d}, v{ONE}, v{S1}")
            k(f"v_dot2_f32_bf16 v{S2}, v{YR+4*t+d}, v{YR+4*t+d}, v{S2}")
    k("s_nop 1")
    reduce16(k, S1, S2)
    ln_finish(k, S1, S2, T + 2, 640)
    k(f"""
    v_cndmask_b32 v{S1}, 0, v{S1}, s[50:51]
    v_cndmask_b32 v{S2}, 0, v{S2}, s[50:51]
    s_mul_i32 s46, s29, 20480
    s_add_u32 s46, s46, s36
    s_add_u32 s47, s46, {L.G_XA - 20480}
    s_lshl_b32 s48, s29, 7
    s_add_u32 s48, s48, s36
    s_add_u32 s48, s48, {L.G_ST3}
    v_lshlrev_b32 v12, 3, v15            ; m*8
    s_lshl_b32 s49, s29, 7
    s_add_u32 s49, s49, s37
    s_lshl_b32 s41, s30, 2
    s_add_u32 s49, s49, s41
    """)
    if E("PROFB0", 0): stamp()
    xid_eval(190)
    TL = MODL
    TL = 112 * 1024
    k(f"""
    s_barrier
    v_and_b32 v9, 7, v4
    v_xor_b32 v9, v15, v9                ; m ^ (c&7)
    v_and_b32 v10, 3, v4
    v_lshl_add_u32 v9, v10, 4, v9
    v_lshrrev_b32 v10, 2, v4
    v_lshl_add_u32 v9, v10, 6, v9
    v_lshlrev_b32 v9, 4, v9
    v_add_u32 v9, {TL}, v9
    """)
    for t in range(5):
        k(f"ds_write_b128 v9, {vr(YR+4*t,4)} offset:{4096*t}")
        k(f"ds_write_b128 v9, {vr(XR+4*t,4)} offset:{20480+4096*t}")
    k(f"""
    v_xor_b32 v9, v4, v3
    v_xor_b32 v10, 4, v9
    v_lshl_add_u32 v9, v3, 4, v9
    v_lshl_add_u32 v10, v3, 4, v10
    s_mul_i32 s41, s30, 5120
    s_add_u32 s41, s41, {TL}
    v_lshl_add_u32 v9, v9, 4, s41
    v_lshl_add_u32 v10, v10, 4, s41
    s_cmp_eq_u32 s30, 1
    s_cselect_b32 s41, 1, 0
    s_cmp_eq_u32 s30, 3
    s_cselect_b32 s41, 1, s41
    s_cmp_eq_u32 s41, 1
    v_mov_b32 v11, v9
    s_cbranch_scc0 {"k2_noswap"}
    v_mov_b32 v9, v10
    v_mov_b32 v10, v11
    """)
    k.lab("k2_noswap")
    k(f"""
    s_mul_i32 s41, s30, 5120
    s_add_u32 s46, s46, s41
    s_add_u32 s47, s47, s41
    s_waitcnt lgkmcnt(0)
    s_barrier
    """)
    for i in range(5):
        k(f"ds_read_b128 {vr(YR+4*i,4)}, v{9 + (i & 1)} offset:{1024*i}")
    XAR = 220
    for i in range(5):
        k(f"ds_read_b128 {vr(XAR+4*i,4)}, v{9 + (i & 1)} offset:{20480+1024*i}")
    k("s_add_u32 s52, s46, 4096")
    k(f"""
    s_sub_u32 s41, s29, 1
    s_cmp_lt_u32 s41, 16
    s_cselect_b32 s20, s47, 0x90000000
    """)
    def xa_block(sc):
        _U.n += 1
        lab = f"k2_noxa{_U.n}"
        k(f"s_sub_u32 s41, s29, 1\ns_cmp_ge_u32 s41, 16\ns_cbranch_scc1 {lab}")
        for i in range(5):
            k(f"s_waitcnt lgkmcnt({4-i})")
            k(f"buffer_store_dwordx4 {vr(XR+4*i,4)}, v2, {WS}, s{47 if i < 4 else 53} offen offset:{(i%4)*1024}{sc}")
        k.lab(lab)
    class _U:
        n = 0
    ls = k.newlab("slow"); lj = k.newlab("sent")
    k("s_cmp_eq_u32 s31, 0"); k(f"s_cbranch_scc1 {ls}")
    for sc in ("", " sc1"):
        dsc = " sc1" if E("MIXED", 0) else sc
        for i in range(5):
            k(f"s_waitcnt lgkmcnt({9-i})")
            k(f"buffer_store_dwordx4 {vr(YR+4*i,4)}, v2, {WS}, s{46 if i < 4 else 52} offen offset:{(i%4)*1024}{dsc}")
        k(f"""
        v_cmp_eq_u32 vcc, 0, v4
        s_and_saveexec_b64 s[50:51], vcc
        buffer_store_dwordx2 {vr(S1,2)}, v12, {WS}, s48 offen{dsc}
        s_mov_b64 exec, -1
        """)
        k(f"""
        s_waitcnt vmcnt(0)
        v_mov_b32 v9, 1
        v_mov_b32 v10, {L.F_B0}
        s_mov_b64 exec, 1
        buffer_store_dword v9, v10, {WS}, s49 offen{sc}
        s_mov_b64 exec, -1
        """)
        if sc == "":
            k(f"s_branch {lj}"); k.lab(ls)
    k.lab(lj)
    k("s_mov_b32 s21, s49")
    stamp()
    i0 = w1.i
    w1.some(99)
    k(f"s_branch {join0}")
    w4_done_b0 = w4.i
    k.lab(nob0)
    k("s_mov_b32 s21, 0")
    k("s_mov_b32 s20, 0x90000000")
    w1.i = 0
    k(f"""
    s_mul_i32 s38, s30, {25*1024}
    s_add_u32 s39, s38, s44
    s_add_u32 s39, s39, {L.W1P}
    """)
    xid_load(190)
    xid_eval(190)
    small_vectors()
    w1.some(99)
    w4.i = 0
    w4.some(w4_done_b0)
    if E("OUTTLB", 1):
        k(f"""
        s_mul_i32 s47, s28, 327680
        s_lshl_b32 s48, s29, 13
        s_add_u32 s47, s47, s48
        v_mov_b32 v101, 0
        s_mov_b64 exec, 1
        buffer_load_dword v102, v101, {OS}, s47 offen
        s_mov_b64 exec, -1
        """)
    if E("K2TOUCH", 1):
        lt = k.newlab("nt")
        k(f"""
        s_cmp_eq_u32 s31, 0
        s_cbranch_scc1 {lt}
        s_sub_u32 s47, s29, 18
        s_lshl_b32 s47, s47, 2
        s_add_u32 s47, s47, s30              ; 0..55
        s_mul_i32 s48, s47, {6*1024}
        s_min_u32 s48, s48, {327680 - 6*1024}
        s_mul_i32 s49, s28, 327680
        s_add_u32 s48, s48, s49
        s_add_u32 s48, s48, {L.KVR}
        """)
        for i in range(6):
            k(f"buffer_load_dwordx4 {vr(64+4*i,4)}, v2, {WS}, s48 offen offset:{(i%4)*1024}")
            if i == 3: k("s_add_u32 s48, s48, 4096")
        k(f"""
        s_mul_i32 s48, s47, 384
        s_min_u32 s48, s48, {20480 - 384}
        s_add_u32 s48, s48, s36
        s_add_u32 s48, s48, {L.G_ST1}
        s_mov_b64 exec, 7
        buffer_load_dword v100, v5, {WS}, s48 offen
        s_mov_b64 exec, -1
        """)
        k.lab(lt)
    PFM = E("PFM", 0)
    if PFM:
        k(f"""
        s_sub_u32 s47, s29, 18
        s_lshl_b32 s47, s47, 2
        s_add_u32 s47, s47, s30              ; 0..55
        s_mul_i32 s48, s47, {15*1024}
        s_min_u32 s48, s48, {800*1024 - 15*1024}
        s_add_u32 s48, s48, {L.W2P}
        """)
        for _ in range(E("PFSL", 0)): k("s_sleep 127")
        for i in range(15):
            vq.op(f"buffer_load_dwordx4 {vr(64+4*(i%16),4)}, v2, {WS}, s48 offen offset:{(i%4)*1024}", "pf")
            if i % 4 == 3: k("s_add_u32 s48, s48, 4096")
    if PFM >= 2:
        k(f"""
        s_mul_i32 s48, s47, 15
        s_min_u32 s48, s48, {16*52 - 15}
        s_mul_i32 s49, s48, {65536 // 52 + 1}
        s_lshr_b32 s49, s49, 16
        s_mul_i32 s41, s49, 52
        s_sub_u32 s48, s48, s41
        s_mul_i32 s49, s49, 140
        s_add_u32 s48, s48, s49
        s_lshl_b32 s48, s48, 10
        s_add_u32 s48, s48, {L.W3P}
        """)
        for i in range(15):
            vq.op(f"buffer_load_dwordx4 {vr(128+4*(i%16),4)}, v2, {WS}, s48 offen offset:{(i%4)*1024}", "pf")
            if i % 4 == 3: k("s_add_u32 s48, s48, 4096")
    k.lab(join0)
    vq.reset()
    if STOP == 0:
        finish(); k.lab(end); k("s_endpgm"); return k

    GX, GW, GA, GT = 16, 96, 156, 176
    VC = 12
    XPRE = E("XPRE", 4)
    def gemm5(stage, pos0, inloop, xone, kbar=None):
        def wread(ks, nt):
            slot = (pos0 + ks * 5 + nt) % NSLOT
            o = slot * 1024
            k(f"ds_read_b128 {vr(GW+(ks%3)*20+4*nt,4)}, v{14 + (o >> 16)} offset:{o & 0xffff}")
        for ks in range(2):
            for nt in range(5): wread(ks, nt)
        xn = [XPRE]
        for ks in range(20):
            if E("PROFG1", 0) == stage and ks in (0, 1, 2, 5, 10, 15): stamp()
            vq.wait(f"x{ks}")
            k(f"s_waitcnt lgkmcnt({5 if ks < 19 else 0})")
            if ks == kbar: k("s_barrier")
            for nt in range(5):
                c = "0" if ks == 0 else vr(GA + 4*nt, 4)
                k(f"v_mfma_f32_16x16x32_bf16 {vr(GA+4*nt,4)}, {vr(GW+(ks%3)*20+4*nt,4)}, {vr(GX+4*ks,4)}, {c}")
                if ks + 2 < 20 and nt >= 1:
                    wread(ks + 2, nt - 1)
                    if nt == 4: wread(ks + 2, 4)
                if nt in (0, 3) and xn[0] < 20: xone(xn[0]); xn[0] += 1
                if nt in (1, 4): inloop(ks, nt)
    def lds_bases():
        k("v_mov_b32 v14, v2")
        k("v_add_u32 v15, 0x10000, v2")
    def fix_bank(text): return text.replace("v16 offset", "v11 offset")

    k(f"""
    s_lshl_b32 s46, s32, 2
    s_add_u32 s46, s46, s30              ; rt (0..15)
    s_lshr_b32 s47, s33, 1
    s_and_b32 s48, s47, 1
    s_lshr_b32 s47, s47, 1
    s_add_u32 s47, s47, 1                ; |shift|
    s_sub_u32 s49, 0, s47
    s_cmp_eq_u32 s48, 1
    s_cselect_b32 s47, s47, s49
    s_lshl_b32 s49, s46, 4
    s_add_u32 s49, s49, 16
    s_add_u32 s49, s49, s47
    v_add_u32 v9, s49, v4
    v_lshrrev_b32 v10, 4, v9
    v_mul_u32_u24 v6, 20480, v10
    v_and_b32 v10, 15, v9
    v_lshl_add_u32 v10, v3, 4, v10
    v_lshl_add_u32 v6, v10, 4, v6
    v_lshlrev_b32 v13, 3, v9
    s_add_u32 s49, s46, s48
    s_lshl_b32 s49, s49, 7
    s_add_u32 s49, s49, s37
    v_bfe_u32 v7, v1, 2, 1
    v_lshlrev_b32 v7, 7, v7
    v_and_b32 v9, 3, v1
    v_lshl_add_u32 v7, v9, 2, v7
    """)
    poll(49)
    stamp()
    def xload1(vaddr, sb, i):
        k(f"s_add_u32 s41, s{sb}, {(i//4)*4096}")
        vq.op(f"buffer_load_dwordx4 {vr(GX+4*i,4)}, v{vaddr}, {WS}, s41 offen offset:{(i%4)*1024} sc1", f"x{i}")
    for i in range(XPRE): xload1(6, 36, i)
    k(f"s_add_u32 s41, s36, {L.G_ST3}")
    vq.op(f"buffer_load_dwordx2 {vr(GT,2)}, v13, {WS}, s41 offen sc1", "st")
    k("v_mov_b32 v14, v2")
    k("v_add_u32 v15, 0x10000, v2")
    k("v_add_u32 v11, 0x20000, v2")
    k("s_barrier")
    w2a = Dma(100, 13, 44, L.W2P, 38, 39)
    def l2pf(base, i, per, first_s):
        if i == 0:
            k(f"""
            s_lshl_b32 s{first_s}, s29, 2
            s_add_u32 s{first_s}, s{first_s}, s30
            s_mul_i32 s{first_s}, s{first_s}, {per*128}
            s_add_u32 s{first_s}, s{first_s}, {base}
            """)
        n = min(64, per - 64 * i)
        if n < 64: k(f"s_mov_b64 exec, {hex((1 << n) - 1)}")
        vq.op(f"buffer_load_dword v{232+i}, v5, {WS}, s{first_s} offen", "pf")
        if n < 64: k("s_mov_b64 exec, -1")
        k(f"s_add_u32 s{first_s}, s{first_s}, 8192")
    st1 = {"w2b": None, "xa": 0}
    def g1_in(ks, nt):
        if ks < E("G1W", 8): return
        if st1["xa"] < 5 and nt == 4 and not E("XALATE", 0):
            i = st1["xa"]; st1["xa"] += 1
            k(f"s_add_u32 s41, s20, {1024*i}")
            vq.op(f"buffer_store_dwordx4 {vr(XAR+4*i,4)}, v2, {WS}, s41 offen sc1", "xas")
            return
        if w2a.left(): w2a.one(); return
        if st1["w2b"] is None: st1["w2b"] = Dma(152, 12, 44, L.W2P + 52 * 1024, 38, 39)
        if st1["w2b"].left(): st1["w2b"].one()
    n0 = len(k.L)
    gemm5(1, 0, g1_in, lambda i: xload1(6, 36, i), kbar=9)
    k.L[n0:] = [x.replace("v16 offset", "v11 offset") if "ds_read_b128" in x else x for x in k.L[n0:]]
    stamp()
    k("s_barrier")
    while st1["xa"] < 5:
        i = st1["xa"]; st1["xa"] += 1
        k(f"s_add_u32 s41, s20, {1024*i}")
        vq.op(f"buffer_store_dwordx4 {vr(XAR+4*i,4)}, v2, {WS}, s41 offen sc1", "xas")
    w2a.some(99)
    if st1["w2b"] is None: st1["w2b"] = Dma(152, 12, 44, L.W2P + 52 * 1024, 38, 39)
    st1["w2b"].some(99)
    w3a = Dma(200, 13, 45, 0, 38, 39)
    w3a.some(E("NW3A", 13))
    RS = GT
    CSR = GT + 4
    k(f"""
    v_lshlrev_b32 v9, 4, v3
    v_add_u32 v9, {SMALL}, v9
    v_mov_b32 v{VC}, {fhex(C1)}
    v_mov_b32 v{VC+1}, {fhex(C0)}
    """)
    for nt in range(5):
        k(f"ds_read_b128 {vr(CSR+4*nt,4)}, v9 offset:{64*nt}")
        k(f"ds_read_b128 {vr(CSR+20+4*nt,4)}, v9 offset:{512+64*nt}")
    vq.wait("st")
    TT = CSR + 40
    k("s_waitcnt lgkmcnt(0)")
    for nt in range(5):
        cs = CSR + 4*nt
        for i in (0, 2):
            k(f"v_pk_add_f32 {vr(cs+i,2)}, {vr(cs+i,2)}, {vr(cs+20+i,2)}")
    ln_gelu_multi(k, vr, [(GA + 4*nt, CSR + 4*nt, RS) for nt in range(5)], CSR + 20, VC)
    g1pk, prs = pack_tiles(k, [GA + 4*nt for nt in range(5)])
    swap_pairs(k, prs)
    k(f"""
    s_mov_b32 s46, s22
    s_lshl_b32 s41, s33, 2
    s_add_u32 s49, s55, s41              ; + j*4
    """)
    def tile_stores(lst, sb):
        return [(f"buffer_store_dwordx4 {vr(r,4)}, v254, {WS}, s{sb} offen offset:{512*i}" if n == 4 else f"buffer_store_dwordx2 {vr(r,2)}, v8, {WS}, s{sb} offen offset:{512*i}") for r, n, i in lst]
    stores(tile_stores(g1pk, 46), 49, L.F_G1)
    lxa = k.newlab("xas"); lxb = k.newlab("xas"); lxc = k.newlab("xas")
    k(f"""
    s_cmp_eq_u32 s21, 0
    s_cbranch_scc1 {lxc}
    v_mov_b32 v9, 3
    v_mov_b32 v10, {L.F_B0}
    s_mov_b64 exec, 1
    s_cmp_eq_u32 s31, 0
    s_cbranch_scc1 {lxa}
    buffer_store_dword v9, v10, {WS}, s21 offen
    s_branch {lxb}
    """)
    k.lab(lxa)
    k(f"buffer_store_dword v9, v10, {WS}, s21 offen sc1")
    k.lab(lxb)
    k("s_mov_b64 exec, -1")
    k.lab(lxc)
    stamp()
    if STOP == 1:
        finish(); k.lab(end); k("s_endpgm"); return k

    k(f"""
    s_sub_u32 s41, s55, s37
    s_lshr_b32 s41, s41, 7               ; rt
    v_bfe_u32 v7, v1, 3, 2               ; 0..3
    v_min_u32 v7, 2, v7
    v_add_u32 v7, s41, v7
    v_subrev_u32 v7, 1, v7
    v_max_i32 v7, 0, v7
    v_min_i32 v7, 15, v7
    v_lshlrev_b32 v7, 7, v7
    v_and_b32 v9, 7, v1
    v_lshl_add_u32 v7, v9, 2, v7
    s_add_u32 s49, s37, {L.F_G1}
    """)
    poll(49)
    stamp()
    k(f"""
    s_mul_i32 s41, s33, 2560
    s_sub_u32 s47, s22, s41
    """)
    k("s_mov_b32 s52, s47")
    for i in range(XPRE): xload1(2, 52, i)
    HBR = GT
    k(f"s_add_u32 s41, s54, {L.G_HBX + 20480}")
    def pair_loads(reg, sb, tag):
        vq.op(f"buffer_load_dwordx4 {vr(reg,4)}, v254, {WS}, s{sb} offen sc1", tag)
        vq.op(f"buffer_load_dwordx4 {vr(reg+4,4)}, v254, {WS}, s{sb} offen offset:1024 sc1", tag)
        vq.op(f"buffer_load_dwordx2 {vr(reg+8,2)}, v8, {WS}, s{sb} offen offset:2048 sc1", tag)
    def pair_src(reg, nt):
        return reg + (nt // 2) * 4 + (nt % 2) * 2
    HB_S = 48
    k("s_mov_b32 s48, s41")
    k(f"""
    s_sub_u32 s41, s55, s37              ; rt*128
    s_lshl_b32 s41, s41, 3               ; rt*1024
    s_add_u32 s46, s41, s36
    s_add_u32 s46, s46, {L.G_ST1}
    """)
    k("s_barrier")
    st2 = {"w3b": None, "hb": False}
    def g2_in(ks, nt):
        if ks < E("G2W", 8): return
        if not st2["hb"]:
            st2["hb"] = True; pair_loads(HBR, 48, "hb"); return
        if w3a.left(): w3a.one(); return
        if ks < 10: return
        if st2["w3b"] is None: st2["w3b"] = Dma(252, 12, 45, 52 * 1024, 38, 39)
        if st2["w3b"].left(): st2["w3b"].one()
    n0 = len(k.L)
    gemm5(2, 100, g2_in, lambda i: xload1(2, 52, i), kbar=9)
    k.L[n0:] = [x.replace("v16 offset", "v11 offset") if "ds_read_b128" in x else x for x in k.L[n0:]]
    stamp()
    k("s_barrier")
    w3a.some(99)
    if st2["w3b"] is None: st2["w3b"] = Dma(252, 12, 45, 52 * 1024, 38, 39)
    st2["w3b"].some(99)
    w3c = Dma(300, 1, 45, 100 * 1024, 38, 39)
    w3c.some(99)
    w3d = Dma(304, 9, 45, 104 * 1024, 38, 39)
    w3d.some(99)
    TT = GT + 12; ONE = GT + 20; A1 = GT + 22
    k(f"""
    v_mov_b32 v{ONE}, 0x3f803f80
    v_mov_b32 v{A1}, 0
    v_mov_b32 v{A1+1}, 0
    """)
    vq.wait("hb")
    swap_pairs(k, [HBR, HBR + 4])
    k("s_nop 1")
    U = GT + 24
    for nt in range(5):
        p = pair_src(HBR, nt)
        k.unpack(U + 4*nt, U + 4*nt + 1, p); k.unpack(U + 4*nt + 2, U + 4*nt + 3, p + 1)
    for nt in range(5):
        z = GA + 4*nt
        for i in (0, 2):
            k(f"v_pk_add_f32 {vr(z+i,2)}, {vr(z+i,2)}, {vr(U+4*nt+i,2)}")
    g2pk, prs = pack_tiles(k, [GA + 4*nt for nt in range(5)])
    for r, n, i in g2pk:
        for q_ in range(n):
            k(f"v_dot2_f32_bf16 v{A1}, v{r+q_}, v{ONE}, v{A1}")
            k(f"v_dot2_f32_bf16 v{A1+1}, v{r+q_}, v{r+q_}, v{A1+1}")
    k("s_nop 1")
    swap_pairs(k, prs)
    k("s_nop 2")
    reduce_g(k, A1, A1 + 1, TT)
    k(f"""
    s_add_u32 s47, s54, {L.G_X1}
    v_lshlrev_b32 v9, 6, v4              ; m*64
    s_lshl_b32 s41, s33, 3
    s_add_u32 s46, s46, s41
    s_lshl_b32 s41, s33, 2
    s_add_u32 s49, s55, s41
    v_mov_b32 v11, v9
    """)
    st = tile_stores(g2pk, 47)
    st.append(f"s_mov_b64 exec, 0xffff\nbuffer_store_dwordx2 {vr(A1,2)}, v11, {WS}, s46 offen\ns_mov_b64 exec, -1")
    stores(st, 49, L.F_G2)
    stamp()
    if STOP == 2:
        finish(); k.lab(end); k("s_endpgm"); return k

    A3, X3, W3, T3 = 16, 72, 160, 216
    XD = 11
    k(f"""
    s_lshl_b32 s46, s34, 3
    s_lshl_b32 s47, s30, 1
    s_add_u32 s46, s46, s47              ; rt0 = 8c + 2w
    s_lshl_b32 s49, s46, 7
    s_add_u32 s49, s49, {L.F_G2}
    v_bfe_u32 v7, v1, 3, 1
    v_lshlrev_b32 v7, 7, v7
    v_and_b32 v9, 7, v1
    v_lshl_add_u32 v7, v9, 2, v7
    v_add_u32 v7, s49, v7
    s_sub_u32 s49, s55, s37
    s_add_u32 s49, s49, {128 + L.F_B0}
    v_and_b32 v9, 3, v1
    v_lshlrev_b32 v9, 2, v9
    v_add_u32 v9, s49, v9                ; xa flags (value 3) of this wave's output tile
    v_and_b32 v10, 16, v1
    v_cmp_ne_u32 vcc, 0, v10
    v_mov_b32 v11, 1
    v_mov_b32 v10, 3
    v_cndmask_b32 v7, v7, v9, vcc
    v_cndmask_b32 v10, v11, v10, vcc
    """)
    poll(37, 10)
    stamp()
    k(f"""
    s_mul_i32 s47, s46, 20480
    s_add_u32 s47, s47, s36
    s_add_u32 s47, s47, {L.G_X1}
    s_add_u32 s48, s47, 20480
    """)
    def x3load(ks):
        for rt in range(2):
            k(f"s_add_u32 s41, s{47+rt}, {(ks//4)*4096}")
            vq.op(f"buffer_load_dwordx4 {vr(X3+((ks%XD)*2+rt)*4,4)}, v2, {WS}, s41 offen offset:{(ks%4)*1024} sc1", f"x{ks}")
    X3PRE = E("X3PRE", 3)
    for ks in range(X3PRE): x3load(ks)
    SP = T3
    k(f"""
    v_lshlrev_b32 v9, 6, v4
    v_lshl_add_u32 v9, v3, 4, v9
    s_lshl_b32 s41, s46, 10
    s_add_u32 s41, s41, s36
    s_add_u32 s41, s41, {L.G_ST1}
    """)
    for rt in range(2):
        vq.op(f"buffer_load_dwordx4 {vr(SP+4*rt,4)}, v9, {WS}, s41 offen offset:{1024*rt} sc1", "st")
    x3n = [X3PRE]
    k(f"""
    s_mul_i32 s52, s46, 55296
    s_mul_i32 s41, s35, 3584
    s_add_u32 s52, s52, s41
    s_add_u32 s52, s52, s36
    s_add_u32 s52, s52, {L.G_H3}
    s_add_u32 s53, s52, 55296
    """)
    EP = 228
    def g3_extra(ks):
        if ks in (10, 11) and not E("H3SC1", 1):
            k("s_mov_b64 exec, 0xfffffff")
            touch(52 + ks - 10, 248)
            k("s_mov_b64 exec, -1")
        if ks in (13, 14):
            off = L.G_XA if ks == 13 else L.G_X1
            k(f"s_add_u32 s48, s54, {off}")
            pair_loads(EP + (ks - 13) * 10, 48, "ep")
    k("s_barrier")
    def w3read(ks, nt):
        slot = (200 + ks * 7 + nt) % NSLOT
        o = slot * 1024
        a = {0: 14, 1: 15, 2: 11}[o >> 16]
        k(f"ds_read_b128 {vr(W3+(ks&1)*28+4*nt,4)}, v{a} offset:{o & 0xffff}")
    k("v_add_u32 v11, 0x20000, v2")
    RS3 = T3 + 8
    n0_ = len(k.L)
    for rt in range(2):
        s_ = SP + 4*rt
        k(f"v_add_f32 v{RS3+2*rt}, v{s_}, v{s_+2}")
        k(f"v_add_f32 v{RS3+2*rt+1}, v{s_+1}, v{s_+3}")
        reduce_g(k, RS3 + 2*rt, RS3 + 2*rt + 1, SP)
        ln_finish(k, RS3 + 2*rt, RS3 + 2*rt + 1, SP, 640)
    stat_ops = k.L[n0_:]; del k.L[n0_:]
    for nt in range(7): w3read(0, nt)
    for ks in range(20):
        assert x3n[0] > ks
        if not E("NOXW", 0): vq.wait(f"x{ks}")
        if E("PROFG3", 0) and ks in (1, 2, 5, 10, 15): stamp()
        for nt in range(7):
            if not E("NOLW", 0): k(f"s_waitcnt lgkmcnt({6 if ks < 19 else 6 - nt})")
            for rt in range(2):
                a = A3 + (rt*7 + nt) * 4
                c = "0" if ks == 0 else vr(a, 4)
                k(f"v_mfma_f32_16x16x32_bf16 {vr(a,4)}, {vr(W3+(ks&1)*28+4*nt,4)}, {vr(X3+((ks%XD)*2+rt)*4,4)}, {c}")
            if ks < 19 and not E("NODS", 0): w3read(ks + 1, nt)
            if nt in (1, 4) and x3n[0] < 20 and x3n[0] < ks + min(XD, E("X3D", 8)) and (nt == 1 or x3n[0] < ks + E("X3D", 8) - 1):
                x3load(x3n[0]); x3n[0] += 1
            if nt in (2, 3, 5) and ks >= E("W4K0", 1) and w4.left(): w4.one()
            if nt == 6 and ks >= E("W4K1", 12) and w4.left(): w4.one()
            if nt == 6: g3_extra(ks)
            if ks >= 5:
                for _ in range(2):
                    if stat_ops: k.L.append(stat_ops.pop(0))
    stamp()
    assert not stat_ops
    CS3 = X3
    TT = W3
    k(f"""
    v_lshlrev_b32 v9, 4, v3
    v_add_u32 v9, {SMALL + 1024}, v9
    v_mov_b32 v{VC}, {fhex(C1)}
    v_mov_b32 v{VC+1}, {fhex(C0)}
    """)
    for nt in range(7):
        k(f"ds_read_b128 {vr(CS3+4*nt,4)}, v9 offset:{64*nt}")
        k(f"ds_read_b128 {vr(CS3+28+4*nt,4)}, v9 offset:{512+64*nt}")
    k("s_waitcnt lgkmcnt(0)")
    for nt in range(7):
        cs = CS3 + 4*nt
        for i in (0, 2):
            k(f"v_pk_add_f32 {vr(cs+i,2)}, {vr(cs+i,2)}, {vr(cs+28+i,2)}")
    k(f"""
    s_lshl_b32 s49, s34, 2
    s_add_u32 s49, s49, s30
    s_lshl_b32 s49, s49, 7
    s_add_u32 s49, s49, s37
    s_lshl_b32 s41, s35, 2
    s_add_u32 s49, s49, s41
    """)
    def st_variants(emit):
        if E("MIXED", 0) or E("H3SC1", 1):
            emit(" sc1"); return
        ls = k.newlab("slow"); lj = k.newlab("sent")
        k("s_cmp_eq_u32 s31, 0"); k(f"s_cbranch_scc1 {ls}")
        emit(""); k(f"s_branch {lj}"); k.lab(ls); emit(" sc1"); k.lab(lj)
    for gi, n0_ in enumerate(range(0, 7, 2)):
        nts = list(range(n0_, min(n0_ + 2, 7)))
        tl = [(A3 + (rt*7 + nt) * 4, CS3 + 4*nt, RS3 + 2*rt) for nt in nts for rt in range(2)]
        ln_gelu_multi(k, vr, tl, TT, VC)
        pks = []
        prs_all = []
        for rt in range(2):
            pk, prs = pack_tiles(k, [A3 + (rt*7 + nt) * 4 for nt in nts])
            pks.append(pk[0]); prs_all += prs
        if prs_all: swap_pairs(k, prs_all)
        done = k.newlab("gs")
        if gi >= 2:
            k("s_cmp_eq_u32 s35, 15"); k(f"s_cbranch_scc1 {done}")
        if gi == 1:
            k("s_cmp_eq_u32 s35, 15")
            k("s_cselect_b32 s46, 0xffff, -1")
            k("s_mov_b32 exec_lo, s46"); k("s_mov_b32 exec_hi, s46")
        def emit(sc, pks=pks, n0_=n0_):
            for rt in range(2):
                r, n, i = pks[rt]
                if n == 4: k(f"buffer_store_dwordx4 {vr(r,4)}, v254, {WS}, s{52+rt} offen offset:{512*n0_}{sc}")
                else: k(f"buffer_store_dwordx2 {vr(r,2)}, v8, {WS}, s{52+rt} offen offset:{512*n0_}{sc}")
        st_variants(emit)
        if gi == 1: k("s_mov_b64 exec, -1")
        k.lab(done)
        if gi == 0: w4.some(99)
    ls = k.newlab("slow"); lj = k.newlab("sent")
    k(f"""
    s_waitcnt vmcnt(0)
    v_mov_b32 v9, 1
    v_mov_b32 v10, {L.F_G3}
    s_mov_b64 exec, 1
    s_cmp_eq_u32 s31, 0
    s_cbranch_scc1 {ls}
    buffer_store_dword v9, v10, {WS}, s49 offen
    s_branch {lj}
    """)
    k.lab(ls)
    k(f"buffer_store_dword v9, v10, {WS}, s49 offen sc1")
    k.lab(lj)
    k("s_mov_b64 exec, -1")
    vq.reset()
    stamp()
    if STOP == 3:
        finish(); k.lab(end); k("s_endpgm"); return k

    A4, X4, WX, T4 = 16, 96, 192, 216
    XD4 = 6
    for i in range(6):
        vq.op(f"buffer_load_dwordx4 {vr(WX+4*i,4)}, v2, {WS}, s40 offen offset:{(i%4)*1024}", "wx")
        if i == 3: k("s_add_u32 s40, s40, 4096")
    k(f"""
    s_and_b32 s41, s32, 1
    s_lshl_b32 s41, s41, 1
    s_lshl_b32 s49, s34, 2
    s_add_u32 s49, s49, s41
    s_lshl_b32 s49, s49, 7
    s_add_u32 s49, s49, s37
    s_lshl_b32 s41, s30, 4
    s_add_u32 s49, s49, s41              ; + 4w flags
    s_add_u32 s49, s49, {L.F_G3}
    v_bfe_u32 v7, v1, 2, 1
    v_lshlrev_b32 v7, 7, v7
    v_and_b32 v9, 3, v1
    v_lshl_add_u32 v7, v9, 2, v7
    """)
    for i in range(4):
        k(f"""
        s_add_u32 s41, s30, {i}
        s_and_b32 s41, s41, 3
        s_lshl_b32 s46, s32, 2
        s_add_u32 s41, s41, s46
        s_mul_i32 s41, s41, 55296
        s_mul_i32 s46, s30, {14*1024}
        s_add_u32 s41, s41, s46
        s_add_u32 s41, s41, s36
        s_add_u32 s{50+i}, s41, {L.G_H3}
        """)
    poll(49)
    stamp()
    def x4load(ks, guard=False):
        for i in range(4):
            k(f"s_add_u32 s41, s{50+i}, {(ks//4)*4096}")
            vq.op(f"buffer_load_dwordx4 {vr(X4+((ks%XD4)*4+i)*4,4)}, v2, {WS}, s41 offen offset:{(ks%4)*1024} sc1", f"x{ks}")
    def x4one(ks, i):
        k(f"s_add_u32 s41, s{50+i}, {(ks//4)*4096}")
        vq.op(f"buffer_load_dwordx4 {vr(X4+((ks%XD4)*4+i)*4,4)}, v2, {WS}, s41 offen offset:{(ks%4)*1024} sc1", f"x{ks}")
    X4PRE = E("X4PRE", 2)
    for ks in range(X4PRE): x4load(ks)
    x4q = [(ks, i) for ks in range(X4PRE, 14) for i in range(4)]
    skip = k.newlab("k4skip")
    def wfrag(idx): return ar(4*idx, 4) if idx < 64 else vr(WX + 4*(idx - 64), 4)
    for ks in range(14):
        if ks == 12:
            k("s_cmp_eq_u32 s30, 3"); k(f"s_cbranch_scc1 {skip}")
        assert not any(q[0] <= ks for q in x4q)
        vq.wait(f"x{ks}")
        for nt in range(5):
            for i in range(4):
                a = A4 + (i*5 + nt) * 4
                c = "0" if ks == 0 else vr(a, 4)
                k(f"v_mfma_f32_16x16x32_bf16 {vr(a,4)}, {wfrag(ks*5+nt)}, {vr(X4+((ks%XD4)*4+i)*4,4)}, {c}")
            for _ in range(2 if (nt in (1, 3) and x4q and x4q[0][0] < ks + E("X4D", 4)) else 1):
                if x4q and x4q[0][0] - XD4 < ks and (nt >= 1 or x4q[0][0] - XD4 < ks - 1):
                    x4one(*x4q.pop(0))
    k.lab(skip)
    stamp()
    k(f"""
    s_waitcnt vmcnt(0)
    s_barrier
    """)
    for i in range(1, 4):
        k(f"""
        s_add_u32 s41, s30, {i}
        s_and_b32 s41, s41, 3
        s_mul_i32 s41, s41, {15*1024}
        s_add_u32 s41, s41, {(i-1)*5*1024}
        v_add_u32 v{9}, s41, v2
        """)
        for nt in range(5):
            k(f"ds_write_b128 v9, {vr(A4+(i*5+nt)*4,4)} offset:{1024*nt}")
    GB = X4
    PB = X4 + 20
    k(f"""
    v_lshlrev_b32 v10, 4, v3
    v_add_u32 v10, {SMALL + 2048}, v10
    """)
    for nt in range(5):
        k(f"ds_read_b128 {vr(GB+4*nt,4)}, v10 offset:{64*nt}")
    k(f"""
    s_mul_i32 s41, s30, {15*1024}
    v_add_u32 v9, s41, v2
    s_waitcnt lgkmcnt(0)
    s_barrier
    """)
    for i in range(15):
        k(f"ds_read_b128 {vr(PB+4*i,4)}, v9 offset:{1024*i}")
    k(f"""
    s_lshl_b32 s46, s32, 2
    s_add_u32 s46, s46, s30
    s_lshl_b32 s46, s46, 4
    s_lshl_b32 s47, s28, 8
    s_add_u32 s46, s46, s47
    v_add_u32 v10, s46, v4
    v_mul_u32_u24 v10, 1280, v10
    v_lshl_add_u32 v10, v3, 3, v10
    s_mul_i32 s47, s33, 160
    """)
    TT = 248
    swap_pairs(k, [EP, EP + 4, EP + 10, EP + 14])
    k("s_waitcnt lgkmcnt(0)")
    for s_ in range(3):
        for nt in range(5):
            z = A4 + 4*nt
            for i in (0, 2):
                k(f"v_pk_add_f32 {vr(z+i,2)}, {vr(z+i,2)}, {vr(PB+(s_*5+nt)*4+i,2)}")
    U = PB
    for nt in range(5):
        p = pair_src(EP + 10, nt)
        k.unpack(U + 4*nt, U + 4*nt + 1, p); k.unpack(U + 4*nt + 2, U + 4*nt + 3, p + 1)
        p = pair_src(EP, nt)
        k.unpack(U + 20 + 4*nt, U + 20 + 4*nt + 1, p); k.unpack(U + 20 + 4*nt + 2, U + 20 + 4*nt + 3, p + 1)
    for nt in range(5):
        z = A4 + 4*nt
        for i in (0, 2):
            k(f"v_pk_add_f32 {vr(z+i,2)}, {vr(z+i,2)}, {vr(U+4*nt+i,2)}")
    for nt in range(5):
        z = A4 + 4*nt
        for i in (0, 2):
            k(f"v_pk_fma_f32 {vr(z+i,2)}, {vr(z+i,2)}, {vr(GB+4*nt+i,2)}, {vr(U+20+4*nt+i,2)}")
    g4pk, prs = pack_tiles(k, [A4 + 4*nt for nt in range(5)])
    swap_pairs(k, prs)
    k("""
    v_and_b32 v9, 1, v3
    v_lshlrev_b32 v9, 5, v9
    v_lshrrev_b32 v11, 1, v3
    v_lshl_add_u32 v9, v11, 4, v9
    v_lshlrev_b32 v11, 3, v3
    v_sub_u32 v11, v10, v11
    v_add_u32 v11, v11, v9
    """)
    osc = " sc1" if E("OUTSC1", 0) else ""
    for r, n, i in g4pk:
        if n == 4: k(f"buffer_store_dwordx4 {vr(r,4)}, v11, {OS}, s47 offen offset:{32*i}{osc}")
        else: k(f"buffer_store_dwordx2 {vr(r,2)}, v10, {OS}, s47 offen offset:{32*i}{osc}")
    stamp()
    finish()
    k.lab(end)
    k("s_endpgm")
    return k

def kernels(Kern, vr):
    return [gen_chain(Kern, vr)]
```

```python
S, D, F = 2048, 640, 1728
def _al(x, a=4096): return (x + a - 1) // a * a
_off = 0
def _alloc(n):
    global _off
    o = _off
    _off = _al(_off + n)
    return o
KVR_CH = 4224
KVR = _alloc(640 * KVR_CH + 8192)
MODF = _alloc(6 * 640 * 4 + 4096)
CS3P = _alloc(2 * 1792 * 4)
CS1P = _alloc(2 * 1792 * 4)
W1P = _alloc(8 * 100 * 1024)
W2P = _alloc(8 * 100 * 1024)
W3P = _alloc(16 * 140 * 1024)
W4P = _alloc(8 * 280 * 1024)
FLAGS = _alloc(8 * 8192)
KFL = _alloc(8 * 512)
G_HBX = 0
G_XA = G_HBX + 18 * 20480
G_H1S = G_XA + 16 * 20480
G_X1 = G_HBX + 20480
G_H3 = G_XA + 16 * 20480
G_ST1 = G_H3 + 16 * 55296
G_ST3 = G_ST1 + 256 * 64
GS = _al(G_ST3 + 288 * 8)
GRP = _alloc(8 * GS)
WS_END = _off
F_B0 = 0
F_G1 = 18 * 128
F_G2 = 34 * 128
F_G3 = 50 * 128
F_XID = 58 * 128
F_PK = 60 * 128
```

```python
import sys, os
sys.path.insert(0, os.path.dirname(os.path.abspath(__file__)))
import layout as L

NAME = "adaLN_cond__ssm_conv_h3__mixer_s_mlp__prompt"
SZ_SD = 2048 * 640 * 2

class Kern:
    def __init__(self, name, grid, block, lds, vgpr=256, sgpr=102, agpr=0):
        self.name, self.grid, self.block, self.lds = name, grid, block, lds
        self.vgpr, self.sgpr, self.agpr = vgpr, (102 if (os.environ.get("PROF") or os.environ.get("PROFK1")) else sgpr), agpr
        self.L = []
        self.nlab = 0
    def __call__(self, s):
        for ln in s.strip("\n").split("\n"):
            ln = ln.strip()
            if ln:
                self.L.append("    " + ln)
    def lab(self, s):
        self.L.append(s + ":")
    def newlab(self, p="L"):
        self.nlab += 1
        return f"{self.name}_{p}{self.nlab}"
    def srd(self, d, b, size, off=0):
        if off:
            self(f"s_add_u32 s{d}, s{b}, {off}")
            self(f"s_addc_u32 s{d+1}, s{b+1}, 0")
        else:
            self(f"s_mov_b32 s{d}, s{b}")
            self(f"s_mov_b32 s{d+1}, s{b+1}")
        self(f"s_mov_b32 s{d+2}, {size}")
        self(f"s_mov_b32 s{d+3}, 0x00020000")
    def round2(self, a, b, t):
        self(f"v_cvt_pk_bf16_f32 v{t}, v{a}, v{b}")
        self(f"v_lshlrev_b32 v{a}, 16, v{t}")
        self(f"v_and_b32 v{b}, 0xffff0000, v{t}")
    def unpack(self, lo, hi, src):
        self(f"v_lshlrev_b32 v{lo}, 16, v{src}")
        self(f"v_and_b32 v{hi}, 0xffff0000, v{src}")
    def stamp(self, i):
        if os.environ.get("PROFK1"):
            self(f"s_memtime s[{80+2*i}:{81+2*i}]")
    def stamp_end(self, n):
        if os.environ.get("PROFK1"):
            l = self.newlab("prof")
            self(f"""
            s_waitcnt lgkmcnt(0)
            s_cmp_lg_u32 s2, {int(os.environ.get("PROFWG", "0"))}
            s_cbranch_scc1 {l}
            s_load_dwordx2 s[76:77], s[0:1], 112
            s_waitcnt lgkmcnt(0)
            s_mov_b32 s78, 256
            s_mov_b32 s79, 0x00020000
            v_mov_b32 v1, 0
            """)
            for i in range(n):
                self(f"s_sub_u32 s75, s{80+2*i}, s80")
                self(f"v_mov_b32 v2, s75")
                self(f"buffer_store_dword v2, v1, s[76:79], 0 offen offset:{4*i}")
            self.lab(l)
    def text(self):
        sc = self.name in os.environ.get("SC1", "k1_kernel").split(",")
        Ls = [(l + " sc1" if (sc and l.strip().startswith("buffer_store") and " sc1" not in l and "NOSC" not in l) else l.replace(" NOSC", "")) for l in self.L]
        return (f".globl {self.name}\n.p2align 8\n.type {self.name},@function\n{self.name}:\n" + "\n".join(Ls) + "\n")
    def kd(self):
        acc = (self.vgpr + 3) // 4 * 4
        nfv = self.vgpr if not self.agpr else acc + self.agpr
        return f""".p2align 6
.amdhsa_kernel {self.name}
  .amdhsa_next_free_vgpr {nfv}
  .amdhsa_next_free_sgpr {self.sgpr}
  .amdhsa_accum_offset {acc}
  .amdhsa_group_segment_fixed_size 0
  .amdhsa_kernarg_size 128
  .amdhsa_user_sgpr_count 2
  .amdhsa_user_sgpr_kernarg_segment_ptr 1
  .amdhsa_system_sgpr_workgroup_id_x 1
  .amdhsa_float_denorm_mode_32 3
.end_amdhsa_kernel
"""

def vr(a, n):
    return f"v[{a}:{a+n-1}]"

MERGE = os.environ.get("MERGE", "0") == "1"
CNT_OFF = 128

def signal(k, cnt_sgpr_or_imm):
    l = k.newlab("sig")
    k(f"""
    s_mov_b64 exec, -1
    s_waitcnt vmcnt(0)
    s_barrier
    v_cmp_eq_u32 vcc, 0, v0
    s_and_saveexec_b64 s[42:43], vcc
    s_cbranch_execz {l}
    v_mov_b32 v1, 1
    v_mov_b32 v2, {cnt_sgpr_or_imm}
    buffer_atomic_add v1, v2, s[48:51], 0 offen
    """)
    k.lab(l)
    k("s_endpgm")

def poll(k, voff, target, vtmp):
    l = k.newlab("poll"); d = k.newlab("polld")
    k("s_mov_b32 s52, 0")
    k("s_cmp_lg_u32 s20, 0")
    k(f"s_cbranch_scc1 {d}")
    k.lab(l)
    k(f"""
    buffer_load_dword v{vtmp}, v{voff}, s[48:51], 0 offen sc0 sc1
    s_waitcnt vmcnt(0)
    v_readfirstlane_b32 s53, v{vtmp}
    s_add_u32 s52, s52, 1
    s_cmp_ge_u32 s53, {target}
    s_cbranch_scc1 {d}
    s_cmp_ge_u32 s52, 0x100000
    s_cbranch_scc1 {d}
    s_sleep {int(os.environ.get("SLP", 8))}
    s_branch {l}
    """)
    k.lab(d)
    k("s_barrier")

def emit_pack(k, base, idreg="s2", step=None):
    k(f"""
    s_load_dwordx2 s[10:11], s[0:1], 120   ; ws
    s_load_dwordx8 s[12:19], s[0:1], 56    ; w1 w2 w3 w4
    v_lshrrev_b32 v2, 6, v0
    v_and_b32 v1, 63, v0                   ; lane
    v_readfirstlane_b32 s20, v2
    s_waitcnt lgkmcnt(0)
    """)
    k.srd(28, 10, 0x10000000)
    labs = [k.newlab("pk") for _ in range(4)]
    pend = k.newlab("pke")
    k(f"""
    s_sub_u32 s21, {idreg}, {base}
    v_lshrrev_b32 v3, 3, v0                ; row
    v_and_b32 v4, 7, v0                    ; chunk
    v_mul_u32_u24 v5, 144, v3
    v_lshl_add_u32 v5, v4, 4, v5
    v_and_b32 v6, 15, v1
    v_lshrrev_b32 v7, 4, v1                ; g
    v_lshrrev_b32 v8, 2, v6
    v_lshl_add_u32 v8, v7, 3, v8           ; 8g + (i>>2)
    v_mul_u32_u24 v8, 144, v8
    v_and_b32 v9, 3, v6
    v_lshl_add_u32 v8, v9, 3, v8
    s_lshl_b32 s22, s20, 5
    v_add_u32 v8, s22, v8
    v_lshlrev_b32 v9, 4, v1                ; lane*16
    s_cmp_lt_u32 s21, 10
    s_cbranch_scc1 {labs[0]}
    s_cmp_lt_u32 s21, 20
    s_cbranch_scc1 {labs[1]}
    s_cmp_lt_u32 s21, 48
    s_cbranch_scc1 {labs[2]}
    s_cmp_lt_u32 s21, 78
    s_cbranch_scc1 {labs[3]}
    s_branch {pend}
    """)
    for m in range(4):
        k.lab(labs[m])
        N = [640, 640, 1728, 640][m]; Kd = [640, 640, 640, 1728][m]
        pitch = N * 2
        nks = 10 if m < 3 else 9
        ub = [0, 10, 20, 48][m]
        ncb = N // 64
        npr = (ncb + 1) // 2
        k.srd(24, 12 + 2*m, Kd * N * 2)
        magic = {5: (52429, 18), 14: (4682, 16)}[npr]
        k(f"""
        s_sub_u32 s32, s21, {ub}
        s_mul_i32 s33, s32, {magic[0]}
        s_lshr_b32 s33, s33, {magic[1]}      ; kq
        s_mul_i32 s34, s33, {npr}
        s_sub_u32 s34, s32, s34
        s_lshl_b32 s34, s34, 1
        v_mul_u32_u24 v10, {pitch}, v3
        v_lshl_add_u32 v10, v4, 4, v10
        s_mul_i32 s35, s33, {nks*32*pitch}
        s_lshl_b32 s36, s34, 7
        s_add_u32 s35, s35, s36
        """)
        R = [32, 72]
        for h in range(2):
            for i in range(nks):
                k(f"buffer_load_dwordx4 {vr(R[h]+4*i,4)}, v10, s[24:27], s35 offen offset:{128*h}")
                if i < nks - 1:
                    k(f"s_add_u32 s35, s35, {32*pitch}")
            if h == 0: k(f"s_sub_u32 s35, s35, {(nks-1)*32*pitch}")
        nt_ = 7 if m == 2 else 5
        mg = (9363, 16) if nt_ == 7 else (52429, 18)
        perj = [100, 100, 140, 280][m]
        dconst = [i * nt_ * 1024 for i in range(nks)]
        for h in range(2):
            skip = None
            if h == 1:
                k("s_add_u32 s34, s34, 1")
                k("s_barrier")
            k(f"""
            s_lshl_b32 s36, s34, 2
            s_add_u32 s36, s36, s20             ; ntg
            s_mul_i32 s38, s36, {mg[0]}
            s_lshr_b32 s38, s38, {mg[1]}     ; j
            s_mul_i32 s39, s38, {nt_}
            s_sub_u32 s39, s36, s39          ; nt
            s_mul_i32 s37, s38, {perj}
            s_mul_i32 s40, s33, {nks*nt_}
            s_add_u32 s37, s37, s40
            s_add_u32 s37, s37, s39
            s_lshl_b32 s37, s37, 10
            s_add_u32 s37, s37, {[L.W1P, L.W2P, L.W3P, L.W4P][m]}
            """)
            nst = nks + (1 if m in (0, 2) else 0)
            for i in range(nks):
                n_after = (nks - 1 - i) + (nks if h == 0 else nst)
                k(f"s_waitcnt vmcnt({n_after})")
                k(f"ds_write_b128 v5, {vr(R[h]+4*i,4)} offset:{4608*i}")
            k("s_waitcnt lgkmcnt(0)")
            k("s_barrier")
            for i in range(nks):
                k(f"ds_read_b64_tr_b16 {vr(R[h]+4*i,2)}, v8 offset:{4608*i}")
                k(f"ds_read_b64_tr_b16 {vr(R[h]+4*i+2,2)}, v8 offset:{4608*i+576}")
            if m in (0, 2):
                k("v_mov_b32 v12, 0")
                k("v_mov_b32 v13, 0x3f803f80")
            for i in range(nks):
                k(f"s_waitcnt lgkmcnt({2*(nks-1-i)})" if 2*(nks-1-i) <= 15 else "s_waitcnt lgkmcnt(15)")
                k(f"s_add_u32 s38, s37, {dconst[i]}")
                k(f"buffer_store_dwordx4 {vr(R[h]+4*i,4)}, v9, s[28:31], s38 offen" + (" NOSC" if (os.environ.get("WPLAIN") and str(m) in os.environ.get("WPLAIN")) else ""))
                if m in (0, 2):
                    for d in range(4):
                        k(f"v_dot2_f32_bf16 v12, v{R[h]+4*i+d}, v13, v12")
            if m in (0, 2):
                k(f"""
                s_nop 2
                v_mov_b32 v13, v12
                s_nop 1
                v_permlane32_swap_b32 v13, v12
                v_add_f32 v12, v12, v13
                v_mov_b32 v13, v12
                s_nop 1
                v_permlane16_swap_b32 v13, v12
                v_add_f32 v12, v12, v13
                s_mul_i32 s38, s33, {1792*4}
                s_lshl_b32 s39, s36, 6
                s_add_u32 s38, s38, s39
                s_add_u32 s38, s38, {L.CS3P if m == 2 else L.CS1P}
                v_lshlrev_b32 v14, 2, v1
                v_cmp_gt_u32 vcc, 16, v1
                s_and_saveexec_b64 s[40:41], vcc
                buffer_store_dword v12, v14, s[28:31], s38 offen
                s_mov_b64 exec, -1
                """)
        k("s_endpgm")
    k.lab(pend)
    k("s_endpgm")


WREG = 9472
KVL = 4 * 9472
def gen_k1(k=None):
    NMOD = 60; NPF = 32
    MODFIRST = int(os.environ.get("MODFIRST", 0))
    NSIDE = 96 + NPF + (42 if MODFIRST else NMOD)
    GRID = (160 + NSIDE + 7) // 8 * 8
    k = Kern("k1_kernel", GRID, 256, KVL + 10240, vgpr=256, sgpr=72)
    end = "k1_end"; modl = "k1_modf"
    k(f"""
    s_cmp_ge_u32 s2, {GRID}
    s_cbranch_scc1 {end}
    s_load_dwordx4 s[4:7], s[0:1], 32
    s_load_dwordx2 s[10:11], s[0:1], 120   ; ws
    s_load_dwordx4 s[12:15], s[0:1], 8     ; k, v
    s_load_dwordx2 s[8:9], s[0:1], 24      ; shift_k
    v_lshrrev_b32 v2, 6, v0
    v_and_b32 v1, 63, v0                   ; lane
    v_readfirstlane_b32 s20, v2
    s_sub_u32 s54, s2, 160
    s_cmp_ge_u32 s2, 256
    s_cbranch_scc1 k1_side
    s_and_b32 s55, s2, 7                   ; class
    s_lshr_b32 s56, s2, 3                  ; member
    s_lshl_b32 s57, s55, 9
    s_add_u32 s57, s57, {L.KFL}
    v_mov_b32 v250, 0
    s_waitcnt lgkmcnt(0)
    """)
    k.srd(28, 10, 0x10000000)
    k.stamp(0)
    if os.environ.get("PROFMOD"):
        k(f"""
        s_memrealtime s[62:63]
        s_waitcnt lgkmcnt(0)
        s_lshl_b32 s23, s2, 4
        s_add_u32 s23, s23, {(48 << 20) + 4096}
        v_mov_b32 v12, s62
        s_mov_b64 exec, 1
        buffer_store_dword v12, v250, s[28:31], s23 offen
        s_mov_b64 exec, -1
        """)
    if os.environ.get("PROFKV"): k("s_memrealtime s[62:63]")
    k("buffer_load_dword v251, v250, s[28:31], s57 offen sc1")
    k.srd(16, 12, SZ_SD); k.srd(40, 14, SZ_SD); k.srd(44, 8, 640 * 8)
    KR, VR_, SKR, SKF, KF, KVF, T = 10, 32, 48, 56, 72, 116, 150
    k(f"""
    v_mul_u32_u24 v4, 3277, v0
    v_lshrrev_b32 v4, 16, v4               ; rg
    v_mul_u32_u24 v5, 20, v4
    v_sub_u32 v5, v0, v5                   ; cg
    s_lshl_b32 s21, s56, 6
    v_lshl_add_u32 v6, v4, 3, s21
    v_mul_u32_u24 v6, 1280, v6
    s_mul_i32 s22, s55, 160
    v_lshl_add_u32 v7, v5, 3, s22
    v_add_u32 v6, v6, v7
    v_subrev_u32 v8, 3840, v6
    v_add_u32 v9, 5120, v6
    s_movk_i32 s23, 160
    v_cmp_gt_u32 vcc, s23, v0
    s_and_saveexec_b64 s[60:61], vcc
    s_cbranch_execz k1_kvld
    """)
    for r in range(11):
        if r < 3: k(f"buffer_load_dwordx2 {vr(KR+2*r,2)}, v8, s[16:19], 0 offen offset:{1280*r}")
        elif r < 6: k(f"buffer_load_dwordx2 {vr(KR+2*r,2)}, v6, s[16:19], 0 offen offset:{1280*(r-3)}")
        elif r < 7: k(f"buffer_load_dwordx2 {vr(KR+2*r,2)}, v6, s[16:19], 0 offen offset:3840")
        else: k(f"buffer_load_dwordx2 {vr(KR+2*r,2)}, v9, s[16:19], 0 offen offset:{1280*(r-7)}")
    k(f"v_lshlrev_b32 v{T}, 2, v7")
    k(f"buffer_load_dwordx4 {vr(SKR,4)}, v{T}, s[44:47], 0 offen")
    k(f"buffer_load_dwordx4 {vr(SKR+4,4)}, v{T}, s[44:47], 0 offen offset:16")
    for r in range(8):
        if r < 4: k(f"buffer_load_dwordx2 {vr(VR_+2*r,2)}, v6, s[40:43], 0 offen offset:{1280*r}")
        else: k(f"buffer_load_dwordx2 {vr(VR_+2*r,2)}, v9, s[40:43], 0 offen offset:{1280*(r-4)}")
    k.lab("k1_kvld")
    k("s_mov_b64 exec, -1")
    lnc = k.newlab("nc")
    k.srd(24, 4, 640 * 4096)
    k(f"""
    s_cmp_lt_u32 s56, 12
    s_cbranch_scc1 {lnc}
    s_mul_i32 s58, s55, 20
    s_add_u32 s58, s58, s56
    s_sub_u32 s58, s58, 12
    s_lshl_b32 s21, s58, 2
    s_add_u32 s21, s21, s20                 ; ch
    s_mul_i32 s34, s20, {WREG}
    v_lshlrev_b32 v3, 4, v1                 ; lane*16
    s_lshl_b32 s35, s21, 12                 ; ch*4096
    s_add_u32 s36, s34, 256
    s_mov_b32 m0, s36
    s_nop 0
    """)
    for i in range(4):
        k(f"buffer_load_dwordx4 v3, s[24:27], s35 offen offset:{1024*i} lds")
    k.lab(lnc)
    k(f"""
    s_mov_b64 exec, s[60:61]
    s_movk_i32 s23, 160
    v_cmp_gt_u32 vcc, s23, v0
    s_and_b64 exec, exec, vcc
    s_cbranch_execz k1_kvskip
    """)
    k(f"""
    v_sub_u32 v{T}, 7, v4
    v_and_b32 v{T+1}, 7, v5
    v_xor_b32 v{T}, v{T}, v{T+1}
    v_lshlrev_b32 v{T}, 4, v{T}
    v_lshl_add_u32 v{T}, v5, 9, v{T}
    v_add_u32 v{T}, {KVL}, v{T}
    s_cmp_lt_u32 s56, 12
    s_cbranch_scc1 k1_w8
    s_waitcnt vmcnt(12)
    s_branch k1_w9
    """)
    k.lab("k1_w8")
    k("s_waitcnt vmcnt(8)")
    k.lab("k1_w9")
    for c in range(4):
        k.unpack(SKF + c, SKF + 4 + c, SKR + 2*c)
        k.unpack(SKF + 8 + c, SKF + 12 + c, SKR + 2*c + 1)
    for r in range(11):
        k.unpack(KF + 4*r, KF + 4*r + 1, KR + 2*r)
        k.unpack(KF + 4*r + 2, KF + 4*r + 3, KR + 2*r + 1)
    for p in range(2):
        for s_ in range(8):
            A = KVF + 4*s_ + 2*p
            k(f"v_pk_mul_f32 {vr(A,2)}, {vr(KF+4*s_+2*p,2)}, {vr(SKF+12+2*p,2)}")
        for j in (2, 1, 0):
            for s_ in range(8):
                A = KVF + 4*s_ + 2*p
                k(f"v_pk_fma_f32 {vr(A,2)}, {vr(KF+4*(s_+3-j)+2*p,2)}, {vr(SKF+4*j+2*p,2)}, {vr(A,2)}")
    for s_ in range(8):
        for p in range(2):
            A = KVF + 4*s_ + 2*p
            k.round2(A, A + 1, T + 4 + (2*s_ + p) % 8)
    k("""
    s_cmp_lt_u32 s56, 12
    s_cbranch_scc1 k1_w0
    s_waitcnt vmcnt(4)
    s_branch k1_w1
    """)
    k.lab("k1_w0")
    k("s_waitcnt vmcnt(0)")
    k.lab("k1_w1")
    if os.environ.get("PROFKV"): k("s_memrealtime s[64:65]")
    k.stamp(1)
    for s_ in range(8):
        for p in range(2):
            t_ = KF + 4*s_ + 2*p
            k.unpack(t_, t_ + 1, VR_ + 2*s_ + p)
    for s_ in range(8):
        for p in range(2):
            k(f"v_pk_mul_f32 {vr(KVF+4*s_+2*p,2)}, {vr(KVF+4*s_+2*p,2)}, {vr(KF+4*s_+2*p,2)}")
    O2 = KR
    for c in range(4):
        for d in range(4):
            k(f"v_cvt_pk_bf16_f32 v{O2+4*c+d}, v{KVF+4*(7-2*d)+c}, v{KVF+4*(6-2*d)+c}")
    for c in range(4):
        k(f"ds_write_b128 v{T}, {vr(O2+4*c,4)} offset:{128*c}")
    k.lab("k1_kvskip")
    k(f"""
    s_mov_b64 exec, -1
    v_lshrrev_b32 v{T+1}, 3, v0             ; channel (0..31)
    v_and_b32 v{T+2}, 7, v0                 ; unit
    v_lshrrev_b32 v{T+3}, 2, v{T+1}
    v_and_b32 v{T+3}, 7, v{T+3}
    v_xor_b32 v{T+3}, v{T+3}, v{T+2}
    v_lshlrev_b32 v{T+3}, 4, v{T+3}
    v_lshl_add_u32 v{T+3}, v{T+1}, 7, v{T+3}
    v_add_u32 v{T+3}, {KVL}, v{T+3}
    v_mul_u32_u24 v{T+1}, {L.KVR_CH}, v{T+1}
    v_lshl_add_u32 v{T+4}, v{T+2}, 4, v{T+1}
    s_mul_i32 s36, s55, {80*L.KVR_CH}
    s_add_u32 s36, s36, {L.KVR}
    s_lshl_b32 s37, s56, 7
    s_sub_u32 s38, 3968, s37
    s_add_u32 s38, s38, s36                 ; + 3968 - 128*mi
    s_waitcnt lgkmcnt(0)
    s_barrier
    """)
    k.stamp(2)
    for i in range(3):
        k(f"ds_read_b128 {vr(32+4*i,4)}, v{T+3} offset:{4096*i}")
    for i in range(3):
        if i == 2: k("s_movk_i32 s23, 128\nv_cmp_gt_u32 vcc, s23, v0\ns_and_saveexec_b64 s[60:61], vcc\ns_cbranch_execz k1_st2skip")
        k(f"s_waitcnt lgkmcnt({2-i})")
        k(f"buffer_store_dwordx4 {vr(32+4*i,4)}, v{T+4}, s[28:31], s38 offen sc1")
        k(f"s_add_u32 s38, s38, {32*L.KVR_CH}")
    k.lab("k1_st2skip")
    k("s_mov_b64 exec, -1")
    zl = k.newlab()
    k(f"""
    s_cmp_lg_u32 s56, 0
    s_cbranch_scc1 {zl}
    v_mov_b32 v44, 0
    v_mov_b32 v45, 0
    v_mov_b32 v46, 0
    v_mov_b32 v47, 0
    s_add_u32 s36, s36, 4096
    """)
    for i in range(3):
        if i == 2: k(f"s_movk_i32 s23, 128\nv_cmp_gt_u32 vcc, s23, v0\ns_and_b64 exec, exec, vcc\ns_cbranch_execz {zl}")
        k(f"buffer_store_dwordx4 v[44:47], v{T+4}, s[28:31], s36 offen sc1")
        k(f"s_add_u32 s36, s36, {32*L.KVR_CH}")
    k.lab(zl)
    lfl = k.newlab("kf")
    k(f"""
    s_mov_b64 exec, -1
    s_waitcnt vmcnt(0)
    v_add_u32 v251, 1, v251
    """)
    k.stamp(3)
    if os.environ.get("PROFKV"): k("s_memrealtime s[66:67]")
    k(f"""
    s_barrier
    s_cmp_lg_u32 s20, 0
    s_cbranch_scc1 {lfl}
    s_lshl_b32 s23, s56, 2
    s_add_u32 s23, s23, s57
    s_mov_b64 exec, 1
    buffer_store_dword v251, v250, s[28:31], s23 offen offset:256 NOSC
    buffer_store_dword v251, v250, s[28:31], s23 offen offset:128 sc1
    s_mov_b64 exec, -1
    """)
    k.lab(lfl)
    k(f"""
    s_lshl_b32 s54, s56, 3
    s_add_u32 s54, s54, s55
    """)
    if os.environ.get("PROFKV"):
        lq = k.newlab("pq")
        k(f"""
        s_cmp_ge_u32 s56, 12
        s_cbranch_scc1 {lq}
        s_cmp_lg_u32 s20, 0
        s_cbranch_scc1 {lq}
        s_waitcnt lgkmcnt(0)
        s_lshl_b32 s23, s54, 4
        s_add_u32 s23, s23, {48 << 20}
        v_mov_b32 v12, s62
        v_mov_b32 v13, s64
        v_mov_b32 v14, s66
        v_mov_b32 v15, s66
        s_mov_b64 exec, 1
        buffer_store_dwordx4 v[12:15], v250, s[28:31], s23 offen
        s_mov_b64 exec, -1
        """)
        k.lab(lq)
    k(f"""
    s_cmp_lt_u32 s56, 12
    s_cbranch_scc1 k1_side2
    """)
    k("s_mov_b32 s2, s58")
    if os.environ.get("PRIO", "1") == "1": k("s_setprio 3")
    k.stamp(5)
    k(f"""
    s_lshl_b32 s21, s2, 3
    s_add_u32 s22, s6, s21
    s_addc_u32 s23, s7, 0
    s_load_dwordx2 s[32:33], s[22:23], 0
    s_lshl_b32 s21, s2, 2
    s_add_u32 s21, s21, s20                 ; ch
    s_mul_i32 s34, s20, {WREG}
    v_lshlrev_b32 v3, 4, v1                 ; lane*16
    s_mul_i32 s37, s21, {L.KVR_CH}
    s_add_u32 s37, s37, {L.KVR}
    v_lshrrev_b32 v4, 3, v0
    v_mul_u32_u24 v4, 20480, v4
    s_lshr_b32 s38, s2, 1
    s_and_b32 s38, s38, 7
    v_and_b32 v5, 7, v0
    v_xor_b32 v5, s38, v5
    v_lshl_add_u32 v4, v5, 4, v4            ; (t>>3)*20480 + ((t&7)^sw)*16
    s_lshl_b32 s38, s2, 7                   ; cg*128
    """)
    for i in range(5):
        k(f"""
        v_add_u32 v20, {64*i}, v1
        v_mul_u32_u24 v21, 3856, v20
        v_lshrrev_b32 v21, 16, v21             ; n = q/17
        v_mul_u32_u24 v22, 17, v21
        v_sub_u32 v22, v20, v22                ; e
        v_lshlrev_b32 v22, 4, v22
        v_lshlrev_b32 v21, 8, v21
        v_sub_u32 v22, v22, v21
        v_add_u32 v{23+i}, 3840, v22
        """)
    k(f"""
    v_lshl_add_u32 v5, v1, 2, s34
    v_mov_b32 v6, 0
    ds_write_b32 v5, v6
    v_and_b32 v7, 15, v1                    ; n16
    v_bfe_u32 v8, v1, 4, 1                  ; ph
    v_lshrrev_b32 v9, 5, v1                 ; g
    v_mul_u32_u24 v10, 272, v7
    v_lshl_add_u32 v10, v9, 4, v10
    v_add_u32 v10, s34, v10
    v_add_u32 v10, {4352+4}, v10
    v_lshlrev_b32 v11, 2, v8
    v_sub_u32 v10, v10, v11
    v_and_b32 v12, 7, v1
    v_mul_u32_u24 v13, 272, v12
    v_lshl_add_u32 v13, v9, 4, v13
    v_add_u32 v13, s34, v13
    v_add_u32 v13, {4352+4}, v13
    v_sub_u32 v13, v13, v11                 ; vBP
    v_bfe_u32 v11, v1, 3, 1                 ; a'
    v_lshlrev_b32 v11, 4, v11
    v_sub_u32 v11, 16, v11
    v_and_b32 v14, 31, v1
    v_lshlrev_b32 v14, 3, v14
    v_lshl_add_u32 v14, v9, 4, v14
    v_add_u32 v14, s34, v14
    v_add_u32 v14, 8, v14                   ; vA
    v_cmp_ne_u32 vcc, 0, v12
    v_mov_b32 v16, 0
    s_nop 1
    v_cndmask_b32 v15, v16, -1, vcc
    """)
    k("s_waitcnt lgkmcnt(0)")
    AM_ = 176
    for ks in range(8):
        k(f"ds_read_b64 {vr(AM_+4*ks,2)}, v14 offset:{256*7+32*ks}")
        k(f"ds_read_b64 {vr(AM_+4*ks+2,2)}, v14 offset:{256*7+32*ks+8}")
    lw = k.newlab("kw"); lp = k.newlab("kp"); ld = k.newlab("kd"); lb = k.newlab("kb")
    k(f"""
    s_cmp_lg_u32 s20, 0
    s_cbranch_scc1 {lw}
    v_and_b32 v40, 31, v1
    v_lshlrev_b32 v40, 2, v40
    s_mov_b32 s23, 200000
    """)
    lq4 = k.newlab("kq")
    k("s_mov_b64 s[60:61], 0")
    k.lab(lp)
    k(f"""
    buffer_load_dword v41, v40, s[28:31], s57 offen offset:256 sc1
    s_waitcnt vmcnt(0)
    v_cmp_eq_u32 vcc, v251, v41
    s_sub_u32 s23, s23, 1
    s_or_b64 s[60:61], s[60:61], vcc
    s_cmp_eq_u64 s[60:61], -1
    s_cbranch_scc1 {ld}
    s_and_b32 s21, s23, 3
    s_cmp_lg_u32 s21, 0
    s_cbranch_scc1 {lq4}
    buffer_load_dword v41, v40, s[28:31], s57 offen offset:128 sc1
    s_waitcnt vmcnt(0)
    v_cmp_eq_u32 vcc, v251, v41
    s_nop 1
    s_or_b64 s[60:61], s[60:61], vcc
    s_cmp_eq_u64 s[60:61], -1
    s_cbranch_scc1 {ld}
    """)
    k.lab(lq4)
    k(f"""
    s_sleep {os.environ.get("KSLEEP", 2)}
    s_cmp_lg_u32 s23, 0
    s_cbranch_scc1 {lp}
    """)
    k.lab(ld)
    if os.environ.get("PROFKV"):
        k(f"""
        s_memrealtime s[68:69]
        s_waitcnt lgkmcnt(0)
        s_lshl_b32 s23, s56, 3
        s_add_u32 s23, s23, s55
        s_lshl_b32 s23, s23, 4
        s_add_u32 s23, s23, {48 << 20}
        v_mov_b32 v12, s62
        v_mov_b32 v13, s64
        v_mov_b32 v14, s66
        v_mov_b32 v15, s68
        s_mov_b64 exec, 1
        buffer_store_dwordx4 v[12:15], v250, s[28:31], s23 offen
        s_mov_b64 exec, -1
        """)
    k(f"""
    s_cmp_lg_u32 s56, 12
    s_cbranch_scc1 {lw}
    s_mov_b64 exec, 1
    buffer_store_dword v251, v250, s[28:31], s57 offen sc1
    s_mov_b64 exec, -1
    """)
    k.lab(lw)
    k.stamp(4)
    k("s_barrier")
    for i in range(5):
        k(f"s_add_u32 s36, s34, {4352 + 1024*i}")
        k("s_mov_b32 m0, s36")
        if i == 4: k("s_mov_b64 exec, 0xffff")
        else: k("s_nop 0")
        k(f"buffer_load_dwordx4 v{23+i}, s[28:31], s37 offen sc1 lds")
    k("s_mov_b64 exec, -1")
    k("s_waitcnt vmcnt(0) lgkmcnt(0)")
    B0, B1, BP, AX, AY, AP_, AM, APk = 32, 64, 96, 128, 144, 160, 176, 208
    k.stamp(6)
    def aread(reg, off):
        return f"ds_read_b64 {vr(reg,2)}, v14 offset:{off}\n    ds_read_b64 {vr(reg+2,2)}, v14 offset:{off+8}"
    TB = 16
    for ks in range(8):
        k(f"ds_read2_b32 {vr(B1+4*ks,2)}, v10 offset0:{8*ks} offset1:{8*ks+1}")
        k(f"ds_read2_b32 {vr(B1+4*ks+2,2)}, v10 offset0:{8*ks+2} offset1:{8*ks+3}")
    prd = []
    for ks in range(8):
        prd.append(f"ds_read_b32 v{TB+ks}, v10 offset:{32*ks+16}")
    for ks in range(8):
        prd.append(f"ds_read2_b32 {vr(BP+4*ks,2)}, v13 offset0:{8*ks} offset1:{8*ks+1}")
        prd.append(f"ds_read2_b32 {vr(BP+4*ks+2,2)}, v13 offset0:{8*ks+2} offset1:{8*ks+3}")
        prd.append(f"ds_read_b32 v{TB+8+ks}, v13 offset:{32*ks+16}")
    al0 = []; alp = []
    for ks in range(8):
        for d in range(4):
            hi = B1 + 4*ks + d + 1 if d < 3 else TB + ks
            al0.append(f"v_alignbit_b32 v{B0+4*ks+d}, v{hi}, v{B1+4*ks+d}, 16")
            hi = BP + 4*ks + d + 1 if d < 3 else TB + 8 + ks
            alp.append(f"v_alignbit_b32 v{BP+4*ks+d}, v{hi}, v{BP+4*ks+d}, v11")
    DPP = "row_mask:0xf bank_mask:0xf bound_ctrl:0"
    def mfma(acc, a, b, first):
        c = "0" if first else vr(acc, 16)
        k(f"v_mfma_f32_32x32x16_bf16 {vr(acc,16)}, {vr(a,4)}, {vr(b,4)}, {c}")
    def phase(acc, Areg, Breg, first, reads, late, pad=True, rg=8):
        reads = list(reads); late = list(late)
        for ks in range(8):
            mfma(acc, Areg + 4*ks, Breg + 4*ks, first and ks == 0)
            n = (len(reads) + (rg - 1 - ks)) // (rg - ks) if ks < rg else 0
            for s in reads[:n]:
                k(s)
            reads = reads[n:]
            if ks < 2:
                if pad and late and n < 5:
                    k(f"s_nop {4 - n}")
            else:
                n = (len(late) + (7 - ks)) // (8 - ks)
                for s in late[:n]:
                    k(s)
                late = late[n:]
        assert not late and not reads
    def shift_ops(acc, masked):
        if masked:
            return [f"v_and_b32_dpp v{acc+r}, v{acc+r}, v15 row_shr:1 {DPP}" for r in range(16)]
        return [f"v_mov_b32_dpp v{acc+r}, v{acc+r} row_shr:1 {DPP}" for r in range(16)]
    def areads(reg, off):
        o = []
        for ks in range(8):
            o += aread(reg + 4*ks, off + 32*ks).split("\n")
        return o
    epi_a = f"""v_mul_u32_u24 v16, 272, v7
    v_add_u32 v16, s34, v16
    v_add_u32 v16, {4352 + 36}, v16
    v_lshlrev_b32 v17, 2, v8
    v_sub_u32 v16, v16, v17
    v_lshlrev_b32 v17, 5, v9
    v_sub_u32 v16, v16, v17""".split("\n")
    epi_a += [f"ds_read_b32 v{64+r}, v16 offset:{216 - 64*(r>>2) - 8*(r&3)}" for r in range(16)]
    epi_a += f"""s_lshr_b32 s44, s20, 1
    s_and_b32 s45, s20, 1
    s_cmp_eq_u32 s44, 1
    s_cselect_b32 s44, s33, s32
    s_lshl_b32 s46, s44, 16
    s_and_b32 s47, s44, 0xffff0000
    s_cmp_eq_u32 s45, 1
    s_cselect_b32 s44, s47, s46
    v_mul_u32_u24 v18, 264, v7
    v_lshl_add_u32 v18, v9, 5, v18
    v_lshl_add_u32 v18, v8, 2, v18
    v_add_u32 v18, s34, v18
    v_mul_u32_u24 v17, 264, v2
    v_lshl_add_u32 v17, v1, 2, v17""".split("\n")
    if int(os.environ.get("CODEPF2", 0)):
        epi_a.append("s_getpc_b64 s[50:51]\nK1PC2:\ns_add_u32 s50, s50, k2_kernel-K1PC2\ns_addc_u32 s51, s51, 0")
        epi_a += f"""s_sub_u32 s52, s56, 12
    s_lshl_b32 s52, s52, 2
    s_add_u32 s52, s52, s20
    s_lshl_b32 s52, s52, 10
    s_min_u32 s52, s52, (CODE_END-k2_kernel-1020)&0xfffffff0
    v_add_u32 v19, s52, v3
    global_load_dwordx4 v[28:31], v19, s[50:51]""".split("\n")
    epi_b = []
    for r in range(16):
        epi_b.append(f"v_and_b32 v{80+r}, 0xffff0000, v{64+r}")
        epi_b.append(f"v_lshlrev_b32 v{64+r}, 16, v{64+r}")
    for q in range(7, -1, -1):
        first = (q == 7)
        k("s_waitcnt lgkmcnt(0)")
        apl = areads(APk, 256*(q+8))
        if first:
            for ks in range(8):
                mfma(AY, AM + 4*ks, B1 + 4*ks, ks == 0)
                if ks == 0:
                    for x in prd[:16]: k(x)
                elif ks == 1:
                    for x in prd[16:]: k(x)
                elif ks == 2:
                    k("s_waitcnt lgkmcnt(15)")
                    k("s_waitcnt lgkmcnt(0)")
                    for x in al0[:4]: k(x)
                else:
                    for x in al0[4 + (ks-3)*6: 4 + (ks-2)*6]: k(x)
            k("s_nop 0")
            phase(AX, AM, B0, True, apl, alp[:16] + shift_ops(AY, False) + alp[16:] + ["s_nop 0"])
        else:
            phase(AY, AM, B1, False, apl, shift_ops(AP_, True))
            if q > 0: phase(AX, AM, B0, False, [], shift_ops(AY, False))
            else: phase(AX, AM, B0, False, [], epi_a, pad=False)
        k("s_waitcnt lgkmcnt(0)")
        aml = areads(AM, 256*(q-1)) if q > 0 else []
        phase(AP_, APk, BP, first, aml, shift_ops(AX, False) if q > 0 else epi_b, rg=5, pad=(q > 0))
    k.stamp(7)
    k("s_mov_b32 s48, 0x05040100")
    k("s_mov_b32 s49, 0x07060302")
    k("s_nop 11")
    for r in range(16):
        k(f"v_add_f32_dpp v{AX+r}, v{AP_+r}, v{AX+r} row_shr:8 {DPP}")
    k("""
    s_mov_b32 s42, 0xff00ff00
    s_mov_b32 s43, 0xff00ff00
    s_mov_b64 exec, s[42:43]
    """)
    for r in range(16):
        k(f"v_add_f32 v{AY+r}, v{AP_+r}, v{AY+r}")
    k("s_mov_b64 exec, -1")
    for r in range(16):
        k(f"v_fma_f32 v{AX+r}, v{80+r}, s44, v{AX+r}")
        k(f"v_fma_f32 v{AY+r}, v{64+r}, s44, v{AY+r}")
    for r in range(16):
        k(f"v_cvt_pk_bf16_f32 v{32+r}, v{AX+r}, v{AY+r}")
    for r in range(16):
        k(f"ds_write_b32 v18, v{32+r} offset:{64*(r>>2)+8*(r&3)}")
    k(f"""
    s_waitcnt lgkmcnt(0)
    s_barrier
    """)
    Y = 48
    for e in range(4):
        for c in range(4):
            k(f"ds_read_b32 v{Y+4*e+c}, v17 offset:{c*WREG+1056*e}")
    k("s_waitcnt lgkmcnt(0)")
    O = 96
    for e in range(4):
        for hh in range(2):
            a, b = Y + 4*e + 2*hh, Y + 4*e + 2*hh + 1
            k(f"v_perm_b32 v{O+4*e+hh}, v{b}, v{a}, s48")
            k(f"v_perm_b32 v{O+4*e+2+hh}, v{b}, v{a}, s49")
    k(f"""
    v_lshrrev_b32 v20, 3, v0             ; tt
    v_lshrrev_b32 v21, 4, v20            ; tt>>4
    v_and_b32 v22, 15, v20               ; tt&15
    v_mul_u32_u24 v23, 20480, v20
    v_sub_u32 v23, v4, v23
    s_mov_b32 s40, {L.GS}
    v_mul_lo_u32 v24, v21, s40
    v_add_u32 v24, v24, v23
    v_add_u32 v25, 1, v22
    v_mul_u32_u24 v25, 20480, v25
    v_add_u32 v25, v25, v24
    v_cmp_eq_u32 s[42:43], 15, v22
    v_cmp_eq_u32 s[44:45], 0, v22
    v_add_u32 v26, {2*L.GS}, v24
    v_add_u32 v27, {17*20480}, v24
    v_cndmask_b32 v26, v27, v26, s[42:43]
    v_cmp_ne_u32 vcc, 0, v20
    s_and_b64 s[46:47], s[44:45], vcc
    s_or_b64 s[46:47], s[46:47], s[42:43]
    v_cmp_ne_u32 vcc, 31, v20
    s_and_b64 s[52:53], s[42:43], vcc
    s_or_b64 s[52:53], s[52:53], s[44:45]
    s_or_b64 s[44:45], s[44:45], s[42:43]    ; e = 1, 2
    s_add_u32 s39, s38, {L.GRP}
    """)
    for e in range(4):
        k(f"buffer_store_dwordx4 {vr(O+4*e,4)}, v25, s[28:31], s39 offen" + (" NOSC" if os.environ.get("YPLAIN") else ""))
        hl_ = k.newlab("halo")
        k(f"s_mov_b64 exec, {['s[46:47]', 's[44:45]', 's[44:45]', 's[52:53]'][e]}")
        k(f"s_cbranch_execz {hl_}")
        k(f"s_sub_u32 s41, s39, {L.GS}")
        k(f"buffer_store_dwordx4 {vr(O+4*e,4)}, v26, s[28:31], s41 offen" + (" NOSC" if os.environ.get("YPLAIN") else ""))
        k.lab(hl_)
        k("s_mov_b64 exec, -1")
        k(f"s_add_u32 s39, s39, {2*L.GS}")
    k.stamp(8)
    k("s_waitcnt vmcnt(0)")
    k.stamp_end(9)
    k("s_endpgm")

    k.lab("k1_side")
    k(f"""
    s_cmp_ge_u32 s54, {NSIDE}
    s_cbranch_scc1 {end}
    """)
    def side_wait(cnt):
        sp = k.newlab("sw"); sd = k.newlab("sw")
        k(f"""
        s_cmp_lg_u32 s20, 0
        s_cbranch_scc1 {sd}
        s_and_b32 s55, s2, 7
        s_lshl_b32 s57, s55, 9
        s_add_u32 s57, s57, {L.KFL}
        v_mov_b32 v250, 0
        v_and_b32 v248, 31, v0
        v_lshlrev_b32 v248, 2, v248
        s_waitcnt lgkmcnt(0)
        """)
        k.srd(28, 10, 0x10000000)
        k(f"""
        buffer_load_dword v251, v250, s[28:31], s57 offen sc1
        s_mov_b32 s23, {cnt}
        s_waitcnt vmcnt(0)
        v_add_u32 v251, 1, v251
        """)
        k.lab(sp)
        k(f"""
        buffer_load_dword v249, v248, s[28:31], s57 offen offset:256 sc1
        s_waitcnt vmcnt(0)
        v_cmp_eq_u32 vcc, v251, v249
        s_sub_u32 s23, s23, 1
        s_cmp_eq_u64 vcc, -1
        s_cbranch_scc1 {sd}
        s_sleep {os.environ.get('SSLEEP', 16)}
        s_cmp_lg_u32 s23, 0
        s_cbranch_scc1 {sp}
        """)
        k.lab(sd)
        k("s_barrier")
    if int(os.environ.get("SIDEWAIT", 1)):
        lsx = k.newlab("sx")
        k(f"""
        s_cmp_lt_u32 s54, {96+NPF+int(os.environ.get("NOWAITN", 0))}
        s_cbranch_scc1 {lsx}
        s_mov_b32 s61, s54
        """)
        side_wait(os.environ.get("SWN", 30))
        k("s_mov_b32 s54, s61")
        k.lab(lsx)
    k(f"""
    s_cmp_lt_u32 s54, {96+NPF}
    s_cbranch_scc1 k1_pf
    """)
    if MODFIRST:
        k(f"s_sub_u32 s54, s54, {96+NPF-36}")
        k("s_branch k1_pack0")
        k.lab("k1_side2")
        k(f"""
        s_cmp_lt_u32 s54, {NMOD}
        s_cbranch_scc1 k1_mod0
        s_sub_u32 s54, s54, {NMOD}
        """)
        k.lab("k1_pack0")
        emit_pack(k, 0, "s54", None)
        k.lab("k1_mod0")
    else:
        k("s_branch k1_mod0")
        k.lab("k1_side2")
        emit_pack(k, 0, "s54", None)
        k.lab("k1_mod0")
        k(f"s_sub_u32 s54, s54, {96+NPF}")
    if os.environ.get("PROFMOD"): k("s_memrealtime s[62:63]")
    k("s_waitcnt lgkmcnt(0)")
    k.srd(28, 10, 0x10000000)
    k.lab(modl)
    k("""
    s_load_dwordx4 s[12:15], s[0:1], 88
    s_mov_b32 s32, s54
    v_and_b32 v3, 7, v0              ; cc
    v_lshrrev_b32 v4, 3, v0          ; rsub
    v_lshlrev_b32 v5, 1, v4          ; c offset
    v_mul_u32_u24 v6, 7680, v4
    s_lshl_b32 s36, s32, 7
    v_lshl_add_u32 v7, v3, 4, s36
    v_add_u32 v6, v6, v7
    s_waitcnt lgkmcnt(0)
    """)
    k.srd(16, 12, 1280); k.srd(20, 14, 640 * 7680)
    C, W, A, T = 10, 32, 112, 120
    for it in range(20):
        k(f"buffer_load_ushort v{C+it}, v5, s[16:19], 0 offen offset:{64*it}")
    for it in range(20):
        k(f"s_mov_b32 s37, {it*32*7680}")
        k(f"buffer_load_dwordx4 {vr(W+4*it,4)}, v6, s[20:23], s37 offen")
    k("s_waitcnt vmcnt(20)")
    if os.environ.get("PROFMOD"): k("s_memrealtime s[64:65]")
    for it in range(20):
        k(f"v_lshlrev_b32 v{C+it}, 16, v{C+it}")
        k(f"v_mul_f32 v{T+it}, 0xbfb8aa3b, v{C+it}")
        k(f"v_exp_f32 v{T+it}, v{T+it}")
    for it in range(20):
        k(f"v_add_f32 v{T+it}, 1.0, v{T+it}")
        k(f"v_rcp_f32 v{T+it}, v{T+it}")
    k("s_nop 0")
    for it in range(20):
        k(f"v_mul_f32 v{C+it}, v{C+it}, v{T+it}")
    for it in range(0, 20, 2):
        k.round2(C + it, C + it + 1, T)
    for j in range(8):
        k(f"v_mov_b32 v{A+j}, 0")
    for it in range(20):
        k(f"s_waitcnt vmcnt({19-it})")
        for d in range(4):
            k.unpack(T + 2*d, T + 2*d + 1, W + 4*it + d)
        ce = C + (it & ~1)
        sel = "op_sel:[0,0,0] op_sel_hi:[1,0,1]" if it % 2 == 0 else "op_sel:[0,1,0] op_sel_hi:[1,1,1]"
        for d in range(4):
            k(f"v_pk_fma_f32 {vr(A+2*d,2)}, {vr(T+2*d,2)}, {vr(ce,2)}, {vr(A+2*d,2)} {sel}")
    if os.environ.get("PROFMOD"): k("s_memrealtime s[66:67]")
    k(f"""
    v_lshlrev_b32 v7, 5, v0
    ds_write_b128 v7, {vr(A,4)}
    ds_write_b128 v7, {vr(A+4,4)} offset:16
    s_waitcnt lgkmcnt(0)
    s_barrier
    v_cmp_gt_u32 vcc, 64, v0
    s_and_saveexec_b64 s[42:43], vcc
    s_cbranch_execz {end}
    v_lshlrev_b32 v7, 2, v0
    """)
    for r in range(32):
        k(f"ds_read_b32 v{W+r}, v7 offset:{256*r}")
    k("s_waitcnt lgkmcnt(0)")
    for st in (16, 8, 4, 2, 1):
        for r in range(st):
            k(f"v_add_f32 v{W+r}, v{W+r}, v{W+r+st}")
    a_ = W
    k(f"""
    s_movk_i32 s22, 640
    v_cvt_pk_bf16_f32 v{a_}, v{a_}, v{a_}
    v_lshlrev_b32 v{a_}, 16, v{a_}
    v_add_f32 v{a_+1}, 1.0, v{a_}
    v_cvt_pk_bf16_f32 v{a_+1}, v{a_+1}, v{a_+1}
    v_lshlrev_b32 v{a_+1}, 16, v{a_+1}
    s_lshl_b32 s33, s32, 6
    v_add_u32 v{a_+2}, s33, v0
    v_subrev_u32 v{a_+3}, 640, v{a_+2}
    v_cmp_gt_u32 vcc, 640, v{a_+3}
    v_subrev_u32 v{a_+3}, 2560, v{a_+2}
    v_cmp_gt_u32 s[40:41], s22, v{a_+3}
    s_or_b64 vcc, vcc, s[40:41]
    v_cndmask_b32 v{a_}, v{a_}, v{a_+1}, vcc
    s_lshl_b32 s21, s32, 8
    s_add_u32 s21, s21, {L.MODF}
    buffer_store_dword v{a_}, v7, s[28:31], s21 offen
    """)
    if os.environ.get("PROFMOD"):
        k(f"""
        s_waitcnt vmcnt(0)
        s_memrealtime s[68:69]
        s_waitcnt lgkmcnt(0)
        s_lshl_b32 s23, s32, 4
        s_add_u32 s23, s23, {48 << 20}
        v_mov_b32 v12, s62
        v_mov_b32 v13, s64
        v_mov_b32 v14, s66
        v_mov_b32 v15, s68
        v_mov_b32 v16, 0
        s_mov_b64 exec, 1
        buffer_store_dwordx4 v[12:15], v16, s[28:31], s23 offen
        """)
    k.lab(end)
    k("s_endpgm")
    k.lab("k1_pf")
    WPX = NPF // 8 * 4
    k(f"""
    s_waitcnt lgkmcnt(0)
    s_load_dwordx2 s[4:5], s[0:1], 0
    v_lshlrev_b32 v3, 7, v1          ; lane*128
    v_lshlrev_b32 v1, 4, v1
    s_sub_u32 s24, s54, 96
    s_lshr_b32 s24, s24, 3
    s_lshl_b32 s24, s24, 2
    s_add_u32 s24, s24, s20
    s_and_b32 s22, s2, 7
    s_mul_i32 s21, s24, {327680 // WPX}
    s_mul_i32 s23, s22, 327680
    s_add_u32 s21, s21, s23
    s_waitcnt lgkmcnt(0)
    """)
    k.srd(16, 4, SZ_SD); k.srd(28, 10, 0x10000000)
    zl2 = k.newlab("zf")
    k(f"""
    s_sub_u32 s36, s54, 96
    s_cmp_ge_u32 s36, 16
    s_cbranch_scc1 {zl2}
    s_lshl_b32 s36, s36, 12
    s_add_u32 s36, s36, {L.FLAGS}
    v_lshlrev_b32 v5, 4, v0
    v_mov_b32 v60, 0
    v_mov_b32 v61, 0
    v_mov_b32 v62, 0
    v_mov_b32 v63, 0
    buffer_store_dwordx4 v[60:63], v5, s[28:31], s36 offen
    """)
    k.lab(zl2)
    if int(os.environ.get("ZST", 1)):
        k(f"""
        s_sub_u32 s36, s54, 96
        s_lshr_b32 s36, s36, 3
        s_mul_i32 s36, s36, 5120
        s_and_b32 s37, s2, 7
        s_mul_i32 s37, s37, {L.GS}
        s_add_u32 s36, s36, s37
        s_add_u32 s36, s36, {L.GRP + L.G_ST1}
        v_lshlrev_b32 v5, 4, v0
        v_mov_b32 v60, 0
        v_mov_b32 v61, 0
        v_mov_b32 v62, 0
        v_mov_b32 v63, 0
        buffer_store_dwordx4 v[60:63], v5, s[28:31], s36 offen
        s_add_u32 s36, s36, 4096
        s_cmp_lg_u32 s20, 0
        s_cbranch_scc1 k1_zst
        buffer_store_dwordx4 v[60:63], v5, s[28:31], s36 offen
        """)
        k.lab("k1_zst")
        k(f"""
        s_and_b32 s37, s2, 7
        s_cmp_eq_u32 s37, 0
        s_cselect_b32 s38, {L.GRP}, 0
        s_cmp_eq_u32 s37, 7
        s_cselect_b32 s38, {L.GRP + 7*L.GS + 17*20480}, s38
        s_cmp_eq_u32 s38, 0
        s_cbranch_scc1 k1_zht
        s_sub_u32 s36, s54, 96
        s_lshr_b32 s36, s36, 3
        s_mul_i32 s36, s36, 5120
        s_add_u32 s36, s36, s38
        buffer_store_dwordx4 v[60:63], v5, s[28:31], s36 offen
        s_add_u32 s36, s36, 4096
        s_cmp_lg_u32 s20, 0
        s_cbranch_scc1 k1_zht
        buffer_store_dwordx4 v[60:63], v5, s[28:31], s36 offen
        """)
        k.lab("k1_zht")
    k("s_getpc_b64 s[40:41]")
    k.lab("k1_pcref")
    k(f"""
    s_sub_u32 s40, s40, k1_pcref-k1_kernel
    s_subb_u32 s41, s41, 0
    s_lshl_b32 s42, s24, 12
    """)
    for i in range(4):
        k(f"""
        s_add_u32 s43, s42, {1024*i}
        s_min_u32 s43, s43, (CODE_END-k1_kernel-1020)&0xfffffff0
        v_add_u32 v6, s43, v1
        global_load_dwordx4 {vr(64+4*i,4)}, v6, s[40:41]
        """)
    if int(os.environ.get("PFW2", 1)):
        k("s_mov_b32 s61, s21")
        k("s_mov_b32 s62, s24")
        k("s_waitcnt vmcnt(0)")
        side_wait(os.environ.get("SWN", 30))
        k("s_mov_b32 s21, s61")
        k("s_mov_b32 s24, s62")
        k.srd(28, 10, 0x10000000)
    for i in range(0 if os.environ.get("NOQPF") else 327680 // WPX // 1024):
        k(f"buffer_load_dwordx4 {vr(8+4*(i%10),4)}, v1, s[16:19], s21 offen offset:{(i%4)*1024}")
        if i % 4 == 3:
            k("s_add_u32 s21, s21, 4096")
    def lines(sreg, n, dst, bits=""):
        i = 0
        while n > 0:
            c = min(64, n)
            if c < 64: k(f"s_mov_b64 exec, {hex((1 << c) - 1) if c <= 31 else None}" if c <= 31 else f"s_mov_b32 exec_hi, {hex((1 << (c - 32)) - 1)}")
            k(f"buffer_load_dword v{dst+i}, v3, s[28:31], s{sreg} offen{bits}")
            if c < 64: k("s_mov_b64 exec, -1")
            else: k(f"s_add_u32 s{sreg}, s{sreg}, 8192")
            n -= c; i += 1
    k(f"""
    s_mul_i32 s22, s22, {L.GS}
    s_add_u32 s22, s22, {L.GRP}
    """)
    if os.environ.get("WARM"):
        k(f"s_mul_i32 s23, s24, {327680 // WPX}\ns_add_u32 s23, s23, s22\ns_add_u32 s23, s23, {L.G_H1S}")
        lines(23, 2560 // WPX, 48)
        k(f"s_mul_i32 s23, s24, {20480 // WPX}\ns_add_u32 s23, s23, s22\ns_add_u32 s23, s23, {L.G_ST1}")
        lines(23, 160 // WPX, 54)
    if os.environ.get("H3W"):
        k(f"s_mul_i32 s23, s24, 27648\ns_add_u32 s23, s23, s22\ns_add_u32 s23, s23, {L.G_H3}")
        lines(23, 216, 54, " nt")
    if os.environ.get("WPF"):
        lp = k.newlab("pfp"); ld = k.newlab("pfd"); le = k.newlab("pfe")
        k(f"""
        v_and_b32 v4, 1, v0
        v_lshlrev_b32 v4, 7, v4
        v_add_u32 v4, {L.FLAGS + L.F_PK + 128}, v4
        v_and_b32 v6, 1, v0
        v_mul_u32_u24 v6, 34, v6
        v_add_u32 v6, 20, v6                            ; targets 20 / 54
        s_mov_b32 s32, 20000
        """)
        k.lab(lp)
        k(f"""
        buffer_load_dword v5, v4, s[28:31], 0 offen sc1
        s_waitcnt vmcnt(0)
        v_cmp_le_u32 vcc, v6, v5
        s_sub_u32 s32, s32, 1
        s_cmp_eq_u64 vcc, -1
        s_cbranch_scc1 {ld}
        s_cmp_eq_u32 s32, 0
        s_cbranch_scc1 {le}
        s_sleep 64
        s_branch {lp}
        """)
        k.lab(ld)
        WPF = os.environ.get("WPF", "23")
        if "1" in WPF:
            k(f"s_mul_i32 s23, s24, 25600\ns_add_u32 s23, s23, {L.W1P}")
            lines(23, 200, 56)
        if "2" in WPF:
            k(f"s_mul_i32 s23, s24, 25600\ns_add_u32 s23, s23, {L.W2P}")
            lines(23, 200, 60)
        if "3" in WPF:
            k(f"s_mul_i32 s23, s24, {70*1024}\ns_add_u32 s23, s23, {L.W3P}")
            lines(23, 560, 64)
        k.lab(le)
    k("s_waitcnt vmcnt(0)")
    k("s_endpgm")
    return k

def build(kerns, path):
    hdr = open("/code/" + NAME + ".s.ref").read().split("\n")
    com = [l for l in hdr if l.startswith(";") and "@launch" not in l and "Override launch" not in l and "grid=ceil" not in l]
    s = "\n".join(com) + "\n"
    for k in kerns:
        s += f"; @launch kernel={k.name} grid=({k.grid},1,1) block=({k.block},1,1) lds={k.lds}\n"
    s += '.amdgcn_target "amdgcn-amd-amdhsa--gfx950"\n.text\n'
    for k in kerns:
        s += k.text()
    s += "CODE_END:\n    s_endpgm\n"
    s += '.section .rodata,"a"\n'
    for k in kerns:
        s += k.kd()
    open(path, "w").write(s)

if __name__ == "__main__":
    out = sys.argv[1] if len(sys.argv) > 1 else "/code/" + NAME + ".s"
    if MERGE:
        k = Kern("k01_kernel", 864, 256, 46080, vgpr=256, sgpr=64)
        if os.environ.get("ORD") == "kvfirst":
            k("""
            s_cmp_ge_u32 s2, 864
            s_cbranch_scc1 k1_end
            s_cmp_lt_u32 s2, 480
            s_cbranch_scc1 k01_k0
            s_sub_u32 s2, s2, 480
            s_branch k01_k1
            """)
        else:
            k("""
            s_cmp_ge_u32 s2, 864
            s_cbranch_scc1 k1_end
            s_cmp_lt_u32 s2, 160
            s_cbranch_scc1 k01_k1
            s_cmp_lt_u32 s2, 600
            s_cbranch_scc1 k01_a
            s_cmp_lt_u32 s2, 819
            s_cbranch_scc1 k01_b
            s_cmp_lt_u32 s2, 824
            s_cbranch_scc1 k1_end
            s_sub_u32 s2, s2, 384
            s_branch k01_k0
            """)
            k.lab("k01_b")
            k("s_sub_u32 s2, s2, 440")
            k("s_branch k01_k1")
            k.lab("k01_a")
            k("s_sub_u32 s2, s2, 160")
        k.lab("k01_k0")
        gen_k0(k)
        k.lab("k01_k1")
        gen_k1(k)
        kerns = [k]
    else:
        kerns = [gen_k1()]
    try:
        import chain
        kerns += chain.kernels(Kern, vr)
    except ImportError:
        pass
    build(kerns, out)
    print("wrote", out)
```

```python
import os, struct
import layout as L
SZ_SD = 2048 * 640 * 2
C0 = -2.0 * 0.7978845608028654 * 1.4426950408889634
C1 = C0 * 0.044715
def fhex(x):
    return "0x%08x" % struct.unpack("<I", struct.pack("<f", x))[0]
E = lambda n, d: int(os.environ.get(n, d))
STOP = E("STOP", 9)
PROF = E("PROF", 0)
NSLOT = 152
SMALL = NSLOT * 1024
YL = 132 * 1024
MODL = 116 * 1024

def ln_finish(k, s1, s2, t, n):
    k(f"""
    v_mul_f32 v{s1}, {fhex(1.0/n)}, v{s1}
    v_mul_f32 v{s2}, {fhex(1.0/n)}, v{s2}
    v_fma_f32 v{s2}, -v{s1}, v{s1}, v{s2}
    v_max_f32 v{s2}, 0, v{s2}
    """)
    k.round2(s1, s2, t)
    k(f"""
    v_add_f32 v{s2}, {fhex(1e-5)}, v{s2}
    v_cvt_pk_bf16_f32 v{t}, v{s2}, v{s2}
    v_lshlrev_b32 v{s2}, 16, v{t}
    v_sqrt_f32 v{s2}, v{s2}
    s_nop 0
    v_cvt_pk_bf16_f32 v{t}, v{s2}, v{s2}
    v_lshlrev_b32 v{s2}, 16, v{t}
    v_rcp_f32 v{s2}, v{s2}
    s_nop 0
    v_mul_f32 v{s1}, v{s1}, v{s2}
    v_sub_f32 v{s1}, 0, v{s1}
    """)

def reduce16(k, a, b):
    for ctl in ("quad_perm:[1,0,3,2]", "quad_perm:[2,3,0,1]", "row_half_mirror", "row_mirror"):
        k("s_nop 0")
        k(f"v_add_f32_dpp v{a}, v{a}, v{a} {ctl} row_mask:0xf bank_mask:0xf")
        k(f"v_add_f32_dpp v{b}, v{b}, v{b} {ctl} row_mask:0xf bank_mask:0xf")

def reduce_g(k, a, b, t):
    for sw in ("v_permlane32_swap_b32", "v_permlane16_swap_b32"):
        k(f"""
        v_mov_b32 v{t}, v{a}
        v_mov_b32 v{t+1}, v{b}
        s_nop 1
        {sw} v{t}, v{a}
        {sw} v{t+1}, v{b}
        s_nop 0
        v_add_f32 v{a}, v{a}, v{t}
        v_add_f32 v{b}, v{b}, v{t+1}
        """)

def gelu4pk(k, vr, z, t, vc):
    for i in (0, 2):
        k(f"v_pk_mul_f32 {vr(t+i,2)}, {vr(z+i,2)}, {vr(z+i,2)}")
    for i in (0, 2):
        k(f"v_pk_fma_f32 {vr(t+i,2)}, {vr(t+i,2)}, {vr(vc,2)}, {vr(vc,2)} op_sel:[0,0,1] op_sel_hi:[1,0,1]")
    for i in (0, 2):
        k(f"v_pk_mul_f32 {vr(t+i,2)}, {vr(t+i,2)}, {vr(z+i,2)}")
    for i in range(4):
        k(f"v_exp_f32 v{t+i}, v{t+i}")
    for i in range(4):
        k(f"v_add_f32 v{t+i}, 1.0, v{t+i}")
    for i in range(4):
        k(f"v_rcp_f32 v{t+i}, v{t+i}")
    k("s_nop 0")
    for i in (0, 2):
        k(f"v_pk_mul_f32 {vr(z+i,2)}, {vr(z+i,2)}, {vr(t+i,2)}")

def ln_gelu_multi(k, vr, tiles, t, vc):
    n = len(tiles)
    T = lambda i: t + 4 * i
    for i, (z, cs, rs) in enumerate(tiles):
        for h in (0, 2):
            k(f"v_pk_mul_f32 {vr(T(i)+h,2)}, {vr(cs+h,2)}, {vr(rs,2)} op_sel_hi:[1,0]")
    for i, (z, cs, rs) in enumerate(tiles):
        for h in (0, 2):
            k(f"v_pk_fma_f32 {vr(z+h,2)}, {vr(z+h,2)}, {vr(rs,2)}, {vr(T(i)+h,2)} op_sel:[0,1,0] op_sel_hi:[1,1,1]")
    for i, (z, cs, rs) in enumerate(tiles):
        for h in (0, 2):
            k(f"v_pk_mul_f32 {vr(T(i)+h,2)}, {vr(z+h,2)}, {vr(z+h,2)}")
    for i, (z, cs, rs) in enumerate(tiles):
        for h in (0, 2):
            k(f"v_pk_fma_f32 {vr(T(i)+h,2)}, {vr(T(i)+h,2)}, {vr(vc,2)}, {vr(vc,2)} op_sel:[0,0,1] op_sel_hi:[1,0,1]")
    for i, (z, cs, rs) in enumerate(tiles):
        for h in (0, 2):
            k(f"v_pk_mul_f32 {vr(T(i)+h,2)}, {vr(T(i)+h,2)}, {vr(z+h,2)}")
    for i in range(n):
        for r in range(4): k(f"v_exp_f32 v{T(i)+r}, v{T(i)+r}")
    for i in range(n):
        for h in (0, 2): k(f"v_pk_add_f32 {vr(T(i)+h,2)}, {vr(T(i)+h,2)}, 1.0 op_sel_hi:[1,0]")
    for i in range(n):
        for r in range(4): k(f"v_rcp_f32 v{T(i)+r}, v{T(i)+r}")
    k("s_nop 0")
    for i, (z, cs, rs) in enumerate(tiles):
        for h in (0, 2):
            k(f"v_pk_mul_f32 {vr(z+h,2)}, {vr(z+h,2)}, {vr(T(i)+h,2)}")

def pack_tiles(k, zs):
    out = []
    i = 0
    prs = []
    while i < len(zs):
        if i + 1 < len(zs):
            a, b = zs[i], zs[i + 1]
            k(f"v_cvt_pk_bf16_f32 v{a}, v{a}, v{a+1}")
            k(f"v_cvt_pk_bf16_f32 v{a+1}, v{a+2}, v{a+3}")
            k(f"v_cvt_pk_bf16_f32 v{a+2}, v{b}, v{b+1}")
            k(f"v_cvt_pk_bf16_f32 v{a+3}, v{b+2}, v{b+3}")
            prs.append(a); out.append((a, 4, i)); i += 2
        else:
            a = zs[i]
            k(f"v_cvt_pk_bf16_f32 v{a}, v{a}, v{a+1}")
            k(f"v_cvt_pk_bf16_f32 v{a+1}, v{a+2}, v{a+3}")
            out.append((a, 2, i)); i += 1
    return out, prs

def swap_pairs(k, prs):
    k("s_nop 1")
    for a in prs:
        k(f"v_permlane16_swap_b32 v{a}, v{a+2}")
        k(f"v_permlane16_swap_b32 v{a+1}, v{a+3}")

class VQ:
    def __init__(self, k): self.k = k; self.q = []
    def op(self, text, tag=None):
        self.k(text); self.q.append(tag)
    def wait(self, tag):
        idx = [i for i, t in enumerate(self.q) if t == tag]
        if not idx: return
        n = len(self.q) - 1 - idx[-1]
        self.k(f"s_waitcnt vmcnt({min(n, 63)})")
        self.q = self.q[idx[-1] + 1:] if n <= 63 else self.q[-63:]
    def drain(self):
        self.k("s_waitcnt vmcnt(0)"); self.q = []
    def reset(self): self.q = []

def gen_chain(Kern, vr):
    k = Kern("k2_kernel", 256, 256, 163840, vgpr=256, sgpr=102, agpr=256)
    ar = lambda a, n: f"a[{a}:{a+n-1}]"
    vq = VQ(k)
    end = "k2_end"
    WS, QS, YS, OS = "s[12:15]", "s[16:19]", "s[20:23]", "s[24:27]"
    nst = [0]
    def stamp():
        if PROF:
            i = nst[0]; nst[0] += 1
            if PROF == 3:
                k(f"s_memtime s[{56+2*i}:{57+2*i}]"); nst[0] += 1
                k(f"s_memrealtime s[{58+2*i}:{59+2*i}]")
            else:
                k(f"{'s_memrealtime' if PROF == 2 else 's_memtime'} s[{56+2*i}:{57+2*i}]")
    def finish(label_end=True):
        k("s_waitcnt vmcnt(0) lgkmcnt(0)")
        if PROF == 2:
            k(f"""
            s_lshl_b32 s41, s2, 2
            s_add_u32 s41, s41, s30
            s_lshl_b32 s41, s41, 7
            s_add_u32 s41, s41, {48 << 20}
            v_mov_b32 v1, 0
            s_mov_b64 exec, 1
            """)
            for i in range(nst[0]):
                k(f"v_mov_b32 v2, s{56+2*i}")
                k(f"buffer_store_dword v2, v1, {WS}, s41 offen offset:{4*i}")
            k(f"v_mov_b32 v2, {nst[0]}")
            k(f"buffer_store_dword v2, v1, {WS}, s41 offen offset:124")
        elif PROF:
            l = k.newlab("prof")
            k(f"""
            s_cmp_lg_u32 s2, {E("PROFWG", 0)}
            s_cbranch_scc1 {l}
            s_cmp_lg_u32 s30, {E("PROFW", 0)}
            s_cbranch_scc1 {l}
            s_load_dwordx2 s[4:5], s[0:1], 112
            s_waitcnt lgkmcnt(0)
            s_mov_b32 s6, 256
            s_mov_b32 s7, 0x00020000
            v_mov_b32 v1, 0
            s_mov_b64 exec, 1
            """)
            for i in range(1, nst[0]):
                k(f"s_sub_u32 s41, s{56+2*i}, s{56 + (2 if (PROF == 3 and i % 2) else 0)}")
                k(f"v_mov_b32 v2, s41")
                k(f"buffer_store_dword v2, v1, s[4:7], 0 offen offset:{4*(i-1)}")
            k.lab(l)
        k("s_endpgm")

    k(f"""
    s_cmp_ge_u32 s2, 256
    s_cbranch_scc1 {end}
    s_load_dwordx2 s[4:5], s[0:1], 0
    s_load_dwordx2 s[6:7], s[0:1], 104
    s_load_dwordx2 s[8:9], s[0:1], 120
    s_getreg_b32 s42, hwreg(HW_REG_XCC_ID, 0, 4)
    v_lshrrev_b32 v2, 6, v0
    v_and_b32 v1, 63, v0
    v_readfirstlane_b32 s30, v2          ; wave
    s_and_b32 s28, s2, 7                 ; group
    s_lshr_b32 s29, s2, 3                ; member
    s_lshr_b32 s32, s29, 3
    s_and_b32 s33, s29, 7                ; j
    s_lshr_b32 s34, s29, 4
    s_and_b32 s35, s29, 15               ; j3
    s_mul_i32 s36, s28, {L.GS}
    s_add_u32 s36, s36, {L.GRP}
    s_lshl_b32 s37, s28, 13
    s_add_u32 s37, s37, {L.FLAGS}
    s_add_u32 s42, s42, 1
    s_mov_b32 s31, 0
    v_lshlrev_b32 v2, 4, v1              ; lane*16
    v_lshrrev_b32 v3, 4, v1              ; g
    v_and_b32 v4, 15, v1                 ; m
    v_lshrrev_b32 v8, 1, v3
    v_lshl_add_u32 v8, v8, 4, v4
    v_and_b32 v9, 1, v3
    v_lshl_add_u32 v8, v8, 1, v9
    v_lshlrev_b32 v8, 3, v8
    v_lshlrev_b32 v5, 7, v1
    v_and_b32 v9, 1, v3
    v_lshlrev_b32 v9, 1, v9
    v_lshrrev_b32 v10, 1, v3
    v_or_b32 v9, v9, v10
    v_lshlrev_b32 v9, 8, v9
    v_lshl_add_u32 v254, v4, 4, v9
    s_waitcnt lgkmcnt(0)
    """)
    stamp()
    k.srd(12, 8, 0x10000000); k.srd(16, 4, SZ_SD); k.srd(24, 6, SZ_SD)
    l = k.newlab()
    k(f"""
    s_cmp_lg_u32 s30, 0
    s_cbranch_scc1 {l}
    s_lshl_b32 s41, s29, 2
    s_add_u32 s41, s41, s37
    v_mov_b32 v9, s42
    v_mov_b32 v10, {L.F_XID}
    s_mov_b64 exec, 1
    buffer_store_dword v9, v10, {WS}, s41 offen sc1
    s_mov_b64 exec, -1
    """)
    k.lab(l)

    class Dma:
        def __init__(self, p0, n, srcbase_s, srcoff, sm, so):
            self.i = 0; self.n = n; self.sm = sm; self.so = so
            slot0 = p0 % NSLOT
            assert slot0 + 4 * n <= NSLOT
            k(f"""
            s_mul_i32 s{sm}, s30, {n*1024}
            s_add_u32 s{so}, s{sm}, s{srcbase_s}
            s_add_u32 s{so}, s{so}, {srcoff}
            s_add_u32 s{sm}, s{sm}, {slot0*1024}
            """)
        def left(self): return self.n - self.i
        def one(self, tag="w"):
            o = (self.i % 4) * 1024
            k(f"s_mov_b32 m0, s{self.sm}")
            k("s_nop 0")
            if not E("NOWD", 0): vq.op(f"buffer_load_dwordx4 v2, {WS}, s{self.so} offen offset:{o} lds", tag)
            self.i += 1
            if self.i % 4 == 0 and self.i < self.n:
                k(f"s_add_u32 s{self.sm}, s{self.sm}, 4096")
                k(f"s_add_u32 s{self.so}, s{self.so}, 4096")
        def some(self, n, tag="w"):
            for _ in range(min(n, self.left())): self.one(tag)
    class W4:
        def __init__(self): self.i = 0
        def left(self): return 64 - self.i
        def one(self, tag="w4"):
            i = self.i
            if not E("NOW4", 0): vq.op(f"buffer_load_dwordx4 {ar(4*i,4)}, v2, {WS}, s40 offen offset:{(i%4)*1024}", tag)
            self.i += 1
            if self.i % 4 == 0: k("s_add_u32 s40, s40, 4096")
            if self.i == 60:
                k("s_cmp_eq_u32 s30, 3")
                k(f"s_cselect_b32 s41, {60*1024}, 0")
                k("s_sub_u32 s40, s40, s41")
        def some(self, n):
            for _ in range(min(n, self.left())): self.one()
    k(f"""
    s_mul_i32 s44, s33, {100*1024}
    s_mul_i32 s45, s35, {140*1024}
    s_add_u32 s45, s45, {L.W3P}
    s_mul_i32 s40, s33, {280*1024}
    s_mul_i32 s41, s30, {70*1024}
    s_add_u32 s40, s40, s41
    s_add_u32 s40, s40, {L.W4P}
    """)
    w4 = W4()
    def small_vectors():
        lsm1 = k.newlab("sm"); lsm2 = k.newlab("sm"); lsm3 = k.newlab("sm")
        k(f"""
        s_cmp_eq_u32 s30, 1
        s_cbranch_scc1 {lsm1}
        s_cmp_ge_u32 s30, 2
        s_cbranch_scc1 {lsm2}
        s_mul_i32 s41, s33, 320
        s_add_u32 s41, s41, {L.CS1P}
        s_mov_b32 m0, {SMALL}
        s_mov_b64 exec, 0xfffff
        buffer_load_dwordx4 v2, {WS}, s41 offen lds
        s_add_u32 s41, s41, {1792*4}
        s_mov_b32 m0, {SMALL + 512}
        s_nop 0
        buffer_load_dwordx4 v2, {WS}, s41 offen lds
        s_branch {lsm3}
        """)
        k.lab(lsm1)
        k(f"""
        s_mul_i32 s41, s35, 448
        s_add_u32 s41, s41, {L.CS3P}
        s_mov_b32 m0, {SMALL + 1024}
        s_mov_b64 exec, 0xfffffff
        buffer_load_dwordx4 v2, {WS}, s41 offen lds
        s_add_u32 s41, s41, {1792*4}
        s_mov_b32 m0, {SMALL + 1536}
        s_nop 0
        buffer_load_dwordx4 v2, {WS}, s41 offen lds
        s_branch {lsm3}
        """)
        k.lab(lsm2)
        k(f"""
        s_mul_i32 s41, s33, 320
        s_add_u32 s41, s41, {L.MODF + 5*2560}
        s_mov_b32 m0, {SMALL + 2048}
        s_mov_b64 exec, 0xfffff
        buffer_load_dwordx4 v2, {WS}, s41 offen lds
        """)
        k.lab(lsm3)
        k("s_mov_b64 exec, -1")
        vq.q += ['sm']
    k(f"""
    s_lshl_b32 s46, s32, 2
    s_add_u32 s46, s46, s30
    s_mul_i32 s47, s46, 20480
    s_mul_i32 s41, s33, 2560
    s_add_u32 s47, s47, s41
    s_add_u32 s54, s47, s36
    s_lshl_b32 s55, s46, 7
    s_add_u32 s55, s55, s37
    s_mul_i32 s22, s28, 327680
    s_add_u32 s22, s22, s47
    s_add_u32 s22, s22, {L.KVR}
    """)
    def touch_h1s():
        k(f"s_add_u32 s47, s54, {L.G_H1S}")
        k("s_mov_b64 exec, 0xfffff")
        touch(47, 188)
        k("s_mov_b64 exec, -1")

    def poll(sbase, thr=None):
        lp = k.newlab("poll"); ld = k.newlab("go")
        k(f"s_mov_b32 s43, {E('SPIN', 200000)}")
        k.lab(lp)
        k(f"""
        buffer_load_dword v9, v7, {WS}, s{sbase} offen sc1
        s_waitcnt vmcnt(0)
        {"v_cmp_ne_u32 vcc, 0, v9" if thr is None else f"v_cmp_le_u32 vcc, v{thr}, v9"}
        s_sub_u32 s43, s43, 1
        s_cmp_eq_u64 vcc, -1
        s_cbranch_scc1 {ld}
        s_cmp_lg_u32 s43, 0
        s_cbranch_scc1 {lp}
        """)
        k.lab(ld)
        vq.reset()
    def xid_load(reg):
        k(f"v_and_b32 v{reg+1}, 31, v1")
        k(f"v_lshlrev_b32 v{reg+1}, 2, v{reg+1}")
        k(f"s_add_u32 s41, s37, {L.F_XID}")
        vq.op(f"buffer_load_dword v{reg}, v{reg+1}, {WS}, s41 offen sc1", "xid")
    def xid_eval(reg):
        vq.wait("xid")
        lp = k.newlab("xp"); ld = k.newlab("xd")
        k(f"s_mov_b32 s43, {E('SPIN', 200000)}")
        k.lab(lp)
        k(f"""
        v_cmp_ne_u32 vcc, 0, v{reg}
        s_sub_u32 s43, s43, 1
        s_cmp_eq_u64 vcc, -1
        s_cbranch_scc1 {ld}
        s_cmp_eq_u32 s43, 0
        s_cbranch_scc1 {ld}
        s_add_u32 s41, s37, {L.F_XID}
        buffer_load_dword v{reg}, v{reg+1}, {WS}, s41 offen sc1
        s_waitcnt vmcnt(0)
        s_branch {lp}
        """)
        k.lab(ld)
        k(f"""
        v_cmp_eq_u32 vcc, s42, v{reg}
        s_nop 1
        s_cmp_eq_u64 vcc, -1
        s_cselect_b32 s31, 1, 0
        """)
        if E("SLOW", 0): k("s_mov_b32 s31, 0")
    def stores(lst, flag_s, flag_off):
        ls = k.newlab("slow"); lj = k.newlab("sent")
        k(f"s_cmp_eq_u32 s31, 0")
        k(f"s_cbranch_scc1 {ls}")
        for sc in ("", " sc1"):
            dsc = " sc1" if E("MIXED", 0) else sc
            for t in lst:
                lines = t.strip("\n").split("\n")
                k("\n".join((x + dsc if x.strip().startswith("buffer_store") else x) for x in lines))
            k(f"""
            s_waitcnt vmcnt(0)
            v_mov_b32 v9, 1
            v_mov_b32 v10, {flag_off}
            s_mov_b64 exec, 1
            buffer_store_dword v9, v10, {WS}, s{flag_s} offen{sc}
            s_mov_b64 exec, -1
            """)
            if sc == "":
                k(f"s_branch {lj}")
                k.lab(ls)
        k.lab(lj)
        vq.reset(); vq.q.append("flag")
    def touch(sreg, dst=9):
        if E("NOTOUCH", 1): return
        k(f"s_cmp_eq_u32 s31, 0")
        k(f"s_cselect_b32 s41, {L.W1P}, s{sreg}")
        vq.op(f"buffer_load_dword v{dst}, v5, {WS}, s41 offen", "touch")

    XR, YR, XF, MT, T = 16, 36, 56, 96, 120
    w1 = Dma(0, 25, 44, L.W1P, 38, 39)
    nob0 = k.newlab("nob0"); join0 = k.newlab("join0")
    k(f"""
    s_cmp_ge_u32 s29, 18
    s_cbranch_scc1 {nob0}
    s_lshl_b32 s46, s28, 8
    s_lshl_b32 s47, s29, 4
    s_add_u32 s46, s46, s47
    s_sub_u32 s46, s46, 16               ; global row of tile row 0 (signed)
    s_lshl_b32 s47, s30, 2
    s_add_u32 s47, s47, s46              ; first row of the wave
    v_add_u32 v11, s47, v3               ; global row
    v_mul_lo_u32 v6, v11, s48
    """.replace("v_mul_lo_u32 v6, v11, s48", "s_movk_i32 s48, 1280\n    v_mul_lo_u32 v6, v11, s48"))
    k("v_lshl_add_u32 v6, v4, 4, v6")
    for t in range(5):
        vq.op(f"buffer_load_dwordx4 {vr(XR+4*t,4)}, v6, {QS}, 0 offen offset:{256*t}", "q")
    if E("PROFQ", 0): stamp()
    k(f"""
    s_mul_i32 s47, s29, 20480
    s_mul_i32 s48, s30, 5120
    s_add_u32 s47, s47, s48
    s_add_u32 s47, s47, s36
    v_add_u32 v12, s47, v2
    s_add_u32 s48, s48, {YL}
    s_mov_b32 m0, s48
    s_nop 0
    """)
    for i in range(4):
        vq.op(f"buffer_load_dwordx4 v12, {WS}, 0 offen offset:{1024*i} lds", "y")
    k(f"""
    s_add_u32 s48, s48, 4096
    s_mov_b32 m0, s48
    s_movk_i32 s47, 4096
    """)
    vq.op(f"buffer_load_dwordx4 v12, {WS}, s47 offen lds", "y")
    k(f"""
    s_lshl_b32 s47, s30, 12
    s_add_u32 s48, s47, {MODL}
    """)
    for i in range(4):
        k(f"""
        s_add_u32 s41, s47, {1024*i}
        s_min_u32 s41, s41, {15360 - 1024}
        s_add_u32 s41, s41, {L.MODF}
        s_add_u32 m0, s48, {1024*i}
        s_nop 0
        """)
        vq.op(f"buffer_load_dwordx4 v2, {WS}, s41 offen lds", "y")
    w4_b0 = E("NW40", 0)
    k(f"""
    v_lshl_add_u32 v15, s30, 2, v3
    v_lshrrev_b32 v7, 1, v15
    v_and_b32 v9, 7, v4
    v_xor_b32 v7, v7, v9
    v_and_b32 v9, 1, v15
    v_lshl_add_u32 v7, v7, 1, v9
    v_lshlrev_b32 v7, 3, v7
    v_lshl_add_u32 v7, v4, 8, v7
    v_add_u32 v7, {YL}, v7
    v_lshlrev_b32 v10, 5, v4
    v_add_u32 v10, {MODL}, v10
    v_lshrrev_b32 v12, 2, v4
    v_and_b32 v13, 3, v4
    v_lshl_add_u32 v13, v13, 4, v15
    v_lshlrev_b32 v13, 4, v13
    v_lshl_add_u32 v6, v12, 10, v13
    s_movk_i32 s48, 2048
    v_cmp_gt_u32 {"s[50:51]"}, s48, v11
    """)
    S1, S2, N1, N2, ONE = T, T + 1, T + 4, T + 5, T + 6
    k(f"""
    v_mov_b32 v{S1}, 0
    v_mov_b32 v{S2}, 0
    v_mov_b32 v{N1}, 0
    v_mov_b32 v{N2}, 0
    v_mov_b32 v{ONE}, 0x3f803f80
    """)
    vq.wait("q")
    stamp()
    for d in range(20):
        k(f"v_dot2_f32_bf16 v{S1}, v{XR+d}, v{ONE}, v{S1}")
        k(f"v_dot2_f32_bf16 v{S2}, v{XR+d}, v{XR+d}, v{S2}")
        k.unpack(XF + 2*d, XF + 2*d + 1, XR + d)
        if d == 2: small_vectors()
        if d >= 4 and d % 2 == 0 and w1.i < E("NW1A", 8): w1.one()
    k("s_nop 1")
    reduce16(k, S1, S2)
    ln_finish(k, S1, S2, T + 2, 640)
    if E("PROFB0", 0): stamp()
    vq.wait("y")
    if E("PROFB0", 0): stamp()
    k("s_barrier")
    for t in range(5):
        k(f"ds_read_b64 {vr(YR+4*t,2)}, v7 offset:{t*4096}")
        k(f"ds_read_b64 {vr(YR+4*t+2,2)}, v7 offset:{t*4096+128}")
    BC = "op_sel:[0,1,0] op_sel_hi:[1,1,0]"
    TP, TY, MT2 = 144, 152, 160
    MTB = lambda t: (MT if t % 2 == 0 else MT2)
    def modread(t, vecs):
        for vi, vec in enumerate(vecs):
            k(f"ds_read_b128 {vr(MTB(t)+8*vi,4)}, v10 offset:{vec*2560+t*512}")
            k(f"ds_read_b128 {vr(MTB(t)+8*vi+4,4)}, v10 offset:{vec*2560+t*512+16}")
    modread(0, (1, 0, 2))
    for t in range(5):
        M = MTB(t)
        if t < 4:
            modread(t + 1, (1, 0, 2)); k("s_waitcnt lgkmcnt(6)")
        else:
            k("s_waitcnt lgkmcnt(0)")
        D4 = range(4)
        e = lambda d: XF + 8*t + 2*d
        for _ in range((E("NW1B", 0) + 4) // 5):
            if w1.i < E("NW1A", 8) + E("NW1B", 0): w1.one()
        for d in D4: k.unpack(TY + 2*d, TY + 2*d + 1, YR + 4*t + d)
        for d in D4: k(f"v_pk_fma_f32 {vr(TP+2*d,2)}, {vr(e(d),2)}, {vr(S1,2)}, {vr(S1,2)} {BC}")
        for d in D4: k(f"v_pk_fma_f32 {vr(TP+2*d,2)}, {vr(TP+2*d,2)}, {vr(M+2*d,2)}, {vr(M+8+2*d,2)}")
        for _ in range((w4_b0 + 4) // 5):
            if w4.i < w4_b0: w4.one()
        for d in D4: k(f"v_pk_mul_f32 {vr(TP+2*d,2)}, {vr(TP+2*d,2)}, {vr(TY+2*d,2)}")
        for d in D4: k(f"v_pk_fma_f32 {vr(e(d),2)}, {vr(M+16+2*d,2)}, {vr(TP+2*d,2)}, {vr(e(d),2)}")
        for d in D4: k(f"v_cvt_pk_bf16_f32 v{XR+4*t+d}, v{e(d)}, v{e(d)+1}")
        for d in D4:
            if E("XARND", 0):
                k(f"v_lshlrev_b32 v{e(d)}, 16, v{XR+4*t+d}")
                k(f"v_and_b32 v{e(d)+1}, 0xffff0000, v{XR+4*t+d}")
            k(f"v_dot2_f32_bf16 v{N1}, v{XR+4*t+d}, v{ONE}, v{N1}")
            k(f"v_dot2_f32_bf16 v{N2}, v{XR+4*t+d}, v{XR+4*t+d}, v{N2}")
    if E("PROFB0", 0): stamp()
    xid_load(190)
    modread(0, (4, 3))
    k("s_nop 1")
    reduce16(k, N1, N2)
    ln_finish(k, N1, N2, T + 2, 640)
    k(f"v_mov_b32 v{S1}, 0")
    k(f"v_mov_b32 v{S2}, 0")
    for t in range(5):
        M = MTB(t)
        if t < 4:
            modread(t + 1, (4, 3)); k("s_waitcnt lgkmcnt(4)")
        else:
            k("s_waitcnt lgkmcnt(0)")
        e = lambda d: XF + 8*t + 2*d
        for d in range(4): k(f"v_pk_fma_f32 {vr(e(d),2)}, {vr(e(d),2)}, {vr(N1,2)}, {vr(N1,2)} {BC}")
        for d in range(4): k(f"v_pk_fma_f32 {vr(e(d),2)}, {vr(e(d),2)}, {vr(M+2*d,2)}, {vr(M+8+2*d,2)}")
        for d in range(4): k(f"v_cvt_pk_bf16_f32 v{YR+4*t+d}, v{e(d)}, v{e(d)+1}")
        for d in range(4):
            k(f"v_dot2_f32_bf16 v{S1}, v{YR+4*t+d}, v{ONE}, v{S1}")
            k(f"v_dot2_f32_bf16 v{S2}, v{YR+4*t+d}, v{YR+4*t+d}, v{S2}")
    k("s_nop 1")
    reduce16(k, S1, S2)
    ln_finish(k, S1, S2, T + 2, 640)
    k(f"""
    v_cndmask_b32 v{S1}, 0, v{S1}, s[50:51]
    v_cndmask_b32 v{S2}, 0, v{S2}, s[50:51]
    s_mul_i32 s46, s29, 20480
    s_add_u32 s46, s46, s36
    s_add_u32 s47, s46, {L.G_XA - 20480}
    s_lshl_b32 s48, s29, 7
    s_add_u32 s48, s48, s36
    s_add_u32 s48, s48, {L.G_ST3}
    v_lshlrev_b32 v12, 3, v15            ; m*8
    s_lshl_b32 s49, s29, 7
    s_add_u32 s49, s49, s37
    s_lshl_b32 s41, s30, 2
    s_add_u32 s49, s49, s41
    """)
    if E("PROFB0", 0): stamp()
    xid_eval(190)
    TL = MODL
    TL = 112 * 1024
    k(f"""
    s_barrier
    v_and_b32 v9, 7, v4
    v_xor_b32 v9, v15, v9                ; m ^ (c&7)
    v_and_b32 v10, 3, v4
    v_lshl_add_u32 v9, v10, 4, v9
    v_lshrrev_b32 v10, 2, v4
    v_lshl_add_u32 v9, v10, 6, v9
    v_lshlrev_b32 v9, 4, v9
    v_add_u32 v9, {TL}, v9
    """)
    for t in range(5):
        k(f"ds_write_b128 v9, {vr(YR+4*t,4)} offset:{4096*t}")
        k(f"ds_write_b128 v9, {vr(XR+4*t,4)} offset:{20480+4096*t}")
    k(f"""
    v_xor_b32 v9, v4, v3
    v_xor_b32 v10, 4, v9
    v_lshl_add_u32 v9, v3, 4, v9
    v_lshl_add_u32 v10, v3, 4, v10
    s_mul_i32 s41, s30, 5120
    s_add_u32 s41, s41, {TL}
    v_lshl_add_u32 v9, v9, 4, s41
    v_lshl_add_u32 v10, v10, 4, s41
    s_cmp_eq_u32 s30, 1
    s_cselect_b32 s41, 1, 0
    s_cmp_eq_u32 s30, 3
    s_cselect_b32 s41, 1, s41
    s_cmp_eq_u32 s41, 1
    v_mov_b32 v11, v9
    s_cbranch_scc0 {"k2_noswap"}
    v_mov_b32 v9, v10
    v_mov_b32 v10, v11
    """)
    k.lab("k2_noswap")
    k(f"""
    s_mul_i32 s41, s30, 5120
    s_add_u32 s46, s46, s41
    s_add_u32 s47, s47, s41
    s_waitcnt lgkmcnt(0)
    s_barrier
    """)
    for i in range(5):
        k(f"ds_read_b128 {vr(YR+4*i,4)}, v{9 + (i & 1)} offset:{1024*i}")
    XAR = 220
    for i in range(5):
        k(f"ds_read_b128 {vr(XAR+4*i,4)}, v{9 + (i & 1)} offset:{20480+1024*i}")
    k("s_add_u32 s52, s46, 4096")
    k(f"""
    s_sub_u32 s41, s29, 1
    s_cmp_lt_u32 s41, 16
    s_cselect_b32 s20, s47, 0x90000000
    """)
    def xa_block(sc):
        _U.n += 1
        lab = f"k2_noxa{_U.n}"
        k(f"s_sub_u32 s41, s29, 1\ns_cmp_ge_u32 s41, 16\ns_cbranch_scc1 {lab}")
        for i in range(5):
            k(f"s_waitcnt lgkmcnt({4-i})")
            k(f"buffer_store_dwordx4 {vr(XR+4*i,4)}, v2, {WS}, s{47 if i < 4 else 53} offen offset:{(i%4)*1024}{sc}")
        k.lab(lab)
    class _U:
        n = 0
    ls = k.newlab("slow"); lj = k.newlab("sent")
    k("s_cmp_eq_u32 s31, 0"); k(f"s_cbranch_scc1 {ls}")
    for sc in ("", " sc1"):
        dsc = " sc1" if E("MIXED", 0) else sc
        for i in range(5):
            k(f"s_waitcnt lgkmcnt({9-i})")
            k(f"buffer_store_dwordx4 {vr(YR+4*i,4)}, v2, {WS}, s{46 if i < 4 else 52} offen offset:{(i%4)*1024}{dsc}")
        k(f"""
        v_cmp_eq_u32 vcc, 0, v4
        s_and_saveexec_b64 s[50:51], vcc
        buffer_store_dwordx2 {vr(S1,2)}, v12, {WS}, s48 offen{dsc}
        s_mov_b64 exec, -1
        """)
        k(f"""
        s_waitcnt vmcnt(0)
        v_mov_b32 v9, 1
        v_mov_b32 v10, {L.F_B0}
        s_mov_b64 exec, 1
        buffer_store_dword v9, v10, {WS}, s49 offen{sc}
        s_mov_b64 exec, -1
        """)
        if sc == "":
            k(f"s_branch {lj}"); k.lab(ls)
    k.lab(lj)
    k("s_mov_b32 s21, s49")
    stamp()
    i0 = w1.i
    w1.some(99)
    k(f"s_branch {join0}")
    w4_done_b0 = w4.i
    k.lab(nob0)
    k("s_mov_b32 s21, 0")
    k("s_mov_b32 s20, 0x90000000")
    w1.i = 0
    k(f"""
    s_mul_i32 s38, s30, {25*1024}
    s_add_u32 s39, s38, s44
    s_add_u32 s39, s39, {L.W1P}
    """)
    xid_load(190)
    xid_eval(190)
    small_vectors()
    w1.some(99)
    w4.i = 0
    w4.some(w4_done_b0)
    if E("OUTTLB", 1):
        k(f"""
        s_mul_i32 s47, s28, 327680
        s_lshl_b32 s48, s29, 13
        s_add_u32 s47, s47, s48
        v_mov_b32 v101, 0
        s_mov_b64 exec, 1
        buffer_load_dword v102, v101, {OS}, s47 offen
        s_mov_b64 exec, -1
        """)
        if E("GRPTLB", 0):
            k(f"""
            v_lshlrev_b32 v101, 16, v1
            s_mov_b64 exec, {hex((1 << ((L.GS + 65535) // 65536)) - 1)}
            buffer_load_dword v103, v101, {WS}, s36 offen
            s_mov_b64 exec, -1
            """)
    if E("K2TOUCH", 1):
        lt = k.newlab("nt")
        k(f"""
        s_cmp_eq_u32 s31, 0
        s_cbranch_scc1 {lt}
        s_sub_u32 s47, s29, 18
        s_lshl_b32 s47, s47, 2
        s_add_u32 s47, s47, s30              ; 0..55
        s_mul_i32 s48, s47, {6*1024}
        s_min_u32 s48, s48, {327680 - 6*1024}
        s_mul_i32 s49, s28, 327680
        s_add_u32 s48, s48, s49
        s_add_u32 s48, s48, {L.KVR}
        """)
        for i in range(6):
            k(f"buffer_load_dwordx4 {vr(64+4*i,4)}, v2, {WS}, s48 offen offset:{(i%4)*1024}")
            if i == 3: k("s_add_u32 s48, s48, 4096")
        k(f"""
        s_mul_i32 s48, s47, 384
        s_min_u32 s48, s48, {20480 - 384}
        s_add_u32 s48, s48, s36
        s_add_u32 s48, s48, {L.G_ST1}
        s_mov_b64 exec, 7
        buffer_load_dword v100, v5, {WS}, s48 offen
        s_mov_b64 exec, -1
        """)
        k.lab(lt)
    PFM = E("PFM", 0)
    if PFM:
        k(f"""
        s_sub_u32 s47, s29, 18
        s_lshl_b32 s47, s47, 2
        s_add_u32 s47, s47, s30              ; 0..55
        s_mul_i32 s48, s47, {15*1024}
        s_min_u32 s48, s48, {800*1024 - 15*1024}
        s_add_u32 s48, s48, {L.W2P}
        """)
        for _ in range(E("PFSL", 0)): k("s_sleep 127")
        for i in range(15):
            vq.op(f"buffer_load_dwordx4 {vr(64+4*(i%16),4)}, v2, {WS}, s48 offen offset:{(i%4)*1024}", "pf")
            if i % 4 == 3: k("s_add_u32 s48, s48, 4096")
    if PFM >= 2:
        k(f"""
        s_mul_i32 s48, s47, 15
        s_min_u32 s48, s48, {16*52 - 15}
        s_mul_i32 s49, s48, {65536 // 52 + 1}
        s_lshr_b32 s49, s49, 16
        s_mul_i32 s41, s49, 52
        s_sub_u32 s48, s48, s41
        s_mul_i32 s49, s49, 140
        s_add_u32 s48, s48, s49
        s_lshl_b32 s48, s48, 10
        s_add_u32 s48, s48, {L.W3P}
        """)
        for i in range(15):
            vq.op(f"buffer_load_dwordx4 {vr(128+4*(i%16),4)}, v2, {WS}, s48 offen offset:{(i%4)*1024}", "pf")
            if i % 4 == 3: k("s_add_u32 s48, s48, 4096")
    k.lab(join0)
    vq.reset()
    if STOP == 0:
        finish(); k.lab(end); k("s_endpgm"); return k

    GX, GW, GA, GT = 16, 96, 156, 176
    VC = 12
    XPRE = E("XPRE", 4)
    def gemm5(stage, pos0, inloop, xone, kbar=None):
        def wread(ks, nt):
            slot = (pos0 + ks * 5 + nt) % NSLOT
            o = slot * 1024
            k(f"ds_read_b128 {vr(GW+(ks%3)*20+4*nt,4)}, v{14 + (o >> 16)} offset:{o & 0xffff}")
        for ks in range(2):
            for nt in range(5): wread(ks, nt)
        xn = [XPRE]
        for ks in range(20):
            if E("PROFG1", 0) == stage and ks in (0, 1, 2, 5, 10, 15): stamp()
            vq.wait(f"x{ks}")
            k(f"s_waitcnt lgkmcnt({5 if ks < 19 else 0})")
            if ks == kbar: k("s_barrier")
            for nt in range(5):
                c = "0" if ks == 0 else vr(GA + 4*nt, 4)
                k(f"v_mfma_f32_16x16x32_bf16 {vr(GA+4*nt,4)}, {vr(GW+(ks%3)*20+4*nt,4)}, {vr(GX+4*ks,4)}, {c}")
                if ks + 2 < 20 and nt >= 1:
                    wread(ks + 2, nt - 1)
                    if nt == 4: wread(ks + 2, 4)
                if nt in (0, 3) and xn[0] < 20: xone(xn[0]); xn[0] += 1
                if nt in (1, 4): inloop(ks, nt)
    def lds_bases():
        k("v_mov_b32 v14, v2")
        k("v_add_u32 v15, 0x10000, v2")
    def fix_bank(text): return text.replace("v16 offset", "v11 offset")

    k(f"""
    s_lshl_b32 s46, s32, 2
    s_add_u32 s46, s46, s30              ; rt (0..15)
    s_lshr_b32 s47, s33, 1
    s_and_b32 s48, s47, 1
    s_lshr_b32 s47, s47, 1
    s_add_u32 s47, s47, 1                ; |shift|
    s_sub_u32 s49, 0, s47
    s_cmp_eq_u32 s48, 1
    s_cselect_b32 s47, s47, s49
    s_lshl_b32 s49, s46, 4
    s_add_u32 s49, s49, 16
    s_add_u32 s49, s49, s47
    v_add_u32 v9, s49, v4
    v_lshrrev_b32 v10, 4, v9
    v_mul_u32_u24 v6, 20480, v10
    v_and_b32 v10, 15, v9
    v_lshl_add_u32 v10, v3, 4, v10
    v_lshl_add_u32 v6, v10, 4, v6
    v_lshlrev_b32 v13, 3, v9
    s_add_u32 s49, s46, s48
    s_lshl_b32 s49, s49, 7
    s_add_u32 s49, s49, s37
    v_bfe_u32 v7, v1, 2, 1
    v_lshlrev_b32 v7, 7, v7
    v_and_b32 v9, 3, v1
    v_lshl_add_u32 v7, v9, 2, v7
    """)
    poll(49)
    stamp()
    def xload1(vaddr, sb, i):
        k(f"s_add_u32 s41, s{sb}, {(i//4)*4096}")
        vq.op(f"buffer_load_dwordx4 {vr(GX+4*i,4)}, v{vaddr}, {WS}, s41 offen offset:{(i%4)*1024} sc1", f"x{i}")
    for i in range(XPRE): xload1(6, 36, i)
    k(f"s_add_u32 s41, s36, {L.G_ST3}")
    vq.op(f"buffer_load_dwordx2 {vr(GT,2)}, v13, {WS}, s41 offen sc1", "st")
    k("v_mov_b32 v14, v2")
    k("v_add_u32 v15, 0x10000, v2")
    k("v_add_u32 v11, 0x20000, v2")
    k("s_barrier")
    w2a = Dma(100, 13, 44, L.W2P, 38, 39)
    def l2pf(base, i, per, first_s):
        if i == 0:
            k(f"""
            s_lshl_b32 s{first_s}, s29, 2
            s_add_u32 s{first_s}, s{first_s}, s30
            s_mul_i32 s{first_s}, s{first_s}, {per*128}
            s_add_u32 s{first_s}, s{first_s}, {base}
            """)
        n = min(64, per - 64 * i)
        if n < 64: k(f"s_mov_b64 exec, {hex((1 << n) - 1)}")
        vq.op(f"buffer_load_dword v{232+i}, v5, {WS}, s{first_s} offen", "pf")
        if n < 64: k("s_mov_b64 exec, -1")
        k(f"s_add_u32 s{first_s}, s{first_s}, 8192")
    st1 = {"w2b": None, "xa": 0}
    def g1_in(ks, nt):
        if ks < E("G1W", 8): return
        if st1["xa"] < 5 and nt == 4 and not E("XALATE", 0):
            i = st1["xa"]; st1["xa"] += 1
            k(f"s_add_u32 s41, s20, {1024*i}")
            vq.op(f"buffer_store_dwordx4 {vr(XAR+4*i,4)}, v2, {WS}, s41 offen sc1", "xas")
            return
        if w2a.left(): w2a.one(); return
        if st1["w2b"] is None: st1["w2b"] = Dma(152, 12, 44, L.W2P + 52 * 1024, 38, 39)
        if st1["w2b"].left(): st1["w2b"].one()
    n0 = len(k.L)
    gemm5(1, 0, g1_in, lambda i: xload1(6, 36, i), kbar=9)
    k.L[n0:] = [x.replace("v16 offset", "v11 offset") if "ds_read_b128" in x else x for x in k.L[n0:]]
    stamp()
    k("s_barrier")
    while st1["xa"] < 5:
        i = st1["xa"]; st1["xa"] += 1
        k(f"s_add_u32 s41, s20, {1024*i}")
        vq.op(f"buffer_store_dwordx4 {vr(XAR+4*i,4)}, v2, {WS}, s41 offen sc1", "xas")
    w2a.some(99)
    if st1["w2b"] is None: st1["w2b"] = Dma(152, 12, 44, L.W2P + 52 * 1024, 38, 39)
    st1["w2b"].some(99)
    w3a = Dma(200, 13, 45, 0, 38, 39)
    w3a.some(E("NW3A", 13))
    RS = GT
    CSR = GT + 4
    k(f"""
    v_lshlrev_b32 v9, 4, v3
    v_add_u32 v9, {SMALL}, v9
    v_mov_b32 v{VC}, {fhex(C1)}
    v_mov_b32 v{VC+1}, {fhex(C0)}
    """)
    for nt in range(5):
        k(f"ds_read_b128 {vr(CSR+4*nt,4)}, v9 offset:{64*nt}")
        k(f"ds_read_b128 {vr(CSR+20+4*nt,4)}, v9 offset:{512+64*nt}")
    vq.wait("st")
    TT = CSR + 40
    k("s_waitcnt lgkmcnt(0)")
    for nt in range(5):
        cs = CSR + 4*nt
        for i in (0, 2):
            k(f"v_pk_add_f32 {vr(cs+i,2)}, {vr(cs+i,2)}, {vr(cs+20+i,2)}")
    ln_gelu_multi(k, vr, [(GA + 4*nt, CSR + 4*nt, RS) for nt in range(5)], CSR + 20, VC)
    g1pk, prs = pack_tiles(k, [GA + 4*nt for nt in range(5)])
    swap_pairs(k, prs)
    k(f"""
    s_mov_b32 s46, s22
    s_lshl_b32 s41, s33, 2
    s_add_u32 s49, s55, s41              ; + j*4
    """)
    def tile_stores(lst, sb):
        return [(f"buffer_store_dwordx4 {vr(r,4)}, v254, {WS}, s{sb} offen offset:{512*i}" if n == 4 else f"buffer_store_dwordx2 {vr(r,2)}, v8, {WS}, s{sb} offen offset:{512*i}") for r, n, i in lst]
    stores(tile_stores(g1pk, 46), 49, L.F_G1)
    lxa = k.newlab("xas"); lxb = k.newlab("xas"); lxc = k.newlab("xas")
    k(f"""
    s_cmp_eq_u32 s21, 0
    s_cbranch_scc1 {lxc}
    v_mov_b32 v9, 3
    v_mov_b32 v10, {L.F_B0}
    s_mov_b64 exec, 1
    s_cmp_eq_u32 s31, 0
    s_cbranch_scc1 {lxa}
    buffer_store_dword v9, v10, {WS}, s21 offen
    s_branch {lxb}
    """)
    k.lab(lxa)
    k(f"buffer_store_dword v9, v10, {WS}, s21 offen sc1")
    k.lab(lxb)
    k("s_mov_b64 exec, -1")
    k.lab(lxc)
    stamp()
    if STOP == 1:
        finish(); k.lab(end); k("s_endpgm"); return k

    k(f"""
    s_sub_u32 s41, s55, s37
    s_lshr_b32 s41, s41, 7               ; rt
    v_bfe_u32 v7, v1, 3, 2               ; 0..3
    v_min_u32 v7, 2, v7
    v_add_u32 v7, s41, v7
    v_subrev_u32 v7, 1, v7
    v_max_i32 v7, 0, v7
    v_min_i32 v7, 15, v7
    v_lshlrev_b32 v7, 7, v7
    v_and_b32 v9, 7, v1
    v_lshl_add_u32 v7, v9, 2, v7
    s_add_u32 s49, s37, {L.F_G1}
    """)
    poll(49)
    stamp()
    k(f"""
    s_mul_i32 s41, s33, 2560
    s_sub_u32 s47, s22, s41
    """)
    k("s_mov_b32 s52, s47")
    for i in range(XPRE): xload1(2, 52, i)
    HBR = GT
    k(f"s_add_u32 s41, s54, {L.G_HBX + 20480}")
    def pair_loads(reg, sb, tag):
        vq.op(f"buffer_load_dwordx4 {vr(reg,4)}, v254, {WS}, s{sb} offen sc1", tag)
        vq.op(f"buffer_load_dwordx4 {vr(reg+4,4)}, v254, {WS}, s{sb} offen offset:1024 sc1", tag)
        vq.op(f"buffer_load_dwordx2 {vr(reg+8,2)}, v8, {WS}, s{sb} offen offset:2048 sc1", tag)
    def pair_src(reg, nt):
        return reg + (nt // 2) * 4 + (nt % 2) * 2
    HB_S = 48
    k("s_mov_b32 s48, s41")
    k(f"""
    s_sub_u32 s41, s55, s37              ; rt*128
    s_lshl_b32 s41, s41, 3               ; rt*1024
    s_add_u32 s46, s41, s36
    s_add_u32 s46, s46, {L.G_ST1}
    """)
    k("s_barrier")
    st2 = {"w3b": None, "hb": False}
    def g2_in(ks, nt):
        if ks < E("G2W", 8): return
        if not st2["hb"]:
            st2["hb"] = True; pair_loads(HBR, 48, "hb"); return
        if w3a.left(): w3a.one(); return
        if ks < 10: return
        if st2["w3b"] is None: st2["w3b"] = Dma(252, 12, 45, 52 * 1024, 38, 39)
        if st2["w3b"].left(): st2["w3b"].one()
    n0 = len(k.L)
    gemm5(2, 100, g2_in, lambda i: xload1(2, 52, i), kbar=9)
    k.L[n0:] = [x.replace("v16 offset", "v11 offset") if "ds_read_b128" in x else x for x in k.L[n0:]]
    stamp()
    k("s_barrier")
    w3a.some(99)
    if st2["w3b"] is None: st2["w3b"] = Dma(252, 12, 45, 52 * 1024, 38, 39)
    st2["w3b"].some(99)
    w3c = Dma(300, 1, 45, 100 * 1024, 38, 39)
    w3c.some(99)
    w3d = Dma(304, 9, 45, 104 * 1024, 38, 39)
    w3d.some(99)
    TT = GT + 12; ONE = GT + 20; A1 = GT + 22
    k(f"""
    v_mov_b32 v{ONE}, 0x3f803f80
    v_mov_b32 v{A1}, 0
    v_mov_b32 v{A1+1}, 0
    """)
    vq.wait("hb")
    swap_pairs(k, [HBR, HBR + 4])
    k("s_nop 1")
    U = GT + 24
    for nt in range(5):
        p = pair_src(HBR, nt)
        k.unpack(U + 4*nt, U + 4*nt + 1, p); k.unpack(U + 4*nt + 2, U + 4*nt + 3, p + 1)
    for nt in range(5):
        z = GA + 4*nt
        for i in (0, 2):
            k(f"v_pk_add_f32 {vr(z+i,2)}, {vr(z+i,2)}, {vr(U+4*nt+i,2)}")
    g2pk, prs = pack_tiles(k, [GA + 4*nt for nt in range(5)])
    for r, n, i in g2pk:
        for q_ in range(n):
            k(f"v_dot2_f32_bf16 v{A1}, v{r+q_}, v{ONE}, v{A1}")
            k(f"v_dot2_f32_bf16 v{A1+1}, v{r+q_}, v{r+q_}, v{A1+1}")
    k("s_nop 1")
    swap_pairs(k, prs)
    k("s_nop 2")
    reduce_g(k, A1, A1 + 1, TT)
    k(f"""
    s_add_u32 s47, s54, {L.G_X1}
    v_lshlrev_b32 v9, 6, v4              ; m*64
    s_lshl_b32 s41, s33, 3
    s_add_u32 s46, s46, s41
    s_lshl_b32 s41, s33, 2
    s_add_u32 s49, s55, s41
    v_mov_b32 v11, v9
    """)
    st = tile_stores(g2pk, 47)
    st.append(f"s_mov_b64 exec, 0xffff\nbuffer_store_dwordx2 {vr(A1,2)}, v11, {WS}, s46 offen\ns_mov_b64 exec, -1")
    stores(st, 49, L.F_G2)
    stamp()
    if STOP == 2:
        finish(); k.lab(end); k("s_endpgm"); return k

    A3, X3, W3, T3 = 16, 72, 160, 216
    XD = 11
    k(f"""
    s_lshl_b32 s46, s34, 3
    s_lshl_b32 s47, s30, 1
    s_add_u32 s46, s46, s47              ; rt0 = 8c + 2w
    s_lshl_b32 s49, s46, 7
    s_add_u32 s49, s49, {L.F_G2}
    v_bfe_u32 v7, v1, 3, 1
    v_lshlrev_b32 v7, 7, v7
    v_and_b32 v9, 7, v1
    v_lshl_add_u32 v7, v9, 2, v7
    v_add_u32 v7, s49, v7
    s_sub_u32 s49, s55, s37
    s_add_u32 s49, s49, {128 + L.F_B0}
    v_and_b32 v9, 3, v1
    v_lshlrev_b32 v9, 2, v9
    v_add_u32 v9, s49, v9                ; xa flags (value 3) of this wave's output tile
    v_and_b32 v10, 16, v1
    v_cmp_ne_u32 vcc, 0, v10
    v_mov_b32 v11, 1
    v_mov_b32 v10, 3
    v_cndmask_b32 v7, v7, v9, vcc
    v_cndmask_b32 v10, v11, v10, vcc
    """)
    poll(37, 10)
    stamp()
    k(f"""
    s_mul_i32 s47, s46, 20480
    s_add_u32 s47, s47, s36
    s_add_u32 s47, s47, {L.G_X1}
    s_add_u32 s48, s47, 20480
    """)
    def x3load(ks):
        for rt in range(2):
            k(f"s_add_u32 s41, s{47+rt}, {(ks//4)*4096}")
            vq.op(f"buffer_load_dwordx4 {vr(X3+((ks%XD)*2+rt)*4,4)}, v2, {WS}, s41 offen offset:{(ks%4)*1024} sc1", f"x{ks}")
    X3PRE = E("X3PRE", 3)
    for ks in range(X3PRE): x3load(ks)
    SP = T3
    k(f"""
    v_lshlrev_b32 v9, 6, v4
    v_lshl_add_u32 v9, v3, 4, v9
    s_lshl_b32 s41, s46, 10
    s_add_u32 s41, s41, s36
    s_add_u32 s41, s41, {L.G_ST1}
    """)
    for rt in range(2):
        vq.op(f"buffer_load_dwordx4 {vr(SP+4*rt,4)}, v9, {WS}, s41 offen offset:{1024*rt} sc1", "st")
    x3n = [X3PRE]
    k(f"""
    s_mul_i32 s52, s46, 55296
    s_mul_i32 s41, s35, 3584
    s_add_u32 s52, s52, s41
    s_add_u32 s52, s52, s36
    s_add_u32 s52, s52, {L.G_H3}
    s_add_u32 s53, s52, 55296
    """)
    EP = 228
    def g3_extra(ks):
        if ks in (10, 11) and not E("H3SC1", 1):
            k("s_mov_b64 exec, 0xfffffff")
            touch(52 + ks - 10, 248)
            k("s_mov_b64 exec, -1")
        if ks in (13, 14):
            off = L.G_XA if ks == 13 else L.G_X1
            k(f"s_add_u32 s48, s54, {off}")
            pair_loads(EP + (ks - 13) * 10, 48, "ep")
    k("s_barrier")
    def w3read(ks, nt):
        slot = (200 + ks * 7 + nt) % NSLOT
        o = slot * 1024
        a = {0: 14, 1: 15, 2: 11}[o >> 16]
        k(f"ds_read_b128 {vr(W3+(ks&1)*28+4*nt,4)}, v{a} offset:{o & 0xffff}")
    k("v_add_u32 v11, 0x20000, v2")
    RS3 = T3 + 8
    n0_ = len(k.L)
    for rt in range(2):
        s_ = SP + 4*rt
        k(f"v_add_f32 v{RS3+2*rt}, v{s_}, v{s_+2}")
        k(f"v_add_f32 v{RS3+2*rt+1}, v{s_+1}, v{s_+3}")
        reduce_g(k, RS3 + 2*rt, RS3 + 2*rt + 1, SP)
        ln_finish(k, RS3 + 2*rt, RS3 + 2*rt + 1, SP, 640)
    stat_ops = k.L[n0_:]; del k.L[n0_:]
    for nt in range(7): w3read(0, nt)
    for ks in range(20):
        assert x3n[0] > ks
        if not E("NOXW", 0): vq.wait(f"x{ks}")
        if E("PROFG3", 0) and ks in (1, 2, 5, 10, 15): stamp()
        for nt in range(7):
            if not E("NOLW", 0): k(f"s_waitcnt lgkmcnt({6 if ks < 19 else 6 - nt})")
            for rt in range(2):
                a = A3 + (rt*7 + nt) * 4
                c = "0" if ks == 0 else vr(a, 4)
                k(f"v_mfma_f32_16x16x32_bf16 {vr(a,4)}, {vr(W3+(ks&1)*28+4*nt,4)}, {vr(X3+((ks%XD)*2+rt)*4,4)}, {c}")
            if ks < 19 and not E("NODS", 0): w3read(ks + 1, nt)
            if nt in (1, 4) and x3n[0] < 20 and x3n[0] < ks + min(XD, E("X3D", 8)) and (nt == 1 or x3n[0] < ks + E("X3D", 8) - 1):
                x3load(x3n[0]); x3n[0] += 1
            if nt in (2, 3, 5) and ks >= E("W4K0", 1) and w4.left(): w4.one()
            if nt == 6 and ks >= E("W4K1", 12) and w4.left(): w4.one()
            if nt == 6: g3_extra(ks)
            if ks >= 5:
                for _ in range(2):
                    if stat_ops: k.L.append(stat_ops.pop(0))
    stamp()
    assert not stat_ops
    CS3 = X3
    TT = W3
    k(f"""
    v_lshlrev_b32 v9, 4, v3
    v_add_u32 v9, {SMALL + 1024}, v9
    v_mov_b32 v{VC}, {fhex(C1)}
    v_mov_b32 v{VC+1}, {fhex(C0)}
    """)
    for nt in range(7):
        k(f"ds_read_b128 {vr(CS3+4*nt,4)}, v9 offset:{64*nt}")
        k(f"ds_read_b128 {vr(CS3+28+4*nt,4)}, v9 offset:{512+64*nt}")
    k("s_waitcnt lgkmcnt(0)")
    for nt in range(7):
        cs = CS3 + 4*nt
        for i in (0, 2):
            k(f"v_pk_add_f32 {vr(cs+i,2)}, {vr(cs+i,2)}, {vr(cs+28+i,2)}")
    k(f"""
    s_lshl_b32 s49, s34, 2
    s_add_u32 s49, s49, s30
    s_lshl_b32 s49, s49, 7
    s_add_u32 s49, s49, s37
    s_lshl_b32 s41, s35, 2
    s_add_u32 s49, s49, s41
    """)
    def st_variants(emit):
        if E("MIXED", 0) or E("H3SC1", 1):
            emit(" sc1"); return
        ls = k.newlab("slow"); lj = k.newlab("sent")
        k("s_cmp_eq_u32 s31, 0"); k(f"s_cbranch_scc1 {ls}")
        emit(""); k(f"s_branch {lj}"); k.lab(ls); emit(" sc1"); k.lab(lj)
    for gi, n0_ in enumerate(range(0, 7, 2)):
        nts = list(range(n0_, min(n0_ + 2, 7)))
        tl = [(A3 + (rt*7 + nt) * 4, CS3 + 4*nt, RS3 + 2*rt) for nt in nts for rt in range(2)]
        ln_gelu_multi(k, vr, tl, TT, VC)
        pks = []
        prs_all = []
        for rt in range(2):
            pk, prs = pack_tiles(k, [A3 + (rt*7 + nt) * 4 for nt in nts])
            pks.append(pk[0]); prs_all += prs
        if prs_all: swap_pairs(k, prs_all)
        done = k.newlab("gs")
        if gi >= 2:
            k("s_cmp_eq_u32 s35, 15"); k(f"s_cbranch_scc1 {done}")
        if gi == 1:
            k("s_cmp_eq_u32 s35, 15")
            k("s_cselect_b32 s46, 0xffff, -1")
            k("s_mov_b32 exec_lo, s46"); k("s_mov_b32 exec_hi, s46")
        def emit(sc, pks=pks, n0_=n0_):
            for rt in range(2):
                r, n, i = pks[rt]
                if n == 4: k(f"buffer_store_dwordx4 {vr(r,4)}, v254, {WS}, s{52+rt} offen offset:{512*n0_}{sc}")
                else: k(f"buffer_store_dwordx2 {vr(r,2)}, v8, {WS}, s{52+rt} offen offset:{512*n0_}{sc}")
        st_variants(emit)
        if gi == 1: k("s_mov_b64 exec, -1")
        k.lab(done)
        if gi == 0: w4.some(99)
    ls = k.newlab("slow"); lj = k.newlab("sent")
    k(f"""
    s_waitcnt vmcnt(0)
    v_mov_b32 v9, 1
    v_mov_b32 v10, {L.F_G3}
    s_mov_b64 exec, 1
    s_cmp_eq_u32 s31, 0
    s_cbranch_scc1 {ls}
    buffer_store_dword v9, v10, {WS}, s49 offen
    s_branch {lj}
    """)
    k.lab(ls)
    k(f"buffer_store_dword v9, v10, {WS}, s49 offen sc1")
    k.lab(lj)
    k("s_mov_b64 exec, -1")
    vq.reset()
    stamp()
    if STOP == 3:
        finish(); k.lab(end); k("s_endpgm"); return k

    A4, X4, WX, T4 = 16, 96, 192, 216
    XD4 = 6
    for i in range(6):
        vq.op(f"buffer_load_dwordx4 {vr(WX+4*i,4)}, v2, {WS}, s40 offen offset:{(i%4)*1024}", "wx")
        if i == 3: k("s_add_u32 s40, s40, 4096")
    k(f"""
    s_and_b32 s41, s32, 1
    s_lshl_b32 s41, s41, 1
    s_lshl_b32 s49, s34, 2
    s_add_u32 s49, s49, s41
    s_lshl_b32 s49, s49, 7
    s_add_u32 s49, s49, s37
    s_lshl_b32 s41, s30, 4
    s_add_u32 s49, s49, s41              ; + 4w flags
    s_add_u32 s49, s49, {L.F_G3}
    v_bfe_u32 v7, v1, 2, 1
    v_lshlrev_b32 v7, 7, v7
    v_and_b32 v9, 3, v1
    v_lshl_add_u32 v7, v9, 2, v7
    """)
    for i in range(4):
        k(f"""
        s_add_u32 s41, s30, {i}
        s_and_b32 s41, s41, 3
        s_lshl_b32 s46, s32, 2
        s_add_u32 s41, s41, s46
        s_mul_i32 s41, s41, 55296
        s_mul_i32 s46, s30, {14*1024}
        s_add_u32 s41, s41, s46
        s_add_u32 s41, s41, s36
        s_add_u32 s{50+i}, s41, {L.G_H3}
        """)
    poll(49)
    stamp()
    def x4load(ks, guard=False):
        for i in range(4):
            k(f"s_add_u32 s41, s{50+i}, {(ks//4)*4096}")
            vq.op(f"buffer_load_dwordx4 {vr(X4+((ks%XD4)*4+i)*4,4)}, v2, {WS}, s41 offen offset:{(ks%4)*1024} sc1", f"x{ks}")
    def x4one(ks, i):
        k(f"s_add_u32 s41, s{50+i}, {(ks//4)*4096}")
        vq.op(f"buffer_load_dwordx4 {vr(X4+((ks%XD4)*4+i)*4,4)}, v2, {WS}, s41 offen offset:{(ks%4)*1024} sc1", f"x{ks}")
    X4PRE = E("X4PRE", 2)
    for ks in range(X4PRE): x4load(ks)
    x4q = [(ks, i) for ks in range(X4PRE, 14) for i in range(4)]
    skip = k.newlab("k4skip")
    def wfrag(idx): return ar(4*idx, 4) if idx < 64 else vr(WX + 4*(idx - 64), 4)
    for ks in range(14):
        if ks == 12:
            k("s_cmp_eq_u32 s30, 3"); k(f"s_cbranch_scc1 {skip}")
        assert not any(q[0] <= ks for q in x4q)
        vq.wait(f"x{ks}")
        for nt in range(5):
            for i in range(4):
                a = A4 + (i*5 + nt) * 4
                c = "0" if ks == 0 else vr(a, 4)
                k(f"v_mfma_f32_16x16x32_bf16 {vr(a,4)}, {wfrag(ks*5+nt)}, {vr(X4+((ks%XD4)*4+i)*4,4)}, {c}")
            for _ in range(2 if (nt in (1, 3) and x4q and x4q[0][0] < ks + E("X4D", 4)) else 1):
                if x4q and x4q[0][0] - XD4 < ks and (nt >= 1 or x4q[0][0] - XD4 < ks - 1):
                    x4one(*x4q.pop(0))
    k.lab(skip)
    stamp()
    k(f"""
    s_waitcnt vmcnt(0)
    s_barrier
    """)
    for i in range(1, 4):
        k(f"""
        s_add_u32 s41, s30, {i}
        s_and_b32 s41, s41, 3
        s_mul_i32 s41, s41, {15*1024}
        s_add_u32 s41, s41, {(i-1)*5*1024}
        v_add_u32 v{9}, s41, v2
        """)
        for nt in range(5):
            k(f"ds_write_b128 v9, {vr(A4+(i*5+nt)*4,4)} offset:{1024*nt}")
    GB = X4
    PB = X4 + 20
    k(f"""
    v_lshlrev_b32 v10, 4, v3
    v_add_u32 v10, {SMALL + 2048}, v10
    """)
    for nt in range(5):
        k(f"ds_read_b128 {vr(GB+4*nt,4)}, v10 offset:{64*nt}")
    k(f"""
    s_mul_i32 s41, s30, {15*1024}
    v_add_u32 v9, s41, v2
    s_waitcnt lgkmcnt(0)
    s_barrier
    """)
    for i in range(15):
        k(f"ds_read_b128 {vr(PB+4*i,4)}, v9 offset:{1024*i}")
    k(f"""
    s_lshl_b32 s46, s32, 2
    s_add_u32 s46, s46, s30
    s_lshl_b32 s46, s46, 4
    s_lshl_b32 s47, s28, 8
    s_add_u32 s46, s46, s47
    v_add_u32 v10, s46, v4
    v_mul_u32_u24 v10, 1280, v10
    v_lshl_add_u32 v10, v3, 3, v10
    s_mul_i32 s47, s33, 160
    """)
    TT = 248
    swap_pairs(k, [EP, EP + 4, EP + 10, EP + 14])
    k("s_waitcnt lgkmcnt(0)")
    for s_ in range(3):
        for nt in range(5):
            z = A4 + 4*nt
            for i in (0, 2):
                k(f"v_pk_add_f32 {vr(z+i,2)}, {vr(z+i,2)}, {vr(PB+(s_*5+nt)*4+i,2)}")
    U = PB
    for nt in range(5):
        p = pair_src(EP + 10, nt)
        k.unpack(U + 4*nt, U + 4*nt + 1, p); k.unpack(U + 4*nt + 2, U + 4*nt + 3, p + 1)
        p = pair_src(EP, nt)
        k.unpack(U + 20 + 4*nt, U + 20 + 4*nt + 1, p); k.unpack(U + 20 + 4*nt + 2, U + 20 + 4*nt + 3, p + 1)
    for nt in range(5):
        z = A4 + 4*nt
        for i in (0, 2):
            k(f"v_pk_add_f32 {vr(z+i,2)}, {vr(z+i,2)}, {vr(U+4*nt+i,2)}")
    for nt in range(5):
        z = A4 + 4*nt
        for i in (0, 2):
            k(f"v_pk_fma_f32 {vr(z+i,2)}, {vr(z+i,2)}, {vr(GB+4*nt+i,2)}, {vr(U+20+4*nt+i,2)}")
    g4pk, prs = pack_tiles(k, [A4 + 4*nt for nt in range(5)])
    swap_pairs(k, prs)
    k("""
    v_and_b32 v9, 1, v3
    v_lshlrev_b32 v9, 5, v9
    v_lshrrev_b32 v11, 1, v3
    v_lshl_add_u32 v9, v11, 4, v9
    v_lshlrev_b32 v11, 3, v3
    v_sub_u32 v11, v10, v11
    v_add_u32 v11, v11, v9
    """)
    osc = " sc1" if E("OUTSC1", 0) else ""
    for r, n, i in g4pk:
        if n == 4: k(f"buffer_store_dwordx4 {vr(r,4)}, v11, {OS}, s47 offen offset:{32*i}{osc}")
        else: k(f"buffer_store_dwordx2 {vr(r,2)}, v10, {OS}, s47 offen offset:{32*i}{osc}")
    stamp()
    finish()
    k.lab(end)
    k("s_endpgm")
    return k

def kernels(Kern, vr):
    return [gen_chain(Kern, vr)]
```

```python
import sys, os
sys.path.insert(0, os.path.dirname(os.path.abspath(__file__)))
import layout as L

NAME = "adaLN_cond__ssm_conv_h3__mixer_s_mlp__prompt"
SZ_SD = 2048 * 640 * 2

class Kern:
    def __init__(self, name, grid, block, lds, vgpr=256, sgpr=102, agpr=0):
        self.name, self.grid, self.block, self.lds = name, grid, block, lds
        self.vgpr, self.sgpr, self.agpr = vgpr, (102 if (os.environ.get("PROF") or os.environ.get("PROFK1")) else sgpr), agpr
        self.L = []
        self.nlab = 0
    def __call__(self, s):
        for ln in s.strip("\n").split("\n"):
            ln = ln.strip()
            if ln:
                self.L.append("    " + ln)
    def lab(self, s):
        self.L.append(s + ":")
    def newlab(self, p="L"):
        self.nlab += 1
        return f"{self.name}_{p}{self.nlab}"
    def srd(self, d, b, size, off=0):
        if off:
            self(f"s_add_u32 s{d}, s{b}, {off}")
            self(f"s_addc_u32 s{d+1}, s{b+1}, 0")
        else:
            self(f"s_mov_b32 s{d}, s{b}")
            self(f"s_mov_b32 s{d+1}, s{b+1}")
        self(f"s_mov_b32 s{d+2}, {size}")
        self(f"s_mov_b32 s{d+3}, 0x00020000")
    def round2(self, a, b, t):
        self(f"v_cvt_pk_bf16_f32 v{t}, v{a}, v{b}")
        self(f"v_lshlrev_b32 v{a}, 16, v{t}")
        self(f"v_and_b32 v{b}, 0xffff0000, v{t}")
    def unpack(self, lo, hi, src):
        self(f"v_lshlrev_b32 v{lo}, 16, v{src}")
        self(f"v_and_b32 v{hi}, 0xffff0000, v{src}")
    def stamp(self, i):
        if os.environ.get("PROFK1"):
            self(f"s_memtime s[{80+2*i}:{81+2*i}]")
    def stamp_end(self, n):
        if os.environ.get("PROFK1"):
            l = self.newlab("prof")
            self(f"""
            s_waitcnt lgkmcnt(0)
            s_cmp_lg_u32 s2, {int(os.environ.get("PROFWG", "0"))}
            s_cbranch_scc1 {l}
            s_load_dwordx2 s[76:77], s[0:1], 112
            s_waitcnt lgkmcnt(0)
            s_mov_b32 s78, 256
            s_mov_b32 s79, 0x00020000
            v_mov_b32 v1, 0
            """)
            for i in range(n):
                self(f"s_sub_u32 s75, s{80+2*i}, s80")
                self(f"v_mov_b32 v2, s75")
                self(f"buffer_store_dword v2, v1, s[76:79], 0 offen offset:{4*i}")
            self.lab(l)
    def text(self):
        sc = self.name in os.environ.get("SC1", "k1_kernel").split(",")
        Ls = [(l + " sc1" if (sc and l.strip().startswith("buffer_store") and " sc1" not in l and "NOSC" not in l) else l.replace(" NOSC", "")) for l in self.L]
        return (f".globl {self.name}\n.p2align 8\n.type {self.name},@function\n{self.name}:\n" + "\n".join(Ls) + "\n")
    def kd(self):
        acc = (self.vgpr + 3) // 4 * 4
        nfv = self.vgpr if not self.agpr else acc + self.agpr
        return f""".p2align 6
.amdhsa_kernel {self.name}
  .amdhsa_next_free_vgpr {nfv}
  .amdhsa_next_free_sgpr {self.sgpr}
  .amdhsa_accum_offset {acc}
  .amdhsa_group_segment_fixed_size 0
  .amdhsa_kernarg_size 128
  .amdhsa_user_sgpr_count 2
  .amdhsa_user_sgpr_kernarg_segment_ptr 1
  .amdhsa_system_sgpr_workgroup_id_x 1
  .amdhsa_float_denorm_mode_32 3
.end_amdhsa_kernel
"""

def vr(a, n):
    return f"v[{a}:{a+n-1}]"

MERGE = os.environ.get("MERGE", "0") == "1"
CNT_OFF = 128

def signal(k, cnt_sgpr_or_imm):
    l = k.newlab("sig")
    k(f"""
    s_mov_b64 exec, -1
    s_waitcnt vmcnt(0)
    s_barrier
    v_cmp_eq_u32 vcc, 0, v0
    s_and_saveexec_b64 s[42:43], vcc
    s_cbranch_execz {l}
    v_mov_b32 v1, 1
    v_mov_b32 v2, {cnt_sgpr_or_imm}
    buffer_atomic_add v1, v2, s[48:51], 0 offen
    """)
    k.lab(l)
    k("s_endpgm")

def poll(k, voff, target, vtmp):
    l = k.newlab("poll"); d = k.newlab("polld")
    k("s_mov_b32 s52, 0")
    k("s_cmp_lg_u32 s20, 0")
    k(f"s_cbranch_scc1 {d}")
    k.lab(l)
    k(f"""
    buffer_load_dword v{vtmp}, v{voff}, s[48:51], 0 offen sc0 sc1
    s_waitcnt vmcnt(0)
    v_readfirstlane_b32 s53, v{vtmp}
    s_add_u32 s52, s52, 1
    s_cmp_ge_u32 s53, {target}
    s_cbranch_scc1 {d}
    s_cmp_ge_u32 s52, 0x100000
    s_cbranch_scc1 {d}
    s_sleep {int(os.environ.get("SLP", 8))}
    s_branch {l}
    """)
    k.lab(d)
    k("s_barrier")

def emit_pack(k, base, idreg="s2", step=None):
    k(f"""
    s_load_dwordx2 s[10:11], s[0:1], 120   ; ws
    s_load_dwordx8 s[12:19], s[0:1], 56    ; w1 w2 w3 w4
    v_lshrrev_b32 v2, 6, v0
    v_and_b32 v1, 63, v0                   ; lane
    v_readfirstlane_b32 s20, v2
    s_waitcnt lgkmcnt(0)
    """)
    k.srd(28, 10, 0x10000000)
    labs = [k.newlab("pk") for _ in range(4)]
    pend = k.newlab("pke")
    k(f"""
    s_sub_u32 s21, {idreg}, {base}
    v_lshrrev_b32 v3, 3, v0                ; row
    v_and_b32 v4, 7, v0                    ; chunk
    v_mul_u32_u24 v5, 144, v3
    v_lshl_add_u32 v5, v4, 4, v5
    v_and_b32 v6, 15, v1
    v_lshrrev_b32 v7, 4, v1                ; g
    v_lshrrev_b32 v8, 2, v6
    v_lshl_add_u32 v8, v7, 3, v8           ; 8g + (i>>2)
    v_mul_u32_u24 v8, 144, v8
    v_and_b32 v9, 3, v6
    v_lshl_add_u32 v8, v9, 3, v8
    s_lshl_b32 s22, s20, 5
    v_add_u32 v8, s22, v8
    v_lshlrev_b32 v9, 4, v1                ; lane*16
    s_cmp_lt_u32 s21, 10
    s_cbranch_scc1 {labs[0]}
    s_cmp_lt_u32 s21, 20
    s_cbranch_scc1 {labs[1]}
    s_cmp_lt_u32 s21, 48
    s_cbranch_scc1 {labs[2]}
    s_cmp_lt_u32 s21, 78
    s_cbranch_scc1 {labs[3]}
    s_branch {pend}
    """)
    for m in range(4):
        k.lab(labs[m])
        N = [640, 640, 1728, 640][m]; Kd = [640, 640, 640, 1728][m]
        pitch = N * 2
        nks = 10 if m < 3 else 9
        ub = [0, 10, 20, 48][m]
        ncb = N // 64
        npr = (ncb + 1) // 2
        k.srd(24, 12 + 2*m, Kd * N * 2)
        magic = {5: (52429, 18), 14: (4682, 16)}[npr]
        k(f"""
        s_sub_u32 s32, s21, {ub}
        s_mul_i32 s33, s32, {magic[0]}
        s_lshr_b32 s33, s33, {magic[1]}      ; kq
        s_mul_i32 s34, s33, {npr}
        s_sub_u32 s34, s32, s34
        s_lshl_b32 s34, s34, 1
        v_mul_u32_u24 v10, {pitch}, v3
        v_lshl_add_u32 v10, v4, 4, v10
        s_mul_i32 s35, s33, {nks*32*pitch}
        s_lshl_b32 s36, s34, 7
        s_add_u32 s35, s35, s36
        """)
        R = [32, 72]
        for h in range(2):
            for i in range(nks):
                k(f"buffer_load_dwordx4 {vr(R[h]+4*i,4)}, v10, s[24:27], s35 offen offset:{128*h}")
                if i < nks - 1:
                    k(f"s_add_u32 s35, s35, {32*pitch}")
            if h == 0: k(f"s_sub_u32 s35, s35, {(nks-1)*32*pitch}")
        nt_ = 7 if m == 2 else 5
        mg = (9363, 16) if nt_ == 7 else (52429, 18)
        perj = [100, 100, 140, 280][m]
        dconst = [i * nt_ * 1024 for i in range(nks)]
        for h in range(2):
            skip = None
            if h == 1:
                k("s_add_u32 s34, s34, 1")
                k("s_barrier")
            k(f"""
            s_lshl_b32 s36, s34, 2
            s_add_u32 s36, s36, s20             ; ntg
            s_mul_i32 s38, s36, {mg[0]}
            s_lshr_b32 s38, s38, {mg[1]}     ; j
            s_mul_i32 s39, s38, {nt_}
            s_sub_u32 s39, s36, s39          ; nt
            s_mul_i32 s37, s38, {perj}
            s_mul_i32 s40, s33, {nks*nt_}
            s_add_u32 s37, s37, s40
            s_add_u32 s37, s37, s39
            s_lshl_b32 s37, s37, 10
            s_add_u32 s37, s37, {[L.W1P, L.W2P, L.W3P, L.W4P][m]}
            """)
            nst = nks + (1 if m in (0, 2) else 0)
            for i in range(nks):
                n_after = (nks - 1 - i) + (nks if h == 0 else nst)
                k(f"s_waitcnt vmcnt({n_after})")
                k(f"ds_write_b128 v5, {vr(R[h]+4*i,4)} offset:{4608*i}")
            k("s_waitcnt lgkmcnt(0)")
            k("s_barrier")
            for i in range(nks):
                k(f"ds_read_b64_tr_b16 {vr(R[h]+4*i,2)}, v8 offset:{4608*i}")
                k(f"ds_read_b64_tr_b16 {vr(R[h]+4*i+2,2)}, v8 offset:{4608*i+576}")
            if m in (0, 2):
                k("v_mov_b32 v12, 0")
                k("v_mov_b32 v13, 0x3f803f80")
            for i in range(nks):
                k(f"s_waitcnt lgkmcnt({2*(nks-1-i)})" if 2*(nks-1-i) <= 15 else "s_waitcnt lgkmcnt(15)")
                k(f"s_add_u32 s38, s37, {dconst[i]}")
                k(f"buffer_store_dwordx4 {vr(R[h]+4*i,4)}, v9, s[28:31], s38 offen" + (" NOSC" if (os.environ.get("WPLAIN") and str(m) in os.environ.get("WPLAIN")) else ""))
                if m in (0, 2):
                    for d in range(4):
                        k(f"v_dot2_f32_bf16 v12, v{R[h]+4*i+d}, v13, v12")
            if m in (0, 2):
                k(f"""
                s_nop 2
                v_mov_b32 v13, v12
                s_nop 1
                v_permlane32_swap_b32 v13, v12
                v_add_f32 v12, v12, v13
                v_mov_b32 v13, v12
                s_nop 1
                v_permlane16_swap_b32 v13, v12
                v_add_f32 v12, v12, v13
                s_mul_i32 s38, s33, {1792*4}
                s_lshl_b32 s39, s36, 6
                s_add_u32 s38, s38, s39
                s_add_u32 s38, s38, {L.CS3P if m == 2 else L.CS1P}
                v_lshlrev_b32 v14, 2, v1
                v_cmp_gt_u32 vcc, 16, v1
                s_and_saveexec_b64 s[40:41], vcc
                buffer_store_dword v12, v14, s[28:31], s38 offen
                s_mov_b64 exec, -1
                """)
        k("s_endpgm")
    k.lab(pend)
    k("s_endpgm")


WREG = 9472
KVL = 4 * 9472
def gen_k1(k=None):
    NMOD = 60; NPF = 32
    MODFIRST = int(os.environ.get("MODFIRST", 0))
    NSIDE = 96 + NPF + (42 if MODFIRST else NMOD)
    GRID = (160 + NSIDE + 7) // 8 * 8
    k = Kern("k1_kernel", GRID, 256, KVL + 10240, vgpr=256, sgpr=72)
    end = "k1_end"; modl = "k1_modf"
    k(f"""
    s_cmp_ge_u32 s2, {GRID}
    s_cbranch_scc1 {end}
    s_load_dwordx4 s[4:7], s[0:1], 32
    s_load_dwordx2 s[10:11], s[0:1], 120   ; ws
    s_load_dwordx4 s[12:15], s[0:1], 8     ; k, v
    s_load_dwordx2 s[8:9], s[0:1], 24      ; shift_k
    v_lshrrev_b32 v2, 6, v0
    v_and_b32 v1, 63, v0                   ; lane
    v_readfirstlane_b32 s20, v2
    s_sub_u32 s54, s2, 160
    s_cmp_ge_u32 s2, 256
    s_cbranch_scc1 k1_side
    s_and_b32 s55, s2, 7                   ; class
    s_lshr_b32 s56, s2, 3                  ; member
    s_lshl_b32 s57, s55, 9
    s_add_u32 s57, s57, {L.KFL}
    v_mov_b32 v250, 0
    s_waitcnt lgkmcnt(0)
    """)
    k.srd(28, 10, 0x10000000)
    k.stamp(0)
    if os.environ.get("PROFMOD"):
        k(f"""
        s_memrealtime s[62:63]
        s_waitcnt lgkmcnt(0)
        s_lshl_b32 s23, s2, 4
        s_add_u32 s23, s23, {(48 << 20) + 4096}
        v_mov_b32 v12, s62
        s_mov_b64 exec, 1
        buffer_store_dword v12, v250, s[28:31], s23 offen
        s_mov_b64 exec, -1
        """)
    if os.environ.get("PROFKV"): k("s_memrealtime s[62:63]")
    k("buffer_load_dword v251, v250, s[28:31], s57 offen sc1")
    k.srd(16, 12, SZ_SD); k.srd(40, 14, SZ_SD); k.srd(44, 8, 640 * 8)
    KR, VR_, SKR, SKF, KF, KVF, T = 10, 32, 48, 56, 72, 116, 150
    k(f"""
    v_mul_u32_u24 v4, 3277, v0
    v_lshrrev_b32 v4, 16, v4               ; rg
    v_mul_u32_u24 v5, 20, v4
    v_sub_u32 v5, v0, v5                   ; cg
    s_lshl_b32 s21, s56, 6
    v_lshl_add_u32 v6, v4, 3, s21
    v_mul_u32_u24 v6, 1280, v6
    s_mul_i32 s22, s55, 160
    v_lshl_add_u32 v7, v5, 3, s22
    v_add_u32 v6, v6, v7
    v_subrev_u32 v8, 3840, v6
    v_add_u32 v9, 5120, v6
    s_movk_i32 s23, 160
    v_cmp_gt_u32 vcc, s23, v0
    s_and_saveexec_b64 s[60:61], vcc
    s_cbranch_execz k1_kvld
    """)
    for r in range(11):
        if r < 3: k(f"buffer_load_dwordx2 {vr(KR+2*r,2)}, v8, s[16:19], 0 offen offset:{1280*r}")
        elif r < 6: k(f"buffer_load_dwordx2 {vr(KR+2*r,2)}, v6, s[16:19], 0 offen offset:{1280*(r-3)}")
        elif r < 7: k(f"buffer_load_dwordx2 {vr(KR+2*r,2)}, v6, s[16:19], 0 offen offset:3840")
        else: k(f"buffer_load_dwordx2 {vr(KR+2*r,2)}, v9, s[16:19], 0 offen offset:{1280*(r-7)}")
    k(f"v_lshlrev_b32 v{T}, 2, v7")
    k(f"buffer_load_dwordx4 {vr(SKR,4)}, v{T}, s[44:47], 0 offen")
    k(f"buffer_load_dwordx4 {vr(SKR+4,4)}, v{T}, s[44:47], 0 offen offset:16")
    for r in range(8):
        if r < 4: k(f"buffer_load_dwordx2 {vr(VR_+2*r,2)}, v6, s[40:43], 0 offen offset:{1280*r}")
        else: k(f"buffer_load_dwordx2 {vr(VR_+2*r,2)}, v9, s[40:43], 0 offen offset:{1280*(r-4)}")
    k.lab("k1_kvld")
    k("s_mov_b64 exec, -1")
    lnc = k.newlab("nc")
    k.srd(24, 4, 640 * 4096)
    k(f"""
    s_cmp_lt_u32 s56, 12
    s_cbranch_scc1 {lnc}
    s_mul_i32 s58, s55, 20
    s_add_u32 s58, s58, s56
    s_sub_u32 s58, s58, 12
    s_lshl_b32 s21, s58, 2
    s_add_u32 s21, s21, s20                 ; ch
    s_mul_i32 s34, s20, {WREG}
    v_lshlrev_b32 v3, 4, v1                 ; lane*16
    s_lshl_b32 s35, s21, 12                 ; ch*4096
    s_add_u32 s36, s34, 256
    s_mov_b32 m0, s36
    s_nop 0
    """)
    for i in range(4):
        k(f"buffer_load_dwordx4 v3, s[24:27], s35 offen offset:{1024*i} lds")
    k.lab(lnc)
    k(f"""
    s_mov_b64 exec, s[60:61]
    s_movk_i32 s23, 160
    v_cmp_gt_u32 vcc, s23, v0
    s_and_b64 exec, exec, vcc
    s_cbranch_execz k1_kvskip
    """)
    k(f"""
    v_sub_u32 v{T}, 7, v4
    v_and_b32 v{T+1}, 7, v5
    v_xor_b32 v{T}, v{T}, v{T+1}
    v_lshlrev_b32 v{T}, 4, v{T}
    v_lshl_add_u32 v{T}, v5, 9, v{T}
    v_add_u32 v{T}, {KVL}, v{T}
    s_cmp_lt_u32 s56, 12
    s_cbranch_scc1 k1_w8
    s_waitcnt vmcnt(12)
    s_branch k1_w9
    """)
    k.lab("k1_w8")
    k("s_waitcnt vmcnt(8)")
    k.lab("k1_w9")
    for c in range(4):
        k.unpack(SKF + c, SKF + 4 + c, SKR + 2*c)
        k.unpack(SKF + 8 + c, SKF + 12 + c, SKR + 2*c + 1)
    for r in range(11):
        k.unpack(KF + 4*r, KF + 4*r + 1, KR + 2*r)
        k.unpack(KF + 4*r + 2, KF + 4*r + 3, KR + 2*r + 1)
    for p in range(2):
        for s_ in range(8):
            A = KVF + 4*s_ + 2*p
            k(f"v_pk_mul_f32 {vr(A,2)}, {vr(KF+4*s_+2*p,2)}, {vr(SKF+12+2*p,2)}")
        for j in (2, 1, 0):
            for s_ in range(8):
                A = KVF + 4*s_ + 2*p
                k(f"v_pk_fma_f32 {vr(A,2)}, {vr(KF+4*(s_+3-j)+2*p,2)}, {vr(SKF+4*j+2*p,2)}, {vr(A,2)}")
    for s_ in range(8):
        for p in range(2):
            A = KVF + 4*s_ + 2*p
            k.round2(A, A + 1, T + 4 + (2*s_ + p) % 8)
    k("""
    s_cmp_lt_u32 s56, 12
    s_cbranch_scc1 k1_w0
    s_waitcnt vmcnt(4)
    s_branch k1_w1
    """)
    k.lab("k1_w0")
    k("s_waitcnt vmcnt(0)")
    k.lab("k1_w1")
    if os.environ.get("PROFKV"): k("s_memrealtime s[64:65]")
    k.stamp(1)
    for s_ in range(8):
        for p in range(2):
            t_ = KF + 4*s_ + 2*p
            k.unpack(t_, t_ + 1, VR_ + 2*s_ + p)
    for s_ in range(8):
        for p in range(2):
            k(f"v_pk_mul_f32 {vr(KVF+4*s_+2*p,2)}, {vr(KVF+4*s_+2*p,2)}, {vr(KF+4*s_+2*p,2)}")
    O2 = KR
    for c in range(4):
        for d in range(4):
            k(f"v_cvt_pk_bf16_f32 v{O2+4*c+d}, v{KVF+4*(7-2*d)+c}, v{KVF+4*(6-2*d)+c}")
    for c in range(4):
        k(f"ds_write_b128 v{T}, {vr(O2+4*c,4)} offset:{128*c}")
    k.lab("k1_kvskip")
    k(f"""
    s_mov_b64 exec, -1
    v_lshrrev_b32 v{T+1}, 3, v0             ; channel (0..31)
    v_and_b32 v{T+2}, 7, v0                 ; unit
    v_lshrrev_b32 v{T+3}, 2, v{T+1}
    v_and_b32 v{T+3}, 7, v{T+3}
    v_xor_b32 v{T+3}, v{T+3}, v{T+2}
    v_lshlrev_b32 v{T+3}, 4, v{T+3}
    v_lshl_add_u32 v{T+3}, v{T+1}, 7, v{T+3}
    v_add_u32 v{T+3}, {KVL}, v{T+3}
    v_mul_u32_u24 v{T+1}, {L.KVR_CH}, v{T+1}
    v_lshl_add_u32 v{T+4}, v{T+2}, 4, v{T+1}
    s_mul_i32 s36, s55, {80*L.KVR_CH}
    s_add_u32 s36, s36, {L.KVR}
    s_lshl_b32 s37, s56, 7
    s_sub_u32 s38, 3968, s37
    s_add_u32 s38, s38, s36                 ; + 3968 - 128*mi
    s_waitcnt lgkmcnt(0)
    s_barrier
    """)
    k.stamp(2)
    for i in range(3):
        k(f"ds_read_b128 {vr(32+4*i,4)}, v{T+3} offset:{4096*i}")
    for i in range(3):
        if i == 2: k("s_movk_i32 s23, 128\nv_cmp_gt_u32 vcc, s23, v0\ns_and_saveexec_b64 s[60:61], vcc\ns_cbranch_execz k1_st2skip")
        k(f"s_waitcnt lgkmcnt({2-i})")
        k(f"buffer_store_dwordx4 {vr(32+4*i,4)}, v{T+4}, s[28:31], s38 offen sc1")
        k(f"s_add_u32 s38, s38, {32*L.KVR_CH}")
    k.lab("k1_st2skip")
    k("s_mov_b64 exec, -1")
    zl = k.newlab()
    k(f"""
    s_cmp_lg_u32 s56, 0
    s_cbranch_scc1 {zl}
    v_mov_b32 v44, 0
    v_mov_b32 v45, 0
    v_mov_b32 v46, 0
    v_mov_b32 v47, 0
    s_add_u32 s36, s36, 4096
    """)
    for i in range(3):
        if i == 2: k(f"s_movk_i32 s23, 128\nv_cmp_gt_u32 vcc, s23, v0\ns_and_b64 exec, exec, vcc\ns_cbranch_execz {zl}")
        k(f"buffer_store_dwordx4 v[44:47], v{T+4}, s[28:31], s36 offen sc1")
        k(f"s_add_u32 s36, s36, {32*L.KVR_CH}")
    k.lab(zl)
    lfl = k.newlab("kf")
    k(f"""
    s_mov_b64 exec, -1
    s_waitcnt vmcnt(0)
    v_add_u32 v251, 1, v251
    """)
    k.stamp(3)
    if os.environ.get("PROFKV"): k("s_memrealtime s[66:67]")
    k(f"""
    s_barrier
    s_cmp_lg_u32 s20, 0
    s_cbranch_scc1 {lfl}
    s_lshl_b32 s23, s56, 2
    s_add_u32 s23, s23, s57
    s_mov_b64 exec, 1
    buffer_store_dword v251, v250, s[28:31], s23 offen offset:256 NOSC
    buffer_store_dword v251, v250, s[28:31], s23 offen offset:128 sc1
    s_mov_b64 exec, -1
    """)
    k.lab(lfl)
    k(f"""
    s_lshl_b32 s54, s56, 3
    s_add_u32 s54, s54, s55
    """)
    if os.environ.get("PROFKV"):
        lq = k.newlab("pq")
        k(f"""
        s_cmp_ge_u32 s56, 12
        s_cbranch_scc1 {lq}
        s_cmp_lg_u32 s20, 0
        s_cbranch_scc1 {lq}
        s_waitcnt lgkmcnt(0)
        s_lshl_b32 s23, s54, 4
        s_add_u32 s23, s23, {48 << 20}
        v_mov_b32 v12, s62
        v_mov_b32 v13, s64
        v_mov_b32 v14, s66
        v_mov_b32 v15, s66
        s_mov_b64 exec, 1
        buffer_store_dwordx4 v[12:15], v250, s[28:31], s23 offen
        s_mov_b64 exec, -1
        """)
        k.lab(lq)
    k(f"""
    s_cmp_lt_u32 s56, 12
    s_cbranch_scc1 k1_side2
    """)
    k("s_mov_b32 s2, s58")
    if os.environ.get("PRIO", "1") == "1": k("s_setprio 3")
    k.stamp(5)
    k(f"""
    s_lshl_b32 s21, s2, 3
    s_add_u32 s22, s6, s21
    s_addc_u32 s23, s7, 0
    s_load_dwordx2 s[32:33], s[22:23], 0
    s_lshl_b32 s21, s2, 2
    s_add_u32 s21, s21, s20                 ; ch
    s_mul_i32 s34, s20, {WREG}
    v_lshlrev_b32 v3, 4, v1                 ; lane*16
    s_mul_i32 s37, s21, {L.KVR_CH}
    s_add_u32 s37, s37, {L.KVR}
    v_lshrrev_b32 v4, 3, v0
    v_mul_u32_u24 v4, 20480, v4
    s_lshr_b32 s38, s2, 1
    s_and_b32 s38, s38, 7
    v_and_b32 v5, 7, v0
    v_xor_b32 v5, s38, v5
    v_lshl_add_u32 v4, v5, 4, v4            ; (t>>3)*20480 + ((t&7)^sw)*16
    s_lshl_b32 s38, s2, 7                   ; cg*128
    """)
    for i in range(5):
        k(f"""
        v_add_u32 v20, {64*i}, v1
        v_mul_u32_u24 v21, 3856, v20
        v_lshrrev_b32 v21, 16, v21             ; n = q/17
        v_mul_u32_u24 v22, 17, v21
        v_sub_u32 v22, v20, v22                ; e
        v_lshlrev_b32 v22, 4, v22
        v_lshlrev_b32 v21, 8, v21
        v_sub_u32 v22, v22, v21
        v_add_u32 v{23+i}, 3840, v22
        """)
    k(f"""
    v_lshl_add_u32 v5, v1, 2, s34
    v_mov_b32 v6, 0
    ds_write_b32 v5, v6
    v_and_b32 v7, 15, v1                    ; n16
    v_bfe_u32 v8, v1, 4, 1                  ; ph
    v_lshrrev_b32 v9, 5, v1                 ; g
    v_mul_u32_u24 v10, 272, v7
    v_lshl_add_u32 v10, v9, 4, v10
    v_add_u32 v10, s34, v10
    v_add_u32 v10, {4352+4}, v10
    v_lshlrev_b32 v11, 2, v8
    v_sub_u32 v10, v10, v11
    v_and_b32 v12, 7, v1
    v_mul_u32_u24 v13, 272, v12
    v_lshl_add_u32 v13, v9, 4, v13
    v_add_u32 v13, s34, v13
    v_add_u32 v13, {4352+4}, v13
    v_sub_u32 v13, v13, v11                 ; vBP
    v_bfe_u32 v11, v1, 3, 1                 ; a'
    v_lshlrev_b32 v11, 4, v11
    v_sub_u32 v11, 16, v11
    v_and_b32 v14, 31, v1
    v_lshlrev_b32 v14, 3, v14
    v_lshl_add_u32 v14, v9, 4, v14
    v_add_u32 v14, s34, v14
    v_add_u32 v14, 8, v14                   ; vA
    v_cmp_ne_u32 vcc, 0, v12
    v_mov_b32 v16, 0
    s_nop 1
    v_cndmask_b32 v15, v16, -1, vcc
    """)
    k("s_waitcnt lgkmcnt(0)")
    AM_ = 176
    for ks in range(8):
        k(f"ds_read_b64 {vr(AM_+4*ks,2)}, v14 offset:{256*7+32*ks}")
        k(f"ds_read_b64 {vr(AM_+4*ks+2,2)}, v14 offset:{256*7+32*ks+8}")
    lw = k.newlab("kw"); lp = k.newlab("kp"); ld = k.newlab("kd"); lb = k.newlab("kb")
    k(f"""
    s_cmp_lg_u32 s20, 0
    s_cbranch_scc1 {lw}
    v_and_b32 v40, 31, v1
    v_lshlrev_b32 v40, 2, v40
    s_mov_b32 s23, 200000
    """)
    lq4 = k.newlab("kq")
    k("s_mov_b64 s[60:61], 0")
    k.lab(lp)
    k(f"""
    buffer_load_dword v41, v40, s[28:31], s57 offen offset:256 sc1
    s_waitcnt vmcnt(0)
    v_cmp_eq_u32 vcc, v251, v41
    s_sub_u32 s23, s23, 1
    s_or_b64 s[60:61], s[60:61], vcc
    s_cmp_eq_u64 s[60:61], -1
    s_cbranch_scc1 {ld}
    s_and_b32 s21, s23, 3
    s_cmp_lg_u32 s21, 0
    s_cbranch_scc1 {lq4}
    buffer_load_dword v41, v40, s[28:31], s57 offen offset:128 sc1
    s_waitcnt vmcnt(0)
    v_cmp_eq_u32 vcc, v251, v41
    s_nop 1
    s_or_b64 s[60:61], s[60:61], vcc
    s_cmp_eq_u64 s[60:61], -1
    s_cbranch_scc1 {ld}
    """)
    k.lab(lq4)
    k(f"""
    s_sleep {os.environ.get("KSLEEP", 2)}
    s_cmp_lg_u32 s23, 0
    s_cbranch_scc1 {lp}
    """)
    k.lab(ld)
    if os.environ.get("PROFKV"):
        k(f"""
        s_memrealtime s[68:69]
        s_waitcnt lgkmcnt(0)
        s_lshl_b32 s23, s56, 3
        s_add_u32 s23, s23, s55
        s_lshl_b32 s23, s23, 4
        s_add_u32 s23, s23, {48 << 20}
        v_mov_b32 v12, s62
        v_mov_b32 v13, s64
        v_mov_b32 v14, s66
        v_mov_b32 v15, s68
        s_mov_b64 exec, 1
        buffer_store_dwordx4 v[12:15], v250, s[28:31], s23 offen
        s_mov_b64 exec, -1
        """)
    k(f"""
    s_cmp_lg_u32 s56, 12
    s_cbranch_scc1 {lw}
    s_mov_b64 exec, 1
    buffer_store_dword v251, v250, s[28:31], s57 offen sc1
    s_mov_b64 exec, -1
    """)
    k.lab(lw)
    k.stamp(4)
    k("s_barrier")
    for i in range(5):
        k(f"s_add_u32 s36, s34, {4352 + 1024*i}")
        k("s_mov_b32 m0, s36")
        if i == 4: k("s_mov_b64 exec, 0xffff")
        else: k("s_nop 0")
        k(f"buffer_load_dwordx4 v{23+i}, s[28:31], s37 offen sc1 lds")
    k("s_mov_b64 exec, -1")
    k("s_waitcnt vmcnt(0) lgkmcnt(0)")
    B0, B1, BP, AX, AY, AP_, AM, APk = 32, 64, 96, 128, 144, 160, 176, 208
    k.stamp(6)
    def aread(reg, off):
        return f"ds_read_b64 {vr(reg,2)}, v14 offset:{off}\n    ds_read_b64 {vr(reg+2,2)}, v14 offset:{off+8}"
    TB = 16
    for ks in range(8):
        k(f"ds_read2_b32 {vr(B1+4*ks,2)}, v10 offset0:{8*ks} offset1:{8*ks+1}")
        k(f"ds_read2_b32 {vr(B1+4*ks+2,2)}, v10 offset0:{8*ks+2} offset1:{8*ks+3}")
    prd = []
    for ks in range(8):
        prd.append(f"ds_read_b32 v{TB+ks}, v10 offset:{32*ks+16}")
    for ks in range(8):
        prd.append(f"ds_read2_b32 {vr(BP+4*ks,2)}, v13 offset0:{8*ks} offset1:{8*ks+1}")
        prd.append(f"ds_read2_b32 {vr(BP+4*ks+2,2)}, v13 offset0:{8*ks+2} offset1:{8*ks+3}")
        prd.append(f"ds_read_b32 v{TB+8+ks}, v13 offset:{32*ks+16}")
    al0 = []; alp = []
    for ks in range(8):
        for d in range(4):
            hi = B1 + 4*ks + d + 1 if d < 3 else TB + ks
            al0.append(f"v_alignbit_b32 v{B0+4*ks+d}, v{hi}, v{B1+4*ks+d}, 16")
            hi = BP + 4*ks + d + 1 if d < 3 else TB + 8 + ks
            alp.append(f"v_alignbit_b32 v{BP+4*ks+d}, v{hi}, v{BP+4*ks+d}, v11")
    DPP = "row_mask:0xf bank_mask:0xf bound_ctrl:0"
    def mfma(acc, a, b, first):
        c = "0" if first else vr(acc, 16)
        k(f"v_mfma_f32_32x32x16_bf16 {vr(acc,16)}, {vr(a,4)}, {vr(b,4)}, {c}")
    def phase(acc, Areg, Breg, first, reads, late, pad=True, rg=8):
        reads = list(reads); late = list(late)
        for ks in range(8):
            mfma(acc, Areg + 4*ks, Breg + 4*ks, first and ks == 0)
            n = (len(reads) + (rg - 1 - ks)) // (rg - ks) if ks < rg else 0
            for s in reads[:n]:
                k(s)
            reads = reads[n:]
            if ks < 2:
                if pad and late and n < 5:
                    k(f"s_nop {4 - n}")
            else:
                n = (len(late) + (7 - ks)) // (8 - ks)
                for s in late[:n]:
                    k(s)
                late = late[n:]
        assert not late and not reads
    def shift_ops(acc, masked):
        if masked:
            return [f"v_and_b32_dpp v{acc+r}, v{acc+r}, v15 row_shr:1 {DPP}" for r in range(16)]
        return [f"v_mov_b32_dpp v{acc+r}, v{acc+r} row_shr:1 {DPP}" for r in range(16)]
    def areads(reg, off):
        o = []
        for ks in range(8):
            o += aread(reg + 4*ks, off + 32*ks).split("\n")
        return o
    epi_a = f"""v_mul_u32_u24 v16, 272, v7
    v_add_u32 v16, s34, v16
    v_add_u32 v16, {4352 + 36}, v16
    v_lshlrev_b32 v17, 2, v8
    v_sub_u32 v16, v16, v17
    v_lshlrev_b32 v17, 5, v9
    v_sub_u32 v16, v16, v17""".split("\n")
    epi_a += [f"ds_read_b32 v{64+r}, v16 offset:{216 - 64*(r>>2) - 8*(r&3)}" for r in range(16)]
    epi_a += f"""s_lshr_b32 s44, s20, 1
    s_and_b32 s45, s20, 1
    s_cmp_eq_u32 s44, 1
    s_cselect_b32 s44, s33, s32
    s_lshl_b32 s46, s44, 16
    s_and_b32 s47, s44, 0xffff0000
    s_cmp_eq_u32 s45, 1
    s_cselect_b32 s44, s47, s46
    v_mul_u32_u24 v18, 264, v7
    v_lshl_add_u32 v18, v9, 5, v18
    v_lshl_add_u32 v18, v8, 2, v18
    v_add_u32 v18, s34, v18
    v_mul_u32_u24 v17, 264, v2
    v_lshl_add_u32 v17, v1, 2, v17""".split("\n")
    if int(os.environ.get("CODEPF2", 0)):
        epi_a.append("s_getpc_b64 s[50:51]\nK1PC2:\ns_add_u32 s50, s50, k2_kernel-K1PC2\ns_addc_u32 s51, s51, 0")
        epi_a += f"""s_sub_u32 s52, s56, 12
    s_lshl_b32 s52, s52, 2
    s_add_u32 s52, s52, s20
    s_lshl_b32 s52, s52, 10
    s_min_u32 s52, s52, (CODE_END-k2_kernel-1020)&0xfffffff0
    v_add_u32 v19, s52, v3
    global_load_dwordx4 v[28:31], v19, s[50:51]""".split("\n")
    tlb_ops = []
    if int(os.environ.get("YTLB", 1)):
        tlb_ops = [f"v_and_b32 v19, 31, v1", f"s_mov_b32 s50, {L.GS // 4 // 16 * 16}", "v_mul_lo_u32 v19, v19, s50", f"s_mov_b32 s50, {L.GRP}",
                   "buffer_load_dword v28, v19, s[28:31], s50 offen"]
    epi_b = []
    for r in range(16):
        epi_b.append(f"v_and_b32 v{80+r}, 0xffff0000, v{64+r}")
        epi_b.append(f"v_lshlrev_b32 v{64+r}, 16, v{64+r}")
    for q in range(7, -1, -1):
        first = (q == 7)
        k("s_waitcnt lgkmcnt(0)")
        apl = areads(APk, 256*(q+8))
        if first:
            for ks in range(8):
                mfma(AY, AM + 4*ks, B1 + 4*ks, ks == 0)
                if ks == 0:
                    for x in prd[:16]: k(x)
                elif ks == 1:
                    for x in prd[16:]: k(x)
                elif ks == 2:
                    k("s_waitcnt lgkmcnt(15)")
                    k("s_waitcnt lgkmcnt(0)")
                    for x in al0[:4]: k(x)
                else:
                    for x in al0[4 + (ks-3)*6: 4 + (ks-2)*6]: k(x)
            k("s_nop 0")
            phase(AX, AM, B0, True, apl, alp[:16] + shift_ops(AY, False) + alp[16:] + ["s_nop 0"])
        else:
            phase(AY, AM, B1, False, apl, shift_ops(AP_, True))
            if q == 5: phase(AX, AM, B0, False, tlb_ops, shift_ops(AY, False))
            elif q > 0: phase(AX, AM, B0, False, [], shift_ops(AY, False))
            else: phase(AX, AM, B0, False, [], epi_a, pad=False)
        k("s_waitcnt lgkmcnt(0)")
        aml = areads(AM, 256*(q-1)) if q > 0 else []
        phase(AP_, APk, BP, first, aml, shift_ops(AX, False) if q > 0 else epi_b, rg=5, pad=(q > 0))
    k.stamp(7)
    k("s_mov_b32 s48, 0x05040100")
    k("s_mov_b32 s49, 0x07060302")
    k("s_nop 11")
    for r in range(16):
        k(f"v_add_f32_dpp v{AX+r}, v{AP_+r}, v{AX+r} row_shr:8 {DPP}")
    k("""
    s_mov_b32 s42, 0xff00ff00
    s_mov_b32 s43, 0xff00ff00
    s_mov_b64 exec, s[42:43]
    """)
    for r in range(16):
        k(f"v_add_f32 v{AY+r}, v{AP_+r}, v{AY+r}")
    k("s_mov_b64 exec, -1")
    for r in range(16):
        k(f"v_fma_f32 v{AX+r}, v{80+r}, s44, v{AX+r}")
        k(f"v_fma_f32 v{AY+r}, v{64+r}, s44, v{AY+r}")
    for r in range(16):
        k(f"v_cvt_pk_bf16_f32 v{32+r}, v{AX+r}, v{AY+r}")
    for r in range(16):
        k(f"ds_write_b32 v18, v{32+r} offset:{64*(r>>2)+8*(r&3)}")
    k(f"""
    s_waitcnt lgkmcnt(0)
    s_barrier
    """)
    Y = 48
    for e in range(4):
        for c in range(4):
            k(f"ds_read_b32 v{Y+4*e+c}, v17 offset:{c*WREG+1056*e}")
    k("s_waitcnt lgkmcnt(0)")
    O = 96
    for e in range(4):
        for hh in range(2):
            a, b = Y + 4*e + 2*hh, Y + 4*e + 2*hh + 1
            k(f"v_perm_b32 v{O+4*e+hh}, v{b}, v{a}, s48")
            k(f"v_perm_b32 v{O+4*e+2+hh}, v{b}, v{a}, s49")
    k(f"""
    v_lshrrev_b32 v20, 3, v0             ; tt
    v_lshrrev_b32 v21, 4, v20            ; tt>>4
    v_and_b32 v22, 15, v20               ; tt&15
    v_mul_u32_u24 v23, 20480, v20
    v_sub_u32 v23, v4, v23
    s_mov_b32 s40, {L.GS}
    v_mul_lo_u32 v24, v21, s40
    v_add_u32 v24, v24, v23
    v_add_u32 v25, 1, v22
    v_mul_u32_u24 v25, 20480, v25
    v_add_u32 v25, v25, v24
    v_cmp_eq_u32 s[42:43], 15, v22
    v_cmp_eq_u32 s[44:45], 0, v22
    v_add_u32 v26, {2*L.GS}, v24
    v_add_u32 v27, {17*20480}, v24
    v_cndmask_b32 v26, v27, v26, s[42:43]
    v_cmp_ne_u32 vcc, 0, v20
    s_and_b64 s[46:47], s[44:45], vcc
    s_or_b64 s[46:47], s[46:47], s[42:43]
    v_cmp_ne_u32 vcc, 31, v20
    s_and_b64 s[52:53], s[42:43], vcc
    s_or_b64 s[52:53], s[52:53], s[44:45]
    s_or_b64 s[44:45], s[44:45], s[42:43]    ; e = 1, 2
    s_add_u32 s39, s38, {L.GRP}
    """)
    for e in range(4):
        k(f"buffer_store_dwordx4 {vr(O+4*e,4)}, v25, s[28:31], s39 offen" + (" NOSC" if os.environ.get("YPLAIN") else ""))
        hl_ = k.newlab("halo")
        k(f"s_mov_b64 exec, {['s[46:47]', 's[44:45]', 's[44:45]', 's[52:53]'][e]}")
        k(f"s_cbranch_execz {hl_}")
        k(f"s_sub_u32 s41, s39, {L.GS}")
        k(f"buffer_store_dwordx4 {vr(O+4*e,4)}, v26, s[28:31], s41 offen" + (" NOSC" if os.environ.get("YPLAIN") else ""))
        k.lab(hl_)
        k("s_mov_b64 exec, -1")
        k(f"s_add_u32 s39, s39, {2*L.GS}")
    k.stamp(8)
    k("s_waitcnt vmcnt(0)")
    k.stamp_end(9)
    k("s_endpgm")

    k.lab("k1_side")
    k(f"""
    s_cmp_ge_u32 s54, {NSIDE}
    s_cbranch_scc1 {end}
    """)
    def side_wait(cnt):
        sp = k.newlab("sw"); sd = k.newlab("sw")
        k(f"""
        s_cmp_lg_u32 s20, 0
        s_cbranch_scc1 {sd}
        s_and_b32 s55, s2, 7
        s_lshl_b32 s57, s55, 9
        s_add_u32 s57, s57, {L.KFL}
        v_mov_b32 v250, 0
        v_and_b32 v248, 31, v0
        v_lshlrev_b32 v248, 2, v248
        s_waitcnt lgkmcnt(0)
        """)
        k.srd(28, 10, 0x10000000)
        k(f"""
        buffer_load_dword v251, v250, s[28:31], s57 offen sc1
        s_mov_b32 s23, {cnt}
        s_waitcnt vmcnt(0)
        v_add_u32 v251, 1, v251
        """)
        k.lab(sp)
        k(f"""
        buffer_load_dword v249, v248, s[28:31], s57 offen offset:256 sc1
        s_waitcnt vmcnt(0)
        v_cmp_eq_u32 vcc, v251, v249
        s_sub_u32 s23, s23, 1
        s_cmp_eq_u64 vcc, -1
        s_cbranch_scc1 {sd}
        s_sleep {os.environ.get('SSLEEP', 16)}
        s_cmp_lg_u32 s23, 0
        s_cbranch_scc1 {sp}
        """)
        k.lab(sd)
        k("s_barrier")
    if int(os.environ.get("SIDEWAIT", 1)):
        lsx = k.newlab("sx")
        k(f"""
        s_cmp_lt_u32 s54, {96+NPF+int(os.environ.get("NOWAITN", 0))}
        s_cbranch_scc1 {lsx}
        s_mov_b32 s61, s54
        """)
        side_wait(os.environ.get("SWN", 30))
        k("s_mov_b32 s54, s61")
        k.lab(lsx)
    k(f"""
    s_cmp_lt_u32 s54, {96+NPF}
    s_cbranch_scc1 k1_pf
    """)
    if MODFIRST:
        k(f"s_sub_u32 s54, s54, {96+NPF-36}")
        k("s_branch k1_pack0")
        k.lab("k1_side2")
        k(f"""
        s_cmp_lt_u32 s54, {NMOD}
        s_cbranch_scc1 k1_mod0
        s_sub_u32 s54, s54, {NMOD}
        """)
        k.lab("k1_pack0")
        emit_pack(k, 0, "s54", None)
        k.lab("k1_mod0")
    else:
        k("s_branch k1_mod0")
        k.lab("k1_side2")
        emit_pack(k, 0, "s54", None)
        k.lab("k1_mod0")
        k(f"s_sub_u32 s54, s54, {96+NPF}")
    if os.environ.get("PROFMOD"): k("s_memrealtime s[62:63]")
    k("s_waitcnt lgkmcnt(0)")
    k.srd(28, 10, 0x10000000)
    k.lab(modl)
    k("""
    s_load_dwordx4 s[12:15], s[0:1], 88
    s_mov_b32 s32, s54
    v_and_b32 v3, 7, v0              ; cc
    v_lshrrev_b32 v4, 3, v0          ; rsub
    v_lshlrev_b32 v5, 1, v4          ; c offset
    v_mul_u32_u24 v6, 7680, v4
    s_lshl_b32 s36, s32, 7
    v_lshl_add_u32 v7, v3, 4, s36
    v_add_u32 v6, v6, v7
    s_waitcnt lgkmcnt(0)
    """)
    k.srd(16, 12, 1280); k.srd(20, 14, 640 * 7680)
    C, W, A, T = 10, 32, 112, 120
    for it in range(20):
        k(f"buffer_load_ushort v{C+it}, v5, s[16:19], 0 offen offset:{64*it}")
    for it in range(20):
        k(f"s_mov_b32 s37, {it*32*7680}")
        k(f"buffer_load_dwordx4 {vr(W+4*it,4)}, v6, s[20:23], s37 offen")
    k("s_waitcnt vmcnt(20)")
    if os.environ.get("PROFMOD"): k("s_memrealtime s[64:65]")
    for it in range(20):
        k(f"v_lshlrev_b32 v{C+it}, 16, v{C+it}")
        k(f"v_mul_f32 v{T+it}, 0xbfb8aa3b, v{C+it}")
        k(f"v_exp_f32 v{T+it}, v{T+it}")
    for it in range(20):
        k(f"v_add_f32 v{T+it}, 1.0, v{T+it}")
        k(f"v_rcp_f32 v{T+it}, v{T+it}")
    k("s_nop 0")
    for it in range(20):
        k(f"v_mul_f32 v{C+it}, v{C+it}, v{T+it}")
    for it in range(0, 20, 2):
        k.round2(C + it, C + it + 1, T)
    for j in range(8):
        k(f"v_mov_b32 v{A+j}, 0")
    for it in range(20):
        k(f"s_waitcnt vmcnt({19-it})")
        for d in range(4):
            k.unpack(T + 2*d, T + 2*d + 1, W + 4*it + d)
        ce = C + (it & ~1)
        sel = "op_sel:[0,0,0] op_sel_hi:[1,0,1]" if it % 2 == 0 else "op_sel:[0,1,0] op_sel_hi:[1,1,1]"
        for d in range(4):
            k(f"v_pk_fma_f32 {vr(A+2*d,2)}, {vr(T+2*d,2)}, {vr(ce,2)}, {vr(A+2*d,2)} {sel}")
    if os.environ.get("PROFMOD"): k("s_memrealtime s[66:67]")
    k(f"""
    v_lshlrev_b32 v7, 5, v0
    ds_write_b128 v7, {vr(A,4)}
    ds_write_b128 v7, {vr(A+4,4)} offset:16
    s_waitcnt lgkmcnt(0)
    s_barrier
    v_cmp_gt_u32 vcc, 64, v0
    s_and_saveexec_b64 s[42:43], vcc
    s_cbranch_execz {end}
    v_lshlrev_b32 v7, 2, v0
    """)
    for r in range(32):
        k(f"ds_read_b32 v{W+r}, v7 offset:{256*r}")
    k("s_waitcnt lgkmcnt(0)")
    for st in (16, 8, 4, 2, 1):
        for r in range(st):
            k(f"v_add_f32 v{W+r}, v{W+r}, v{W+r+st}")
    a_ = W
    k(f"""
    s_movk_i32 s22, 640
    v_cvt_pk_bf16_f32 v{a_}, v{a_}, v{a_}
    v_lshlrev_b32 v{a_}, 16, v{a_}
    v_add_f32 v{a_+1}, 1.0, v{a_}
    v_cvt_pk_bf16_f32 v{a_+1}, v{a_+1}, v{a_+1}
    v_lshlrev_b32 v{a_+1}, 16, v{a_+1}
    s_lshl_b32 s33, s32, 6
    v_add_u32 v{a_+2}, s33, v0
    v_subrev_u32 v{a_+3}, 640, v{a_+2}
    v_cmp_gt_u32 vcc, 640, v{a_+3}
    v_subrev_u32 v{a_+3}, 2560, v{a_+2}
    v_cmp_gt_u32 s[40:41], s22, v{a_+3}
    s_or_b64 vcc, vcc, s[40:41]
    v_cndmask_b32 v{a_}, v{a_}, v{a_+1}, vcc
    s_lshl_b32 s21, s32, 8
    s_add_u32 s21, s21, {L.MODF}
    buffer_store_dword v{a_}, v7, s[28:31], s21 offen
    """)
    if os.environ.get("PROFMOD"):
        k(f"""
        s_waitcnt vmcnt(0)
        s_memrealtime s[68:69]
        s_waitcnt lgkmcnt(0)
        s_lshl_b32 s23, s32, 4
        s_add_u32 s23, s23, {48 << 20}
        v_mov_b32 v12, s62
        v_mov_b32 v13, s64
        v_mov_b32 v14, s66
        v_mov_b32 v15, s68
        v_mov_b32 v16, 0
        s_mov_b64 exec, 1
        buffer_store_dwordx4 v[12:15], v16, s[28:31], s23 offen
        """)
    k.lab(end)
    k("s_endpgm")
    k.lab("k1_pf")
    WPX = NPF // 8 * 4
    k(f"""
    s_waitcnt lgkmcnt(0)
    s_load_dwordx2 s[4:5], s[0:1], 0
    v_lshlrev_b32 v3, 7, v1          ; lane*128
    v_lshlrev_b32 v1, 4, v1
    s_sub_u32 s24, s54, 96
    s_lshr_b32 s24, s24, 3
    s_lshl_b32 s24, s24, 2
    s_add_u32 s24, s24, s20
    s_and_b32 s22, s2, 7
    s_mul_i32 s21, s24, {327680 // WPX}
    s_mul_i32 s23, s22, 327680
    s_add_u32 s21, s21, s23
    s_waitcnt lgkmcnt(0)
    """)
    k.srd(16, 4, SZ_SD); k.srd(28, 10, 0x10000000)
    zl2 = k.newlab("zf")
    k(f"""
    s_sub_u32 s36, s54, 96
    s_cmp_ge_u32 s36, 16
    s_cbranch_scc1 {zl2}
    s_lshl_b32 s36, s36, 12
    s_add_u32 s36, s36, {L.FLAGS}
    v_lshlrev_b32 v5, 4, v0
    v_mov_b32 v60, 0
    v_mov_b32 v61, 0
    v_mov_b32 v62, 0
    v_mov_b32 v63, 0
    buffer_store_dwordx4 v[60:63], v5, s[28:31], s36 offen
    """)
    k.lab(zl2)
    if int(os.environ.get("ZST", 1)):
        k(f"""
        s_sub_u32 s36, s54, 96
        s_lshr_b32 s36, s36, 3
        s_mul_i32 s36, s36, 5120
        s_and_b32 s37, s2, 7
        s_mul_i32 s37, s37, {L.GS}
        s_add_u32 s36, s36, s37
        s_add_u32 s36, s36, {L.GRP + L.G_ST1}
        v_lshlrev_b32 v5, 4, v0
        v_mov_b32 v60, 0
        v_mov_b32 v61, 0
        v_mov_b32 v62, 0
        v_mov_b32 v63, 0
        buffer_store_dwordx4 v[60:63], v5, s[28:31], s36 offen
        s_add_u32 s36, s36, 4096
        s_cmp_lg_u32 s20, 0
        s_cbranch_scc1 k1_zst
        buffer_store_dwordx4 v[60:63], v5, s[28:31], s36 offen
        """)
        k.lab("k1_zst")
        k(f"""
        s_and_b32 s37, s2, 7
        s_cmp_eq_u32 s37, 0
        s_cselect_b32 s38, {L.GRP}, 0
        s_cmp_eq_u32 s37, 7
        s_cselect_b32 s38, {L.GRP + 7*L.GS + 17*20480}, s38
        s_cmp_eq_u32 s38, 0
        s_cbranch_scc1 k1_zht
        s_sub_u32 s36, s54, 96
        s_lshr_b32 s36, s36, 3
        s_mul_i32 s36, s36, 5120
        s_add_u32 s36, s36, s38
        buffer_store_dwordx4 v[60:63], v5, s[28:31], s36 offen
        s_add_u32 s36, s36, 4096
        s_cmp_lg_u32 s20, 0
        s_cbranch_scc1 k1_zht
        buffer_store_dwordx4 v[60:63], v5, s[28:31], s36 offen
        """)
        k.lab("k1_zht")
    k("s_getpc_b64 s[40:41]")
    k.lab("k1_pcref")
    k(f"""
    s_sub_u32 s40, s40, k1_pcref-k1_kernel
    s_subb_u32 s41, s41, 0
    s_lshl_b32 s42, s24, 12
    """)
    for i in range(4):
        k(f"""
        s_add_u32 s43, s42, {1024*i}
        s_min_u32 s43, s43, (CODE_END-k1_kernel-1020)&0xfffffff0
        v_add_u32 v6, s43, v1
        global_load_dwordx4 {vr(64+4*i,4)}, v6, s[40:41]
        """)
    if int(os.environ.get("PFW2", 1)):
        k("s_mov_b32 s61, s21")
        k("s_mov_b32 s62, s24")
        k("s_waitcnt vmcnt(0)")
        side_wait(os.environ.get("SWN", 30))
        k("s_mov_b32 s21, s61")
        k("s_mov_b32 s24, s62")
        k.srd(28, 10, 0x10000000)
    for i in range(0 if os.environ.get("NOQPF") else 327680 // WPX // 1024):
        k(f"buffer_load_dwordx4 {vr(8+4*(i%10),4)}, v1, s[16:19], s21 offen offset:{(i%4)*1024}")
        if i % 4 == 3:
            k("s_add_u32 s21, s21, 4096")
    def lines(sreg, n, dst, bits=""):
        i = 0
        while n > 0:
            c = min(64, n)
            if c < 64: k(f"s_mov_b64 exec, {hex((1 << c) - 1) if c <= 31 else None}" if c <= 31 else f"s_mov_b32 exec_hi, {hex((1 << (c - 32)) - 1)}")
            k(f"buffer_load_dword v{dst+i}, v3, s[28:31], s{sreg} offen{bits}")
            if c < 64: k("s_mov_b64 exec, -1")
            else: k(f"s_add_u32 s{sreg}, s{sreg}, 8192")
            n -= c; i += 1
    k(f"""
    s_mul_i32 s22, s22, {L.GS}
    s_add_u32 s22, s22, {L.GRP}
    """)
    if os.environ.get("WARM"):
        k(f"s_mul_i32 s23, s24, {327680 // WPX}\ns_add_u32 s23, s23, s22\ns_add_u32 s23, s23, {L.G_H1S}")
        lines(23, 2560 // WPX, 48)
        k(f"s_mul_i32 s23, s24, {20480 // WPX}\ns_add_u32 s23, s23, s22\ns_add_u32 s23, s23, {L.G_ST1}")
        lines(23, 160 // WPX, 54)
    if os.environ.get("H3W"):
        k(f"s_mul_i32 s23, s24, 27648\ns_add_u32 s23, s23, s22\ns_add_u32 s23, s23, {L.G_H3}")
        lines(23, 216, 54, " nt")
    if os.environ.get("WPF"):
        lp = k.newlab("pfp"); ld = k.newlab("pfd"); le = k.newlab("pfe")
        k(f"""
        v_and_b32 v4, 1, v0
        v_lshlrev_b32 v4, 7, v4
        v_add_u32 v4, {L.FLAGS + L.F_PK + 128}, v4
        v_and_b32 v6, 1, v0
        v_mul_u32_u24 v6, 34, v6
        v_add_u32 v6, 20, v6                            ; targets 20 / 54
        s_mov_b32 s32, 20000
        """)
        k.lab(lp)
        k(f"""
        buffer_load_dword v5, v4, s[28:31], 0 offen sc1
        s_waitcnt vmcnt(0)
        v_cmp_le_u32 vcc, v6, v5
        s_sub_u32 s32, s32, 1
        s_cmp_eq_u64 vcc, -1
        s_cbranch_scc1 {ld}
        s_cmp_eq_u32 s32, 0
        s_cbranch_scc1 {le}
        s_sleep 64
        s_branch {lp}
        """)
        k.lab(ld)
        WPF = os.environ.get("WPF", "23")
        if "1" in WPF:
            k(f"s_mul_i32 s23, s24, 25600\ns_add_u32 s23, s23, {L.W1P}")
            lines(23, 200, 56)
        if "2" in WPF:
            k(f"s_mul_i32 s23, s24, 25600\ns_add_u32 s23, s23, {L.W2P}")
            lines(23, 200, 60)
        if "3" in WPF:
            k(f"s_mul_i32 s23, s24, {70*1024}\ns_add_u32 s23, s23, {L.W3P}")
            lines(23, 560, 64)
        k.lab(le)
    k("s_waitcnt vmcnt(0)")
    k("s_endpgm")
    return k

def build(kerns, path):
    hdr = open("/code/" + NAME + ".s.ref").read().split("\n")
    com = [l for l in hdr if l.startswith(";") and "@launch" not in l and "Override launch" not in l and "grid=ceil" not in l]
    s = "\n".join(com) + "\n"
    for k in kerns:
        s += f"; @launch kernel={k.name} grid=({k.grid},1,1) block=({k.block},1,1) lds={k.lds}\n"
    s += '.amdgcn_target "amdgcn-amd-amdhsa--gfx950"\n.text\n'
    for k in kerns:
        s += k.text()
    s += "CODE_END:\n    s_endpgm\n"
    s += '.section .rodata,"a"\n'
    for k in kerns:
        s += k.kd()
    open(path, "w").write(s)

if __name__ == "__main__":
    out = sys.argv[1] if len(sys.argv) > 1 else "/code/" + NAME + ".s"
    if MERGE:
        k = Kern("k01_kernel", 864, 256, 46080, vgpr=256, sgpr=64)
        if os.environ.get("ORD") == "kvfirst":
            k("""
            s_cmp_ge_u32 s2, 864
            s_cbranch_scc1 k1_end
            s_cmp_lt_u32 s2, 480
            s_cbranch_scc1 k01_k0
            s_sub_u32 s2, s2, 480
            s_branch k01_k1
            """)
        else:
            k("""
            s_cmp_ge_u32 s2, 864
            s_cbranch_scc1 k1_end
            s_cmp_lt_u32 s2, 160
            s_cbranch_scc1 k01_k1
            s_cmp_lt_u32 s2, 600
            s_cbranch_scc1 k01_a
            s_cmp_lt_u32 s2, 819
            s_cbranch_scc1 k01_b
            s_cmp_lt_u32 s2, 824
            s_cbranch_scc1 k1_end
            s_sub_u32 s2, s2, 384
            s_branch k01_k0
            """)
            k.lab("k01_b")
            k("s_sub_u32 s2, s2, 440")
            k("s_branch k01_k1")
            k.lab("k01_a")
            k("s_sub_u32 s2, s2, 160")
        k.lab("k01_k0")
        gen_k0(k)
        k.lab("k01_k1")
        gen_k1(k)
        kerns = [k]
    else:
        kerns = [gen_k1()]
    try:
        import chain
        kerns += chain.kernels(Kern, vr)
    except ImportError:
        pass
    build(kerns, out)
    print("wrote", out)
```

```python
import sys, os
sys.path.insert(0, os.path.dirname(os.path.abspath(__file__)))
import layout as L

NAME = "adaLN_cond__ssm_conv_h3__mixer_s_mlp__prompt"
SZ_SD = 2048 * 640 * 2

class Kern:
    def __init__(self, name, grid, block, lds, vgpr=256, sgpr=102, agpr=0):
        self.name, self.grid, self.block, self.lds = name, grid, block, lds
        self.vgpr, self.sgpr, self.agpr = vgpr, (102 if (os.environ.get("PROF") or os.environ.get("PROFK1")) else sgpr), agpr
        self.L = []
        self.nlab = 0
    def __call__(self, s):
        for ln in s.strip("\n").split("\n"):
            ln = ln.strip()
            if ln:
                self.L.append("    " + ln)
    def lab(self, s):
        self.L.append(s + ":")
    def newlab(self, p="L"):
        self.nlab += 1
        return f"{self.name}_{p}{self.nlab}"
    def srd(self, d, b, size, off=0):
        if off:
            self(f"s_add_u32 s{d}, s{b}, {off}")
            self(f"s_addc_u32 s{d+1}, s{b+1}, 0")
        else:
            self(f"s_mov_b32 s{d}, s{b}")
            self(f"s_mov_b32 s{d+1}, s{b+1}")
        self(f"s_mov_b32 s{d+2}, {size}")
        self(f"s_mov_b32 s{d+3}, 0x00020000")
    def round2(self, a, b, t):
        self(f"v_cvt_pk_bf16_f32 v{t}, v{a}, v{b}")
        self(f"v_lshlrev_b32 v{a}, 16, v{t}")
        self(f"v_and_b32 v{b}, 0xffff0000, v{t}")
    def unpack(self, lo, hi, src):
        self(f"v_lshlrev_b32 v{lo}, 16, v{src}")
        self(f"v_and_b32 v{hi}, 0xffff0000, v{src}")
    def stamp(self, i):
        if os.environ.get("PROFK1"):
            self(f"s_memtime s[{80+2*i}:{81+2*i}]")
    def stamp_end(self, n):
        if os.environ.get("PROFK1"):
            l = self.newlab("prof")
            self(f"""
            s_waitcnt lgkmcnt(0)
            s_cmp_lg_u32 s2, {int(os.environ.get("PROFWG", "0"))}
            s_cbranch_scc1 {l}
            s_load_dwordx2 s[76:77], s[0:1], 112
            s_waitcnt lgkmcnt(0)
            s_mov_b32 s78, 256
            s_mov_b32 s79, 0x00020000
            v_mov_b32 v1, 0
            """)
            for i in range(n):
                self(f"s_sub_u32 s75, s{80+2*i}, s80")
                self(f"v_mov_b32 v2, s75")
                self(f"buffer_store_dword v2, v1, s[76:79], 0 offen offset:{4*i}")
            self.lab(l)
    def text(self):
        sc = self.name in os.environ.get("SC1", "k1_kernel").split(",")
        Ls = [(l + " sc1" if (sc and l.strip().startswith("buffer_store") and " sc1" not in l and "NOSC" not in l) else l.replace(" NOSC", "")) for l in self.L]
        return (f".globl {self.name}\n.p2align 8\n.type {self.name},@function\n{self.name}:\n" + "\n".join(Ls) + "\n")
    def kd(self):
        acc = (self.vgpr + 3) // 4 * 4
        nfv = self.vgpr if not self.agpr else acc + self.agpr
        return f""".p2align 6
.amdhsa_kernel {self.name}
  .amdhsa_next_free_vgpr {nfv}
  .amdhsa_next_free_sgpr {self.sgpr}
  .amdhsa_accum_offset {acc}
  .amdhsa_group_segment_fixed_size 0
  .amdhsa_kernarg_size 128
  .amdhsa_user_sgpr_count 2
  .amdhsa_user_sgpr_kernarg_segment_ptr 1
  .amdhsa_system_sgpr_workgroup_id_x 1
  .amdhsa_float_denorm_mode_32 3
.end_amdhsa_kernel
"""

def vr(a, n):
    return f"v[{a}:{a+n-1}]"

MERGE = os.environ.get("MERGE", "0") == "1"
CNT_OFF = 128

def signal(k, cnt_sgpr_or_imm):
    l = k.newlab("sig")
    k(f"""
    s_mov_b64 exec, -1
    s_waitcnt vmcnt(0)
    s_barrier
    v_cmp_eq_u32 vcc, 0, v0
    s_and_saveexec_b64 s[42:43], vcc
    s_cbranch_execz {l}
    v_mov_b32 v1, 1
    v_mov_b32 v2, {cnt_sgpr_or_imm}
    buffer_atomic_add v1, v2, s[48:51], 0 offen
    """)
    k.lab(l)
    k("s_endpgm")

def poll(k, voff, target, vtmp):
    l = k.newlab("poll"); d = k.newlab("polld")
    k("s_mov_b32 s52, 0")
    k("s_cmp_lg_u32 s20, 0")
    k(f"s_cbranch_scc1 {d}")
    k.lab(l)
    k(f"""
    buffer_load_dword v{vtmp}, v{voff}, s[48:51], 0 offen sc0 sc1
    s_waitcnt vmcnt(0)
    v_readfirstlane_b32 s53, v{vtmp}
    s_add_u32 s52, s52, 1
    s_cmp_ge_u32 s53, {target}
    s_cbranch_scc1 {d}
    s_cmp_ge_u32 s52, 0x100000
    s_cbranch_scc1 {d}
    s_sleep {int(os.environ.get("SLP", 8))}
    s_branch {l}
    """)
    k.lab(d)
    k("s_barrier")

def emit_pack(k, base, idreg="s2", step=None):
    k(f"""
    s_load_dwordx2 s[10:11], s[0:1], 120   ; ws
    s_load_dwordx8 s[12:19], s[0:1], 56    ; w1 w2 w3 w4
    v_lshrrev_b32 v2, 6, v0
    v_and_b32 v1, 63, v0                   ; lane
    v_readfirstlane_b32 s20, v2
    s_waitcnt lgkmcnt(0)
    """)
    k.srd(28, 10, 0x10000000)
    labs = [k.newlab("pk") for _ in range(4)]
    pend = k.newlab("pke")
    k(f"""
    s_sub_u32 s21, {idreg}, {base}
    v_lshrrev_b32 v3, 3, v0                ; row
    v_and_b32 v4, 7, v0                    ; chunk
    v_mul_u32_u24 v5, 144, v3
    v_lshl_add_u32 v5, v4, 4, v5
    v_and_b32 v6, 15, v1
    v_lshrrev_b32 v7, 4, v1                ; g
    v_lshrrev_b32 v8, 2, v6
    v_lshl_add_u32 v8, v7, 3, v8           ; 8g + (i>>2)
    v_mul_u32_u24 v8, 144, v8
    v_and_b32 v9, 3, v6
    v_lshl_add_u32 v8, v9, 3, v8
    s_lshl_b32 s22, s20, 5
    v_add_u32 v8, s22, v8
    v_lshlrev_b32 v9, 4, v1                ; lane*16
    s_cmp_lt_u32 s21, 10
    s_cbranch_scc1 {labs[0]}
    s_cmp_lt_u32 s21, 20
    s_cbranch_scc1 {labs[1]}
    s_cmp_lt_u32 s21, 48
    s_cbranch_scc1 {labs[2]}
    s_cmp_lt_u32 s21, 78
    s_cbranch_scc1 {labs[3]}
    s_branch {pend}
    """)
    for m in range(4):
        k.lab(labs[m])
        N = [640, 640, 1728, 640][m]; Kd = [640, 640, 640, 1728][m]
        pitch = N * 2
        nks = 10 if m < 3 else 9
        ub = [0, 10, 20, 48][m]
        ncb = N // 64
        npr = (ncb + 1) // 2
        k.srd(24, 12 + 2*m, Kd * N * 2)
        magic = {5: (52429, 18), 14: (4682, 16)}[npr]
        k(f"""
        s_sub_u32 s32, s21, {ub}
        s_mul_i32 s33, s32, {magic[0]}
        s_lshr_b32 s33, s33, {magic[1]}      ; kq
        s_mul_i32 s34, s33, {npr}
        s_sub_u32 s34, s32, s34
        s_lshl_b32 s34, s34, 1
        v_mul_u32_u24 v10, {pitch}, v3
        v_lshl_add_u32 v10, v4, 4, v10
        s_mul_i32 s35, s33, {nks*32*pitch}
        s_lshl_b32 s36, s34, 7
        s_add_u32 s35, s35, s36
        """)
        R = [32, 72]
        for h in range(2):
            for i in range(nks):
                k(f"buffer_load_dwordx4 {vr(R[h]+4*i,4)}, v10, s[24:27], s35 offen offset:{128*h}")
                if i < nks - 1:
                    k(f"s_add_u32 s35, s35, {32*pitch}")
            if h == 0: k(f"s_sub_u32 s35, s35, {(nks-1)*32*pitch}")
        nt_ = 7 if m == 2 else 5
        mg = (9363, 16) if nt_ == 7 else (52429, 18)
        perj = [100, 100, 140, 280][m]
        dconst = [i * nt_ * 1024 for i in range(nks)]
        for h in range(2):
            skip = None
            if h == 1:
                k("s_add_u32 s34, s34, 1")
                k("s_barrier")
            k(f"""
            s_lshl_b32 s36, s34, 2
            s_add_u32 s36, s36, s20             ; ntg
            s_mul_i32 s38, s36, {mg[0]}
            s_lshr_b32 s38, s38, {mg[1]}     ; j
            s_mul_i32 s39, s38, {nt_}
            s_sub_u32 s39, s36, s39          ; nt
            s_mul_i32 s37, s38, {perj}
            s_mul_i32 s40, s33, {nks*nt_}
            s_add_u32 s37, s37, s40
            s_add_u32 s37, s37, s39
            s_lshl_b32 s37, s37, 10
            s_add_u32 s37, s37, {[L.W1P, L.W2P, L.W3P, L.W4P][m]}
            """)
            nst = nks + (1 if m in (0, 2) else 0)
            for i in range(nks):
                n_after = (nks - 1 - i) + (nks if h == 0 else nst)
                k(f"s_waitcnt vmcnt({n_after})")
                k(f"ds_write_b128 v5, {vr(R[h]+4*i,4)} offset:{4608*i}")
            k("s_waitcnt lgkmcnt(0)")
            k("s_barrier")
            for i in range(nks):
                k(f"ds_read_b64_tr_b16 {vr(R[h]+4*i,2)}, v8 offset:{4608*i}")
                k(f"ds_read_b64_tr_b16 {vr(R[h]+4*i+2,2)}, v8 offset:{4608*i+576}")
            if m in (0, 2):
                k("v_mov_b32 v12, 0")
                k("v_mov_b32 v13, 0x3f803f80")
            for i in range(nks):
                k(f"s_waitcnt lgkmcnt({2*(nks-1-i)})" if 2*(nks-1-i) <= 15 else "s_waitcnt lgkmcnt(15)")
                k(f"s_add_u32 s38, s37, {dconst[i]}")
                k(f"buffer_store_dwordx4 {vr(R[h]+4*i,4)}, v9, s[28:31], s38 offen" + (" NOSC" if (os.environ.get("WPLAIN") and str(m) in os.environ.get("WPLAIN")) else ""))
                if m in (0, 2):
                    for d in range(4):
                        k(f"v_dot2_f32_bf16 v12, v{R[h]+4*i+d}, v13, v12")
            if m in (0, 2):
                k(f"""
                s_nop 2
                v_mov_b32 v13, v12
                s_nop 1
                v_permlane32_swap_b32 v13, v12
                v_add_f32 v12, v12, v13
                v_mov_b32 v13, v12
                s_nop 1
                v_permlane16_swap_b32 v13, v12
                v_add_f32 v12, v12, v13
                s_mul_i32 s38, s33, {1792*4}
                s_lshl_b32 s39, s36, 6
                s_add_u32 s38, s38, s39
                s_add_u32 s38, s38, {L.CS3P if m == 2 else L.CS1P}
                v_lshlrev_b32 v14, 2, v1
                v_cmp_gt_u32 vcc, 16, v1
                s_and_saveexec_b64 s[40:41], vcc
                buffer_store_dword v12, v14, s[28:31], s38 offen
                s_mov_b64 exec, -1
                """)
        k("s_endpgm")
    k.lab(pend)
    k("s_endpgm")


WREG = 9472
KVL = 4 * 9472
def gen_k1(k=None):
    NMOD = 60; NPF = 32
    MODFIRST = int(os.environ.get("MODFIRST", 0))
    NSIDE = 96 + NPF + (42 if MODFIRST else NMOD)
    GRID = (160 + NSIDE + 7) // 8 * 8
    k = Kern("k1_kernel", GRID, 256, KVL + 10240, vgpr=256, sgpr=72)
    end = "k1_end"; modl = "k1_modf"
    k(f"""
    s_cmp_ge_u32 s2, {GRID}
    s_cbranch_scc1 {end}
    s_load_dwordx4 s[4:7], s[0:1], 32
    s_load_dwordx2 s[10:11], s[0:1], 120   ; ws
    s_load_dwordx4 s[12:15], s[0:1], 8     ; k, v
    s_load_dwordx2 s[8:9], s[0:1], 24      ; shift_k
    v_lshrrev_b32 v2, 6, v0
    v_and_b32 v1, 63, v0                   ; lane
    v_readfirstlane_b32 s20, v2
    s_sub_u32 s54, s2, 160
    s_cmp_ge_u32 s2, 256
    s_cbranch_scc1 k1_side
    s_and_b32 s55, s2, 7                   ; class
    s_lshr_b32 s56, s2, 3                  ; member
    s_lshl_b32 s57, s55, 9
    s_add_u32 s57, s57, {L.KFL}
    v_mov_b32 v250, 0
    s_waitcnt lgkmcnt(0)
    """)
    k.srd(28, 10, 0x10000000)
    k.stamp(0)
    if os.environ.get("PROFMOD"):
        k(f"""
        s_memrealtime s[62:63]
        s_waitcnt lgkmcnt(0)
        s_lshl_b32 s23, s2, 4
        s_add_u32 s23, s23, {(48 << 20) + 4096}
        v_mov_b32 v12, s62
        s_mov_b64 exec, 1
        buffer_store_dword v12, v250, s[28:31], s23 offen
        s_mov_b64 exec, -1
        """)
    if os.environ.get("PROFKV"): k("s_memrealtime s[62:63]")
    k("buffer_load_dword v251, v250, s[28:31], s57 offen sc1")
    k.srd(16, 12, SZ_SD); k.srd(40, 14, SZ_SD); k.srd(44, 8, 640 * 8)
    KR, VR_, SKR, SKF, KF, KVF, T = 10, 32, 48, 56, 72, 116, 150
    k(f"""
    v_mul_u32_u24 v4, 3277, v0
    v_lshrrev_b32 v4, 16, v4               ; rg
    v_mul_u32_u24 v5, 20, v4
    v_sub_u32 v5, v0, v5                   ; cg
    s_lshl_b32 s21, s56, 6
    v_lshl_add_u32 v6, v4, 3, s21
    v_mul_u32_u24 v6, 1280, v6
    s_mul_i32 s22, s55, 160
    v_lshl_add_u32 v7, v5, 3, s22
    v_add_u32 v6, v6, v7
    v_subrev_u32 v8, 3840, v6
    v_add_u32 v9, 5120, v6
    s_movk_i32 s23, 160
    v_cmp_gt_u32 vcc, s23, v0
    s_and_saveexec_b64 s[60:61], vcc
    s_cbranch_execz k1_kvld
    """)
    for r in range(11):
        if r < 3: k(f"buffer_load_dwordx2 {vr(KR+2*r,2)}, v8, s[16:19], 0 offen offset:{1280*r}")
        elif r < 6: k(f"buffer_load_dwordx2 {vr(KR+2*r,2)}, v6, s[16:19], 0 offen offset:{1280*(r-3)}")
        elif r < 7: k(f"buffer_load_dwordx2 {vr(KR+2*r,2)}, v6, s[16:19], 0 offen offset:3840")
        else: k(f"buffer_load_dwordx2 {vr(KR+2*r,2)}, v9, s[16:19], 0 offen offset:{1280*(r-7)}")
    k(f"v_lshlrev_b32 v{T}, 2, v7")
    k(f"buffer_load_dwordx4 {vr(SKR,4)}, v{T}, s[44:47], 0 offen")
    k(f"buffer_load_dwordx4 {vr(SKR+4,4)}, v{T}, s[44:47], 0 offen offset:16")
    for r in range(8):
        if r < 4: k(f"buffer_load_dwordx2 {vr(VR_+2*r,2)}, v6, s[40:43], 0 offen offset:{1280*r}")
        else: k(f"buffer_load_dwordx2 {vr(VR_+2*r,2)}, v9, s[40:43], 0 offen offset:{1280*(r-4)}")
    k.lab("k1_kvld")
    k("s_mov_b64 exec, -1")
    NTL = 0
    if int(os.environ.get("KVTLB", 0)):
        NTL = 1
        k(f"""
        s_mul_i32 s36, s55, {80*L.KVR_CH}
        v_and_b32 v252, 15, v1
        v_mul_u32_u24 v252, {L.KVR_CH*5}, v252
        v_lshrrev_b32 v253, 4, v1
        v_cmp_eq_u32 vcc, 1, v253
        v_and_b32 v254, 15, v1
        v_mul_u32_u24 v254, 0x60000, v254
        v_add_u32 v254, {L.W1P}, v254
        v_add_u32 v252, s36, v252
        v_cndmask_b32 v252, v252, v254, vcc
        buffer_load_dword v253, v252, s[28:31], 0 offen
        """)
    lnc = k.newlab("nc")
    k.srd(24, 4, 640 * 4096)
    k(f"""
    s_cmp_lt_u32 s56, 12
    s_cbranch_scc1 {lnc}
    s_mul_i32 s58, s55, 20
    s_add_u32 s58, s58, s56
    s_sub_u32 s58, s58, 12
    s_lshl_b32 s21, s58, 2
    s_add_u32 s21, s21, s20                 ; ch
    s_mul_i32 s34, s20, {WREG}
    v_lshlrev_b32 v3, 4, v1                 ; lane*16
    s_lshl_b32 s35, s21, 12                 ; ch*4096
    s_add_u32 s36, s34, 256
    s_mov_b32 m0, s36
    s_nop 0
    """)
    for i in range(4):
        k(f"buffer_load_dwordx4 v3, s[24:27], s35 offen offset:{1024*i} lds")
    k.lab(lnc)
    k(f"""
    s_mov_b64 exec, s[60:61]
    s_movk_i32 s23, 160
    v_cmp_gt_u32 vcc, s23, v0
    s_and_b64 exec, exec, vcc
    s_cbranch_execz k1_kvskip
    """)
    k(f"""
    v_sub_u32 v{T}, 7, v4
    v_and_b32 v{T+1}, 7, v5
    v_xor_b32 v{T}, v{T}, v{T+1}
    v_lshlrev_b32 v{T}, 4, v{T}
    v_lshl_add_u32 v{T}, v5, 9, v{T}
    v_add_u32 v{T}, {KVL}, v{T}
    s_cmp_lt_u32 s56, 12
    s_cbranch_scc1 k1_w8
    s_waitcnt vmcnt({12+NTL})
    s_branch k1_w9
    """)
    k.lab("k1_w8")
    k(f"s_waitcnt vmcnt({8+NTL})")
    k.lab("k1_w9")
    for c in range(4):
        k.unpack(SKF + c, SKF + 4 + c, SKR + 2*c)
        k.unpack(SKF + 8 + c, SKF + 12 + c, SKR + 2*c + 1)
    for r in range(11):
        k.unpack(KF + 4*r, KF + 4*r + 1, KR + 2*r)
        k.unpack(KF + 4*r + 2, KF + 4*r + 3, KR + 2*r + 1)
    for p in range(2):
        for s_ in range(8):
            A = KVF + 4*s_ + 2*p
            k(f"v_pk_mul_f32 {vr(A,2)}, {vr(KF+4*s_+2*p,2)}, {vr(SKF+12+2*p,2)}")
        for j in (2, 1, 0):
            for s_ in range(8):
                A = KVF + 4*s_ + 2*p
                k(f"v_pk_fma_f32 {vr(A,2)}, {vr(KF+4*(s_+3-j)+2*p,2)}, {vr(SKF+4*j+2*p,2)}, {vr(A,2)}")
    for s_ in range(8):
        for p in range(2):
            A = KVF + 4*s_ + 2*p
            k.round2(A, A + 1, T + 4 + (2*s_ + p) % 8)
    k("""
    s_cmp_lt_u32 s56, 12
    s_cbranch_scc1 k1_w0
    s_waitcnt vmcnt(%d)
    s_branch k1_w1
    """ % (4 + NTL))
    k.lab("k1_w0")
    k(f"s_waitcnt vmcnt({NTL})")
    k.lab("k1_w1")
    if os.environ.get("PROFKV"): k("s_memrealtime s[64:65]")
    k.stamp(1)
    for s_ in range(8):
        for p in range(2):
            t_ = KF + 4*s_ + 2*p
            k.unpack(t_, t_ + 1, VR_ + 2*s_ + p)
    for s_ in range(8):
        for p in range(2):
            k(f"v_pk_mul_f32 {vr(KVF+4*s_+2*p,2)}, {vr(KVF+4*s_+2*p,2)}, {vr(KF+4*s_+2*p,2)}")
    O2 = KR
    for c in range(4):
        for d in range(4):
            k(f"v_cvt_pk_bf16_f32 v{O2+4*c+d}, v{KVF+4*(7-2*d)+c}, v{KVF+4*(6-2*d)+c}")
    for c in range(4):
        k(f"ds_write_b128 v{T}, {vr(O2+4*c,4)} offset:{128*c}")
    k.lab("k1_kvskip")
    k(f"""
    s_mov_b64 exec, -1
    v_lshrrev_b32 v{T+1}, 3, v0             ; channel (0..31)
    v_and_b32 v{T+2}, 7, v0                 ; unit
    v_lshrrev_b32 v{T+3}, 2, v{T+1}
    v_and_b32 v{T+3}, 7, v{T+3}
    v_xor_b32 v{T+3}, v{T+3}, v{T+2}
    v_lshlrev_b32 v{T+3}, 4, v{T+3}
    v_lshl_add_u32 v{T+3}, v{T+1}, 7, v{T+3}
    v_add_u32 v{T+3}, {KVL}, v{T+3}
    v_mul_u32_u24 v{T+1}, {L.KVR_CH}, v{T+1}
    v_lshl_add_u32 v{T+4}, v{T+2}, 4, v{T+1}
    s_mul_i32 s36, s55, {80*L.KVR_CH}
    s_add_u32 s36, s36, {L.KVR}
    s_lshl_b32 s37, s56, 7
    s_sub_u32 s38, 3968, s37
    s_add_u32 s38, s38, s36                 ; + 3968 - 128*mi
    s_waitcnt lgkmcnt(0)
    s_barrier
    """)
    k.stamp(2)
    for i in range(3):
        k(f"ds_read_b128 {vr(32+4*i,4)}, v{T+3} offset:{4096*i}")
    for i in range(3):
        if i == 2: k("s_movk_i32 s23, 128\nv_cmp_gt_u32 vcc, s23, v0\ns_and_saveexec_b64 s[60:61], vcc\ns_cbranch_execz k1_st2skip")
        k(f"s_waitcnt lgkmcnt({2-i})")
        k(f"buffer_store_dwordx4 {vr(32+4*i,4)}, v{T+4}, s[28:31], s38 offen sc1")
        k(f"s_add_u32 s38, s38, {32*L.KVR_CH}")
    k.lab("k1_st2skip")
    k("s_mov_b64 exec, -1")
    zl = k.newlab()
    k(f"""
    s_cmp_lg_u32 s56, 0
    s_cbranch_scc1 {zl}
    v_mov_b32 v44, 0
    v_mov_b32 v45, 0
    v_mov_b32 v46, 0
    v_mov_b32 v47, 0
    s_add_u32 s36, s36, 4096
    """)
    for i in range(3):
        if i == 2: k(f"s_movk_i32 s23, 128\nv_cmp_gt_u32 vcc, s23, v0\ns_and_b64 exec, exec, vcc\ns_cbranch_execz {zl}")
        k(f"buffer_store_dwordx4 v[44:47], v{T+4}, s[28:31], s36 offen sc1")
        k(f"s_add_u32 s36, s36, {32*L.KVR_CH}")
    k.lab(zl)
    lfl = k.newlab("kf")
    k(f"""
    s_mov_b64 exec, -1
    s_waitcnt vmcnt(0)
    v_add_u32 v251, 1, v251
    """)
    k.stamp(3)
    if os.environ.get("PROFKV"): k("s_memrealtime s[66:67]")
    k(f"""
    s_barrier
    s_cmp_lg_u32 s20, 0
    s_cbranch_scc1 {lfl}
    s_lshl_b32 s23, s56, 2
    s_add_u32 s23, s23, s57
    s_mov_b64 exec, 1
    buffer_store_dword v251, v250, s[28:31], s23 offen offset:256 NOSC
    buffer_store_dword v251, v250, s[28:31], s23 offen offset:128 sc1
    s_mov_b64 exec, -1
    """)
    k.lab(lfl)
    k(f"""
    s_lshl_b32 s54, s56, 3
    s_add_u32 s54, s54, s55
    """)
    if os.environ.get("PROFKV"):
        lq = k.newlab("pq")
        k(f"""
        s_cmp_ge_u32 s56, 12
        s_cbranch_scc1 {lq}
        s_cmp_lg_u32 s20, 0
        s_cbranch_scc1 {lq}
        s_waitcnt lgkmcnt(0)
        s_lshl_b32 s23, s54, 4
        s_add_u32 s23, s23, {48 << 20}
        v_mov_b32 v12, s62
        v_mov_b32 v13, s64
        v_mov_b32 v14, s66
        v_mov_b32 v15, s66
        s_mov_b64 exec, 1
        buffer_store_dwordx4 v[12:15], v250, s[28:31], s23 offen
        s_mov_b64 exec, -1
        """)
        k.lab(lq)
    k(f"""
    s_cmp_lt_u32 s56, 12
    s_cbranch_scc1 k1_side2
    """)
    k("s_mov_b32 s2, s58")
    if os.environ.get("PRIO", "1") == "1": k("s_setprio 3")
    k.stamp(5)
    k(f"""
    s_lshl_b32 s21, s2, 3
    s_add_u32 s22, s6, s21
    s_addc_u32 s23, s7, 0
    s_load_dwordx2 s[32:33], s[22:23], 0
    s_lshl_b32 s21, s2, 2
    s_add_u32 s21, s21, s20                 ; ch
    s_mul_i32 s34, s20, {WREG}
    v_lshlrev_b32 v3, 4, v1                 ; lane*16
    s_mul_i32 s37, s21, {L.KVR_CH}
    s_add_u32 s37, s37, {L.KVR}
    v_lshrrev_b32 v4, 3, v0
    v_mul_u32_u24 v4, 20480, v4
    s_lshr_b32 s38, s2, 1
    s_and_b32 s38, s38, 7
    v_and_b32 v5, 7, v0
    v_xor_b32 v5, s38, v5
    v_lshl_add_u32 v4, v5, 4, v4            ; (t>>3)*20480 + ((t&7)^sw)*16
    s_lshl_b32 s38, s2, 7                   ; cg*128
    """)
    for i in range(5):
        k(f"""
        v_add_u32 v20, {64*i}, v1
        v_mul_u32_u24 v21, 3856, v20
        v_lshrrev_b32 v21, 16, v21             ; n = q/17
        v_mul_u32_u24 v22, 17, v21
        v_sub_u32 v22, v20, v22                ; e
        v_lshlrev_b32 v22, 4, v22
        v_lshlrev_b32 v21, 8, v21
        v_sub_u32 v22, v22, v21
        v_add_u32 v{23+i}, 3840, v22
        """)
    k(f"""
    v_lshl_add_u32 v5, v1, 2, s34
    v_mov_b32 v6, 0
    ds_write_b32 v5, v6
    v_and_b32 v7, 15, v1                    ; n16
    v_bfe_u32 v8, v1, 4, 1                  ; ph
    v_lshrrev_b32 v9, 5, v1                 ; g
    v_mul_u32_u24 v10, 272, v7
    v_lshl_add_u32 v10, v9, 4, v10
    v_add_u32 v10, s34, v10
    v_add_u32 v10, {4352+4}, v10
    v_lshlrev_b32 v11, 2, v8
    v_sub_u32 v10, v10, v11
    v_and_b32 v12, 7, v1
    v_mul_u32_u24 v13, 272, v12
    v_lshl_add_u32 v13, v9, 4, v13
    v_add_u32 v13, s34, v13
    v_add_u32 v13, {4352+4}, v13
    v_sub_u32 v13, v13, v11                 ; vBP
    v_bfe_u32 v11, v1, 3, 1                 ; a'
    v_lshlrev_b32 v11, 4, v11
    v_sub_u32 v11, 16, v11
    v_and_b32 v14, 31, v1
    v_lshlrev_b32 v14, 3, v14
    v_lshl_add_u32 v14, v9, 4, v14
    v_add_u32 v14, s34, v14
    v_add_u32 v14, 8, v14                   ; vA
    v_cmp_ne_u32 vcc, 0, v12
    v_mov_b32 v16, 0
    s_nop 1
    v_cndmask_b32 v15, v16, -1, vcc
    """)
    k("s_waitcnt lgkmcnt(0)")
    AM_ = 176
    for ks in range(8):
        k(f"ds_read_b64 {vr(AM_+4*ks,2)}, v14 offset:{256*7+32*ks}")
        k(f"ds_read_b64 {vr(AM_+4*ks+2,2)}, v14 offset:{256*7+32*ks+8}")
    lw = k.newlab("kw"); lp = k.newlab("kp"); ld = k.newlab("kd"); lb = k.newlab("kb")
    k(f"""
    s_cmp_lg_u32 s20, 0
    s_cbranch_scc1 {lw}
    v_and_b32 v40, 31, v1
    v_lshlrev_b32 v40, 2, v40
    s_mov_b32 s23, 200000
    """)
    lq4 = k.newlab("kq")
    k("s_mov_b64 s[60:61], 0")
    k.lab(lp)
    k(f"""
    buffer_load_dword v41, v40, s[28:31], s57 offen offset:256 sc1
    s_waitcnt vmcnt(0)
    v_cmp_eq_u32 vcc, v251, v41
    s_sub_u32 s23, s23, 1
    s_or_b64 s[60:61], s[60:61], vcc
    s_cmp_eq_u64 s[60:61], -1
    s_cbranch_scc1 {ld}
    s_and_b32 s21, s23, 3
    s_cmp_lg_u32 s21, 0
    s_cbranch_scc1 {lq4}
    buffer_load_dword v41, v40, s[28:31], s57 offen offset:128 sc1
    s_waitcnt vmcnt(0)
    v_cmp_eq_u32 vcc, v251, v41
    s_nop 1
    s_or_b64 s[60:61], s[60:61], vcc
    s_cmp_eq_u64 s[60:61], -1
    s_cbranch_scc1 {ld}
    """)
    k.lab(lq4)
    k(f"""
    s_sleep {os.environ.get("KSLEEP", 2)}
    s_cmp_lg_u32 s23, 0
    s_cbranch_scc1 {lp}
    """)
    k.lab(ld)
    if os.environ.get("PROFKV"):
        k(f"""
        s_memrealtime s[68:69]
        s_waitcnt lgkmcnt(0)
        s_lshl_b32 s23, s56, 3
        s_add_u32 s23, s23, s55
        s_lshl_b32 s23, s23, 4
        s_add_u32 s23, s23, {48 << 20}
        v_mov_b32 v12, s62
        v_mov_b32 v13, s64
        v_mov_b32 v14, s66
        v_mov_b32 v15, s68
        s_mov_b64 exec, 1
        buffer_store_dwordx4 v[12:15], v250, s[28:31], s23 offen
        s_mov_b64 exec, -1
        """)
    k(f"""
    s_cmp_lg_u32 s56, 12
    s_cbranch_scc1 {lw}
    s_mov_b64 exec, 1
    buffer_store_dword v251, v250, s[28:31], s57 offen sc1
    s_mov_b64 exec, -1
    """)
    k.lab(lw)
    k.stamp(4)
    k("s_barrier")
    for i in range(5):
        k(f"s_add_u32 s36, s34, {4352 + 1024*i}")
        k("s_mov_b32 m0, s36")
        if i == 4: k("s_mov_b64 exec, 0xffff")
        else: k("s_nop 0")
        k(f"buffer_load_dwordx4 v{23+i}, s[28:31], s37 offen sc1 lds")
    k("s_mov_b64 exec, -1")
    k("s_waitcnt vmcnt(0) lgkmcnt(0)")
    B0, B1, BP, AX, AY, AP_, AM, APk = 32, 64, 96, 128, 144, 160, 176, 208
    k.stamp(6)
    def aread(reg, off):
        return f"ds_read_b64 {vr(reg,2)}, v14 offset:{off}\n    ds_read_b64 {vr(reg+2,2)}, v14 offset:{off+8}"
    TB = 16
    for ks in range(8):
        k(f"ds_read2_b32 {vr(B1+4*ks,2)}, v10 offset0:{8*ks} offset1:{8*ks+1}")
        k(f"ds_read2_b32 {vr(B1+4*ks+2,2)}, v10 offset0:{8*ks+2} offset1:{8*ks+3}")
    prd = []
    for ks in range(8):
        prd.append(f"ds_read_b32 v{TB+ks}, v10 offset:{32*ks+16}")
    for ks in range(8):
        prd.append(f"ds_read2_b32 {vr(BP+4*ks,2)}, v13 offset0:{8*ks} offset1:{8*ks+1}")
        prd.append(f"ds_read2_b32 {vr(BP+4*ks+2,2)}, v13 offset0:{8*ks+2} offset1:{8*ks+3}")
        prd.append(f"ds_read_b32 v{TB+8+ks}, v13 offset:{32*ks+16}")
    al0 = []; alp = []
    for ks in range(8):
        for d in range(4):
            hi = B1 + 4*ks + d + 1 if d < 3 else TB + ks
            al0.append(f"v_alignbit_b32 v{B0+4*ks+d}, v{hi}, v{B1+4*ks+d}, 16")
            hi = BP + 4*ks + d + 1 if d < 3 else TB + 8 + ks
            alp.append(f"v_alignbit_b32 v{BP+4*ks+d}, v{hi}, v{BP+4*ks+d}, v11")
    DPP = "row_mask:0xf bank_mask:0xf bound_ctrl:0"
    def mfma(acc, a, b, first):
        c = "0" if first else vr(acc, 16)
        k(f"v_mfma_f32_32x32x16_bf16 {vr(acc,16)}, {vr(a,4)}, {vr(b,4)}, {c}")
    def phase(acc, Areg, Breg, first, reads, late, pad=True, rg=8):
        reads = list(reads); late = list(late)
        for ks in range(8):
            mfma(acc, Areg + 4*ks, Breg + 4*ks, first and ks == 0)
            n = (len(reads) + (rg - 1 - ks)) // (rg - ks) if ks < rg else 0
            for s in reads[:n]:
                k(s)
            reads = reads[n:]
            if ks < 2:
                if pad and late and n < 5:
                    k(f"s_nop {4 - n}")
            else:
                n = (len(late) + (7 - ks)) // (8 - ks)
                for s in late[:n]:
                    k(s)
                late = late[n:]
        assert not late and not reads
    def shift_ops(acc, masked):
        if masked:
            return [f"v_and_b32_dpp v{acc+r}, v{acc+r}, v15 row_shr:1 {DPP}" for r in range(16)]
        return [f"v_mov_b32_dpp v{acc+r}, v{acc+r} row_shr:1 {DPP}" for r in range(16)]
    def areads(reg, off):
        o = []
        for ks in range(8):
            o += aread(reg + 4*ks, off + 32*ks).split("\n")
        return o
    epi_a = f"""v_mul_u32_u24 v16, 272, v7
    v_add_u32 v16, s34, v16
    v_add_u32 v16, {4352 + 36}, v16
    v_lshlrev_b32 v17, 2, v8
    v_sub_u32 v16, v16, v17
    v_lshlrev_b32 v17, 5, v9
    v_sub_u32 v16, v16, v17""".split("\n")
    epi_a += [f"ds_read_b32 v{64+r}, v16 offset:{216 - 64*(r>>2) - 8*(r&3)}" for r in range(16)]
    epi_a += f"""s_lshr_b32 s44, s20, 1
    s_and_b32 s45, s20, 1
    s_cmp_eq_u32 s44, 1
    s_cselect_b32 s44, s33, s32
    s_lshl_b32 s46, s44, 16
    s_and_b32 s47, s44, 0xffff0000
    s_cmp_eq_u32 s45, 1
    s_cselect_b32 s44, s47, s46
    v_mul_u32_u24 v18, 264, v7
    v_lshl_add_u32 v18, v9, 5, v18
    v_lshl_add_u32 v18, v8, 2, v18
    v_add_u32 v18, s34, v18
    v_mul_u32_u24 v17, 264, v2
    v_lshl_add_u32 v17, v1, 2, v17""".split("\n")
    if int(os.environ.get("CODEPF2", 0)):
        epi_a.append("s_getpc_b64 s[50:51]\nK1PC2:\ns_add_u32 s50, s50, k2_kernel-K1PC2\ns_addc_u32 s51, s51, 0")
        epi_a += f"""s_sub_u32 s52, s56, 12
    s_lshl_b32 s52, s52, 2
    s_add_u32 s52, s52, s20
    s_lshl_b32 s52, s52, 10
    s_min_u32 s52, s52, (CODE_END-k2_kernel-1020)&0xfffffff0
    v_add_u32 v19, s52, v3
    global_load_dwordx4 v[28:31], v19, s[50:51]""".split("\n")
    tlb_ops = []
    if int(os.environ.get("YTLB", 1)):
        tlb_ops = [f"v_and_b32 v19, 31, v1", f"s_mov_b32 s50, {L.GS // 4 // 16 * 16}", "v_mul_lo_u32 v19, v19, s50", f"s_mov_b32 s50, {L.GRP}",
                   "buffer_load_dword v28, v19, s[28:31], s50 offen"]
    epi_b = []
    for r in range(16):
        epi_b.append(f"v_and_b32 v{80+r}, 0xffff0000, v{64+r}")
        epi_b.append(f"v_lshlrev_b32 v{64+r}, 16, v{64+r}")
    for q in range(7, -1, -1):
        first = (q == 7)
        k("s_waitcnt lgkmcnt(0)")
        apl = areads(APk, 256*(q+8))
        if first:
            for ks in range(8):
                mfma(AY, AM + 4*ks, B1 + 4*ks, ks == 0)
                if ks == 0:
                    for x in prd[:16]: k(x)
                elif ks == 1:
                    for x in prd[16:]: k(x)
                elif ks == 2:
                    k("s_waitcnt lgkmcnt(15)")
                    k("s_waitcnt lgkmcnt(0)")
                    for x in al0[:4]: k(x)
                else:
                    for x in al0[4 + (ks-3)*6: 4 + (ks-2)*6]: k(x)
            k("s_nop 0")
            phase(AX, AM, B0, True, apl, alp[:16] + shift_ops(AY, False) + alp[16:] + ["s_nop 0"])
        else:
            phase(AY, AM, B1, False, apl, shift_ops(AP_, True))
            if q == 5: phase(AX, AM, B0, False, tlb_ops, shift_ops(AY, False))
            elif q > 0: phase(AX, AM, B0, False, [], shift_ops(AY, False))
            else: phase(AX, AM, B0, False, [], epi_a, pad=False)
        k("s_waitcnt lgkmcnt(0)")
        aml = areads(AM, 256*(q-1)) if q > 0 else []
        phase(AP_, APk, BP, first, aml, shift_ops(AX, False) if q > 0 else epi_b, rg=5, pad=(q > 0))
    k.stamp(7)
    k("s_mov_b32 s48, 0x05040100")
    k("s_mov_b32 s49, 0x07060302")
    k("s_nop 11")
    for r in range(16):
        k(f"v_add_f32_dpp v{AX+r}, v{AP_+r}, v{AX+r} row_shr:8 {DPP}")
    k("""
    s_mov_b32 s42, 0xff00ff00
    s_mov_b32 s43, 0xff00ff00
    s_mov_b64 exec, s[42:43]
    """)
    for r in range(16):
        k(f"v_add_f32 v{AY+r}, v{AP_+r}, v{AY+r}")
    k("s_mov_b64 exec, -1")
    for r in range(16):
        k(f"v_fma_f32 v{AX+r}, v{80+r}, s44, v{AX+r}")
        k(f"v_fma_f32 v{AY+r}, v{64+r}, s44, v{AY+r}")
    for r in range(16):
        k(f"v_cvt_pk_bf16_f32 v{32+r}, v{AX+r}, v{AY+r}")
    for r in range(16):
        k(f"ds_write_b32 v18, v{32+r} offset:{64*(r>>2)+8*(r&3)}")
    k(f"""
    s_waitcnt lgkmcnt(0)
    s_barrier
    """)
    Y = 48
    for e in range(4):
        for c in range(4):
            k(f"ds_read_b32 v{Y+4*e+c}, v17 offset:{c*WREG+1056*e}")
    k("s_waitcnt lgkmcnt(0)")
    O = 96
    for e in range(4):
        for hh in range(2):
            a, b = Y + 4*e + 2*hh, Y + 4*e + 2*hh + 1
            k(f"v_perm_b32 v{O+4*e+hh}, v{b}, v{a}, s48")
            k(f"v_perm_b32 v{O+4*e+2+hh}, v{b}, v{a}, s49")
    k(f"""
    v_lshrrev_b32 v20, 3, v0             ; tt
    v_lshrrev_b32 v21, 4, v20            ; tt>>4
    v_and_b32 v22, 15, v20               ; tt&15
    v_mul_u32_u24 v23, 20480, v20
    v_sub_u32 v23, v4, v23
    s_mov_b32 s40, {L.GS}
    v_mul_lo_u32 v24, v21, s40
    v_add_u32 v24, v24, v23
    v_add_u32 v25, 1, v22
    v_mul_u32_u24 v25, 20480, v25
    v_add_u32 v25, v25, v24
    v_cmp_eq_u32 s[42:43], 15, v22
    v_cmp_eq_u32 s[44:45], 0, v22
    v_add_u32 v26, {2*L.GS}, v24
    v_add_u32 v27, {17*20480}, v24
    v_cndmask_b32 v26, v27, v26, s[42:43]
    v_cmp_ne_u32 vcc, 0, v20
    s_and_b64 s[46:47], s[44:45], vcc
    s_or_b64 s[46:47], s[46:47], s[42:43]
    v_cmp_ne_u32 vcc, 31, v20
    s_and_b64 s[52:53], s[42:43], vcc
    s_or_b64 s[52:53], s[52:53], s[44:45]
    s_or_b64 s[44:45], s[44:45], s[42:43]    ; e = 1, 2
    s_add_u32 s39, s38, {L.GRP}
    """)
    for e in range(4):
        k(f"buffer_store_dwordx4 {vr(O+4*e,4)}, v25, s[28:31], s39 offen" + (" NOSC" if os.environ.get("YPLAIN") else ""))
        hl_ = k.newlab("halo")
        k(f"s_mov_b64 exec, {['s[46:47]', 's[44:45]', 's[44:45]', 's[52:53]'][e]}")
        k(f"s_cbranch_execz {hl_}")
        k(f"s_sub_u32 s41, s39, {L.GS}")
        k(f"buffer_store_dwordx4 {vr(O+4*e,4)}, v26, s[28:31], s41 offen" + (" NOSC" if os.environ.get("YPLAIN") else ""))
        k.lab(hl_)
        k("s_mov_b64 exec, -1")
        k(f"s_add_u32 s39, s39, {2*L.GS}")
    k.stamp(8)
    k("s_waitcnt vmcnt(0)")
    k.stamp_end(9)
    k("s_endpgm")

    k.lab("k1_side")
    k(f"""
    s_cmp_ge_u32 s54, {NSIDE}
    s_cbranch_scc1 {end}
    """)
    def side_wait(cnt):
        sp = k.newlab("sw"); sd = k.newlab("sw")
        k(f"""
        s_cmp_lg_u32 s20, 0
        s_cbranch_scc1 {sd}
        s_and_b32 s55, s2, 7
        s_lshl_b32 s57, s55, 9
        s_add_u32 s57, s57, {L.KFL}
        v_mov_b32 v250, 0
        v_and_b32 v248, 31, v0
        v_lshlrev_b32 v248, 2, v248
        s_waitcnt lgkmcnt(0)
        """)
        k.srd(28, 10, 0x10000000)
        k(f"""
        buffer_load_dword v251, v250, s[28:31], s57 offen sc1
        s_mov_b32 s23, {cnt}
        s_waitcnt vmcnt(0)
        v_add_u32 v251, 1, v251
        """)
        k.lab(sp)
        k(f"""
        buffer_load_dword v249, v248, s[28:31], s57 offen offset:256 sc1
        s_waitcnt vmcnt(0)
        v_cmp_eq_u32 vcc, v251, v249
        s_sub_u32 s23, s23, 1
        s_cmp_eq_u64 vcc, -1
        s_cbranch_scc1 {sd}
        s_sleep {os.environ.get('SSLEEP', 16)}
        s_cmp_lg_u32 s23, 0
        s_cbranch_scc1 {sp}
        """)
        k.lab(sd)
        k("s_barrier")
    if int(os.environ.get("SIDEWAIT", 1)):
        lsx = k.newlab("sx")
        k(f"""
        s_cmp_lt_u32 s54, {96+NPF+int(os.environ.get("NOWAITN", 0))}
        s_cbranch_scc1 {lsx}
        s_mov_b32 s61, s54
        """)
        side_wait(os.environ.get("SWN", 30))
        k("s_mov_b32 s54, s61")
        k.lab(lsx)
    k(f"""
    s_cmp_lt_u32 s54, {96+NPF}
    s_cbranch_scc1 k1_pf
    """)
    if MODFIRST:
        k(f"s_sub_u32 s54, s54, {96+NPF-36}")
        k("s_branch k1_pack0")
        k.lab("k1_side2")
        k(f"""
        s_cmp_lt_u32 s54, {NMOD}
        s_cbranch_scc1 k1_mod0
        s_sub_u32 s54, s54, {NMOD}
        """)
        k.lab("k1_pack0")
        emit_pack(k, 0, "s54", None)
        k.lab("k1_mod0")
    else:
        k("s_branch k1_mod0")
        k.lab("k1_side2")
        emit_pack(k, 0, "s54", None)
        k.lab("k1_mod0")
        k(f"s_sub_u32 s54, s54, {96+NPF}")
    if os.environ.get("PROFMOD"): k("s_memrealtime s[62:63]")
    k("s_waitcnt lgkmcnt(0)")
    k.srd(28, 10, 0x10000000)
    k.lab(modl)
    k("""
    s_load_dwordx4 s[12:15], s[0:1], 88
    s_mov_b32 s32, s54
    v_and_b32 v3, 7, v0              ; cc
    v_lshrrev_b32 v4, 3, v0          ; rsub
    v_lshlrev_b32 v5, 1, v4          ; c offset
    v_mul_u32_u24 v6, 7680, v4
    s_lshl_b32 s36, s32, 7
    v_lshl_add_u32 v7, v3, 4, s36
    v_add_u32 v6, v6, v7
    s_waitcnt lgkmcnt(0)
    """)
    k.srd(16, 12, 1280); k.srd(20, 14, 640 * 7680)
    C, W, A, T = 10, 32, 112, 120
    for it in range(20):
        k(f"buffer_load_ushort v{C+it}, v5, s[16:19], 0 offen offset:{64*it}")
    for it in range(20):
        k(f"s_mov_b32 s37, {it*32*7680}")
        k(f"buffer_load_dwordx4 {vr(W+4*it,4)}, v6, s[20:23], s37 offen")
    k("s_waitcnt vmcnt(20)")
    if os.environ.get("PROFMOD"): k("s_memrealtime s[64:65]")
    for it in range(20):
        k(f"v_lshlrev_b32 v{C+it}, 16, v{C+it}")
        k(f"v_mul_f32 v{T+it}, 0xbfb8aa3b, v{C+it}")
        k(f"v_exp_f32 v{T+it}, v{T+it}")
    for it in range(20):
        k(f"v_add_f32 v{T+it}, 1.0, v{T+it}")
        k(f"v_rcp_f32 v{T+it}, v{T+it}")
    k("s_nop 0")
    for it in range(20):
        k(f"v_mul_f32 v{C+it}, v{C+it}, v{T+it}")
    for it in range(0, 20, 2):
        k.round2(C + it, C + it + 1, T)
    for j in range(8):
        k(f"v_mov_b32 v{A+j}, 0")
    for it in range(20):
        k(f"s_waitcnt vmcnt({19-it})")
        for d in range(4):
            k.unpack(T + 2*d, T + 2*d + 1, W + 4*it + d)
        ce = C + (it & ~1)
        sel = "op_sel:[0,0,0] op_sel_hi:[1,0,1]" if it % 2 == 0 else "op_sel:[0,1,0] op_sel_hi:[1,1,1]"
        for d in range(4):
            k(f"v_pk_fma_f32 {vr(A+2*d,2)}, {vr(T+2*d,2)}, {vr(ce,2)}, {vr(A+2*d,2)} {sel}")
    if os.environ.get("PROFMOD"): k("s_memrealtime s[66:67]")
    k(f"""
    v_lshlrev_b32 v7, 5, v0
    ds_write_b128 v7, {vr(A,4)}
    ds_write_b128 v7, {vr(A+4,4)} offset:16
    s_waitcnt lgkmcnt(0)
    s_barrier
    v_cmp_gt_u32 vcc, 64, v0
    s_and_saveexec_b64 s[42:43], vcc
    s_cbranch_execz {end}
    v_lshlrev_b32 v7, 2, v0
    """)
    for r in range(32):
        k(f"ds_read_b32 v{W+r}, v7 offset:{256*r}")
    k("s_waitcnt lgkmcnt(0)")
    for st in (16, 8, 4, 2, 1):
        for r in range(st):
            k(f"v_add_f32 v{W+r}, v{W+r}, v{W+r+st}")
    a_ = W
    k(f"""
    s_movk_i32 s22, 640
    v_cvt_pk_bf16_f32 v{a_}, v{a_}, v{a_}
    v_lshlrev_b32 v{a_}, 16, v{a_}
    v_add_f32 v{a_+1}, 1.0, v{a_}
    v_cvt_pk_bf16_f32 v{a_+1}, v{a_+1}, v{a_+1}
    v_lshlrev_b32 v{a_+1}, 16, v{a_+1}
    s_lshl_b32 s33, s32, 6
    v_add_u32 v{a_+2}, s33, v0
    v_subrev_u32 v{a_+3}, 640, v{a_+2}
    v_cmp_gt_u32 vcc, 640, v{a_+3}
    v_subrev_u32 v{a_+3}, 2560, v{a_+2}
    v_cmp_gt_u32 s[40:41], s22, v{a_+3}
    s_or_b64 vcc, vcc, s[40:41]
    v_cndmask_b32 v{a_}, v{a_}, v{a_+1}, vcc
    s_lshl_b32 s21, s32, 8
    s_add_u32 s21, s21, {L.MODF}
    buffer_store_dword v{a_}, v7, s[28:31], s21 offen
    """)
    if os.environ.get("PROFMOD"):
        k(f"""
        s_waitcnt vmcnt(0)
        s_memrealtime s[68:69]
        s_waitcnt lgkmcnt(0)
        s_lshl_b32 s23, s32, 4
        s_add_u32 s23, s23, {48 << 20}
        v_mov_b32 v12, s62
        v_mov_b32 v13, s64
        v_mov_b32 v14, s66
        v_mov_b32 v15, s68
        v_mov_b32 v16, 0
        s_mov_b64 exec, 1
        buffer_store_dwordx4 v[12:15], v16, s[28:31], s23 offen
        """)
    k.lab(end)
    k("s_endpgm")
    k.lab("k1_pf")
    WPX = NPF // 8 * 4
    k(f"""
    s_waitcnt lgkmcnt(0)
    s_load_dwordx2 s[4:5], s[0:1], 0
    v_lshlrev_b32 v3, 7, v1          ; lane*128
    v_lshlrev_b32 v1, 4, v1
    s_sub_u32 s24, s54, 96
    s_lshr_b32 s24, s24, 3
    s_lshl_b32 s24, s24, 2
    s_add_u32 s24, s24, s20
    s_and_b32 s22, s2, 7
    s_mul_i32 s21, s24, {327680 // WPX}
    s_mul_i32 s23, s22, 327680
    s_add_u32 s21, s21, s23
    s_waitcnt lgkmcnt(0)
    """)
    k.srd(16, 4, SZ_SD); k.srd(28, 10, 0x10000000)
    zl2 = k.newlab("zf")
    k(f"""
    s_sub_u32 s36, s54, 96
    s_cmp_ge_u32 s36, 16
    s_cbranch_scc1 {zl2}
    s_lshl_b32 s36, s36, 12
    s_add_u32 s36, s36, {L.FLAGS}
    v_lshlrev_b32 v5, 4, v0
    v_mov_b32 v60, 0
    v_mov_b32 v61, 0
    v_mov_b32 v62, 0
    v_mov_b32 v63, 0
    buffer_store_dwordx4 v[60:63], v5, s[28:31], s36 offen
    """)
    k.lab(zl2)
    if int(os.environ.get("ZST", 1)):
        k(f"""
        s_sub_u32 s36, s54, 96
        s_lshr_b32 s36, s36, 3
        s_mul_i32 s36, s36, 5120
        s_and_b32 s37, s2, 7
        s_mul_i32 s37, s37, {L.GS}
        s_add_u32 s36, s36, s37
        s_add_u32 s36, s36, {L.GRP + L.G_ST1}
        v_lshlrev_b32 v5, 4, v0
        v_mov_b32 v60, 0
        v_mov_b32 v61, 0
        v_mov_b32 v62, 0
        v_mov_b32 v63, 0
        buffer_store_dwordx4 v[60:63], v5, s[28:31], s36 offen
        s_add_u32 s36, s36, 4096
        s_cmp_lg_u32 s20, 0
        s_cbranch_scc1 k1_zst
        buffer_store_dwordx4 v[60:63], v5, s[28:31], s36 offen
        """)
        k.lab("k1_zst")
        k(f"""
        s_and_b32 s37, s2, 7
        s_cmp_eq_u32 s37, 0
        s_cselect_b32 s38, {L.GRP}, 0
        s_cmp_eq_u32 s37, 7
        s_cselect_b32 s38, {L.GRP + 7*L.GS + 17*20480}, s38
        s_cmp_eq_u32 s38, 0
        s_cbranch_scc1 k1_zht
        s_sub_u32 s36, s54, 96
        s_lshr_b32 s36, s36, 3
        s_mul_i32 s36, s36, 5120
        s_add_u32 s36, s36, s38
        buffer_store_dwordx4 v[60:63], v5, s[28:31], s36 offen
        s_add_u32 s36, s36, 4096
        s_cmp_lg_u32 s20, 0
        s_cbranch_scc1 k1_zht
        buffer_store_dwordx4 v[60:63], v5, s[28:31], s36 offen
        """)
        k.lab("k1_zht")
    k("s_getpc_b64 s[40:41]")
    k.lab("k1_pcref")
    k(f"""
    s_sub_u32 s40, s40, k1_pcref-k1_kernel
    s_subb_u32 s41, s41, 0
    s_lshl_b32 s42, s24, 12
    """)
    for i in range(4):
        k(f"""
        s_add_u32 s43, s42, {1024*i}
        s_min_u32 s43, s43, (CODE_END-k1_kernel-1020)&0xfffffff0
        v_add_u32 v6, s43, v1
        global_load_dwordx4 {vr(64+4*i,4)}, v6, s[40:41]
        """)
    if int(os.environ.get("PFW2", 1)):
        k("s_mov_b32 s61, s21")
        k("s_mov_b32 s62, s24")
        k("s_waitcnt vmcnt(0)")
        side_wait(os.environ.get("SWN", 30))
        k("s_mov_b32 s21, s61")
        k("s_mov_b32 s24, s62")
        k.srd(28, 10, 0x10000000)
    for i in range(0 if os.environ.get("NOQPF") else 327680 // WPX // 1024):
        k(f"buffer_load_dwordx4 {vr(8+4*(i%10),4)}, v1, s[16:19], s21 offen offset:{(i%4)*1024}")
        if i % 4 == 3:
            k("s_add_u32 s21, s21, 4096")
    def lines(sreg, n, dst, bits=""):
        i = 0
        while n > 0:
            c = min(64, n)
            if c < 64: k(f"s_mov_b64 exec, {hex((1 << c) - 1) if c <= 31 else None}" if c <= 31 else f"s_mov_b32 exec_hi, {hex((1 << (c - 32)) - 1)}")
            k(f"buffer_load_dword v{dst+i}, v3, s[28:31], s{sreg} offen{bits}")
            if c < 64: k("s_mov_b64 exec, -1")
            else: k(f"s_add_u32 s{sreg}, s{sreg}, 8192")
            n -= c; i += 1
    k(f"""
    s_mul_i32 s22, s22, {L.GS}
    s_add_u32 s22, s22, {L.GRP}
    """)
    if os.environ.get("WARM"):
        k(f"s_mul_i32 s23, s24, {327680 // WPX}\ns_add_u32 s23, s23, s22\ns_add_u32 s23, s23, {L.G_H1S}")
        lines(23, 2560 // WPX, 48)
        k(f"s_mul_i32 s23, s24, {20480 // WPX}\ns_add_u32 s23, s23, s22\ns_add_u32 s23, s23, {L.G_ST1}")
        lines(23, 160 // WPX, 54)
    if os.environ.get("H3W"):
        k(f"s_mul_i32 s23, s24, 27648\ns_add_u32 s23, s23, s22\ns_add_u32 s23, s23, {L.G_H3}")
        lines(23, 216, 54, " nt")
    if os.environ.get("WPF"):
        lp = k.newlab("pfp"); ld = k.newlab("pfd"); le = k.newlab("pfe")
        k(f"""
        v_and_b32 v4, 1, v0
        v_lshlrev_b32 v4, 7, v4
        v_add_u32 v4, {L.FLAGS + L.F_PK + 128}, v4
        v_and_b32 v6, 1, v0
        v_mul_u32_u24 v6, 34, v6
        v_add_u32 v6, 20, v6                            ; targets 20 / 54
        s_mov_b32 s32, 20000
        """)
        k.lab(lp)
        k(f"""
        buffer_load_dword v5, v4, s[28:31], 0 offen sc1
        s_waitcnt vmcnt(0)
        v_cmp_le_u32 vcc, v6, v5
        s_sub_u32 s32, s32, 1
        s_cmp_eq_u64 vcc, -1
        s_cbranch_scc1 {ld}
        s_cmp_eq_u32 s32, 0
        s_cbranch_scc1 {le}
        s_sleep 64
        s_branch {lp}
        """)
        k.lab(ld)
        WPF = os.environ.get("WPF", "23")
        if "1" in WPF:
            k(f"s_mul_i32 s23, s24, 25600\ns_add_u32 s23, s23, {L.W1P}")
            lines(23, 200, 56)
        if "2" in WPF:
            k(f"s_mul_i32 s23, s24, 25600\ns_add_u32 s23, s23, {L.W2P}")
            lines(23, 200, 60)
        if "3" in WPF:
            k(f"s_mul_i32 s23, s24, {70*1024}\ns_add_u32 s23, s23, {L.W3P}")
            lines(23, 560, 64)
        k.lab(le)
    k("s_waitcnt vmcnt(0)")
    k("s_endpgm")
    return k

def build(kerns, path):
    hdr = open("/code/" + NAME + ".s.ref").read().split("\n")
    com = [l for l in hdr if l.startswith(";") and "@launch" not in l and "Override launch" not in l and "grid=ceil" not in l]
    s = "\n".join(com) + "\n"
    for k in kerns:
        s += f"; @launch kernel={k.name} grid=({k.grid},1,1) block=({k.block},1,1) lds={k.lds}\n"
    s += '.amdgcn_target "amdgcn-amd-amdhsa--gfx950"\n.text\n'
    for k in kerns:
        s += k.text()
    s += "CODE_END:\n    s_endpgm\n"
    s += '.section .rodata,"a"\n'
    for k in kerns:
        s += k.kd()
    open(path, "w").write(s)

if __name__ == "__main__":
    out = sys.argv[1] if len(sys.argv) > 1 else "/code/" + NAME + ".s"
    if MERGE:
        k = Kern("k01_kernel", 864, 256, 46080, vgpr=256, sgpr=64)
        if os.environ.get("ORD") == "kvfirst":
            k("""
            s_cmp_ge_u32 s2, 864
            s_cbranch_scc1 k1_end
            s_cmp_lt_u32 s2, 480
            s_cbranch_scc1 k01_k0
            s_sub_u32 s2, s2, 480
            s_branch k01_k1
            """)
        else:
            k("""
            s_cmp_ge_u32 s2, 864
            s_cbranch_scc1 k1_end
            s_cmp_lt_u32 s2, 160
            s_cbranch_scc1 k01_k1
            s_cmp_lt_u32 s2, 600
            s_cbranch_scc1 k01_a
            s_cmp_lt_u32 s2, 819
            s_cbranch_scc1 k01_b
            s_cmp_lt_u32 s2, 824
            s_cbranch_scc1 k1_end
            s_sub_u32 s2, s2, 384
            s_branch k01_k0
            """)
            k.lab("k01_b")
            k("s_sub_u32 s2, s2, 440")
            k("s_branch k01_k1")
            k.lab("k01_a")
            k("s_sub_u32 s2, s2, 160")
        k.lab("k01_k0")
        gen_k0(k)
        k.lab("k01_k1")
        gen_k1(k)
        kerns = [k]
    else:
        kerns = [gen_k1()]
    try:
        import chain
        kerns += chain.kernels(Kern, vr)
    except ImportError:
        pass
    build(kerns, out)
    print("wrote", out)
```

```python
import sys, os
sys.path.insert(0, os.path.dirname(os.path.abspath(__file__)))
import layout as L

NAME = "adaLN_cond__ssm_conv_h3__mixer_s_mlp__prompt"
SZ_SD = 2048 * 640 * 2

class Kern:
    def __init__(self, name, grid, block, lds, vgpr=256, sgpr=102, agpr=0):
        self.name, self.grid, self.block, self.lds = name, grid, block, lds
        self.vgpr, self.sgpr, self.agpr = vgpr, (102 if (os.environ.get("PROF") or os.environ.get("PROFK1")) else sgpr), agpr
        self.L = []
        self.nlab = 0
    def __call__(self, s):
        for ln in s.strip("\n").split("\n"):
            ln = ln.strip()
            if ln:
                self.L.append("    " + ln)
    def lab(self, s):
        self.L.append(s + ":")
    def newlab(self, p="L"):
        self.nlab += 1
        return f"{self.name}_{p}{self.nlab}"
    def srd(self, d, b, size, off=0):
        if off:
            self(f"s_add_u32 s{d}, s{b}, {off}")
            self(f"s_addc_u32 s{d+1}, s{b+1}, 0")
        else:
            self(f"s_mov_b32 s{d}, s{b}")
            self(f"s_mov_b32 s{d+1}, s{b+1}")
        self(f"s_mov_b32 s{d+2}, {size}")
        self(f"s_mov_b32 s{d+3}, 0x00020000")
    def round2(self, a, b, t):
        self(f"v_cvt_pk_bf16_f32 v{t}, v{a}, v{b}")
        self(f"v_lshlrev_b32 v{a}, 16, v{t}")
        self(f"v_and_b32 v{b}, 0xffff0000, v{t}")
    def unpack(self, lo, hi, src):
        self(f"v_lshlrev_b32 v{lo}, 16, v{src}")
        self(f"v_and_b32 v{hi}, 0xffff0000, v{src}")
    def stamp(self, i):
        if os.environ.get("PROFK1"):
            self(f"s_memtime s[{80+2*i}:{81+2*i}]")
    def stamp_end(self, n):
        if os.environ.get("PROFK1"):
            l = self.newlab("prof")
            self(f"""
            s_waitcnt lgkmcnt(0)
            s_cmp_lg_u32 s2, {int(os.environ.get("PROFWG", "0"))}
            s_cbranch_scc1 {l}
            s_load_dwordx2 s[76:77], s[0:1], 112
            s_waitcnt lgkmcnt(0)
            s_mov_b32 s78, 256
            s_mov_b32 s79, 0x00020000
            v_mov_b32 v1, 0
            """)
            for i in range(n):
                self(f"s_sub_u32 s75, s{80+2*i}, s80")
                self(f"v_mov_b32 v2, s75")
                self(f"buffer_store_dword v2, v1, s[76:79], 0 offen offset:{4*i}")
            self.lab(l)
    def text(self):
        sc = self.name in os.environ.get("SC1", "k1_kernel").split(",")
        Ls = [(l + " sc1" if (sc and l.strip().startswith("buffer_store") and " sc1" not in l and "NOSC" not in l) else l.replace(" NOSC", "")) for l in self.L]
        return (f".globl {self.name}\n.p2align 8\n.type {self.name},@function\n{self.name}:\n" + "\n".join(Ls) + "\n")
    def kd(self):
        acc = (self.vgpr + 3) // 4 * 4
        nfv = self.vgpr if not self.agpr else acc + self.agpr
        return f""".p2align 6
.amdhsa_kernel {self.name}
  .amdhsa_next_free_vgpr {nfv}
  .amdhsa_next_free_sgpr {self.sgpr}
  .amdhsa_accum_offset {acc}
  .amdhsa_group_segment_fixed_size 0
  .amdhsa_kernarg_size 128
  .amdhsa_user_sgpr_count 2
  .amdhsa_user_sgpr_kernarg_segment_ptr 1
  .amdhsa_system_sgpr_workgroup_id_x 1
  .amdhsa_float_denorm_mode_32 3
.end_amdhsa_kernel
"""

def vr(a, n):
    return f"v[{a}:{a+n-1}]"

MERGE = os.environ.get("MERGE", "0") == "1"
CNT_OFF = 128

def signal(k, cnt_sgpr_or_imm):
    l = k.newlab("sig")
    k(f"""
    s_mov_b64 exec, -1
    s_waitcnt vmcnt(0)
    s_barrier
    v_cmp_eq_u32 vcc, 0, v0
    s_and_saveexec_b64 s[42:43], vcc
    s_cbranch_execz {l}
    v_mov_b32 v1, 1
    v_mov_b32 v2, {cnt_sgpr_or_imm}
    buffer_atomic_add v1, v2, s[48:51], 0 offen
    """)
    k.lab(l)
    k("s_endpgm")

def poll(k, voff, target, vtmp):
    l = k.newlab("poll"); d = k.newlab("polld")
    k("s_mov_b32 s52, 0")
    k("s_cmp_lg_u32 s20, 0")
    k(f"s_cbranch_scc1 {d}")
    k.lab(l)
    k(f"""
    buffer_load_dword v{vtmp}, v{voff}, s[48:51], 0 offen sc0 sc1
    s_waitcnt vmcnt(0)
    v_readfirstlane_b32 s53, v{vtmp}
    s_add_u32 s52, s52, 1
    s_cmp_ge_u32 s53, {target}
    s_cbranch_scc1 {d}
    s_cmp_ge_u32 s52, 0x100000
    s_cbranch_scc1 {d}
    s_sleep {int(os.environ.get("SLP", 8))}
    s_branch {l}
    """)
    k.lab(d)
    k("s_barrier")

def emit_pack(k, base, idreg="s2", step=None):
    k(f"""
    s_load_dwordx2 s[10:11], s[0:1], 120   ; ws
    s_load_dwordx8 s[12:19], s[0:1], 56    ; w1 w2 w3 w4
    v_lshrrev_b32 v2, 6, v0
    v_and_b32 v1, 63, v0                   ; lane
    v_readfirstlane_b32 s20, v2
    s_waitcnt lgkmcnt(0)
    """)
    k.srd(28, 10, 0x10000000)
    labs = [k.newlab("pk") for _ in range(4)]
    pend = k.newlab("pke")
    k(f"""
    s_sub_u32 s21, {idreg}, {base}
    v_lshrrev_b32 v3, 3, v0                ; row
    v_and_b32 v4, 7, v0                    ; chunk
    v_mul_u32_u24 v5, 144, v3
    v_lshl_add_u32 v5, v4, 4, v5
    v_and_b32 v6, 15, v1
    v_lshrrev_b32 v7, 4, v1                ; g
    v_lshrrev_b32 v8, 2, v6
    v_lshl_add_u32 v8, v7, 3, v8           ; 8g + (i>>2)
    v_mul_u32_u24 v8, 144, v8
    v_and_b32 v9, 3, v6
    v_lshl_add_u32 v8, v9, 3, v8
    s_lshl_b32 s22, s20, 5
    v_add_u32 v8, s22, v8
    v_lshlrev_b32 v9, 4, v1                ; lane*16
    s_cmp_lt_u32 s21, 10
    s_cbranch_scc1 {labs[0]}
    s_cmp_lt_u32 s21, 20
    s_cbranch_scc1 {labs[1]}
    s_cmp_lt_u32 s21, 48
    s_cbranch_scc1 {labs[2]}
    s_cmp_lt_u32 s21, 78
    s_cbranch_scc1 {labs[3]}
    s_branch {pend}
    """)
    for m in range(4):
        k.lab(labs[m])
        N = [640, 640, 1728, 640][m]; Kd = [640, 640, 640, 1728][m]
        pitch = N * 2
        nks = 10 if m < 3 else 9
        ub = [0, 10, 20, 48][m]
        ncb = N // 64
        npr = (ncb + 1) // 2
        k.srd(24, 12 + 2*m, Kd * N * 2)
        magic = {5: (52429, 18), 14: (4682, 16)}[npr]
        k(f"""
        s_sub_u32 s32, s21, {ub}
        s_mul_i32 s33, s32, {magic[0]}
        s_lshr_b32 s33, s33, {magic[1]}      ; kq
        s_mul_i32 s34, s33, {npr}
        s_sub_u32 s34, s32, s34
        s_lshl_b32 s34, s34, 1
        v_mul_u32_u24 v10, {pitch}, v3
        v_lshl_add_u32 v10, v4, 4, v10
        s_mul_i32 s35, s33, {nks*32*pitch}
        s_lshl_b32 s36, s34, 7
        s_add_u32 s35, s35, s36
        """)
        R = [32, 72]
        for h in range(2):
            for i in range(nks):
                k(f"buffer_load_dwordx4 {vr(R[h]+4*i,4)}, v10, s[24:27], s35 offen offset:{128*h}")
                if i < nks - 1:
                    k(f"s_add_u32 s35, s35, {32*pitch}")
            if h == 0: k(f"s_sub_u32 s35, s35, {(nks-1)*32*pitch}")
        nt_ = 7 if m == 2 else 5
        mg = (9363, 16) if nt_ == 7 else (52429, 18)
        perj = [100, 100, 140, 280][m]
        dconst = [i * nt_ * 1024 for i in range(nks)]
        for h in range(2):
            skip = None
            if h == 1:
                k("s_add_u32 s34, s34, 1")
                k("s_barrier")
            k(f"""
            s_lshl_b32 s36, s34, 2
            s_add_u32 s36, s36, s20             ; ntg
            s_mul_i32 s38, s36, {mg[0]}
            s_lshr_b32 s38, s38, {mg[1]}     ; j
            s_mul_i32 s39, s38, {nt_}
            s_sub_u32 s39, s36, s39          ; nt
            s_mul_i32 s37, s38, {perj}
            s_mul_i32 s40, s33, {nks*nt_}
            s_add_u32 s37, s37, s40
            s_add_u32 s37, s37, s39
            s_lshl_b32 s37, s37, 10
            s_add_u32 s37, s37, {[L.W1P, L.W2P, L.W3P, L.W4P][m]}
            """)
            nst = nks + (1 if m in (0, 2) else 0)
            for i in range(nks):
                n_after = (nks - 1 - i) + (nks if h == 0 else nst)
                k(f"s_waitcnt vmcnt({n_after})")
                k(f"ds_write_b128 v5, {vr(R[h]+4*i,4)} offset:{4608*i}")
            k("s_waitcnt lgkmcnt(0)")
            k("s_barrier")
            for i in range(nks):
                k(f"ds_read_b64_tr_b16 {vr(R[h]+4*i,2)}, v8 offset:{4608*i}")
                k(f"ds_read_b64_tr_b16 {vr(R[h]+4*i+2,2)}, v8 offset:{4608*i+576}")
            if m in (0, 2):
                k("v_mov_b32 v12, 0")
                k("v_mov_b32 v13, 0x3f803f80")
            for i in range(nks):
                k(f"s_waitcnt lgkmcnt({2*(nks-1-i)})" if 2*(nks-1-i) <= 15 else "s_waitcnt lgkmcnt(15)")
                k(f"s_add_u32 s38, s37, {dconst[i]}")
                k(f"buffer_store_dwordx4 {vr(R[h]+4*i,4)}, v9, s[28:31], s38 offen" + (" NOSC" if (os.environ.get("WPLAIN") and str(m) in os.environ.get("WPLAIN")) else ""))
                if m in (0, 2):
                    for d in range(4):
                        k(f"v_dot2_f32_bf16 v12, v{R[h]+4*i+d}, v13, v12")
            if m in (0, 2):
                k(f"""
                s_nop 2
                v_mov_b32 v13, v12
                s_nop 1
                v_permlane32_swap_b32 v13, v12
                v_add_f32 v12, v12, v13
                v_mov_b32 v13, v12
                s_nop 1
                v_permlane16_swap_b32 v13, v12
                v_add_f32 v12, v12, v13
                s_mul_i32 s38, s33, {1792*4}
                s_lshl_b32 s39, s36, 6
                s_add_u32 s38, s38, s39
                s_add_u32 s38, s38, {L.CS3P if m == 2 else L.CS1P}
                v_lshlrev_b32 v14, 2, v1
                v_cmp_gt_u32 vcc, 16, v1
                s_and_saveexec_b64 s[40:41], vcc
                buffer_store_dword v12, v14, s[28:31], s38 offen
                s_mov_b64 exec, -1
                """)
        k("s_endpgm")
    k.lab(pend)
    k("s_endpgm")


WREG = 9472
KVL = 4 * 9472
def gen_k1(k=None):
    NMOD = 60; NPF = 32
    MODFIRST = int(os.environ.get("MODFIRST", 0))
    NSIDE = 96 + NPF + (42 if MODFIRST else NMOD)
    GRID = (160 + NSIDE + 7) // 8 * 8
    k = Kern("k1_kernel", GRID, 256, KVL + 10240, vgpr=256, sgpr=72)
    end = "k1_end"; modl = "k1_modf"
    k(f"""
    s_cmp_ge_u32 s2, {GRID}
    s_cbranch_scc1 {end}
    s_load_dwordx4 s[4:7], s[0:1], 32
    s_load_dwordx2 s[10:11], s[0:1], 120   ; ws
    s_load_dwordx4 s[12:15], s[0:1], 8     ; k, v
    s_load_dwordx2 s[8:9], s[0:1], 24      ; shift_k
    v_lshrrev_b32 v2, 6, v0
    v_and_b32 v1, 63, v0                   ; lane
    v_readfirstlane_b32 s20, v2
    s_sub_u32 s54, s2, 160
    s_cmp_ge_u32 s2, 256
    s_cbranch_scc1 k1_side
    s_and_b32 s55, s2, 7                   ; class
    s_lshr_b32 s56, s2, 3                  ; member
    s_lshl_b32 s57, s55, 9
    s_add_u32 s57, s57, {L.KFL}
    v_mov_b32 v250, 0
    s_waitcnt lgkmcnt(0)
    """)
    k.srd(28, 10, 0x10000000)
    k.stamp(0)
    if os.environ.get("PROFMOD"):
        k(f"""
        s_memrealtime s[62:63]
        s_waitcnt lgkmcnt(0)
        s_lshl_b32 s23, s2, 4
        s_add_u32 s23, s23, {(48 << 20) + 4096}
        v_mov_b32 v12, s62
        s_mov_b64 exec, 1
        buffer_store_dword v12, v250, s[28:31], s23 offen
        s_mov_b64 exec, -1
        """)
    if os.environ.get("PROFKV"): k("s_memrealtime s[62:63]")
    k.srd(16, 12, SZ_SD); k.srd(40, 14, SZ_SD); k.srd(44, 8, 640 * 8)
    KR, VR_, SKR, SKF, KF, KVF, T = 10, 32, 48, 56, 72, 116, 150
    k(f"""
    v_mul_u32_u24 v4, 3277, v0
    v_lshrrev_b32 v4, 16, v4               ; rg
    v_mul_u32_u24 v5, 20, v4
    v_sub_u32 v5, v0, v5                   ; cg
    s_lshl_b32 s21, s56, 6
    v_lshl_add_u32 v6, v4, 3, s21
    v_mul_u32_u24 v6, 1280, v6
    s_mul_i32 s22, s55, 160
    v_lshl_add_u32 v7, v5, 3, s22
    v_add_u32 v6, v6, v7
    v_subrev_u32 v8, 3840, v6
    v_add_u32 v9, 5120, v6
    s_movk_i32 s23, 160
    v_cmp_gt_u32 vcc, s23, v0
    s_and_saveexec_b64 s[60:61], vcc
    s_cbranch_execz k1_kvld
    """)
    for r in range(11):
        if r < 3: k(f"buffer_load_dwordx2 {vr(KR+2*r,2)}, v8, s[16:19], 0 offen offset:{1280*r}")
        elif r < 6: k(f"buffer_load_dwordx2 {vr(KR+2*r,2)}, v6, s[16:19], 0 offen offset:{1280*(r-3)}")
        elif r < 7: k(f"buffer_load_dwordx2 {vr(KR+2*r,2)}, v6, s[16:19], 0 offen offset:3840")
        else: k(f"buffer_load_dwordx2 {vr(KR+2*r,2)}, v9, s[16:19], 0 offen offset:{1280*(r-7)}")
    k(f"v_lshlrev_b32 v{T}, 2, v7")
    k(f"buffer_load_dwordx4 {vr(SKR,4)}, v{T}, s[44:47], 0 offen")
    k(f"buffer_load_dwordx4 {vr(SKR+4,4)}, v{T}, s[44:47], 0 offen offset:16")
    for r in range(8):
        if r < 4: k(f"buffer_load_dwordx2 {vr(VR_+2*r,2)}, v6, s[40:43], 0 offen offset:{1280*r}")
        else: k(f"buffer_load_dwordx2 {vr(VR_+2*r,2)}, v9, s[40:43], 0 offen offset:{1280*(r-4)}")
    k.lab("k1_kvld")
    k("s_mov_b64 exec, -1")
    NTL = 0
    k("buffer_load_dword v251, v250, s[28:31], s57 offen sc1")
    if int(os.environ.get("FLWARM", 1)):
        k("v_and_b32 v249, 31, v1")
        k("v_lshlrev_b32 v249, 2, v249")
        k("buffer_load_dword v249, v249, s[28:31], s57 offen offset:256 sc1")
    NTL += 1 + int(os.environ.get("FLWARM", 1))
    if int(os.environ.get("KVTLB", 0)):
        NTL += 1
        k(f"""
        s_mul_i32 s36, s55, {80*L.KVR_CH}
        v_and_b32 v252, 15, v1
        v_mul_u32_u24 v252, {L.KVR_CH*5}, v252
        v_lshrrev_b32 v253, 4, v1
        v_cmp_eq_u32 vcc, 1, v253
        v_and_b32 v254, 15, v1
        v_mul_u32_u24 v254, 0x60000, v254
        v_add_u32 v254, {L.W1P}, v254
        v_add_u32 v252, s36, v252
        v_cndmask_b32 v252, v252, v254, vcc
        buffer_load_dword v253, v252, s[28:31], 0 offen
        """)
    lnc = k.newlab("nc")
    k.srd(24, 4, 640 * 4096)
    k(f"""
    s_cmp_lt_u32 s56, 12
    s_cbranch_scc1 {lnc}
    s_mul_i32 s58, s55, 20
    s_add_u32 s58, s58, s56
    s_sub_u32 s58, s58, 12
    s_lshl_b32 s21, s58, 2
    s_add_u32 s21, s21, s20                 ; ch
    s_mul_i32 s34, s20, {WREG}
    v_lshlrev_b32 v3, 4, v1                 ; lane*16
    s_lshl_b32 s35, s21, 12                 ; ch*4096
    s_add_u32 s36, s34, 256
    s_mov_b32 m0, s36
    s_nop 0
    """)
    for i in range(4):
        k(f"buffer_load_dwordx4 v3, s[24:27], s35 offen offset:{1024*i} lds")
    k.lab(lnc)
    k(f"""
    s_mov_b64 exec, s[60:61]
    s_movk_i32 s23, 160
    v_cmp_gt_u32 vcc, s23, v0
    s_and_b64 exec, exec, vcc
    s_cbranch_execz k1_kvskip
    """)
    k(f"""
    v_sub_u32 v{T}, 7, v4
    v_and_b32 v{T+1}, 7, v5
    v_xor_b32 v{T}, v{T}, v{T+1}
    v_lshlrev_b32 v{T}, 4, v{T}
    v_lshl_add_u32 v{T}, v5, 9, v{T}
    v_add_u32 v{T}, {KVL}, v{T}
    s_cmp_lt_u32 s56, 12
    s_cbranch_scc1 k1_w8
    s_waitcnt vmcnt({12+NTL})
    s_branch k1_w9
    """)
    k.lab("k1_w8")
    k(f"s_waitcnt vmcnt({8+NTL})")
    k.lab("k1_w9")
    for c in range(4):
        k.unpack(SKF + c, SKF + 4 + c, SKR + 2*c)
        k.unpack(SKF + 8 + c, SKF + 12 + c, SKR + 2*c + 1)
    for r in range(11):
        k.unpack(KF + 4*r, KF + 4*r + 1, KR + 2*r)
        k.unpack(KF + 4*r + 2, KF + 4*r + 3, KR + 2*r + 1)
    for p in range(2):
        for s_ in range(8):
            A = KVF + 4*s_ + 2*p
            k(f"v_pk_mul_f32 {vr(A,2)}, {vr(KF+4*s_+2*p,2)}, {vr(SKF+12+2*p,2)}")
        for j in (2, 1, 0):
            for s_ in range(8):
                A = KVF + 4*s_ + 2*p
                k(f"v_pk_fma_f32 {vr(A,2)}, {vr(KF+4*(s_+3-j)+2*p,2)}, {vr(SKF+4*j+2*p,2)}, {vr(A,2)}")
    for s_ in range(8):
        for p in range(2):
            A = KVF + 4*s_ + 2*p
            k.round2(A, A + 1, T + 4 + (2*s_ + p) % 8)
    k("""
    s_cmp_lt_u32 s56, 12
    s_cbranch_scc1 k1_w0
    s_waitcnt vmcnt(%d)
    s_branch k1_w1
    """ % (4 + NTL))
    k.lab("k1_w0")
    k(f"s_waitcnt vmcnt({NTL})")
    k.lab("k1_w1")
    if os.environ.get("PROFKV"): k("s_memrealtime s[64:65]")
    k.stamp(1)
    for s_ in range(8):
        for p in range(2):
            t_ = KF + 4*s_ + 2*p
            k.unpack(t_, t_ + 1, VR_ + 2*s_ + p)
    for s_ in range(8):
        for p in range(2):
            k(f"v_pk_mul_f32 {vr(KVF+4*s_+2*p,2)}, {vr(KVF+4*s_+2*p,2)}, {vr(KF+4*s_+2*p,2)}")
    O2 = KR
    for c in range(4):
        for d in range(4):
            k(f"v_cvt_pk_bf16_f32 v{O2+4*c+d}, v{KVF+4*(7-2*d)+c}, v{KVF+4*(6-2*d)+c}")
    for c in range(4):
        k(f"ds_write_b128 v{T}, {vr(O2+4*c,4)} offset:{128*c}")
    k.lab("k1_kvskip")
    k(f"""
    s_mov_b64 exec, -1
    v_lshrrev_b32 v{T+1}, 3, v0             ; channel (0..31)
    v_and_b32 v{T+2}, 7, v0                 ; unit
    v_lshrrev_b32 v{T+3}, 2, v{T+1}
    v_and_b32 v{T+3}, 7, v{T+3}
    v_xor_b32 v{T+3}, v{T+3}, v{T+2}
    v_lshlrev_b32 v{T+3}, 4, v{T+3}
    v_lshl_add_u32 v{T+3}, v{T+1}, 7, v{T+3}
    v_add_u32 v{T+3}, {KVL}, v{T+3}
    v_mul_u32_u24 v{T+1}, {L.KVR_CH}, v{T+1}
    v_lshl_add_u32 v{T+4}, v{T+2}, 4, v{T+1}
    s_mul_i32 s36, s55, {80*L.KVR_CH}
    s_add_u32 s36, s36, {L.KVR}
    s_lshl_b32 s37, s56, 7
    s_sub_u32 s38, 3968, s37
    s_add_u32 s38, s38, s36                 ; + 3968 - 128*mi
    s_waitcnt lgkmcnt(0)
    s_barrier
    """)
    k.stamp(2)
    for i in range(3):
        k(f"ds_read_b128 {vr(32+4*i,4)}, v{T+3} offset:{4096*i}")
    for i in range(3):
        if i == 2: k("s_movk_i32 s23, 128\nv_cmp_gt_u32 vcc, s23, v0\ns_and_saveexec_b64 s[60:61], vcc\ns_cbranch_execz k1_st2skip")
        k(f"s_waitcnt lgkmcnt({2-i})")
        k(f"buffer_store_dwordx4 {vr(32+4*i,4)}, v{T+4}, s[28:31], s38 offen sc1")
        k(f"s_add_u32 s38, s38, {32*L.KVR_CH}")
    k.lab("k1_st2skip")
    k("s_mov_b64 exec, -1")
    zl = k.newlab()
    k(f"""
    s_cmp_lg_u32 s56, 0
    s_cbranch_scc1 {zl}
    v_mov_b32 v44, 0
    v_mov_b32 v45, 0
    v_mov_b32 v46, 0
    v_mov_b32 v47, 0
    s_add_u32 s36, s36, 4096
    """)
    for i in range(3):
        if i == 2: k(f"s_movk_i32 s23, 128\nv_cmp_gt_u32 vcc, s23, v0\ns_and_b64 exec, exec, vcc\ns_cbranch_execz {zl}")
        k(f"buffer_store_dwordx4 v[44:47], v{T+4}, s[28:31], s36 offen sc1")
        k(f"s_add_u32 s36, s36, {32*L.KVR_CH}")
    k.lab(zl)
    lfl = k.newlab("kf")
    k(f"""
    s_mov_b64 exec, -1
    s_waitcnt vmcnt(0)
    v_add_u32 v251, 1, v251
    """)
    k.stamp(3)
    if os.environ.get("PROFKV"): k("s_memrealtime s[66:67]")
    k(f"""
    s_barrier
    s_cmp_lg_u32 s20, 0
    s_cbranch_scc1 {lfl}
    s_lshl_b32 s23, s56, 2
    s_add_u32 s23, s23, s57
    s_mov_b64 exec, 1
    buffer_store_dword v251, v250, s[28:31], s23 offen offset:256 NOSC
    buffer_store_dword v251, v250, s[28:31], s23 offen offset:128 sc1
    s_mov_b64 exec, -1
    """)
    k.lab(lfl)
    k(f"""
    s_lshl_b32 s54, s56, 3
    s_add_u32 s54, s54, s55
    """)
    if os.environ.get("PROFKV"):
        lq = k.newlab("pq")
        k(f"""
        s_cmp_ge_u32 s56, 12
        s_cbranch_scc1 {lq}
        s_cmp_lg_u32 s20, 0
        s_cbranch_scc1 {lq}
        s_waitcnt lgkmcnt(0)
        s_lshl_b32 s23, s54, 4
        s_add_u32 s23, s23, {48 << 20}
        v_mov_b32 v12, s62
        v_mov_b32 v13, s64
        v_mov_b32 v14, s66
        v_mov_b32 v15, s66
        s_mov_b64 exec, 1
        buffer_store_dwordx4 v[12:15], v250, s[28:31], s23 offen
        s_mov_b64 exec, -1
        """)
        k.lab(lq)
    k(f"""
    s_cmp_lt_u32 s56, 12
    s_cbranch_scc1 k1_side2
    """)
    k("s_mov_b32 s2, s58")
    if os.environ.get("PRIO", "1") == "1": k("s_setprio 3")
    k.stamp(5)
    k(f"""
    s_lshl_b32 s21, s2, 3
    s_add_u32 s22, s6, s21
    s_addc_u32 s23, s7, 0
    s_load_dwordx2 s[32:33], s[22:23], 0
    s_lshl_b32 s21, s2, 2
    s_add_u32 s21, s21, s20                 ; ch
    s_mul_i32 s34, s20, {WREG}
    v_lshlrev_b32 v3, 4, v1                 ; lane*16
    s_mul_i32 s37, s21, {L.KVR_CH}
    s_add_u32 s37, s37, {L.KVR}
    v_lshrrev_b32 v4, 3, v0
    v_mul_u32_u24 v4, 20480, v4
    s_lshr_b32 s38, s2, 1
    s_and_b32 s38, s38, 7
    v_and_b32 v5, 7, v0
    v_xor_b32 v5, s38, v5
    v_lshl_add_u32 v4, v5, 4, v4            ; (t>>3)*20480 + ((t&7)^sw)*16
    s_lshl_b32 s38, s2, 7                   ; cg*128
    """)
    for i in range(5):
        k(f"""
        v_add_u32 v20, {64*i}, v1
        v_mul_u32_u24 v21, 3856, v20
        v_lshrrev_b32 v21, 16, v21             ; n = q/17
        v_mul_u32_u24 v22, 17, v21
        v_sub_u32 v22, v20, v22                ; e
        v_lshlrev_b32 v22, 4, v22
        v_lshlrev_b32 v21, 8, v21
        v_sub_u32 v22, v22, v21
        v_add_u32 v{23+i}, 3840, v22
        """)
    k(f"""
    v_lshl_add_u32 v5, v1, 2, s34
    v_mov_b32 v6, 0
    ds_write_b32 v5, v6
    v_and_b32 v7, 15, v1                    ; n16
    v_bfe_u32 v8, v1, 4, 1                  ; ph
    v_lshrrev_b32 v9, 5, v1                 ; g
    v_mul_u32_u24 v10, 272, v7
    v_lshl_add_u32 v10, v9, 4, v10
    v_add_u32 v10, s34, v10
    v_add_u32 v10, {4352+4}, v10
    v_lshlrev_b32 v11, 2, v8
    v_sub_u32 v10, v10, v11
    v_and_b32 v12, 7, v1
    v_mul_u32_u24 v13, 272, v12
    v_lshl_add_u32 v13, v9, 4, v13
    v_add_u32 v13, s34, v13
    v_add_u32 v13, {4352+4}, v13
    v_sub_u32 v13, v13, v11                 ; vBP
    v_bfe_u32 v11, v1, 3, 1                 ; a'
    v_lshlrev_b32 v11, 4, v11
    v_sub_u32 v11, 16, v11
    v_and_b32 v14, 31, v1
    v_lshlrev_b32 v14, 3, v14
    v_lshl_add_u32 v14, v9, 4, v14
    v_add_u32 v14, s34, v14
    v_add_u32 v14, 8, v14                   ; vA
    v_cmp_ne_u32 vcc, 0, v12
    v_mov_b32 v16, 0
    s_nop 1
    v_cndmask_b32 v15, v16, -1, vcc
    """)
    k("s_waitcnt lgkmcnt(0)")
    AM_ = 176
    for ks in range(8):
        k(f"ds_read_b64 {vr(AM_+4*ks,2)}, v14 offset:{256*7+32*ks}")
        k(f"ds_read_b64 {vr(AM_+4*ks+2,2)}, v14 offset:{256*7+32*ks+8}")
    lw = k.newlab("kw"); lp = k.newlab("kp"); ld = k.newlab("kd"); lb = k.newlab("kb")
    k(f"""
    s_cmp_lg_u32 s20, 0
    s_cbranch_scc1 {lw}
    v_and_b32 v40, 31, v1
    v_lshlrev_b32 v40, 2, v40
    s_mov_b32 s23, 200000
    """)
    lq4 = k.newlab("kq")
    k("s_mov_b64 s[60:61], 0")
    k.lab(lp)
    k(f"""
    buffer_load_dword v41, v40, s[28:31], s57 offen offset:256 sc1
    s_waitcnt vmcnt(0)
    v_cmp_eq_u32 vcc, v251, v41
    s_sub_u32 s23, s23, 1
    s_or_b64 s[60:61], s[60:61], vcc
    s_cmp_eq_u64 s[60:61], -1
    s_cbranch_scc1 {ld}
    s_and_b32 s21, s23, 3
    s_cmp_lg_u32 s21, 0
    s_cbranch_scc1 {lq4}
    buffer_load_dword v41, v40, s[28:31], s57 offen offset:128 sc1
    s_waitcnt vmcnt(0)
    v_cmp_eq_u32 vcc, v251, v41
    s_nop 1
    s_or_b64 s[60:61], s[60:61], vcc
    s_cmp_eq_u64 s[60:61], -1
    s_cbranch_scc1 {ld}
    """)
    k.lab(lq4)
    k(f"""
    s_sleep {os.environ.get("KSLEEP", 2)}
    s_cmp_lg_u32 s23, 0
    s_cbranch_scc1 {lp}
    """)
    k.lab(ld)
    if os.environ.get("PROFKV"):
        k(f"""
        s_memrealtime s[68:69]
        s_waitcnt lgkmcnt(0)
        s_lshl_b32 s23, s56, 3
        s_add_u32 s23, s23, s55
        s_lshl_b32 s23, s23, 4
        s_add_u32 s23, s23, {48 << 20}
        v_mov_b32 v12, s62
        v_mov_b32 v13, s64
        v_mov_b32 v14, s66
        v_mov_b32 v15, s68
        s_mov_b64 exec, 1
        buffer_store_dwordx4 v[12:15], v250, s[28:31], s23 offen
        s_mov_b64 exec, -1
        """)
    k(f"""
    s_cmp_lg_u32 s56, 12
    s_cbranch_scc1 {lw}
    s_mov_b64 exec, 1
    buffer_store_dword v251, v250, s[28:31], s57 offen sc1
    s_mov_b64 exec, -1
    """)
    k.lab(lw)
    k.stamp(4)
    k("s_barrier")
    for i in range(5):
        k(f"s_add_u32 s36, s34, {4352 + 1024*i}")
        k("s_mov_b32 m0, s36")
        if i == 4: k("s_mov_b64 exec, 0xffff")
        else: k("s_nop 0")
        k(f"buffer_load_dwordx4 v{23+i}, s[28:31], s37 offen sc1 lds")
    k("s_mov_b64 exec, -1")
    k("s_waitcnt vmcnt(0) lgkmcnt(0)")
    B0, B1, BP, AX, AY, AP_, AM, APk = 32, 64, 96, 128, 144, 160, 176, 208
    k.stamp(6)
    def aread(reg, off):
        return f"ds_read_b64 {vr(reg,2)}, v14 offset:{off}\n    ds_read_b64 {vr(reg+2,2)}, v14 offset:{off+8}"
    TB = 16
    for ks in range(8):
        k(f"ds_read2_b32 {vr(B1+4*ks,2)}, v10 offset0:{8*ks} offset1:{8*ks+1}")
        k(f"ds_read2_b32 {vr(B1+4*ks+2,2)}, v10 offset0:{8*ks+2} offset1:{8*ks+3}")
    prd = []
    for ks in range(8):
        prd.append(f"ds_read_b32 v{TB+ks}, v10 offset:{32*ks+16}")
    for ks in range(8):
        prd.append(f"ds_read2_b32 {vr(BP+4*ks,2)}, v13 offset0:{8*ks} offset1:{8*ks+1}")
        prd.append(f"ds_read2_b32 {vr(BP+4*ks+2,2)}, v13 offset0:{8*ks+2} offset1:{8*ks+3}")
        prd.append(f"ds_read_b32 v{TB+8+ks}, v13 offset:{32*ks+16}")
    al0 = []; alp = []
    for ks in range(8):
        for d in range(4):
            hi = B1 + 4*ks + d + 1 if d < 3 else TB + ks
            al0.append(f"v_alignbit_b32 v{B0+4*ks+d}, v{hi}, v{B1+4*ks+d}, 16")
            hi = BP + 4*ks + d + 1 if d < 3 else TB + 8 + ks
            alp.append(f"v_alignbit_b32 v{BP+4*ks+d}, v{hi}, v{BP+4*ks+d}, v11")
    DPP = "row_mask:0xf bank_mask:0xf bound_ctrl:0"
    def mfma(acc, a, b, first):
        c = "0" if first else vr(acc, 16)
        k(f"v_mfma_f32_32x32x16_bf16 {vr(acc,16)}, {vr(a,4)}, {vr(b,4)}, {c}")
    def phase(acc, Areg, Breg, first, reads, late, pad=True, rg=8):
        reads = list(reads); late = list(late)
        for ks in range(8):
            mfma(acc, Areg + 4*ks, Breg + 4*ks, first and ks == 0)
            n = (len(reads) + (rg - 1 - ks)) // (rg - ks) if ks < rg else 0
            for s in reads[:n]:
                k(s)
            reads = reads[n:]
            if ks < 2:
                if pad and late and n < 5:
                    k(f"s_nop {4 - n}")
            else:
                n = (len(late) + (7 - ks)) // (8 - ks)
                for s in late[:n]:
                    k(s)
                late = late[n:]
        assert not late and not reads
    def shift_ops(acc, masked):
        if masked:
            return [f"v_and_b32_dpp v{acc+r}, v{acc+r}, v15 row_shr:1 {DPP}" for r in range(16)]
        return [f"v_mov_b32_dpp v{acc+r}, v{acc+r} row_shr:1 {DPP}" for r in range(16)]
    def areads(reg, off):
        o = []
        for ks in range(8):
            o += aread(reg + 4*ks, off + 32*ks).split("\n")
        return o
    epi_a = f"""v_mul_u32_u24 v16, 272, v7
    v_add_u32 v16, s34, v16
    v_add_u32 v16, {4352 + 36}, v16
    v_lshlrev_b32 v17, 2, v8
    v_sub_u32 v16, v16, v17
    v_lshlrev_b32 v17, 5, v9
    v_sub_u32 v16, v16, v17""".split("\n")
    epi_a += [f"ds_read_b32 v{64+r}, v16 offset:{216 - 64*(r>>2) - 8*(r&3)}" for r in range(16)]
    epi_a += f"""s_lshr_b32 s44, s20, 1
    s_and_b32 s45, s20, 1
    s_cmp_eq_u32 s44, 1
    s_cselect_b32 s44, s33, s32
    s_lshl_b32 s46, s44, 16
    s_and_b32 s47, s44, 0xffff0000
    s_cmp_eq_u32 s45, 1
    s_cselect_b32 s44, s47, s46
    v_mul_u32_u24 v18, 264, v7
    v_lshl_add_u32 v18, v9, 5, v18
    v_lshl_add_u32 v18, v8, 2, v18
    v_add_u32 v18, s34, v18
    v_mul_u32_u24 v17, 264, v2
    v_lshl_add_u32 v17, v1, 2, v17""".split("\n")
    if int(os.environ.get("CODEPF2", 0)):
        epi_a.append("s_getpc_b64 s[50:51]\nK1PC2:\ns_add_u32 s50, s50, k2_kernel-K1PC2\ns_addc_u32 s51, s51, 0")
        epi_a += f"""s_sub_u32 s52, s56, 12
    s_lshl_b32 s52, s52, 2
    s_add_u32 s52, s52, s20
    s_lshl_b32 s52, s52, 10
    s_min_u32 s52, s52, (CODE_END-k2_kernel-1020)&0xfffffff0
    v_add_u32 v19, s52, v3
    global_load_dwordx4 v[28:31], v19, s[50:51]""".split("\n")
    tlb_ops = []
    if int(os.environ.get("YTLB", 1)):
        tlb_ops = [f"v_and_b32 v19, 31, v1", f"s_mov_b32 s50, {L.GS // 4 // 16 * 16}", "v_mul_lo_u32 v19, v19, s50", f"s_mov_b32 s50, {L.GRP}",
                   "buffer_load_dword v28, v19, s[28:31], s50 offen"]
    epi_b = []
    for r in range(16):
        epi_b.append(f"v_and_b32 v{80+r}, 0xffff0000, v{64+r}")
        epi_b.append(f"v_lshlrev_b32 v{64+r}, 16, v{64+r}")
    for q in range(7, -1, -1):
        first = (q == 7)
        k("s_waitcnt lgkmcnt(0)")
        apl = areads(APk, 256*(q+8))
        if first:
            for ks in range(8):
                mfma(AY, AM + 4*ks, B1 + 4*ks, ks == 0)
                if ks == 0:
                    for x in prd[:16]: k(x)
                elif ks == 1:
                    for x in prd[16:]: k(x)
                elif ks == 2:
                    k("s_waitcnt lgkmcnt(15)")
                    k("s_waitcnt lgkmcnt(0)")
                    for x in al0[:4]: k(x)
                else:
                    for x in al0[4 + (ks-3)*6: 4 + (ks-2)*6]: k(x)
            k("s_nop 0")
            phase(AX, AM, B0, True, apl, alp[:16] + shift_ops(AY, False) + alp[16:] + ["s_nop 0"])
        else:
            phase(AY, AM, B1, False, apl, shift_ops(AP_, True))
            if q == 5: phase(AX, AM, B0, False, tlb_ops, shift_ops(AY, False))
            elif q > 0: phase(AX, AM, B0, False, [], shift_ops(AY, False))
            else: phase(AX, AM, B0, False, [], epi_a, pad=False)
        k("s_waitcnt lgkmcnt(0)")
        aml = areads(AM, 256*(q-1)) if q > 0 else []
        phase(AP_, APk, BP, first, aml, shift_ops(AX, False) if q > 0 else epi_b, rg=5, pad=(q > 0))
    k.stamp(7)
    k("s_mov_b32 s48, 0x05040100")
    k("s_mov_b32 s49, 0x07060302")
    k("s_nop 11")
    for r in range(16):
        k(f"v_add_f32_dpp v{AX+r}, v{AP_+r}, v{AX+r} row_shr:8 {DPP}")
    k("""
    s_mov_b32 s42, 0xff00ff00
    s_mov_b32 s43, 0xff00ff00
    s_mov_b64 exec, s[42:43]
    """)
    for r in range(16):
        k(f"v_add_f32 v{AY+r}, v{AP_+r}, v{AY+r}")
    k("s_mov_b64 exec, -1")
    for r in range(16):
        k(f"v_fma_f32 v{AX+r}, v{80+r}, s44, v{AX+r}")
        k(f"v_fma_f32 v{AY+r}, v{64+r}, s44, v{AY+r}")
    for r in range(16):
        k(f"v_cvt_pk_bf16_f32 v{32+r}, v{AX+r}, v{AY+r}")
    for r in range(16):
        k(f"ds_write_b32 v18, v{32+r} offset:{64*(r>>2)+8*(r&3)}")
    k(f"""
    s_waitcnt lgkmcnt(0)
    s_barrier
    """)
    Y = 48
    for e in range(4):
        for c in range(4):
            k(f"ds_read_b32 v{Y+4*e+c}, v17 offset:{c*WREG+1056*e}")
    k("s_waitcnt lgkmcnt(0)")
    O = 96
    for e in range(4):
        for hh in range(2):
            a, b = Y + 4*e + 2*hh, Y + 4*e + 2*hh + 1
            k(f"v_perm_b32 v{O+4*e+hh}, v{b}, v{a}, s48")
            k(f"v_perm_b32 v{O+4*e+2+hh}, v{b}, v{a}, s49")
    k(f"""
    v_lshrrev_b32 v20, 3, v0             ; tt
    v_lshrrev_b32 v21, 4, v20            ; tt>>4
    v_and_b32 v22, 15, v20               ; tt&15
    v_mul_u32_u24 v23, 20480, v20
    v_sub_u32 v23, v4, v23
    s_mov_b32 s40, {L.GS}
    v_mul_lo_u32 v24, v21, s40
    v_add_u32 v24, v24, v23
    v_add_u32 v25, 1, v22
    v_mul_u32_u24 v25, 20480, v25
    v_add_u32 v25, v25, v24
    v_cmp_eq_u32 s[42:43], 15, v22
    v_cmp_eq_u32 s[44:45], 0, v22
    v_add_u32 v26, {2*L.GS}, v24
    v_add_u32 v27, {17*20480}, v24
    v_cndmask_b32 v26, v27, v26, s[42:43]
    v_cmp_ne_u32 vcc, 0, v20
    s_and_b64 s[46:47], s[44:45], vcc
    s_or_b64 s[46:47], s[46:47], s[42:43]
    v_cmp_ne_u32 vcc, 31, v20
    s_and_b64 s[52:53], s[42:43], vcc
    s_or_b64 s[52:53], s[52:53], s[44:45]
    s_or_b64 s[44:45], s[44:45], s[42:43]    ; e = 1, 2
    s_add_u32 s39, s38, {L.GRP}
    """)
    for e in range(4):
        k(f"buffer_store_dwordx4 {vr(O+4*e,4)}, v25, s[28:31], s39 offen" + (" NOSC" if os.environ.get("YPLAIN") else ""))
        hl_ = k.newlab("halo")
        k(f"s_mov_b64 exec, {['s[46:47]', 's[44:45]', 's[44:45]', 's[52:53]'][e]}")
        k(f"s_cbranch_execz {hl_}")
        k(f"s_sub_u32 s41, s39, {L.GS}")
        k(f"buffer_store_dwordx4 {vr(O+4*e,4)}, v26, s[28:31], s41 offen" + (" NOSC" if os.environ.get("YPLAIN") else ""))
        k.lab(hl_)
        k("s_mov_b64 exec, -1")
        k(f"s_add_u32 s39, s39, {2*L.GS}")
    k.stamp(8)
    k("s_waitcnt vmcnt(0)")
    k.stamp_end(9)
    k("s_endpgm")

    k.lab("k1_side")
    k(f"""
    s_cmp_ge_u32 s54, {NSIDE}
    s_cbranch_scc1 {end}
    """)
    def side_wait(cnt):
        sp = k.newlab("sw"); sd = k.newlab("sw")
        k(f"""
        s_cmp_lg_u32 s20, 0
        s_cbranch_scc1 {sd}
        s_and_b32 s55, s2, 7
        s_lshl_b32 s57, s55, 9
        s_add_u32 s57, s57, {L.KFL}
        v_mov_b32 v250, 0
        v_and_b32 v248, 31, v0
        v_lshlrev_b32 v248, 2, v248
        s_waitcnt lgkmcnt(0)
        """)
        k.srd(28, 10, 0x10000000)
        k(f"""
        buffer_load_dword v251, v250, s[28:31], s57 offen sc1
        s_mov_b32 s23, {cnt}
        s_waitcnt vmcnt(0)
        v_add_u32 v251, 1, v251
        """)
        k.lab(sp)
        k(f"""
        buffer_load_dword v249, v248, s[28:31], s57 offen offset:256 sc1
        s_waitcnt vmcnt(0)
        v_cmp_eq_u32 vcc, v251, v249
        s_sub_u32 s23, s23, 1
        s_cmp_eq_u64 vcc, -1
        s_cbranch_scc1 {sd}
        s_sleep {os.environ.get('SSLEEP', 16)}
        s_cmp_lg_u32 s23, 0
        s_cbranch_scc1 {sp}
        """)
        k.lab(sd)
        k("s_barrier")
    if int(os.environ.get("SIDEWAIT", 1)):
        lsx = k.newlab("sx")
        k(f"""
        s_cmp_lt_u32 s54, {96+NPF+int(os.environ.get("NOWAITN", 0))}
        s_cbranch_scc1 {lsx}
        s_mov_b32 s61, s54
        """)
        side_wait(os.environ.get("SWN", 30))
        k("s_mov_b32 s54, s61")
        k.lab(lsx)
    k(f"""
    s_cmp_lt_u32 s54, {96+NPF}
    s_cbranch_scc1 k1_pf
    """)
    if MODFIRST:
        k(f"s_sub_u32 s54, s54, {96+NPF-36}")
        k("s_branch k1_pack0")
        k.lab("k1_side2")
        k(f"""
        s_cmp_lt_u32 s54, {NMOD}
        s_cbranch_scc1 k1_mod0
        s_sub_u32 s54, s54, {NMOD}
        """)
        k.lab("k1_pack0")
        emit_pack(k, 0, "s54", None)
        k.lab("k1_mod0")
    else:
        k("s_branch k1_mod0")
        k.lab("k1_side2")
        emit_pack(k, 0, "s54", None)
        k.lab("k1_mod0")
        k(f"s_sub_u32 s54, s54, {96+NPF}")
    if os.environ.get("PROFMOD"): k("s_memrealtime s[62:63]")
    k("s_waitcnt lgkmcnt(0)")
    k.srd(28, 10, 0x10000000)
    k.lab(modl)
    k("""
    s_load_dwordx4 s[12:15], s[0:1], 88
    s_mov_b32 s32, s54
    v_and_b32 v3, 7, v0              ; cc
    v_lshrrev_b32 v4, 3, v0          ; rsub
    v_lshlrev_b32 v5, 1, v4          ; c offset
    v_mul_u32_u24 v6, 7680, v4
    s_lshl_b32 s36, s32, 7
    v_lshl_add_u32 v7, v3, 4, s36
    v_add_u32 v6, v6, v7
    s_waitcnt lgkmcnt(0)
    """)
    k.srd(16, 12, 1280); k.srd(20, 14, 640 * 7680)
    C, W, A, T = 10, 32, 112, 120
    for it in range(20):
        k(f"buffer_load_ushort v{C+it}, v5, s[16:19], 0 offen offset:{64*it}")
    for it in range(20):
        k(f"s_mov_b32 s37, {it*32*7680}")
        k(f"buffer_load_dwordx4 {vr(W+4*it,4)}, v6, s[20:23], s37 offen")
    k("s_waitcnt vmcnt(20)")
    if os.environ.get("PROFMOD"): k("s_memrealtime s[64:65]")
    for it in range(20):
        k(f"v_lshlrev_b32 v{C+it}, 16, v{C+it}")
        k(f"v_mul_f32 v{T+it}, 0xbfb8aa3b, v{C+it}")
        k(f"v_exp_f32 v{T+it}, v{T+it}")
    for it in range(20):
        k(f"v_add_f32 v{T+it}, 1.0, v{T+it}")
        k(f"v_rcp_f32 v{T+it}, v{T+it}")
    k("s_nop 0")
    for it in range(20):
        k(f"v_mul_f32 v{C+it}, v{C+it}, v{T+it}")
    for it in range(0, 20, 2):
        k.round2(C + it, C + it + 1, T)
    for j in range(8):
        k(f"v_mov_b32 v{A+j}, 0")
    for it in range(20):
        k(f"s_waitcnt vmcnt({19-it})")
        for d in range(4):
            k.unpack(T + 2*d, T + 2*d + 1, W + 4*it + d)
        ce = C + (it & ~1)
        sel = "op_sel:[0,0,0] op_sel_hi:[1,0,1]" if it % 2 == 0 else "op_sel:[0,1,0] op_sel_hi:[1,1,1]"
        for d in range(4):
            k(f"v_pk_fma_f32 {vr(A+2*d,2)}, {vr(T+2*d,2)}, {vr(ce,2)}, {vr(A+2*d,2)} {sel}")
    if os.environ.get("PROFMOD"): k("s_memrealtime s[66:67]")
    k(f"""
    v_lshlrev_b32 v7, 5, v0
    ds_write_b128 v7, {vr(A,4)}
    ds_write_b128 v7, {vr(A+4,4)} offset:16
    s_waitcnt lgkmcnt(0)
    s_barrier
    v_cmp_gt_u32 vcc, 64, v0
    s_and_saveexec_b64 s[42:43], vcc
    s_cbranch_execz {end}
    v_lshlrev_b32 v7, 2, v0
    """)
    for r in range(32):
        k(f"ds_read_b32 v{W+r}, v7 offset:{256*r}")
    k("s_waitcnt lgkmcnt(0)")
    for st in (16, 8, 4, 2, 1):
        for r in range(st):
            k(f"v_add_f32 v{W+r}, v{W+r}, v{W+r+st}")
    a_ = W
    k(f"""
    s_movk_i32 s22, 640
    v_cvt_pk_bf16_f32 v{a_}, v{a_}, v{a_}
    v_lshlrev_b32 v{a_}, 16, v{a_}
    v_add_f32 v{a_+1}, 1.0, v{a_}
    v_cvt_pk_bf16_f32 v{a_+1}, v{a_+1}, v{a_+1}
    v_lshlrev_b32 v{a_+1}, 16, v{a_+1}
    s_lshl_b32 s33, s32, 6
    v_add_u32 v{a_+2}, s33, v0
    v_subrev_u32 v{a_+3}, 640, v{a_+2}
    v_cmp_gt_u32 vcc, 640, v{a_+3}
    v_subrev_u32 v{a_+3}, 2560, v{a_+2}
    v_cmp_gt_u32 s[40:41], s22, v{a_+3}
    s_or_b64 vcc, vcc, s[40:41]
    v_cndmask_b32 v{a_}, v{a_}, v{a_+1}, vcc
    s_lshl_b32 s21, s32, 8
    s_add_u32 s21, s21, {L.MODF}
    buffer_store_dword v{a_}, v7, s[28:31], s21 offen
    """)
    if os.environ.get("PROFMOD"):
        k(f"""
        s_waitcnt vmcnt(0)
        s_memrealtime s[68:69]
        s_waitcnt lgkmcnt(0)
        s_lshl_b32 s23, s32, 4
        s_add_u32 s23, s23, {48 << 20}
        v_mov_b32 v12, s62
        v_mov_b32 v13, s64
        v_mov_b32 v14, s66
        v_mov_b32 v15, s68
        v_mov_b32 v16, 0
        s_mov_b64 exec, 1
        buffer_store_dwordx4 v[12:15], v16, s[28:31], s23 offen
        """)
    k.lab(end)
    k("s_endpgm")
    k.lab("k1_pf")
    WPX = NPF // 8 * 4
    k(f"""
    s_waitcnt lgkmcnt(0)
    s_load_dwordx2 s[4:5], s[0:1], 0
    v_lshlrev_b32 v3, 7, v1          ; lane*128
    v_lshlrev_b32 v1, 4, v1
    s_sub_u32 s24, s54, 96
    s_lshr_b32 s24, s24, 3
    s_lshl_b32 s24, s24, 2
    s_add_u32 s24, s24, s20
    s_and_b32 s22, s2, 7
    s_mul_i32 s21, s24, {327680 // WPX}
    s_mul_i32 s23, s22, 327680
    s_add_u32 s21, s21, s23
    s_waitcnt lgkmcnt(0)
    """)
    k.srd(16, 4, SZ_SD); k.srd(28, 10, 0x10000000)
    zl2 = k.newlab("zf")
    k(f"""
    s_sub_u32 s36, s54, 96
    s_cmp_ge_u32 s36, 16
    s_cbranch_scc1 {zl2}
    s_lshl_b32 s36, s36, 12
    s_add_u32 s36, s36, {L.FLAGS}
    v_lshlrev_b32 v5, 4, v0
    v_mov_b32 v60, 0
    v_mov_b32 v61, 0
    v_mov_b32 v62, 0
    v_mov_b32 v63, 0
    buffer_store_dwordx4 v[60:63], v5, s[28:31], s36 offen
    """)
    k.lab(zl2)
    if int(os.environ.get("ZST", 1)):
        k(f"""
        s_sub_u32 s36, s54, 96
        s_lshr_b32 s36, s36, 3
        s_mul_i32 s36, s36, 5120
        s_and_b32 s37, s2, 7
        s_mul_i32 s37, s37, {L.GS}
        s_add_u32 s36, s36, s37
        s_add_u32 s36, s36, {L.GRP + L.G_ST1}
        v_lshlrev_b32 v5, 4, v0
        v_mov_b32 v60, 0
        v_mov_b32 v61, 0
        v_mov_b32 v62, 0
        v_mov_b32 v63, 0
        buffer_store_dwordx4 v[60:63], v5, s[28:31], s36 offen
        s_add_u32 s36, s36, 4096
        s_cmp_lg_u32 s20, 0
        s_cbranch_scc1 k1_zst
        buffer_store_dwordx4 v[60:63], v5, s[28:31], s36 offen
        """)
        k.lab("k1_zst")
        k(f"""
        s_and_b32 s37, s2, 7
        s_cmp_eq_u32 s37, 0
        s_cselect_b32 s38, {L.GRP}, 0
        s_cmp_eq_u32 s37, 7
        s_cselect_b32 s38, {L.GRP + 7*L.GS + 17*20480}, s38
        s_cmp_eq_u32 s38, 0
        s_cbranch_scc1 k1_zht
        s_sub_u32 s36, s54, 96
        s_lshr_b32 s36, s36, 3
        s_mul_i32 s36, s36, 5120
        s_add_u32 s36, s36, s38
        buffer_store_dwordx4 v[60:63], v5, s[28:31], s36 offen
        s_add_u32 s36, s36, 4096
        s_cmp_lg_u32 s20, 0
        s_cbranch_scc1 k1_zht
        buffer_store_dwordx4 v[60:63], v5, s[28:31], s36 offen
        """)
        k.lab("k1_zht")
    k("s_getpc_b64 s[40:41]")
    k.lab("k1_pcref")
    k(f"""
    s_sub_u32 s40, s40, k1_pcref-k1_kernel
    s_subb_u32 s41, s41, 0
    s_lshl_b32 s42, s24, 12
    """)
    for i in range(4):
        k(f"""
        s_add_u32 s43, s42, {1024*i}
        s_min_u32 s43, s43, (CODE_END-k1_kernel-1020)&0xfffffff0
        v_add_u32 v6, s43, v1
        global_load_dwordx4 {vr(64+4*i,4)}, v6, s[40:41]
        """)
    if int(os.environ.get("PFW2", 1)):
        k("s_mov_b32 s61, s21")
        k("s_mov_b32 s62, s24")
        k("s_waitcnt vmcnt(0)")
        side_wait(os.environ.get("SWN", 30))
        k("s_mov_b32 s21, s61")
        k("s_mov_b32 s24, s62")
        k.srd(28, 10, 0x10000000)
    for i in range(0 if os.environ.get("NOQPF") else 327680 // WPX // 1024):
        k(f"buffer_load_dwordx4 {vr(8+4*(i%10),4)}, v1, s[16:19], s21 offen offset:{(i%4)*1024}")
        if i % 4 == 3:
            k("s_add_u32 s21, s21, 4096")
    def lines(sreg, n, dst, bits=""):
        i = 0
        while n > 0:
            c = min(64, n)
            if c < 64: k(f"s_mov_b64 exec, {hex((1 << c) - 1) if c <= 31 else None}" if c <= 31 else f"s_mov_b32 exec_hi, {hex((1 << (c - 32)) - 1)}")
            k(f"buffer_load_dword v{dst+i}, v3, s[28:31], s{sreg} offen{bits}")
            if c < 64: k("s_mov_b64 exec, -1")
            else: k(f"s_add_u32 s{sreg}, s{sreg}, 8192")
            n -= c; i += 1
    k(f"""
    s_mul_i32 s22, s22, {L.GS}
    s_add_u32 s22, s22, {L.GRP}
    """)
    if os.environ.get("WARM"):
        k(f"s_mul_i32 s23, s24, {327680 // WPX}\ns_add_u32 s23, s23, s22\ns_add_u32 s23, s23, {L.G_H1S}")
        lines(23, 2560 // WPX, 48)
        k(f"s_mul_i32 s23, s24, {20480 // WPX}\ns_add_u32 s23, s23, s22\ns_add_u32 s23, s23, {L.G_ST1}")
        lines(23, 160 // WPX, 54)
    if os.environ.get("H3W"):
        k(f"s_mul_i32 s23, s24, 27648\ns_add_u32 s23, s23, s22\ns_add_u32 s23, s23, {L.G_H3}")
        lines(23, 216, 54, " nt")
    if os.environ.get("WPF"):
        lp = k.newlab("pfp"); ld = k.newlab("pfd"); le = k.newlab("pfe")
        k(f"""
        v_and_b32 v4, 1, v0
        v_lshlrev_b32 v4, 7, v4
        v_add_u32 v4, {L.FLAGS + L.F_PK + 128}, v4
        v_and_b32 v6, 1, v0
        v_mul_u32_u24 v6, 34, v6
        v_add_u32 v6, 20, v6                            ; targets 20 / 54
        s_mov_b32 s32, 20000
        """)
        k.lab(lp)
        k(f"""
        buffer_load_dword v5, v4, s[28:31], 0 offen sc1
        s_waitcnt vmcnt(0)
        v_cmp_le_u32 vcc, v6, v5
        s_sub_u32 s32, s32, 1
        s_cmp_eq_u64 vcc, -1
        s_cbranch_scc1 {ld}
        s_cmp_eq_u32 s32, 0
        s_cbranch_scc1 {le}
        s_sleep 64
        s_branch {lp}
        """)
        k.lab(ld)
        WPF = os.environ.get("WPF", "23")
        if "1" in WPF:
            k(f"s_mul_i32 s23, s24, 25600\ns_add_u32 s23, s23, {L.W1P}")
            lines(23, 200, 56)
        if "2" in WPF:
            k(f"s_mul_i32 s23, s24, 25600\ns_add_u32 s23, s23, {L.W2P}")
            lines(23, 200, 60)
        if "3" in WPF:
            k(f"s_mul_i32 s23, s24, {70*1024}\ns_add_u32 s23, s23, {L.W3P}")
            lines(23, 560, 64)
        k.lab(le)
    k("s_waitcnt vmcnt(0)")
    k("s_endpgm")
    return k

def build(kerns, path):
    hdr = open("/code/" + NAME + ".s.ref").read().split("\n")
    com = [l for l in hdr if l.startswith(";") and "@launch" not in l and "Override launch" not in l and "grid=ceil" not in l]
    s = "\n".join(com) + "\n"
    for k in kerns:
        s += f"; @launch kernel={k.name} grid=({k.grid},1,1) block=({k.block},1,1) lds={k.lds}\n"
    s += '.amdgcn_target "amdgcn-amd-amdhsa--gfx950"\n.text\n'
    for k in kerns:
        s += k.text()
    s += "CODE_END:\n    s_endpgm\n"
    s += '.section .rodata,"a"\n'
    for k in kerns:
        s += k.kd()
    open(path, "w").write(s)

if __name__ == "__main__":
    out = sys.argv[1] if len(sys.argv) > 1 else "/code/" + NAME + ".s"
    if MERGE:
        k = Kern("k01_kernel", 864, 256, 46080, vgpr=256, sgpr=64)
        if os.environ.get("ORD") == "kvfirst":
            k("""
            s_cmp_ge_u32 s2, 864
            s_cbranch_scc1 k1_end
            s_cmp_lt_u32 s2, 480
            s_cbranch_scc1 k01_k0
            s_sub_u32 s2, s2, 480
            s_branch k01_k1
            """)
        else:
            k("""
            s_cmp_ge_u32 s2, 864
            s_cbranch_scc1 k1_end
            s_cmp_lt_u32 s2, 160
            s_cbranch_scc1 k01_k1
            s_cmp_lt_u32 s2, 600
            s_cbranch_scc1 k01_a
            s_cmp_lt_u32 s2, 819
            s_cbranch_scc1 k01_b
            s_cmp_lt_u32 s2, 824
            s_cbranch_scc1 k1_end
            s_sub_u32 s2, s2, 384
            s_branch k01_k0
            """)
            k.lab("k01_b")
            k("s_sub_u32 s2, s2, 440")
            k("s_branch k01_k1")
            k.lab("k01_a")
            k("s_sub_u32 s2, s2, 160")
        k.lab("k01_k0")
        gen_k0(k)
        k.lab("k01_k1")
        gen_k1(k)
        kerns = [k]
    else:
        kerns = [gen_k1()]
    try:
        import chain
        kerns += chain.kernels(Kern, vr)
    except ImportError:
        pass
    build(kerns, out)
    print("wrote", out)
```

```python
import os, struct
import layout as L
SZ_SD = 2048 * 640 * 2
C0 = -2.0 * 0.7978845608028654 * 1.4426950408889634
C1 = C0 * 0.044715
def fhex(x):
    return "0x%08x" % struct.unpack("<I", struct.pack("<f", x))[0]
E = lambda n, d: int(os.environ.get(n, d))
STOP = E("STOP", 9)
PROF = E("PROF", 0)
NSLOT = 152
SMALL = NSLOT * 1024
YL = 132 * 1024
MODL = 116 * 1024

def ln_finish(k, s1, s2, t, n):
    k(f"""
    v_mul_f32 v{s1}, {fhex(1.0/n)}, v{s1}
    v_mul_f32 v{s2}, {fhex(1.0/n)}, v{s2}
    v_fma_f32 v{s2}, -v{s1}, v{s1}, v{s2}
    v_max_f32 v{s2}, 0, v{s2}
    """)
    k.round2(s1, s2, t)
    k(f"""
    v_add_f32 v{s2}, {fhex(1e-5)}, v{s2}
    v_cvt_pk_bf16_f32 v{t}, v{s2}, v{s2}
    v_lshlrev_b32 v{s2}, 16, v{t}
    v_sqrt_f32 v{s2}, v{s2}
    s_nop 0
    v_cvt_pk_bf16_f32 v{t}, v{s2}, v{s2}
    v_lshlrev_b32 v{s2}, 16, v{t}
    v_rcp_f32 v{s2}, v{s2}
    s_nop 0
    v_mul_f32 v{s1}, v{s1}, v{s2}
    v_sub_f32 v{s1}, 0, v{s1}
    """)

def reduce16(k, a, b):
    for ctl in ("quad_perm:[1,0,3,2]", "quad_perm:[2,3,0,1]", "row_half_mirror", "row_mirror"):
        k("s_nop 0")
        k(f"v_add_f32_dpp v{a}, v{a}, v{a} {ctl} row_mask:0xf bank_mask:0xf")
        k(f"v_add_f32_dpp v{b}, v{b}, v{b} {ctl} row_mask:0xf bank_mask:0xf")

def reduce_g(k, a, b, t):
    for sw in ("v_permlane32_swap_b32", "v_permlane16_swap_b32"):
        k(f"""
        v_mov_b32 v{t}, v{a}
        v_mov_b32 v{t+1}, v{b}
        s_nop 1
        {sw} v{t}, v{a}
        {sw} v{t+1}, v{b}
        s_nop 0
        v_add_f32 v{a}, v{a}, v{t}
        v_add_f32 v{b}, v{b}, v{t+1}
        """)

def gelu4pk(k, vr, z, t, vc):
    for i in (0, 2):
        k(f"v_pk_mul_f32 {vr(t+i,2)}, {vr(z+i,2)}, {vr(z+i,2)}")
    for i in (0, 2):
        k(f"v_pk_fma_f32 {vr(t+i,2)}, {vr(t+i,2)}, {vr(vc,2)}, {vr(vc,2)} op_sel:[0,0,1] op_sel_hi:[1,0,1]")
    for i in (0, 2):
        k(f"v_pk_mul_f32 {vr(t+i,2)}, {vr(t+i,2)}, {vr(z+i,2)}")
    for i in range(4):
        k(f"v_exp_f32 v{t+i}, v{t+i}")
    for i in range(4):
        k(f"v_add_f32 v{t+i}, 1.0, v{t+i}")
    for i in range(4):
        k(f"v_rcp_f32 v{t+i}, v{t+i}")
    k("s_nop 0")
    for i in (0, 2):
        k(f"v_pk_mul_f32 {vr(z+i,2)}, {vr(z+i,2)}, {vr(t+i,2)}")

def ln_gelu_multi(k, vr, tiles, t, vc):
    n = len(tiles)
    T = lambda i: t + 4 * i
    for i, (z, cs, rs) in enumerate(tiles):
        for h in (0, 2):
            k(f"v_pk_mul_f32 {vr(T(i)+h,2)}, {vr(cs+h,2)}, {vr(rs,2)} op_sel_hi:[1,0]")
    for i, (z, cs, rs) in enumerate(tiles):
        for h in (0, 2):
            k(f"v_pk_fma_f32 {vr(z+h,2)}, {vr(z+h,2)}, {vr(rs,2)}, {vr(T(i)+h,2)} op_sel:[0,1,0] op_sel_hi:[1,1,1]")
    for i, (z, cs, rs) in enumerate(tiles):
        for h in (0, 2):
            k(f"v_pk_mul_f32 {vr(T(i)+h,2)}, {vr(z+h,2)}, {vr(z+h,2)}")
    for i, (z, cs, rs) in enumerate(tiles):
        for h in (0, 2):
            k(f"v_pk_fma_f32 {vr(T(i)+h,2)}, {vr(T(i)+h,2)}, {vr(vc,2)}, {vr(vc,2)} op_sel:[0,0,1] op_sel_hi:[1,0,1]")
    for i, (z, cs, rs) in enumerate(tiles):
        for h in (0, 2):
            k(f"v_pk_mul_f32 {vr(T(i)+h,2)}, {vr(T(i)+h,2)}, {vr(z+h,2)}")
    for i in range(n):
        for r in range(4): k(f"v_exp_f32 v{T(i)+r}, v{T(i)+r}")
    for i in range(n):
        for h in (0, 2): k(f"v_pk_add_f32 {vr(T(i)+h,2)}, {vr(T(i)+h,2)}, 1.0 op_sel_hi:[1,0]")
    for i in range(n):
        for r in range(4): k(f"v_rcp_f32 v{T(i)+r}, v{T(i)+r}")
    k("s_nop 0")
    for i, (z, cs, rs) in enumerate(tiles):
        for h in (0, 2):
            k(f"v_pk_mul_f32 {vr(z+h,2)}, {vr(z+h,2)}, {vr(T(i)+h,2)}")

def pack_tiles(k, zs):
    out = []
    i = 0
    prs = []
    while i < len(zs):
        if i + 1 < len(zs):
            a, b = zs[i], zs[i + 1]
            k(f"v_cvt_pk_bf16_f32 v{a}, v{a}, v{a+1}")
            k(f"v_cvt_pk_bf16_f32 v{a+1}, v{a+2}, v{a+3}")
            k(f"v_cvt_pk_bf16_f32 v{a+2}, v{b}, v{b+1}")
            k(f"v_cvt_pk_bf16_f32 v{a+3}, v{b+2}, v{b+3}")
            prs.append(a); out.append((a, 4, i)); i += 2
        else:
            a = zs[i]
            k(f"v_cvt_pk_bf16_f32 v{a}, v{a}, v{a+1}")
            k(f"v_cvt_pk_bf16_f32 v{a+1}, v{a+2}, v{a+3}")
            out.append((a, 2, i)); i += 1
    return out, prs

def swap_pairs(k, prs):
    k("s_nop 1")
    for a in prs:
        k(f"v_permlane16_swap_b32 v{a}, v{a+2}")
        k(f"v_permlane16_swap_b32 v{a+1}, v{a+3}")

class VQ:
    def __init__(self, k): self.k = k; self.q = []
    def op(self, text, tag=None):
        self.k(text); self.q.append(tag)
    def wait(self, tag):
        idx = [i for i, t in enumerate(self.q) if t == tag]
        if not idx: return
        n = len(self.q) - 1 - idx[-1]
        self.k(f"s_waitcnt vmcnt({min(n, 63)})")
        self.q = self.q[idx[-1] + 1:] if n <= 63 else self.q[-63:]
    def drain(self):
        self.k("s_waitcnt vmcnt(0)"); self.q = []
    def reset(self): self.q = []

def gen_chain(Kern, vr):
    k = Kern("k2_kernel", 256, 256, 163840, vgpr=256, sgpr=102, agpr=256)
    ar = lambda a, n: f"a[{a}:{a+n-1}]"
    vq = VQ(k)
    end = "k2_end"
    WS, QS, YS, OS = "s[12:15]", "s[16:19]", "s[20:23]", "s[24:27]"
    nst = [0]
    def stamp():
        if PROF:
            i = nst[0]; nst[0] += 1
            if PROF == 3:
                k(f"s_memtime s[{56+2*i}:{57+2*i}]"); nst[0] += 1
                k(f"s_memrealtime s[{58+2*i}:{59+2*i}]")
            else:
                k(f"{'s_memrealtime' if PROF == 2 else 's_memtime'} s[{56+2*i}:{57+2*i}]")
    def finish(label_end=True):
        k("s_waitcnt vmcnt(0) lgkmcnt(0)")
        if PROF == 2:
            k(f"""
            s_lshl_b32 s41, s2, 2
            s_add_u32 s41, s41, s30
            s_lshl_b32 s41, s41, 7
            s_add_u32 s41, s41, {48 << 20}
            v_mov_b32 v1, 0
            s_mov_b64 exec, 1
            """)
            for i in range(nst[0]):
                k(f"v_mov_b32 v2, s{56+2*i}")
                k(f"buffer_store_dword v2, v1, {WS}, s41 offen offset:{4*i}")
            k(f"v_mov_b32 v2, {nst[0]}")
            k(f"buffer_store_dword v2, v1, {WS}, s41 offen offset:124")
        elif PROF:
            l = k.newlab("prof")
            k(f"""
            s_cmp_lg_u32 s2, {E("PROFWG", 0)}
            s_cbranch_scc1 {l}
            s_cmp_lg_u32 s30, {E("PROFW", 0)}
            s_cbranch_scc1 {l}
            s_load_dwordx2 s[4:5], s[0:1], 112
            s_waitcnt lgkmcnt(0)
            s_mov_b32 s6, 256
            s_mov_b32 s7, 0x00020000
            v_mov_b32 v1, 0
            s_mov_b64 exec, 1
            """)
            for i in range(1, nst[0]):
                k(f"s_sub_u32 s41, s{56+2*i}, s{56 + (2 if (PROF == 3 and i % 2) else 0)}")
                k(f"v_mov_b32 v2, s41")
                k(f"buffer_store_dword v2, v1, s[4:7], 0 offen offset:{4*(i-1)}")
            k.lab(l)
        k("s_endpgm")

    k(f"""
    s_cmp_ge_u32 s2, 256
    s_cbranch_scc1 {end}
    s_load_dwordx2 s[4:5], s[0:1], 0
    s_load_dwordx2 s[6:7], s[0:1], 104
    s_load_dwordx2 s[8:9], s[0:1], 120
    s_getreg_b32 s42, hwreg(HW_REG_XCC_ID, 0, 4)
    v_lshrrev_b32 v2, 6, v0
    v_and_b32 v1, 63, v0
    v_readfirstlane_b32 s30, v2          ; wave
    s_and_b32 s28, s2, 7                 ; group
    s_lshr_b32 s29, s2, 3                ; member
    s_lshr_b32 s32, s29, 3
    s_and_b32 s33, s29, 7                ; j
    s_lshr_b32 s34, s29, 4
    s_and_b32 s35, s29, 15               ; j3
    s_mul_i32 s36, s28, {L.GS}
    s_add_u32 s36, s36, {L.GRP}
    s_lshl_b32 s37, s28, 13
    s_add_u32 s37, s37, {L.FLAGS}
    s_add_u32 s42, s42, 1
    s_mov_b32 s31, 0
    v_lshlrev_b32 v2, 4, v1              ; lane*16
    v_lshrrev_b32 v3, 4, v1              ; g
    v_and_b32 v4, 15, v1                 ; m
    v_lshrrev_b32 v8, 1, v3
    v_lshl_add_u32 v8, v8, 4, v4
    v_and_b32 v9, 1, v3
    v_lshl_add_u32 v8, v8, 1, v9
    v_lshlrev_b32 v8, 3, v8
    v_lshlrev_b32 v5, 7, v1
    v_and_b32 v9, 1, v3
    v_lshlrev_b32 v9, 1, v9
    v_lshrrev_b32 v10, 1, v3
    v_or_b32 v9, v9, v10
    v_lshlrev_b32 v9, 8, v9
    v_lshl_add_u32 v254, v4, 4, v9
    s_waitcnt lgkmcnt(0)
    """)
    stamp()
    k.srd(12, 8, 0x10000000); k.srd(16, 4, SZ_SD); k.srd(24, 6, SZ_SD)
    def publish():
        l = k.newlab()
        k(f"""
        s_cmp_lg_u32 s30, 0
        s_cbranch_scc1 {l}
        s_lshl_b32 s41, s29, 2
        s_add_u32 s41, s41, s37
        v_mov_b32 v9, s42
        v_mov_b32 v10, {L.F_XID}
        s_mov_b64 exec, 1
        buffer_store_dword v9, v10, {WS}, s41 offen sc1
        s_mov_b64 exec, -1
        """)
        k.lab(l)
    if not E("PUBLATE", 1): publish()
    class Dma:
        def __init__(self, p0, n, srcbase_s, srcoff, sm, so):
            self.i = 0; self.n = n; self.sm = sm; self.so = so
            slot0 = p0 % NSLOT
            assert slot0 + 4 * n <= NSLOT
            k(f"""
            s_mul_i32 s{sm}, s30, {n*1024}
            s_add_u32 s{so}, s{sm}, s{srcbase_s}
            s_add_u32 s{so}, s{so}, {srcoff}
            s_add_u32 s{sm}, s{sm}, {slot0*1024}
            """)
        def left(self): return self.n - self.i
        def one(self, tag="w"):
            o = (self.i % 4) * 1024
            k(f"s_mov_b32 m0, s{self.sm}")
            k("s_nop 0")
            if not E("NOWD", 0): vq.op(f"buffer_load_dwordx4 v2, {WS}, s{self.so} offen offset:{o} lds", tag)
            self.i += 1
            if self.i % 4 == 0 and self.i < self.n:
                k(f"s_add_u32 s{self.sm}, s{self.sm}, 4096")
                k(f"s_add_u32 s{self.so}, s{self.so}, 4096")
        def some(self, n, tag="w"):
            for _ in range(min(n, self.left())): self.one(tag)
    class W4:
        def __init__(self): self.i = 0
        def left(self): return 64 - self.i
        def one(self, tag="w4"):
            i = self.i
            if not E("NOW4", 0): vq.op(f"buffer_load_dwordx4 {ar(4*i,4)}, v2, {WS}, s40 offen offset:{(i%4)*1024}", tag)
            self.i += 1
            if self.i % 4 == 0: k("s_add_u32 s40, s40, 4096")
            if self.i == 60:
                k("s_cmp_eq_u32 s30, 3")
                k(f"s_cselect_b32 s41, {60*1024}, 0")
                k("s_sub_u32 s40, s40, s41")
        def some(self, n):
            for _ in range(min(n, self.left())): self.one()
    k(f"""
    s_mul_i32 s44, s33, {100*1024}
    s_mul_i32 s45, s35, {140*1024}
    s_add_u32 s45, s45, {L.W3P}
    s_mul_i32 s40, s33, {280*1024}
    s_mul_i32 s41, s30, {70*1024}
    s_add_u32 s40, s40, s41
    s_add_u32 s40, s40, {L.W4P}
    """)
    w4 = W4()
    def small_vectors():
        lsm1 = k.newlab("sm"); lsm2 = k.newlab("sm"); lsm3 = k.newlab("sm")
        k(f"""
        s_cmp_eq_u32 s30, 1
        s_cbranch_scc1 {lsm1}
        s_cmp_ge_u32 s30, 2
        s_cbranch_scc1 {lsm2}
        s_mul_i32 s41, s33, 320
        s_add_u32 s41, s41, {L.CS1P}
        s_mov_b32 m0, {SMALL}
        s_mov_b64 exec, 0xfffff
        buffer_load_dwordx4 v2, {WS}, s41 offen lds
        s_add_u32 s41, s41, {1792*4}
        s_mov_b32 m0, {SMALL + 512}
        s_nop 0
        buffer_load_dwordx4 v2, {WS}, s41 offen lds
        s_branch {lsm3}
        """)
        k.lab(lsm1)
        k(f"""
        s_mul_i32 s41, s35, 448
        s_add_u32 s41, s41, {L.CS3P}
        s_mov_b32 m0, {SMALL + 1024}
        s_mov_b64 exec, 0xfffffff
        buffer_load_dwordx4 v2, {WS}, s41 offen lds
        s_add_u32 s41, s41, {1792*4}
        s_mov_b32 m0, {SMALL + 1536}
        s_nop 0
        buffer_load_dwordx4 v2, {WS}, s41 offen lds
        s_branch {lsm3}
        """)
        k.lab(lsm2)
        k(f"""
        s_mul_i32 s41, s33, 320
        s_add_u32 s41, s41, {L.MODF + 5*2560}
        s_mov_b32 m0, {SMALL + 2048}
        s_mov_b64 exec, 0xfffff
        buffer_load_dwordx4 v2, {WS}, s41 offen lds
        """)
        k.lab(lsm3)
        k("s_mov_b64 exec, -1")
        vq.q += ['sm']
    k(f"""
    s_lshl_b32 s46, s32, 2
    s_add_u32 s46, s46, s30
    s_mul_i32 s47, s46, 20480
    s_mul_i32 s41, s33, 2560
    s_add_u32 s47, s47, s41
    s_add_u32 s54, s47, s36
    s_lshl_b32 s55, s46, 7
    s_add_u32 s55, s55, s37
    s_mul_i32 s22, s28, 327680
    s_add_u32 s22, s22, s47
    s_add_u32 s22, s22, {L.KVR}
    """)
    def touch_h1s():
        k(f"s_add_u32 s47, s54, {L.G_H1S}")
        k("s_mov_b64 exec, 0xfffff")
        touch(47, 188)
        k("s_mov_b64 exec, -1")

    def poll(sbase, thr=None):
        lp = k.newlab("poll"); ld = k.newlab("go")
        k(f"s_mov_b32 s43, {E('SPIN', 200000)}")
        k.lab(lp)
        k(f"""
        buffer_load_dword v9, v7, {WS}, s{sbase} offen sc1
        s_waitcnt vmcnt(0)
        {"v_cmp_ne_u32 vcc, 0, v9" if thr is None else f"v_cmp_le_u32 vcc, v{thr}, v9"}
        s_sub_u32 s43, s43, 1
        s_cmp_eq_u64 vcc, -1
        s_cbranch_scc1 {ld}
        s_cmp_lg_u32 s43, 0
        s_cbranch_scc1 {lp}
        """)
        k.lab(ld)
        vq.reset()
    def xid_load(reg):
        k(f"v_and_b32 v{reg+1}, 31, v1")
        k(f"v_lshlrev_b32 v{reg+1}, 2, v{reg+1}")
        k(f"s_add_u32 s41, s37, {L.F_XID}")
        vq.op(f"buffer_load_dword v{reg}, v{reg+1}, {WS}, s41 offen sc1", "xid")
    def xid_eval(reg):
        vq.wait("xid")
        lp = k.newlab("xp"); ld = k.newlab("xd")
        k(f"s_mov_b32 s43, {E('SPIN', 200000)}")
        k.lab(lp)
        k(f"""
        v_cmp_ne_u32 vcc, 0, v{reg}
        s_sub_u32 s43, s43, 1
        s_cmp_eq_u64 vcc, -1
        s_cbranch_scc1 {ld}
        s_cmp_eq_u32 s43, 0
        s_cbranch_scc1 {ld}
        s_add_u32 s41, s37, {L.F_XID}
        buffer_load_dword v{reg}, v{reg+1}, {WS}, s41 offen sc1
        s_waitcnt vmcnt(0)
        s_branch {lp}
        """)
        k.lab(ld)
        k(f"""
        v_cmp_eq_u32 vcc, s42, v{reg}
        s_nop 1
        s_cmp_eq_u64 vcc, -1
        s_cselect_b32 s31, 1, 0
        """)
        if E("SLOW", 0): k("s_mov_b32 s31, 0")
    def stores(lst, flag_s, flag_off):
        ls = k.newlab("slow"); lj = k.newlab("sent")
        k(f"s_cmp_eq_u32 s31, 0")
        k(f"s_cbranch_scc1 {ls}")
        for sc in ("", " sc1"):
            dsc = " sc1" if E("MIXED", 0) else sc
            for t in lst:
                lines = t.strip("\n").split("\n")
                k("\n".join((x + dsc if x.strip().startswith("buffer_store") else x) for x in lines))
            k(f"""
            s_waitcnt vmcnt(0)
            v_mov_b32 v9, 1
            v_mov_b32 v10, {flag_off}
            s_mov_b64 exec, 1
            buffer_store_dword v9, v10, {WS}, s{flag_s} offen{sc}
            s_mov_b64 exec, -1
            """)
            if sc == "":
                k(f"s_branch {lj}")
                k.lab(ls)
        k.lab(lj)
        vq.reset(); vq.q.append("flag")
    def touch(sreg, dst=9):
        if E("NOTOUCH", 1): return
        k(f"s_cmp_eq_u32 s31, 0")
        k(f"s_cselect_b32 s41, {L.W1P}, s{sreg}")
        vq.op(f"buffer_load_dword v{dst}, v5, {WS}, s41 offen", "touch")

    XR, YR, XF, MT, T = 16, 36, 56, 96, 120
    w1 = Dma(0, 25, 44, L.W1P, 38, 39)
    nob0 = k.newlab("nob0"); join0 = k.newlab("join0")
    k(f"""
    s_cmp_ge_u32 s29, 18
    s_cbranch_scc1 {nob0}
    s_lshl_b32 s46, s28, 8
    s_lshl_b32 s47, s29, 4
    s_add_u32 s46, s46, s47
    s_sub_u32 s46, s46, 16               ; global row of tile row 0 (signed)
    s_lshl_b32 s47, s30, 2
    s_add_u32 s47, s47, s46              ; first row of the wave
    v_add_u32 v11, s47, v3               ; global row
    v_mul_lo_u32 v6, v11, s48
    """.replace("v_mul_lo_u32 v6, v11, s48", "s_movk_i32 s48, 1280\n    v_mul_lo_u32 v6, v11, s48"))
    k("v_lshl_add_u32 v6, v4, 4, v6")
    for t in range(5):
        vq.op(f"buffer_load_dwordx4 {vr(XR+4*t,4)}, v6, {QS}, 0 offen offset:{256*t}", "q")
    if E("PROFQ", 0): stamp()
    k(f"""
    s_mul_i32 s47, s29, 20480
    s_mul_i32 s48, s30, 5120
    s_add_u32 s47, s47, s48
    s_add_u32 s47, s47, s36
    v_add_u32 v12, s47, v2
    s_add_u32 s48, s48, {YL}
    s_mov_b32 m0, s48
    s_nop 0
    """)
    for i in range(4):
        vq.op(f"buffer_load_dwordx4 v12, {WS}, 0 offen offset:{1024*i} lds", "y")
    k(f"""
    s_add_u32 s48, s48, 4096
    s_mov_b32 m0, s48
    s_movk_i32 s47, 4096
    """)
    vq.op(f"buffer_load_dwordx4 v12, {WS}, s47 offen lds", "y")
    k(f"""
    s_lshl_b32 s47, s30, 12
    s_add_u32 s48, s47, {MODL}
    """)
    for i in range(4):
        k(f"""
        s_add_u32 s41, s47, {1024*i}
        s_min_u32 s41, s41, {15360 - 1024}
        s_add_u32 s41, s41, {L.MODF}
        s_add_u32 m0, s48, {1024*i}
        s_nop 0
        """)
        vq.op(f"buffer_load_dwordx4 v2, {WS}, s41 offen lds", "y")
    if E("PUBLATE", 1): publish()
    w4_b0 = E("NW40", 0)
    k(f"""
    v_lshl_add_u32 v15, s30, 2, v3
    v_lshrrev_b32 v7, 1, v15
    v_and_b32 v9, 7, v4
    v_xor_b32 v7, v7, v9
    v_and_b32 v9, 1, v15
    v_lshl_add_u32 v7, v7, 1, v9
    v_lshlrev_b32 v7, 3, v7
    v_lshl_add_u32 v7, v4, 8, v7
    v_add_u32 v7, {YL}, v7
    v_lshlrev_b32 v10, 5, v4
    v_add_u32 v10, {MODL}, v10
    v_lshrrev_b32 v12, 2, v4
    v_and_b32 v13, 3, v4
    v_lshl_add_u32 v13, v13, 4, v15
    v_lshlrev_b32 v13, 4, v13
    v_lshl_add_u32 v6, v12, 10, v13
    s_movk_i32 s48, 2048
    v_cmp_gt_u32 {"s[50:51]"}, s48, v11
    """)
    S1, S2, N1, N2, ONE = T, T + 1, T + 4, T + 5, T + 6
    k(f"""
    v_mov_b32 v{S1}, 0
    v_mov_b32 v{S2}, 0
    v_mov_b32 v{N1}, 0
    v_mov_b32 v{N2}, 0
    v_mov_b32 v{ONE}, 0x3f803f80
    """)
    vq.wait("q")
    stamp()
    for d in range(20):
        k(f"v_dot2_f32_bf16 v{S1}, v{XR+d}, v{ONE}, v{S1}")
        k(f"v_dot2_f32_bf16 v{S2}, v{XR+d}, v{XR+d}, v{S2}")
        k.unpack(XF + 2*d, XF + 2*d + 1, XR + d)
        if d == 2: small_vectors()
        if d >= 4 and d % 2 == 0 and w1.i < E("NW1A", 8): w1.one()
    k("s_nop 1")
    reduce16(k, S1, S2)
    ln_finish(k, S1, S2, T + 2, 640)
    if E("PROFB0", 0): stamp()
    vq.wait("y")
    if E("PROFB0", 0): stamp()
    k("s_barrier")
    for t in range(5):
        k(f"ds_read_b64 {vr(YR+4*t,2)}, v7 offset:{t*4096}")
        k(f"ds_read_b64 {vr(YR+4*t+2,2)}, v7 offset:{t*4096+128}")
    BC = "op_sel:[0,1,0] op_sel_hi:[1,1,0]"
    TP, TY, MT2 = 144, 152, 160
    MTB = lambda t: (MT if t % 2 == 0 else MT2)
    def modread(t, vecs):
        for vi, vec in enumerate(vecs):
            k(f"ds_read_b128 {vr(MTB(t)+8*vi,4)}, v10 offset:{vec*2560+t*512}")
            k(f"ds_read_b128 {vr(MTB(t)+8*vi+4,4)}, v10 offset:{vec*2560+t*512+16}")
    modread(0, (1, 0, 2))
    for t in range(5):
        M = MTB(t)
        if t < 4:
            modread(t + 1, (1, 0, 2)); k("s_waitcnt lgkmcnt(6)")
        else:
            k("s_waitcnt lgkmcnt(0)")
        D4 = range(4)
        e = lambda d: XF + 8*t + 2*d
        for _ in range((E("NW1B", 0) + 4) // 5):
            if w1.i < E("NW1A", 8) + E("NW1B", 0): w1.one()
        for d in D4: k.unpack(TY + 2*d, TY + 2*d + 1, YR + 4*t + d)
        for d in D4: k(f"v_pk_fma_f32 {vr(TP+2*d,2)}, {vr(e(d),2)}, {vr(S1,2)}, {vr(S1,2)} {BC}")
        for d in D4: k(f"v_pk_fma_f32 {vr(TP+2*d,2)}, {vr(TP+2*d,2)}, {vr(M+2*d,2)}, {vr(M+8+2*d,2)}")
        for _ in range((w4_b0 + 4) // 5):
            if w4.i < w4_b0: w4.one()
        for d in D4: k(f"v_pk_mul_f32 {vr(TP+2*d,2)}, {vr(TP+2*d,2)}, {vr(TY+2*d,2)}")
        for d in D4: k(f"v_pk_fma_f32 {vr(e(d),2)}, {vr(M+16+2*d,2)}, {vr(TP+2*d,2)}, {vr(e(d),2)}")
        for d in D4: k(f"v_cvt_pk_bf16_f32 v{XR+4*t+d}, v{e(d)}, v{e(d)+1}")
        for d in D4:
            if E("XARND", 0):
                k(f"v_lshlrev_b32 v{e(d)}, 16, v{XR+4*t+d}")
                k(f"v_and_b32 v{e(d)+1}, 0xffff0000, v{XR+4*t+d}")
            k(f"v_dot2_f32_bf16 v{N1}, v{XR+4*t+d}, v{ONE}, v{N1}")
            k(f"v_dot2_f32_bf16 v{N2}, v{XR+4*t+d}, v{XR+4*t+d}, v{N2}")
    if E("PROFB0", 0): stamp()
    xid_load(190)
    modread(0, (4, 3))
    k("s_nop 1")
    reduce16(k, N1, N2)
    ln_finish(k, N1, N2, T + 2, 640)
    k(f"v_mov_b32 v{S1}, 0")
    k(f"v_mov_b32 v{S2}, 0")
    for t in range(5):
        M = MTB(t)
        if t < 4:
            modread(t + 1, (4, 3)); k("s_waitcnt lgkmcnt(4)")
        else:
            k("s_waitcnt lgkmcnt(0)")
        e = lambda d: XF + 8*t + 2*d
        for d in range(4): k(f"v_pk_fma_f32 {vr(e(d),2)}, {vr(e(d),2)}, {vr(N1,2)}, {vr(N1,2)} {BC}")
        for d in range(4): k(f"v_pk_fma_f32 {vr(e(d),2)}, {vr(e(d),2)}, {vr(M+2*d,2)}, {vr(M+8+2*d,2)}")
        for d in range(4): k(f"v_cvt_pk_bf16_f32 v{YR+4*t+d}, v{e(d)}, v{e(d)+1}")
        for d in range(4):
            k(f"v_dot2_f32_bf16 v{S1}, v{YR+4*t+d}, v{ONE}, v{S1}")
            k(f"v_dot2_f32_bf16 v{S2}, v{YR+4*t+d}, v{YR+4*t+d}, v{S2}")
    k("s_nop 1")
    reduce16(k, S1, S2)
    ln_finish(k, S1, S2, T + 2, 640)
    k(f"""
    v_cndmask_b32 v{S1}, 0, v{S1}, s[50:51]
    v_cndmask_b32 v{S2}, 0, v{S2}, s[50:51]
    s_mul_i32 s46, s29, 20480
    s_add_u32 s46, s46, s36
    s_add_u32 s47, s46, {L.G_XA - 20480}
    s_lshl_b32 s48, s29, 7
    s_add_u32 s48, s48, s36
    s_add_u32 s48, s48, {L.G_ST3}
    v_lshlrev_b32 v12, 3, v15            ; m*8
    s_lshl_b32 s49, s29, 7
    s_add_u32 s49, s49, s37
    s_lshl_b32 s41, s30, 2
    s_add_u32 s49, s49, s41
    """)
    if E("PROFB0", 0): stamp()
    xid_eval(190)
    TL = MODL
    TL = 112 * 1024
    k(f"""
    s_barrier
    v_and_b32 v9, 7, v4
    v_xor_b32 v9, v15, v9                ; m ^ (c&7)
    v_and_b32 v10, 3, v4
    v_lshl_add_u32 v9, v10, 4, v9
    v_lshrrev_b32 v10, 2, v4
    v_lshl_add_u32 v9, v10, 6, v9
    v_lshlrev_b32 v9, 4, v9
    v_add_u32 v9, {TL}, v9
    """)
    for t in range(5):
        k(f"ds_write_b128 v9, {vr(YR+4*t,4)} offset:{4096*t}")
        k(f"ds_write_b128 v9, {vr(XR+4*t,4)} offset:{20480+4096*t}")
    k(f"""
    v_xor_b32 v9, v4, v3
    v_xor_b32 v10, 4, v9
    v_lshl_add_u32 v9, v3, 4, v9
    v_lshl_add_u32 v10, v3, 4, v10
    s_mul_i32 s41, s30, 5120
    s_add_u32 s41, s41, {TL}
    v_lshl_add_u32 v9, v9, 4, s41
    v_lshl_add_u32 v10, v10, 4, s41
    s_cmp_eq_u32 s30, 1
    s_cselect_b32 s41, 1, 0
    s_cmp_eq_u32 s30, 3
    s_cselect_b32 s41, 1, s41
    s_cmp_eq_u32 s41, 1
    v_mov_b32 v11, v9
    s_cbranch_scc0 {"k2_noswap"}
    v_mov_b32 v9, v10
    v_mov_b32 v10, v11
    """)
    k.lab("k2_noswap")
    k(f"""
    s_mul_i32 s41, s30, 5120
    s_add_u32 s46, s46, s41
    s_add_u32 s47, s47, s41
    s_waitcnt lgkmcnt(0)
    s_barrier
    """)
    for i in range(5):
        k(f"ds_read_b128 {vr(YR+4*i,4)}, v{9 + (i & 1)} offset:{1024*i}")
    XAR = 220
    for i in range(5):
        k(f"ds_read_b128 {vr(XAR+4*i,4)}, v{9 + (i & 1)} offset:{20480+1024*i}")
    k("s_add_u32 s52, s46, 4096")
    k(f"""
    s_sub_u32 s41, s29, 1
    s_cmp_lt_u32 s41, 16
    s_cselect_b32 s20, s47, 0x90000000
    """)
    def xa_block(sc):
        _U.n += 1
        lab = f"k2_noxa{_U.n}"
        k(f"s_sub_u32 s41, s29, 1\ns_cmp_ge_u32 s41, 16\ns_cbranch_scc1 {lab}")
        for i in range(5):
            k(f"s_waitcnt lgkmcnt({4-i})")
            k(f"buffer_store_dwordx4 {vr(XR+4*i,4)}, v2, {WS}, s{47 if i < 4 else 53} offen offset:{(i%4)*1024}{sc}")
        k.lab(lab)
    class _U:
        n = 0
    ls = k.newlab("slow"); lj = k.newlab("sent")
    k("s_cmp_eq_u32 s31, 0"); k(f"s_cbranch_scc1 {ls}")
    for sc in ("", " sc1"):
        dsc = " sc1" if E("MIXED", 0) else sc
        for i in range(5):
            k(f"s_waitcnt lgkmcnt({9-i})")
            k(f"buffer_store_dwordx4 {vr(YR+4*i,4)}, v2, {WS}, s{46 if i < 4 else 52} offen offset:{(i%4)*1024}{dsc}")
        k(f"""
        v_cmp_eq_u32 vcc, 0, v4
        s_and_saveexec_b64 s[50:51], vcc
        buffer_store_dwordx2 {vr(S1,2)}, v12, {WS}, s48 offen{dsc}
        s_mov_b64 exec, -1
        """)
        k(f"""
        s_waitcnt vmcnt(0)
        v_mov_b32 v9, 1
        v_mov_b32 v10, {L.F_B0}
        s_mov_b64 exec, 1
        buffer_store_dword v9, v10, {WS}, s49 offen{sc}
        s_mov_b64 exec, -1
        """)
        if sc == "":
            k(f"s_branch {lj}"); k.lab(ls)
    k.lab(lj)
    k("s_mov_b32 s21, s49")
    stamp()
    i0 = w1.i
    w1.some(99)
    k(f"s_branch {join0}")
    w4_done_b0 = w4.i
    k.lab(nob0)
    k("s_mov_b32 s21, 0")
    k("s_mov_b32 s20, 0x90000000")
    w1.i = 0
    k(f"""
    s_mul_i32 s38, s30, {25*1024}
    s_add_u32 s39, s38, s44
    s_add_u32 s39, s39, {L.W1P}
    """)
    if E("PUBLATE", 1): publish()
    xid_load(190)
    xid_eval(190)
    small_vectors()
    w1.some(99)
    w4.i = 0
    w4.some(w4_done_b0)
    if E("OUTTLB", 1):
        k(f"""
        s_mul_i32 s47, s28, 327680
        s_lshl_b32 s48, s29, 13
        s_add_u32 s47, s47, s48
        v_mov_b32 v101, 0
        s_mov_b64 exec, 1
        buffer_load_dword v102, v101, {OS}, s47 offen
        s_mov_b64 exec, -1
        """)
        if E("GRPTLB", 0):
            k(f"""
            v_lshlrev_b32 v101, 16, v1
            s_mov_b64 exec, {hex((1 << ((L.GS + 65535) // 65536)) - 1)}
            buffer_load_dword v103, v101, {WS}, s36 offen
            s_mov_b64 exec, -1
            """)
    if E("K2TOUCH", 1):
        lt = k.newlab("nt")
        k(f"""
        s_cmp_eq_u32 s31, 0
        s_cbranch_scc1 {lt}
        s_sub_u32 s47, s29, 18
        s_lshl_b32 s47, s47, 2
        s_add_u32 s47, s47, s30              ; 0..55
        s_mul_i32 s48, s47, {6*1024}
        s_min_u32 s48, s48, {327680 - 6*1024}
        s_mul_i32 s49, s28, 327680
        s_add_u32 s48, s48, s49
        s_add_u32 s48, s48, {L.KVR}
        """)
        for i in range(6):
            k(f"buffer_load_dwordx4 {vr(64+4*i,4)}, v2, {WS}, s48 offen offset:{(i%4)*1024}")
            if i == 3: k("s_add_u32 s48, s48, 4096")
        k(f"""
        s_mul_i32 s48, s47, 384
        s_min_u32 s48, s48, {20480 - 384}
        s_add_u32 s48, s48, s36
        s_add_u32 s48, s48, {L.G_ST1}
        s_mov_b64 exec, 7
        buffer_load_dword v100, v5, {WS}, s48 offen
        s_mov_b64 exec, -1
        """)
        k.lab(lt)
    PFM = E("PFM", 0)
    if PFM:
        k(f"""
        s_sub_u32 s47, s29, 18
        s_lshl_b32 s47, s47, 2
        s_add_u32 s47, s47, s30              ; 0..55
        s_mul_i32 s48, s47, {15*1024}
        s_min_u32 s48, s48, {800*1024 - 15*1024}
        s_add_u32 s48, s48, {L.W2P}
        """)
        for _ in range(E("PFSL", 0)): k("s_sleep 127")
        for i in range(15):
            vq.op(f"buffer_load_dwordx4 {vr(64+4*(i%16),4)}, v2, {WS}, s48 offen offset:{(i%4)*1024}", "pf")
            if i % 4 == 3: k("s_add_u32 s48, s48, 4096")
    if PFM >= 2:
        k(f"""
        s_mul_i32 s48, s47, 15
        s_min_u32 s48, s48, {16*52 - 15}
        s_mul_i32 s49, s48, {65536 // 52 + 1}
        s_lshr_b32 s49, s49, 16
        s_mul_i32 s41, s49, 52
        s_sub_u32 s48, s48, s41
        s_mul_i32 s49, s49, 140
        s_add_u32 s48, s48, s49
        s_lshl_b32 s48, s48, 10
        s_add_u32 s48, s48, {L.W3P}
        """)
        for i in range(15):
            vq.op(f"buffer_load_dwordx4 {vr(128+4*(i%16),4)}, v2, {WS}, s48 offen offset:{(i%4)*1024}", "pf")
            if i % 4 == 3: k("s_add_u32 s48, s48, 4096")
    k.lab(join0)
    vq.reset()
    if STOP == 0:
        finish(); k.lab(end); k("s_endpgm"); return k

    GX, GW, GA, GT = 16, 96, 156, 176
    VC = 12
    XPRE = E("XPRE", 4)
    def gemm5(stage, pos0, inloop, xone, kbar=None):
        def wread(ks, nt):
            slot = (pos0 + ks * 5 + nt) % NSLOT
            o = slot * 1024
            k(f"ds_read_b128 {vr(GW+(ks%3)*20+4*nt,4)}, v{14 + (o >> 16)} offset:{o & 0xffff}")
        for ks in range(2):
            for nt in range(5): wread(ks, nt)
        xn = [XPRE]
        for ks in range(20):
            if E("PROFG1", 0) == stage and ks in (0, 1, 2, 5, 10, 15): stamp()
            vq.wait(f"x{ks}")
            k(f"s_waitcnt lgkmcnt({5 if ks < 19 else 0})")
            if ks == kbar: k("s_barrier")
            for nt in range(5):
                c = "0" if ks == 0 else vr(GA + 4*nt, 4)
                k(f"v_mfma_f32_16x16x32_bf16 {vr(GA+4*nt,4)}, {vr(GW+(ks%3)*20+4*nt,4)}, {vr(GX+4*ks,4)}, {c}")
                if ks + 2 < 20 and nt >= 1:
                    wread(ks + 2, nt - 1)
                    if nt == 4: wread(ks + 2, 4)
                if nt in (0, 3) and xn[0] < 20: xone(xn[0]); xn[0] += 1
                if nt in (1, 4): inloop(ks, nt)
    def lds_bases():
        k("v_mov_b32 v14, v2")
        k("v_add_u32 v15, 0x10000, v2")
    def fix_bank(text): return text.replace("v16 offset", "v11 offset")

    k(f"""
    s_lshl_b32 s46, s32, 2
    s_add_u32 s46, s46, s30              ; rt (0..15)
    s_lshr_b32 s47, s33, 1
    s_and_b32 s48, s47, 1
    s_lshr_b32 s47, s47, 1
    s_add_u32 s47, s47, 1                ; |shift|
    s_sub_u32 s49, 0, s47
    s_cmp_eq_u32 s48, 1
    s_cselect_b32 s47, s47, s49
    s_lshl_b32 s49, s46, 4
    s_add_u32 s49, s49, 16
    s_add_u32 s49, s49, s47
    v_add_u32 v9, s49, v4
    v_lshrrev_b32 v10, 4, v9
    v_mul_u32_u24 v6, 20480, v10
    v_and_b32 v10, 15, v9
    v_lshl_add_u32 v10, v3, 4, v10
    v_lshl_add_u32 v6, v10, 4, v6
    v_lshlrev_b32 v13, 3, v9
    s_add_u32 s49, s46, s48
    s_lshl_b32 s49, s49, 7
    s_add_u32 s49, s49, s37
    v_bfe_u32 v7, v1, 2, 1
    v_lshlrev_b32 v7, 7, v7
    v_and_b32 v9, 3, v1
    v_lshl_add_u32 v7, v9, 2, v7
    """)
    poll(49)
    stamp()
    def xload1(vaddr, sb, i):
        k(f"s_add_u32 s41, s{sb}, {(i//4)*4096}")
        vq.op(f"buffer_load_dwordx4 {vr(GX+4*i,4)}, v{vaddr}, {WS}, s41 offen offset:{(i%4)*1024} sc1", f"x{i}")
    for i in range(XPRE): xload1(6, 36, i)
    k(f"s_add_u32 s41, s36, {L.G_ST3}")
    vq.op(f"buffer_load_dwordx2 {vr(GT,2)}, v13, {WS}, s41 offen sc1", "st")
    k("v_mov_b32 v14, v2")
    k("v_add_u32 v15, 0x10000, v2")
    k("v_add_u32 v11, 0x20000, v2")
    k("s_barrier")
    w2a = Dma(100, 13, 44, L.W2P, 38, 39)
    def l2pf(base, i, per, first_s):
        if i == 0:
            k(f"""
            s_lshl_b32 s{first_s}, s29, 2
            s_add_u32 s{first_s}, s{first_s}, s30
            s_mul_i32 s{first_s}, s{first_s}, {per*128}
            s_add_u32 s{first_s}, s{first_s}, {base}
            """)
        n = min(64, per - 64 * i)
        if n < 64: k(f"s_mov_b64 exec, {hex((1 << n) - 1)}")
        vq.op(f"buffer_load_dword v{232+i}, v5, {WS}, s{first_s} offen", "pf")
        if n < 64: k("s_mov_b64 exec, -1")
        k(f"s_add_u32 s{first_s}, s{first_s}, 8192")
    st1 = {"w2b": None, "xa": 0}
    def g1_in(ks, nt):
        if ks < E("G1W", 8): return
        if st1["xa"] < 5 and nt == 4 and not E("XALATE", 0):
            i = st1["xa"]; st1["xa"] += 1
            k(f"s_add_u32 s41, s20, {1024*i}")
            vq.op(f"buffer_store_dwordx4 {vr(XAR+4*i,4)}, v2, {WS}, s41 offen sc1", "xas")
            return
        if w2a.left(): w2a.one(); return
        if st1["w2b"] is None: st1["w2b"] = Dma(152, 12, 44, L.W2P + 52 * 1024, 38, 39)
        if st1["w2b"].left(): st1["w2b"].one()
    n0 = len(k.L)
    gemm5(1, 0, g1_in, lambda i: xload1(6, 36, i), kbar=9)
    k.L[n0:] = [x.replace("v16 offset", "v11 offset") if "ds_read_b128" in x else x for x in k.L[n0:]]
    stamp()
    k("s_barrier")
    while st1["xa"] < 5:
        i = st1["xa"]; st1["xa"] += 1
        k(f"s_add_u32 s41, s20, {1024*i}")
        vq.op(f"buffer_store_dwordx4 {vr(XAR+4*i,4)}, v2, {WS}, s41 offen sc1", "xas")
    w2a.some(99)
    if st1["w2b"] is None: st1["w2b"] = Dma(152, 12, 44, L.W2P + 52 * 1024, 38, 39)
    st1["w2b"].some(99)
    w3a = Dma(200, 13, 45, 0, 38, 39)
    w3a.some(E("NW3A", 13))
    RS = GT
    CSR = GT + 4
    k(f"""
    v_lshlrev_b32 v9, 4, v3
    v_add_u32 v9, {SMALL}, v9
    v_mov_b32 v{VC}, {fhex(C1)}
    v_mov_b32 v{VC+1}, {fhex(C0)}
    """)
    for nt in range(5):
        k(f"ds_read_b128 {vr(CSR+4*nt,4)}, v9 offset:{64*nt}")
        k(f"ds_read_b128 {vr(CSR+20+4*nt,4)}, v9 offset:{512+64*nt}")
    vq.wait("st")
    TT = CSR + 40
    k("s_waitcnt lgkmcnt(0)")
    for nt in range(5):
        cs = CSR + 4*nt
        for i in (0, 2):
            k(f"v_pk_add_f32 {vr(cs+i,2)}, {vr(cs+i,2)}, {vr(cs+20+i,2)}")
    ln_gelu_multi(k, vr, [(GA + 4*nt, CSR + 4*nt, RS) for nt in range(5)], CSR + 20, VC)
    g1pk, prs = pack_tiles(k, [GA + 4*nt for nt in range(5)])
    swap_pairs(k, prs)
    k(f"""
    s_mov_b32 s46, s22
    s_lshl_b32 s41, s33, 2
    s_add_u32 s49, s55, s41              ; + j*4
    """)
    def tile_stores(lst, sb):
        return [(f"buffer_store_dwordx4 {vr(r,4)}, v254, {WS}, s{sb} offen offset:{512*i}" if n == 4 else f"buffer_store_dwordx2 {vr(r,2)}, v8, {WS}, s{sb} offen offset:{512*i}") for r, n, i in lst]
    stores(tile_stores(g1pk, 46), 49, L.F_G1)
    lxa = k.newlab("xas"); lxb = k.newlab("xas"); lxc = k.newlab("xas")
    k(f"""
    s_cmp_eq_u32 s21, 0
    s_cbranch_scc1 {lxc}
    v_mov_b32 v9, 3
    v_mov_b32 v10, {L.F_B0}
    s_mov_b64 exec, 1
    s_cmp_eq_u32 s31, 0
    s_cbranch_scc1 {lxa}
    buffer_store_dword v9, v10, {WS}, s21 offen
    s_branch {lxb}
    """)
    k.lab(lxa)
    k(f"buffer_store_dword v9, v10, {WS}, s21 offen sc1")
    k.lab(lxb)
    k("s_mov_b64 exec, -1")
    k.lab(lxc)
    stamp()
    if STOP == 1:
        finish(); k.lab(end); k("s_endpgm"); return k

    k(f"""
    s_sub_u32 s41, s55, s37
    s_lshr_b32 s41, s41, 7               ; rt
    v_bfe_u32 v7, v1, 3, 2               ; 0..3
    v_min_u32 v7, 2, v7
    v_add_u32 v7, s41, v7
    v_subrev_u32 v7, 1, v7
    v_max_i32 v7, 0, v7
    v_min_i32 v7, 15, v7
    v_lshlrev_b32 v7, 7, v7
    v_and_b32 v9, 7, v1
    v_lshl_add_u32 v7, v9, 2, v7
    s_add_u32 s49, s37, {L.F_G1}
    """)
    poll(49)
    stamp()
    k(f"""
    s_mul_i32 s41, s33, 2560
    s_sub_u32 s47, s22, s41
    """)
    k("s_mov_b32 s52, s47")
    for i in range(XPRE): xload1(2, 52, i)
    HBR = GT
    k(f"s_add_u32 s41, s54, {L.G_HBX + 20480}")
    def pair_loads(reg, sb, tag):
        vq.op(f"buffer_load_dwordx4 {vr(reg,4)}, v254, {WS}, s{sb} offen sc1", tag)
        vq.op(f"buffer_load_dwordx4 {vr(reg+4,4)}, v254, {WS}, s{sb} offen offset:1024 sc1", tag)
        vq.op(f"buffer_load_dwordx2 {vr(reg+8,2)}, v8, {WS}, s{sb} offen offset:2048 sc1", tag)
    def pair_src(reg, nt):
        return reg + (nt // 2) * 4 + (nt % 2) * 2
    HB_S = 48
    k("s_mov_b32 s48, s41")
    k(f"""
    s_sub_u32 s41, s55, s37              ; rt*128
    s_lshl_b32 s41, s41, 3               ; rt*1024
    s_add_u32 s46, s41, s36
    s_add_u32 s46, s46, {L.G_ST1}
    """)
    k("s_barrier")
    st2 = {"w3b": None, "hb": False}
    def g2_in(ks, nt):
        if ks < E("G2W", 8): return
        if not st2["hb"]:
            st2["hb"] = True; pair_loads(HBR, 48, "hb"); return
        if w3a.left(): w3a.one(); return
        if ks < 10: return
        if st2["w3b"] is None: st2["w3b"] = Dma(252, 12, 45, 52 * 1024, 38, 39)
        if st2["w3b"].left(): st2["w3b"].one()
    n0 = len(k.L)
    gemm5(2, 100, g2_in, lambda i: xload1(2, 52, i), kbar=9)
    k.L[n0:] = [x.replace("v16 offset", "v11 offset") if "ds_read_b128" in x else x for x in k.L[n0:]]
    stamp()
    k("s_barrier")
    w3a.some(99)
    if st2["w3b"] is None: st2["w3b"] = Dma(252, 12, 45, 52 * 1024, 38, 39)
    st2["w3b"].some(99)
    w3c = Dma(300, 1, 45, 100 * 1024, 38, 39)
    w3c.some(99)
    w3d = Dma(304, 9, 45, 104 * 1024, 38, 39)
    w3d.some(99)
    TT = GT + 12; ONE = GT + 20; A1 = GT + 22
    k(f"""
    v_mov_b32 v{ONE}, 0x3f803f80
    v_mov_b32 v{A1}, 0
    v_mov_b32 v{A1+1}, 0
    """)
    vq.wait("hb")
    swap_pairs(k, [HBR, HBR + 4])
    k("s_nop 1")
    U = GT + 24
    for nt in range(5):
        p = pair_src(HBR, nt)
        k.unpack(U + 4*nt, U + 4*nt + 1, p); k.unpack(U + 4*nt + 2, U + 4*nt + 3, p + 1)
    for nt in range(5):
        z = GA + 4*nt
        for i in (0, 2):
            k(f"v_pk_add_f32 {vr(z+i,2)}, {vr(z+i,2)}, {vr(U+4*nt+i,2)}")
    g2pk, prs = pack_tiles(k, [GA + 4*nt for nt in range(5)])
    for r, n, i in g2pk:
        for q_ in range(n):
            k(f"v_dot2_f32_bf16 v{A1}, v{r+q_}, v{ONE}, v{A1}")
            k(f"v_dot2_f32_bf16 v{A1+1}, v{r+q_}, v{r+q_}, v{A1+1}")
    k("s_nop 1")
    swap_pairs(k, prs)
    k("s_nop 2")
    reduce_g(k, A1, A1 + 1, TT)
    k(f"""
    s_add_u32 s47, s54, {L.G_X1}
    v_lshlrev_b32 v9, 6, v4              ; m*64
    s_lshl_b32 s41, s33, 3
    s_add_u32 s46, s46, s41
    s_lshl_b32 s41, s33, 2
    s_add_u32 s49, s55, s41
    v_mov_b32 v11, v9
    """)
    st = tile_stores(g2pk, 47)
    st.append(f"s_mov_b64 exec, 0xffff\nbuffer_store_dwordx2 {vr(A1,2)}, v11, {WS}, s46 offen\ns_mov_b64 exec, -1")
    stores(st, 49, L.F_G2)
    stamp()
    if STOP == 2:
        finish(); k.lab(end); k("s_endpgm"); return k

    A3, X3, W3, T3 = 16, 72, 160, 216
    XD = 11
    k(f"""
    s_lshl_b32 s46, s34, 3
    s_lshl_b32 s47, s30, 1
    s_add_u32 s46, s46, s47              ; rt0 = 8c + 2w
    s_lshl_b32 s49, s46, 7
    s_add_u32 s49, s49, {L.F_G2}
    v_bfe_u32 v7, v1, 3, 1
    v_lshlrev_b32 v7, 7, v7
    v_and_b32 v9, 7, v1
    v_lshl_add_u32 v7, v9, 2, v7
    v_add_u32 v7, s49, v7
    s_sub_u32 s49, s55, s37
    s_add_u32 s49, s49, {128 + L.F_B0}
    v_and_b32 v9, 3, v1
    v_lshlrev_b32 v9, 2, v9
    v_add_u32 v9, s49, v9                ; xa flags (value 3) of this wave's output tile
    v_and_b32 v10, 16, v1
    v_cmp_ne_u32 vcc, 0, v10
    v_mov_b32 v11, 1
    v_mov_b32 v10, 3
    v_cndmask_b32 v7, v7, v9, vcc
    v_cndmask_b32 v10, v11, v10, vcc
    """)
    poll(37, 10)
    stamp()
    k(f"""
    s_mul_i32 s47, s46, 20480
    s_add_u32 s47, s47, s36
    s_add_u32 s47, s47, {L.G_X1}
    s_add_u32 s48, s47, 20480
    """)
    def x3load(ks):
        for rt in range(2):
            k(f"s_add_u32 s41, s{47+rt}, {(ks//4)*4096}")
            vq.op(f"buffer_load_dwordx4 {vr(X3+((ks%XD)*2+rt)*4,4)}, v2, {WS}, s41 offen offset:{(ks%4)*1024} sc1", f"x{ks}")
    X3PRE = E("X3PRE", 3)
    for ks in range(X3PRE): x3load(ks)
    SP = T3
    k(f"""
    v_lshlrev_b32 v9, 6, v4
    v_lshl_add_u32 v9, v3, 4, v9
    s_lshl_b32 s41, s46, 10
    s_add_u32 s41, s41, s36
    s_add_u32 s41, s41, {L.G_ST1}
    """)
    for rt in range(2):
        vq.op(f"buffer_load_dwordx4 {vr(SP+4*rt,4)}, v9, {WS}, s41 offen offset:{1024*rt} sc1", "st")
    x3n = [X3PRE]
    k(f"""
    s_mul_i32 s52, s46, 55296
    s_mul_i32 s41, s35, 3584
    s_add_u32 s52, s52, s41
    s_add_u32 s52, s52, s36
    s_add_u32 s52, s52, {L.G_H3}
    s_add_u32 s53, s52, 55296
    """)
    EP = 228
    def g3_extra(ks):
        if ks in (10, 11) and not E("H3SC1", 1):
            k("s_mov_b64 exec, 0xfffffff")
            touch(52 + ks - 10, 248)
            k("s_mov_b64 exec, -1")
        if ks in (13, 14):
            off = L.G_XA if ks == 13 else L.G_X1
            k(f"s_add_u32 s48, s54, {off}")
            pair_loads(EP + (ks - 13) * 10, 48, "ep")
    k("s_barrier")
    def w3read(ks, nt):
        slot = (200 + ks * 7 + nt) % NSLOT
        o = slot * 1024
        a = {0: 14, 1: 15, 2: 11}[o >> 16]
        k(f"ds_read_b128 {vr(W3+(ks&1)*28+4*nt,4)}, v{a} offset:{o & 0xffff}")
    k("v_add_u32 v11, 0x20000, v2")
    RS3 = T3 + 8
    n0_ = len(k.L)
    for rt in range(2):
        s_ = SP + 4*rt
        k(f"v_add_f32 v{RS3+2*rt}, v{s_}, v{s_+2}")
        k(f"v_add_f32 v{RS3+2*rt+1}, v{s_+1}, v{s_+3}")
        reduce_g(k, RS3 + 2*rt, RS3 + 2*rt + 1, SP)
        ln_finish(k, RS3 + 2*rt, RS3 + 2*rt + 1, SP, 640)
    stat_ops = k.L[n0_:]; del k.L[n0_:]
    for nt in range(7): w3read(0, nt)
    for ks in range(20):
        assert x3n[0] > ks
        if not E("NOXW", 0): vq.wait(f"x{ks}")
        if E("PROFG3", 0) and ks in (1, 2, 5, 10, 15): stamp()
        for nt in range(7):
            if not E("NOLW", 0): k(f"s_waitcnt lgkmcnt({6 if ks < 19 else 6 - nt})")
            for rt in range(2):
                a = A3 + (rt*7 + nt) * 4
                c = "0" if ks == 0 else vr(a, 4)
                k(f"v_mfma_f32_16x16x32_bf16 {vr(a,4)}, {vr(W3+(ks&1)*28+4*nt,4)}, {vr(X3+((ks%XD)*2+rt)*4,4)}, {c}")
            if ks < 19 and not E("NODS", 0): w3read(ks + 1, nt)
            if nt in (1, 4) and x3n[0] < 20 and x3n[0] < ks + min(XD, E("X3D", 8)) and (nt == 1 or x3n[0] < ks + E("X3D", 8) - 1):
                x3load(x3n[0]); x3n[0] += 1
            if nt in (2, 3, 5) and ks >= E("W4K0", 1) and w4.left(): w4.one()
            if nt == 6 and ks >= E("W4K1", 12) and w4.left(): w4.one()
            if nt == 6: g3_extra(ks)
            if ks >= 5:
                for _ in range(2):
                    if stat_ops: k.L.append(stat_ops.pop(0))
    stamp()
    assert not stat_ops
    CS3 = X3
    TT = W3
    k(f"""
    v_lshlrev_b32 v9, 4, v3
    v_add_u32 v9, {SMALL + 1024}, v9
    v_mov_b32 v{VC}, {fhex(C1)}
    v_mov_b32 v{VC+1}, {fhex(C0)}
    """)
    for nt in range(7):
        k(f"ds_read_b128 {vr(CS3+4*nt,4)}, v9 offset:{64*nt}")
        k(f"ds_read_b128 {vr(CS3+28+4*nt,4)}, v9 offset:{512+64*nt}")
    k("s_waitcnt lgkmcnt(0)")
    for nt in range(7):
        cs = CS3 + 4*nt
        for i in (0, 2):
            k(f"v_pk_add_f32 {vr(cs+i,2)}, {vr(cs+i,2)}, {vr(cs+28+i,2)}")
    k(f"""
    s_lshl_b32 s49, s34, 2
    s_add_u32 s49, s49, s30
    s_lshl_b32 s49, s49, 7
    s_add_u32 s49, s49, s37
    s_lshl_b32 s41, s35, 2
    s_add_u32 s49, s49, s41
    """)
    def st_variants(emit):
        if E("MIXED", 0) or E("H3SC1", 1):
            emit(" sc1"); return
        ls = k.newlab("slow"); lj = k.newlab("sent")
        k("s_cmp_eq_u32 s31, 0"); k(f"s_cbranch_scc1 {ls}")
        emit(""); k(f"s_branch {lj}"); k.lab(ls); emit(" sc1"); k.lab(lj)
    for gi, n0_ in enumerate(range(0, 7, 2)):
        nts = list(range(n0_, min(n0_ + 2, 7)))
        tl = [(A3 + (rt*7 + nt) * 4, CS3 + 4*nt, RS3 + 2*rt) for nt in nts for rt in range(2)]
        ln_gelu_multi(k, vr, tl, TT, VC)
        pks = []
        prs_all = []
        for rt in range(2):
            pk, prs = pack_tiles(k, [A3 + (rt*7 + nt) * 4 for nt in nts])
            pks.append(pk[0]); prs_all += prs
        if prs_all: swap_pairs(k, prs_all)
        done = k.newlab("gs")
        if gi >= 2:
            k("s_cmp_eq_u32 s35, 15"); k(f"s_cbranch_scc1 {done}")
        if gi == 1:
            k("s_cmp_eq_u32 s35, 15")
            k("s_cselect_b32 s46, 0xffff, -1")
            k("s_mov_b32 exec_lo, s46"); k("s_mov_b32 exec_hi, s46")
        def emit(sc, pks=pks, n0_=n0_):
            for rt in range(2):
                r, n, i = pks[rt]
                if n == 4: k(f"buffer_store_dwordx4 {vr(r,4)}, v254, {WS}, s{52+rt} offen offset:{512*n0_}{sc}")
                else: k(f"buffer_store_dwordx2 {vr(r,2)}, v8, {WS}, s{52+rt} offen offset:{512*n0_}{sc}")
        st_variants(emit)
        if gi == 1: k("s_mov_b64 exec, -1")
        k.lab(done)
        if gi == 0: w4.some(99)
    ls = k.newlab("slow"); lj = k.newlab("sent")
    k(f"""
    s_waitcnt vmcnt(0)
    v_mov_b32 v9, 1
    v_mov_b32 v10, {L.F_G3}
    s_mov_b64 exec, 1
    s_cmp_eq_u32 s31, 0
    s_cbranch_scc1 {ls}
    buffer_store_dword v9, v10, {WS}, s49 offen
    s_branch {lj}
    """)
    k.lab(ls)
    k(f"buffer_store_dword v9, v10, {WS}, s49 offen sc1")
    k.lab(lj)
    k("s_mov_b64 exec, -1")
    vq.reset()
    stamp()
    if STOP == 3:
        finish(); k.lab(end); k("s_endpgm"); return k

    A4, X4, WX, T4 = 16, 96, 192, 216
    XD4 = 6
    for i in range(6):
        vq.op(f"buffer_load_dwordx4 {vr(WX+4*i,4)}, v2, {WS}, s40 offen offset:{(i%4)*1024}", "wx")
        if i == 3: k("s_add_u32 s40, s40, 4096")
    k(f"""
    s_and_b32 s41, s32, 1
    s_lshl_b32 s41, s41, 1
    s_lshl_b32 s49, s34, 2
    s_add_u32 s49, s49, s41
    s_lshl_b32 s49, s49, 7
    s_add_u32 s49, s49, s37
    s_lshl_b32 s41, s30, 4
    s_add_u32 s49, s49, s41              ; + 4w flags
    s_add_u32 s49, s49, {L.F_G3}
    v_bfe_u32 v7, v1, 2, 1
    v_lshlrev_b32 v7, 7, v7
    v_and_b32 v9, 3, v1
    v_lshl_add_u32 v7, v9, 2, v7
    """)
    for i in range(4):
        k(f"""
        s_add_u32 s41, s30, {i}
        s_and_b32 s41, s41, 3
        s_lshl_b32 s46, s32, 2
        s_add_u32 s41, s41, s46
        s_mul_i32 s41, s41, 55296
        s_mul_i32 s46, s30, {14*1024}
        s_add_u32 s41, s41, s46
        s_add_u32 s41, s41, s36
        s_add_u32 s{50+i}, s41, {L.G_H3}
        """)
    poll(49)
    stamp()
    def x4load(ks, guard=False):
        for i in range(4):
            k(f"s_add_u32 s41, s{50+i}, {(ks//4)*4096}")
            vq.op(f"buffer_load_dwordx4 {vr(X4+((ks%XD4)*4+i)*4,4)}, v2, {WS}, s41 offen offset:{(ks%4)*1024} sc1", f"x{ks}")
    def x4one(ks, i):
        k(f"s_add_u32 s41, s{50+i}, {(ks//4)*4096}")
        vq.op(f"buffer_load_dwordx4 {vr(X4+((ks%XD4)*4+i)*4,4)}, v2, {WS}, s41 offen offset:{(ks%4)*1024} sc1", f"x{ks}")
    X4PRE = E("X4PRE", 2)
    for ks in range(X4PRE): x4load(ks)
    x4q = [(ks, i) for ks in range(X4PRE, 14) for i in range(4)]
    skip = k.newlab("k4skip")
    def wfrag(idx): return ar(4*idx, 4) if idx < 64 else vr(WX + 4*(idx - 64), 4)
    for ks in range(14):
        if ks == 12:
            k("s_cmp_eq_u32 s30, 3"); k(f"s_cbranch_scc1 {skip}")
        assert not any(q[0] <= ks for q in x4q)
        vq.wait(f"x{ks}")
        for nt in range(5):
            for i in range(4):
                a = A4 + (i*5 + nt) * 4
                c = "0" if ks == 0 else vr(a, 4)
                k(f"v_mfma_f32_16x16x32_bf16 {vr(a,4)}, {wfrag(ks*5+nt)}, {vr(X4+((ks%XD4)*4+i)*4,4)}, {c}")
            for _ in range(2 if (nt in (1, 3) and x4q and x4q[0][0] < ks + E("X4D", 4)) else 1):
                if x4q and x4q[0][0] - XD4 < ks and (nt >= 1 or x4q[0][0] - XD4 < ks - 1):
                    x4one(*x4q.pop(0))
    k.lab(skip)
    stamp()
    k(f"""
    s_waitcnt vmcnt(0)
    s_barrier
    """)
    for i in range(1, 4):
        k(f"""
        s_add_u32 s41, s30, {i}
        s_and_b32 s41, s41, 3
        s_mul_i32 s41, s41, {15*1024}
        s_add_u32 s41, s41, {(i-1)*5*1024}
        v_add_u32 v{9}, s41, v2
        """)
        for nt in range(5):
            k(f"ds_write_b128 v9, {vr(A4+(i*5+nt)*4,4)} offset:{1024*nt}")
    GB = X4
    PB = X4 + 20
    k(f"""
    v_lshlrev_b32 v10, 4, v3
    v_add_u32 v10, {SMALL + 2048}, v10
    """)
    for nt in range(5):
        k(f"ds_read_b128 {vr(GB+4*nt,4)}, v10 offset:{64*nt}")
    k(f"""
    s_mul_i32 s41, s30, {15*1024}
    v_add_u32 v9, s41, v2
    s_waitcnt lgkmcnt(0)
    s_barrier
    """)
    for i in range(15):
        k(f"ds_read_b128 {vr(PB+4*i,4)}, v9 offset:{1024*i}")
    k(f"""
    s_lshl_b32 s46, s32, 2
    s_add_u32 s46, s46, s30
    s_lshl_b32 s46, s46, 4
    s_lshl_b32 s47, s28, 8
    s_add_u32 s46, s46, s47
    v_add_u32 v10, s46, v4
    v_mul_u32_u24 v10, 1280, v10
    v_lshl_add_u32 v10, v3, 3, v10
    s_mul_i32 s47, s33, 160
    """)
    TT = 248
    swap_pairs(k, [EP, EP + 4, EP + 10, EP + 14])
    k("s_waitcnt lgkmcnt(0)")
    for s_ in range(3):
        for nt in range(5):
            z = A4 + 4*nt
            for i in (0, 2):
                k(f"v_pk_add_f32 {vr(z+i,2)}, {vr(z+i,2)}, {vr(PB+(s_*5+nt)*4+i,2)}")
    U = PB
    for nt in range(5):
        p = pair_src(EP + 10, nt)
        k.unpack(U + 4*nt, U + 4*nt + 1, p); k.unpack(U + 4*nt + 2, U + 4*nt + 3, p + 1)
        p = pair_src(EP, nt)
        k.unpack(U + 20 + 4*nt, U + 20 + 4*nt + 1, p); k.unpack(U + 20 + 4*nt + 2, U + 20 + 4*nt + 3, p + 1)
    for nt in range(5):
        z = A4 + 4*nt
        for i in (0, 2):
            k(f"v_pk_add_f32 {vr(z+i,2)}, {vr(z+i,2)}, {vr(U+4*nt+i,2)}")
    for nt in range(5):
        z = A4 + 4*nt
        for i in (0, 2):
            k(f"v_pk_fma_f32 {vr(z+i,2)}, {vr(z+i,2)}, {vr(GB+4*nt+i,2)}, {vr(U+20+4*nt+i,2)}")
    g4pk, prs = pack_tiles(k, [A4 + 4*nt for nt in range(5)])
    swap_pairs(k, prs)
    k("""
    v_and_b32 v9, 1, v3
    v_lshlrev_b32 v9, 5, v9
    v_lshrrev_b32 v11, 1, v3
    v_lshl_add_u32 v9, v11, 4, v9
    v_lshlrev_b32 v11, 3, v3
    v_sub_u32 v11, v10, v11
    v_add_u32 v11, v11, v9
    """)
    osc = " sc1" if E("OUTSC1", 0) else ""
    for r, n, i in g4pk:
        if n == 4: k(f"buffer_store_dwordx4 {vr(r,4)}, v11, {OS}, s47 offen offset:{32*i}{osc}")
        else: k(f"buffer_store_dwordx2 {vr(r,2)}, v10, {OS}, s47 offen offset:{32*i}{osc}")
    stamp()
    finish()
    k.lab(end)
    k("s_endpgm")
    return k

def kernels(Kern, vr):
    return [gen_chain(Kern, vr)]
```

```python
import os, struct
import layout as L
SZ_SD = 2048 * 640 * 2
C0 = -2.0 * 0.7978845608028654 * 1.4426950408889634
C1 = C0 * 0.044715
def fhex(x):
    return "0x%08x" % struct.unpack("<I", struct.pack("<f", x))[0]
E = lambda n, d: int(os.environ.get(n, d))
STOP = E("STOP", 9)
PROF = E("PROF", 0)
NSLOT = 152
SMALL = NSLOT * 1024
YL = 132 * 1024
MODL = 116 * 1024

def ln_finish(k, s1, s2, t, n):
    k(f"""
    v_mul_f32 v{s1}, {fhex(1.0/n)}, v{s1}
    v_mul_f32 v{s2}, {fhex(1.0/n)}, v{s2}
    v_fma_f32 v{s2}, -v{s1}, v{s1}, v{s2}
    v_max_f32 v{s2}, 0, v{s2}
    """)
    k.round2(s1, s2, t)
    k(f"""
    v_add_f32 v{s2}, {fhex(1e-5)}, v{s2}
    v_cvt_pk_bf16_f32 v{t}, v{s2}, v{s2}
    v_lshlrev_b32 v{s2}, 16, v{t}
    v_sqrt_f32 v{s2}, v{s2}
    s_nop 0
    v_cvt_pk_bf16_f32 v{t}, v{s2}, v{s2}
    v_lshlrev_b32 v{s2}, 16, v{t}
    v_rcp_f32 v{s2}, v{s2}
    s_nop 0
    v_mul_f32 v{s1}, v{s1}, v{s2}
    v_sub_f32 v{s1}, 0, v{s1}
    """)

def reduce16(k, a, b):
    for ctl in ("quad_perm:[1,0,3,2]", "quad_perm:[2,3,0,1]", "row_half_mirror", "row_mirror"):
        k("s_nop 0")
        k(f"v_add_f32_dpp v{a}, v{a}, v{a} {ctl} row_mask:0xf bank_mask:0xf")
        k(f"v_add_f32_dpp v{b}, v{b}, v{b} {ctl} row_mask:0xf bank_mask:0xf")

def reduce_g(k, a, b, t):
    for sw in ("v_permlane32_swap_b32", "v_permlane16_swap_b32"):
        k(f"""
        v_mov_b32 v{t}, v{a}
        v_mov_b32 v{t+1}, v{b}
        s_nop 1
        {sw} v{t}, v{a}
        {sw} v{t+1}, v{b}
        s_nop 0
        v_add_f32 v{a}, v{a}, v{t}
        v_add_f32 v{b}, v{b}, v{t+1}
        """)

def gelu4pk(k, vr, z, t, vc):
    for i in (0, 2):
        k(f"v_pk_mul_f32 {vr(t+i,2)}, {vr(z+i,2)}, {vr(z+i,2)}")
    for i in (0, 2):
        k(f"v_pk_fma_f32 {vr(t+i,2)}, {vr(t+i,2)}, {vr(vc,2)}, {vr(vc,2)} op_sel:[0,0,1] op_sel_hi:[1,0,1]")
    for i in (0, 2):
        k(f"v_pk_mul_f32 {vr(t+i,2)}, {vr(t+i,2)}, {vr(z+i,2)}")
    for i in range(4):
        k(f"v_exp_f32 v{t+i}, v{t+i}")
    for i in range(4):
        k(f"v_add_f32 v{t+i}, 1.0, v{t+i}")
    for i in range(4):
        k(f"v_rcp_f32 v{t+i}, v{t+i}")
    k("s_nop 0")
    for i in (0, 2):
        k(f"v_pk_mul_f32 {vr(z+i,2)}, {vr(z+i,2)}, {vr(t+i,2)}")

def ln_gelu_multi(k, vr, tiles, t, vc):
    n = len(tiles)
    T = lambda i: t + 4 * i
    for i, (z, cs, rs) in enumerate(tiles):
        for h in (0, 2):
            k(f"v_pk_mul_f32 {vr(T(i)+h,2)}, {vr(cs+h,2)}, {vr(rs,2)} op_sel_hi:[1,0]")
    for i, (z, cs, rs) in enumerate(tiles):
        for h in (0, 2):
            k(f"v_pk_fma_f32 {vr(z+h,2)}, {vr(z+h,2)}, {vr(rs,2)}, {vr(T(i)+h,2)} op_sel:[0,1,0] op_sel_hi:[1,1,1]")
    for i, (z, cs, rs) in enumerate(tiles):
        for h in (0, 2):
            k(f"v_pk_mul_f32 {vr(T(i)+h,2)}, {vr(z+h,2)}, {vr(z+h,2)}")
    for i, (z, cs, rs) in enumerate(tiles):
        for h in (0, 2):
            k(f"v_pk_fma_f32 {vr(T(i)+h,2)}, {vr(T(i)+h,2)}, {vr(vc,2)}, {vr(vc,2)} op_sel:[0,0,1] op_sel_hi:[1,0,1]")
    for i, (z, cs, rs) in enumerate(tiles):
        for h in (0, 2):
            k(f"v_pk_mul_f32 {vr(T(i)+h,2)}, {vr(T(i)+h,2)}, {vr(z+h,2)}")
    for i in range(n):
        for r in range(4): k(f"v_exp_f32 v{T(i)+r}, v{T(i)+r}")
    for i in range(n):
        for h in (0, 2): k(f"v_pk_add_f32 {vr(T(i)+h,2)}, {vr(T(i)+h,2)}, 1.0 op_sel_hi:[1,0]")
    for i in range(n):
        for r in range(4): k(f"v_rcp_f32 v{T(i)+r}, v{T(i)+r}")
    k("s_nop 0")
    for i, (z, cs, rs) in enumerate(tiles):
        for h in (0, 2):
            k(f"v_pk_mul_f32 {vr(z+h,2)}, {vr(z+h,2)}, {vr(T(i)+h,2)}")

def pack_tiles(k, zs):
    out = []
    i = 0
    prs = []
    while i < len(zs):
        if i + 1 < len(zs):
            a, b = zs[i], zs[i + 1]
            k(f"v_cvt_pk_bf16_f32 v{a}, v{a}, v{a+1}")
            k(f"v_cvt_pk_bf16_f32 v{a+1}, v{a+2}, v{a+3}")
            k(f"v_cvt_pk_bf16_f32 v{a+2}, v{b}, v{b+1}")
            k(f"v_cvt_pk_bf16_f32 v{a+3}, v{b+2}, v{b+3}")
            prs.append(a); out.append((a, 4, i)); i += 2
        else:
            a = zs[i]
            k(f"v_cvt_pk_bf16_f32 v{a}, v{a}, v{a+1}")
            k(f"v_cvt_pk_bf16_f32 v{a+1}, v{a+2}, v{a+3}")
            out.append((a, 2, i)); i += 1
    return out, prs

def swap_pairs(k, prs):
    k("s_nop 1")
    for a in prs:
        k(f"v_permlane16_swap_b32 v{a}, v{a+2}")
        k(f"v_permlane16_swap_b32 v{a+1}, v{a+3}")

class VQ:
    def __init__(self, k): self.k = k; self.q = []
    def op(self, text, tag=None):
        self.k(text); self.q.append(tag)
    def wait(self, tag):
        idx = [i for i, t in enumerate(self.q) if t == tag]
        if not idx: return
        n = len(self.q) - 1 - idx[-1]
        self.k(f"s_waitcnt vmcnt({min(n, 63)})")
        self.q = self.q[idx[-1] + 1:] if n <= 63 else self.q[-63:]
    def drain(self):
        self.k("s_waitcnt vmcnt(0)"); self.q = []
    def reset(self): self.q = []

def gen_chain(Kern, vr):
    k = Kern("k2_kernel", 256, 256, 163840, vgpr=256, sgpr=102, agpr=256)
    ar = lambda a, n: f"a[{a}:{a+n-1}]"
    vq = VQ(k)
    end = "k2_end"
    WS, QS, YS, OS = "s[12:15]", "s[16:19]", "s[20:23]", "s[24:27]"
    nst = [0]
    def stamp():
        if PROF:
            i = nst[0]; nst[0] += 1
            if PROF == 3:
                k(f"s_memtime s[{56+2*i}:{57+2*i}]"); nst[0] += 1
                k(f"s_memrealtime s[{58+2*i}:{59+2*i}]")
            else:
                k(f"{'s_memrealtime' if PROF == 2 else 's_memtime'} s[{56+2*i}:{57+2*i}]")
    def finish(label_end=True):
        k("s_waitcnt vmcnt(0) lgkmcnt(0)")
        if PROF == 2:
            k(f"""
            s_lshl_b32 s41, s2, 2
            s_add_u32 s41, s41, s30
            s_lshl_b32 s41, s41, 7
            s_add_u32 s41, s41, {48 << 20}
            v_mov_b32 v1, 0
            s_mov_b64 exec, 1
            """)
            for i in range(nst[0]):
                k(f"v_mov_b32 v2, s{56+2*i}")
                k(f"buffer_store_dword v2, v1, {WS}, s41 offen offset:{4*i}")
            k(f"v_mov_b32 v2, {nst[0]}")
            k(f"buffer_store_dword v2, v1, {WS}, s41 offen offset:124")
        elif PROF:
            l = k.newlab("prof")
            k(f"""
            s_cmp_lg_u32 s2, {E("PROFWG", 0)}
            s_cbranch_scc1 {l}
            s_cmp_lg_u32 s30, {E("PROFW", 0)}
            s_cbranch_scc1 {l}
            s_load_dwordx2 s[4:5], s[0:1], 112
            s_waitcnt lgkmcnt(0)
            s_mov_b32 s6, 256
            s_mov_b32 s7, 0x00020000
            v_mov_b32 v1, 0
            s_mov_b64 exec, 1
            """)
            for i in range(1, nst[0]):
                k(f"s_sub_u32 s41, s{56+2*i}, s{56 + (2 if (PROF == 3 and i % 2) else 0)}")
                k(f"v_mov_b32 v2, s41")
                k(f"buffer_store_dword v2, v1, s[4:7], 0 offen offset:{4*(i-1)}")
            k.lab(l)
        k("s_endpgm")

    k(f"""
    s_cmp_ge_u32 s2, 256
    s_cbranch_scc1 {end}
    s_load_dwordx2 s[4:5], s[0:1], 0
    s_load_dwordx2 s[6:7], s[0:1], 104
    s_load_dwordx2 s[8:9], s[0:1], 120
    s_getreg_b32 s42, hwreg(HW_REG_XCC_ID, 0, 4)
    v_lshrrev_b32 v2, 6, v0
    v_and_b32 v1, 63, v0
    v_readfirstlane_b32 s30, v2          ; wave
    s_and_b32 s28, s2, 7                 ; group
    s_lshr_b32 s29, s2, 3                ; member
    s_lshr_b32 s32, s29, 3
    s_and_b32 s33, s29, 7                ; j
    s_lshr_b32 s34, s29, 4
    s_and_b32 s35, s29, 15               ; j3
    s_mul_i32 s36, s28, {L.GS}
    s_add_u32 s36, s36, {L.GRP}
    s_lshl_b32 s37, s28, 13
    s_add_u32 s37, s37, {L.FLAGS}
    s_add_u32 s42, s42, 1
    s_mov_b32 s31, 0
    v_lshlrev_b32 v2, 4, v1              ; lane*16
    v_lshrrev_b32 v3, 4, v1              ; g
    v_and_b32 v4, 15, v1                 ; m
    v_lshrrev_b32 v8, 1, v3
    v_lshl_add_u32 v8, v8, 4, v4
    v_and_b32 v9, 1, v3
    v_lshl_add_u32 v8, v8, 1, v9
    v_lshlrev_b32 v8, 3, v8
    v_lshlrev_b32 v5, 7, v1
    v_and_b32 v9, 1, v3
    v_lshlrev_b32 v9, 1, v9
    v_lshrrev_b32 v10, 1, v3
    v_or_b32 v9, v9, v10
    v_lshlrev_b32 v9, 8, v9
    v_lshl_add_u32 v254, v4, 4, v9
    s_waitcnt lgkmcnt(0)
    """)
    stamp()
    k.srd(12, 8, 0x10000000); k.srd(16, 4, SZ_SD); k.srd(24, 6, SZ_SD)
    def publish():
        l = k.newlab()
        k(f"""
        s_cmp_lg_u32 s30, 0
        s_cbranch_scc1 {l}
        s_lshl_b32 s41, s29, 2
        s_add_u32 s41, s41, s37
        v_mov_b32 v9, s42
        v_mov_b32 v10, {L.F_XID}
        s_mov_b64 exec, 1
        buffer_store_dword v9, v10, {WS}, s41 offen sc1
        s_mov_b64 exec, -1
        """)
        k.lab(l)
    if not E("PUBLATE", 0): publish()
    class Dma:
        def __init__(self, p0, n, srcbase_s, srcoff, sm, so):
            self.i = 0; self.n = n; self.sm = sm; self.so = so
            slot0 = p0 % NSLOT
            assert slot0 + 4 * n <= NSLOT
            k(f"""
            s_mul_i32 s{sm}, s30, {n*1024}
            s_add_u32 s{so}, s{sm}, s{srcbase_s}
            s_add_u32 s{so}, s{so}, {srcoff}
            s_add_u32 s{sm}, s{sm}, {slot0*1024}
            """)
        def left(self): return self.n - self.i
        def one(self, tag="w"):
            o = (self.i % 4) * 1024
            k(f"s_mov_b32 m0, s{self.sm}")
            k("s_nop 0")
            if not E("NOWD", 0): vq.op(f"buffer_load_dwordx4 v2, {WS}, s{self.so} offen offset:{o} lds", tag)
            self.i += 1
            if self.i % 4 == 0 and self.i < self.n:
                k(f"s_add_u32 s{self.sm}, s{self.sm}, 4096")
                k(f"s_add_u32 s{self.so}, s{self.so}, 4096")
        def some(self, n, tag="w"):
            for _ in range(min(n, self.left())): self.one(tag)
    class W4:
        def __init__(self): self.i = 0
        def left(self): return 64 - self.i
        def one(self, tag="w4"):
            i = self.i
            if not E("NOW4", 0): vq.op(f"buffer_load_dwordx4 {ar(4*i,4)}, v2, {WS}, s40 offen offset:{(i%4)*1024}", tag)
            self.i += 1
            if self.i % 4 == 0: k("s_add_u32 s40, s40, 4096")
            if self.i == 60:
                k("s_cmp_eq_u32 s30, 3")
                k(f"s_cselect_b32 s41, {60*1024}, 0")
                k("s_sub_u32 s40, s40, s41")
        def some(self, n):
            for _ in range(min(n, self.left())): self.one()
    k(f"""
    s_mul_i32 s44, s33, {100*1024}
    s_mul_i32 s45, s35, {140*1024}
    s_add_u32 s45, s45, {L.W3P}
    s_mul_i32 s40, s33, {280*1024}
    s_mul_i32 s41, s30, {70*1024}
    s_add_u32 s40, s40, s41
    s_add_u32 s40, s40, {L.W4P}
    """)
    w4 = W4()
    def small_vectors():
        lsm1 = k.newlab("sm"); lsm2 = k.newlab("sm"); lsm3 = k.newlab("sm")
        k(f"""
        s_cmp_eq_u32 s30, 1
        s_cbranch_scc1 {lsm1}
        s_cmp_ge_u32 s30, 2
        s_cbranch_scc1 {lsm2}
        s_mul_i32 s41, s33, 320
        s_add_u32 s41, s41, {L.CS1P}
        s_mov_b32 m0, {SMALL}
        s_mov_b64 exec, 0xfffff
        buffer_load_dwordx4 v2, {WS}, s41 offen lds
        s_add_u32 s41, s41, {1792*4}
        s_mov_b32 m0, {SMALL + 512}
        s_nop 0
        buffer_load_dwordx4 v2, {WS}, s41 offen lds
        s_branch {lsm3}
        """)
        k.lab(lsm1)
        k(f"""
        s_mul_i32 s41, s35, 448
        s_add_u32 s41, s41, {L.CS3P}
        s_mov_b32 m0, {SMALL + 1024}
        s_mov_b64 exec, 0xfffffff
        buffer_load_dwordx4 v2, {WS}, s41 offen lds
        s_add_u32 s41, s41, {1792*4}
        s_mov_b32 m0, {SMALL + 1536}
        s_nop 0
        buffer_load_dwordx4 v2, {WS}, s41 offen lds
        s_branch {lsm3}
        """)
        k.lab(lsm2)
        k(f"""
        s_mul_i32 s41, s33, 320
        s_add_u32 s41, s41, {L.MODF + 5*2560}
        s_mov_b32 m0, {SMALL + 2048}
        s_mov_b64 exec, 0xfffff
        buffer_load_dwordx4 v2, {WS}, s41 offen lds
        """)
        k.lab(lsm3)
        k("s_mov_b64 exec, -1")
        vq.q += ['sm']
    k(f"""
    s_lshl_b32 s46, s32, 2
    s_add_u32 s46, s46, s30
    s_mul_i32 s47, s46, 20480
    s_mul_i32 s41, s33, 2560
    s_add_u32 s47, s47, s41
    s_add_u32 s54, s47, s36
    s_lshl_b32 s55, s46, 7
    s_add_u32 s55, s55, s37
    s_mul_i32 s22, s28, 327680
    s_add_u32 s22, s22, s47
    s_add_u32 s22, s22, {L.KVR}
    """)
    def touch_h1s():
        k(f"s_add_u32 s47, s54, {L.G_H1S}")
        k("s_mov_b64 exec, 0xfffff")
        touch(47, 188)
        k("s_mov_b64 exec, -1")

    def poll(sbase, thr=None):
        lp = k.newlab("poll"); ld = k.newlab("go")
        k(f"s_mov_b32 s43, {E('SPIN', 200000)}")
        k.lab(lp)
        k(f"""
        buffer_load_dword v9, v7, {WS}, s{sbase} offen sc1
        s_waitcnt vmcnt(0)
        {"v_cmp_ne_u32 vcc, 0, v9" if thr is None else f"v_cmp_le_u32 vcc, v{thr}, v9"}
        s_sub_u32 s43, s43, 1
        s_cmp_eq_u64 vcc, -1
        s_cbranch_scc1 {ld}
        s_cmp_lg_u32 s43, 0
        s_cbranch_scc1 {lp}
        """)
        k.lab(ld)
        vq.reset()
    def xid_load(reg):
        k(f"v_and_b32 v{reg+1}, 31, v1")
        k(f"v_lshlrev_b32 v{reg+1}, 2, v{reg+1}")
        k(f"s_add_u32 s41, s37, {L.F_XID}")
        vq.op(f"buffer_load_dword v{reg}, v{reg+1}, {WS}, s41 offen sc1", "xid")
    def xid_eval(reg):
        vq.wait("xid")
        lp = k.newlab("xp"); ld = k.newlab("xd")
        k(f"s_mov_b32 s43, {E('SPIN', 200000)}")
        k.lab(lp)
        k(f"""
        v_cmp_ne_u32 vcc, 0, v{reg}
        s_sub_u32 s43, s43, 1
        s_cmp_eq_u64 vcc, -1
        s_cbranch_scc1 {ld}
        s_cmp_eq_u32 s43, 0
        s_cbranch_scc1 {ld}
        s_add_u32 s41, s37, {L.F_XID}
        buffer_load_dword v{reg}, v{reg+1}, {WS}, s41 offen sc1
        s_waitcnt vmcnt(0)
        s_branch {lp}
        """)
        k.lab(ld)
        k(f"""
        v_cmp_eq_u32 vcc, s42, v{reg}
        s_nop 1
        s_cmp_eq_u64 vcc, -1
        s_cselect_b32 s31, 1, 0
        """)
        if E("SLOW", 0): k("s_mov_b32 s31, 0")
    def stores(lst, flag_s, flag_off):
        ls = k.newlab("slow"); lj = k.newlab("sent")
        k(f"s_cmp_eq_u32 s31, 0")
        k(f"s_cbranch_scc1 {ls}")
        for sc in ("", " sc1"):
            dsc = " sc1" if E("MIXED", 0) else sc
            for t in lst:
                lines = t.strip("\n").split("\n")
                k("\n".join((x + dsc if x.strip().startswith("buffer_store") else x) for x in lines))
            k(f"""
            s_waitcnt vmcnt(0)
            v_mov_b32 v9, 1
            v_mov_b32 v10, {flag_off}
            s_mov_b64 exec, 1
            buffer_store_dword v9, v10, {WS}, s{flag_s} offen{sc}
            s_mov_b64 exec, -1
            """)
            if sc == "":
                k(f"s_branch {lj}")
                k.lab(ls)
        k.lab(lj)
        vq.reset(); vq.q.append("flag")
    def touch(sreg, dst=9):
        if E("NOTOUCH", 1): return
        k(f"s_cmp_eq_u32 s31, 0")
        k(f"s_cselect_b32 s41, {L.W1P}, s{sreg}")
        vq.op(f"buffer_load_dword v{dst}, v5, {WS}, s41 offen", "touch")

    XR, YR, XF, MT, T = 16, 36, 56, 96, 120
    w1 = Dma(0, 25, 44, L.W1P, 38, 39)
    nob0 = k.newlab("nob0"); join0 = k.newlab("join0")
    k(f"""
    s_cmp_ge_u32 s29, 18
    s_cbranch_scc1 {nob0}
    s_lshl_b32 s46, s28, 8
    s_lshl_b32 s47, s29, 4
    s_add_u32 s46, s46, s47
    s_sub_u32 s46, s46, 16               ; global row of tile row 0 (signed)
    s_lshl_b32 s47, s30, 2
    s_add_u32 s47, s47, s46              ; first row of the wave
    v_add_u32 v11, s47, v3               ; global row
    v_mul_lo_u32 v6, v11, s48
    """.replace("v_mul_lo_u32 v6, v11, s48", "s_movk_i32 s48, 1280\n    v_mul_lo_u32 v6, v11, s48"))
    k("v_lshl_add_u32 v6, v4, 4, v6")
    for t in range(5):
        vq.op(f"buffer_load_dwordx4 {vr(XR+4*t,4)}, v6, {QS}, 0 offen offset:{256*t}", "q")
    if E("PROFQ", 0): stamp()
    k(f"""
    s_mul_i32 s47, s29, 20480
    s_mul_i32 s48, s30, 5120
    s_add_u32 s47, s47, s48
    s_add_u32 s47, s47, s36
    v_add_u32 v12, s47, v2
    s_add_u32 s48, s48, {YL}
    s_mov_b32 m0, s48
    s_nop 0
    """)
    for i in range(4):
        vq.op(f"buffer_load_dwordx4 v12, {WS}, 0 offen offset:{1024*i} lds", "y")
    k(f"""
    s_add_u32 s48, s48, 4096
    s_mov_b32 m0, s48
    s_movk_i32 s47, 4096
    """)
    vq.op(f"buffer_load_dwordx4 v12, {WS}, s47 offen lds", "y")
    k(f"""
    s_lshl_b32 s47, s30, 12
    s_add_u32 s48, s47, {MODL}
    """)
    for i in range(4):
        k(f"""
        s_add_u32 s41, s47, {1024*i}
        s_min_u32 s41, s41, {15360 - 1024}
        s_add_u32 s41, s41, {L.MODF}
        s_add_u32 m0, s48, {1024*i}
        s_nop 0
        """)
        vq.op(f"buffer_load_dwordx4 v2, {WS}, s41 offen lds", "y")
    if E("PUBLATE", 0): publish()
    w4_b0 = E("NW40", 0)
    k(f"""
    v_lshl_add_u32 v15, s30, 2, v3
    v_lshrrev_b32 v7, 1, v15
    v_and_b32 v9, 7, v4
    v_xor_b32 v7, v7, v9
    v_and_b32 v9, 1, v15
    v_lshl_add_u32 v7, v7, 1, v9
    v_lshlrev_b32 v7, 3, v7
    v_lshl_add_u32 v7, v4, 8, v7
    v_add_u32 v7, {YL}, v7
    v_lshlrev_b32 v10, 5, v4
    v_add_u32 v10, {MODL}, v10
    v_lshrrev_b32 v12, 2, v4
    v_and_b32 v13, 3, v4
    v_lshl_add_u32 v13, v13, 4, v15
    v_lshlrev_b32 v13, 4, v13
    v_lshl_add_u32 v6, v12, 10, v13
    s_movk_i32 s48, 2048
    v_cmp_gt_u32 {"s[50:51]"}, s48, v11
    """)
    S1, S2, N1, N2, ONE = T, T + 1, T + 4, T + 5, T + 6
    k(f"""
    v_mov_b32 v{S1}, 0
    v_mov_b32 v{S2}, 0
    v_mov_b32 v{N1}, 0
    v_mov_b32 v{N2}, 0
    v_mov_b32 v{ONE}, 0x3f803f80
    """)
    vq.wait("q")
    stamp()
    for d in range(20):
        k(f"v_dot2_f32_bf16 v{S1}, v{XR+d}, v{ONE}, v{S1}")
        k(f"v_dot2_f32_bf16 v{S2}, v{XR+d}, v{XR+d}, v{S2}")
        k.unpack(XF + 2*d, XF + 2*d + 1, XR + d)
        if d == 2: small_vectors()
        if d >= 4 and d % 2 == 0 and w1.i < E("NW1A", 8): w1.one()
    k("s_nop 1")
    reduce16(k, S1, S2)
    ln_finish(k, S1, S2, T + 2, 640)
    if E("PROFB0", 0): stamp()
    vq.wait("y")
    if E("PROFB0", 0): stamp()
    k("s_barrier")
    for t in range(5):
        k(f"ds_read_b64 {vr(YR+4*t,2)}, v7 offset:{t*4096}")
        k(f"ds_read_b64 {vr(YR+4*t+2,2)}, v7 offset:{t*4096+128}")
    BC = "op_sel:[0,1,0] op_sel_hi:[1,1,0]"
    TP, TY, MT2 = 144, 152, 160
    MTB = lambda t: (MT if t % 2 == 0 else MT2)
    def modread(t, vecs):
        for vi, vec in enumerate(vecs):
            k(f"ds_read_b128 {vr(MTB(t)+8*vi,4)}, v10 offset:{vec*2560+t*512}")
            k(f"ds_read_b128 {vr(MTB(t)+8*vi+4,4)}, v10 offset:{vec*2560+t*512+16}")
    modread(0, (1, 0, 2))
    for t in range(5):
        M = MTB(t)
        if t < 4:
            modread(t + 1, (1, 0, 2)); k("s_waitcnt lgkmcnt(6)")
        else:
            k("s_waitcnt lgkmcnt(0)")
        D4 = range(4)
        e = lambda d: XF + 8*t + 2*d
        for _ in range((E("NW1B", 0) + 4) // 5):
            if w1.i < E("NW1A", 8) + E("NW1B", 0): w1.one()
        for d in D4: k.unpack(TY + 2*d, TY + 2*d + 1, YR + 4*t + d)
        for d in D4: k(f"v_pk_fma_f32 {vr(TP+2*d,2)}, {vr(e(d),2)}, {vr(S1,2)}, {vr(S1,2)} {BC}")
        for d in D4: k(f"v_pk_fma_f32 {vr(TP+2*d,2)}, {vr(TP+2*d,2)}, {vr(M+2*d,2)}, {vr(M+8+2*d,2)}")
        for _ in range((w4_b0 + 4) // 5):
            if w4.i < w4_b0: w4.one()
        for d in D4: k(f"v_pk_mul_f32 {vr(TP+2*d,2)}, {vr(TP+2*d,2)}, {vr(TY+2*d,2)}")
        for d in D4: k(f"v_pk_fma_f32 {vr(e(d),2)}, {vr(M+16+2*d,2)}, {vr(TP+2*d,2)}, {vr(e(d),2)}")
        for d in D4: k(f"v_cvt_pk_bf16_f32 v{XR+4*t+d}, v{e(d)}, v{e(d)+1}")
        for d in D4:
            if E("XARND", 0):
                k(f"v_lshlrev_b32 v{e(d)}, 16, v{XR+4*t+d}")
                k(f"v_and_b32 v{e(d)+1}, 0xffff0000, v{XR+4*t+d}")
            k(f"v_dot2_f32_bf16 v{N1}, v{XR+4*t+d}, v{ONE}, v{N1}")
            k(f"v_dot2_f32_bf16 v{N2}, v{XR+4*t+d}, v{XR+4*t+d}, v{N2}")
    if E("PROFB0", 0): stamp()
    xid_load(190)
    modread(0, (4, 3))
    k("s_nop 1")
    reduce16(k, N1, N2)
    ln_finish(k, N1, N2, T + 2, 640)
    k(f"v_mov_b32 v{S1}, 0")
    k(f"v_mov_b32 v{S2}, 0")
    for t in range(5):
        M = MTB(t)
        if t < 4:
            modread(t + 1, (4, 3)); k("s_waitcnt lgkmcnt(4)")
        else:
            k("s_waitcnt lgkmcnt(0)")
        e = lambda d: XF + 8*t + 2*d
        for d in range(4): k(f"v_pk_fma_f32 {vr(e(d),2)}, {vr(e(d),2)}, {vr(N1,2)}, {vr(N1,2)} {BC}")
        for d in range(4): k(f"v_pk_fma_f32 {vr(e(d),2)}, {vr(e(d),2)}, {vr(M+2*d,2)}, {vr(M+8+2*d,2)}")
        for d in range(4): k(f"v_cvt_pk_bf16_f32 v{YR+4*t+d}, v{e(d)}, v{e(d)+1}")
        for d in range(4):
            k(f"v_dot2_f32_bf16 v{S1}, v{YR+4*t+d}, v{ONE}, v{S1}")
            k(f"v_dot2_f32_bf16 v{S2}, v{YR+4*t+d}, v{YR+4*t+d}, v{S2}")
    k("s_nop 1")
    reduce16(k, S1, S2)
    ln_finish(k, S1, S2, T + 2, 640)
    k(f"""
    v_cndmask_b32 v{S1}, 0, v{S1}, s[50:51]
    v_cndmask_b32 v{S2}, 0, v{S2}, s[50:51]
    s_mul_i32 s46, s29, 20480
    s_add_u32 s46, s46, s36
    s_add_u32 s47, s46, {L.G_XA - 20480}
    s_lshl_b32 s48, s29, 7
    s_add_u32 s48, s48, s36
    s_add_u32 s48, s48, {L.G_ST3}
    v_lshlrev_b32 v12, 3, v15            ; m*8
    s_lshl_b32 s49, s29, 7
    s_add_u32 s49, s49, s37
    s_lshl_b32 s41, s30, 2
    s_add_u32 s49, s49, s41
    """)
    if E("PROFB0", 0): stamp()
    xid_eval(190)
    TL = MODL
    TL = 112 * 1024
    k(f"""
    s_barrier
    v_and_b32 v9, 7, v4
    v_xor_b32 v9, v15, v9                ; m ^ (c&7)
    v_and_b32 v10, 3, v4
    v_lshl_add_u32 v9, v10, 4, v9
    v_lshrrev_b32 v10, 2, v4
    v_lshl_add_u32 v9, v10, 6, v9
    v_lshlrev_b32 v9, 4, v9
    v_add_u32 v9, {TL}, v9
    """)
    for t in range(5):
        k(f"ds_write_b128 v9, {vr(YR+4*t,4)} offset:{4096*t}")
        k(f"ds_write_b128 v9, {vr(XR+4*t,4)} offset:{20480+4096*t}")
    k(f"""
    v_xor_b32 v9, v4, v3
    v_xor_b32 v10, 4, v9
    v_lshl_add_u32 v9, v3, 4, v9
    v_lshl_add_u32 v10, v3, 4, v10
    s_mul_i32 s41, s30, 5120
    s_add_u32 s41, s41, {TL}
    v_lshl_add_u32 v9, v9, 4, s41
    v_lshl_add_u32 v10, v10, 4, s41
    s_cmp_eq_u32 s30, 1
    s_cselect_b32 s41, 1, 0
    s_cmp_eq_u32 s30, 3
    s_cselect_b32 s41, 1, s41
    s_cmp_eq_u32 s41, 1
    v_mov_b32 v11, v9
    s_cbranch_scc0 {"k2_noswap"}
    v_mov_b32 v9, v10
    v_mov_b32 v10, v11
    """)
    k.lab("k2_noswap")
    k(f"""
    s_mul_i32 s41, s30, 5120
    s_add_u32 s46, s46, s41
    s_add_u32 s47, s47, s41
    s_waitcnt lgkmcnt(0)
    s_barrier
    """)
    for i in range(5):
        k(f"ds_read_b128 {vr(YR+4*i,4)}, v{9 + (i & 1)} offset:{1024*i}")
    XAR = 220
    for i in range(5):
        k(f"ds_read_b128 {vr(XAR+4*i,4)}, v{9 + (i & 1)} offset:{20480+1024*i}")
    k("s_add_u32 s52, s46, 4096")
    k(f"""
    s_sub_u32 s41, s29, 1
    s_cmp_lt_u32 s41, 16
    s_cselect_b32 s20, s47, 0x90000000
    """)
    def xa_block(sc):
        _U.n += 1
        lab = f"k2_noxa{_U.n}"
        k(f"s_sub_u32 s41, s29, 1\ns_cmp_ge_u32 s41, 16\ns_cbranch_scc1 {lab}")
        for i in range(5):
            k(f"s_waitcnt lgkmcnt({4-i})")
            k(f"buffer_store_dwordx4 {vr(XR+4*i,4)}, v2, {WS}, s{47 if i < 4 else 53} offen offset:{(i%4)*1024}{sc}")
        k.lab(lab)
    class _U:
        n = 0
    ls = k.newlab("slow"); lj = k.newlab("sent")
    k("s_cmp_eq_u32 s31, 0"); k(f"s_cbranch_scc1 {ls}")
    for sc in ("", " sc1"):
        dsc = " sc1" if E("MIXED", 0) else sc
        for i in range(5):
            k(f"s_waitcnt lgkmcnt({9-i})")
            k(f"buffer_store_dwordx4 {vr(YR+4*i,4)}, v2, {WS}, s{46 if i < 4 else 52} offen offset:{(i%4)*1024}{dsc}")
        k(f"""
        v_cmp_eq_u32 vcc, 0, v4
        s_and_saveexec_b64 s[50:51], vcc
        buffer_store_dwordx2 {vr(S1,2)}, v12, {WS}, s48 offen{dsc}
        s_mov_b64 exec, -1
        """)
        k(f"""
        s_waitcnt vmcnt(0)
        v_mov_b32 v9, 1
        v_mov_b32 v10, {L.F_B0}
        s_mov_b64 exec, 1
        buffer_store_dword v9, v10, {WS}, s49 offen{sc}
        s_mov_b64 exec, -1
        """)
        if sc == "":
            k(f"s_branch {lj}"); k.lab(ls)
    k.lab(lj)
    k("s_mov_b32 s21, s49")
    stamp()
    i0 = w1.i
    w1.some(99)
    k(f"s_branch {join0}")
    w4_done_b0 = w4.i
    k.lab(nob0)
    k("s_mov_b32 s21, 0")
    k("s_mov_b32 s20, 0x90000000")
    w1.i = 0
    k(f"""
    s_mul_i32 s38, s30, {25*1024}
    s_add_u32 s39, s38, s44
    s_add_u32 s39, s39, {L.W1P}
    """)
    if E("PUBLATE", 0): publish()
    if E("XIDFIRST", 1):
        xid_load(190)
        xid_eval(190)
    small_vectors()
    w1.some(99)
    if not E("XIDFIRST", 1):
        xid_load(190)
        xid_eval(190)
    w4.i = 0
    w4.some(w4_done_b0)
    if E("OUTTLB", 1):
        k(f"""
        s_mul_i32 s47, s28, 327680
        s_lshl_b32 s48, s29, 13
        s_add_u32 s47, s47, s48
        v_mov_b32 v101, 0
        s_mov_b64 exec, 1
        buffer_load_dword v102, v101, {OS}, s47 offen
        s_mov_b64 exec, -1
        """)
        if E("GRPTLB", 0):
            k(f"""
            v_lshlrev_b32 v101, 16, v1
            s_mov_b64 exec, {hex((1 << ((L.GS + 65535) // 65536)) - 1)}
            buffer_load_dword v103, v101, {WS}, s36 offen
            s_mov_b64 exec, -1
            """)
    if E("K2TOUCH", 1):
        lt = k.newlab("nt")
        k(f"""
        s_cmp_eq_u32 s31, 0
        s_cbranch_scc1 {lt}
        s_sub_u32 s47, s29, 18
        s_lshl_b32 s47, s47, 2
        s_add_u32 s47, s47, s30              ; 0..55
        s_mul_i32 s48, s47, {6*1024}
        s_min_u32 s48, s48, {327680 - 6*1024}
        s_mul_i32 s49, s28, 327680
        s_add_u32 s48, s48, s49
        s_add_u32 s48, s48, {L.KVR}
        """)
        for i in range(6):
            k(f"buffer_load_dwordx4 {vr(64+4*i,4)}, v2, {WS}, s48 offen offset:{(i%4)*1024}")
            if i == 3: k("s_add_u32 s48, s48, 4096")
        k(f"""
        s_mul_i32 s48, s47, 384
        s_min_u32 s48, s48, {20480 - 384}
        s_add_u32 s48, s48, s36
        s_add_u32 s48, s48, {L.G_ST1}
        s_mov_b64 exec, 7
        buffer_load_dword v100, v5, {WS}, s48 offen
        s_mov_b64 exec, -1
        """)
        k.lab(lt)
    PFM = E("PFM", 0)
    if PFM:
        k(f"""
        s_sub_u32 s47, s29, 18
        s_lshl_b32 s47, s47, 2
        s_add_u32 s47, s47, s30              ; 0..55
        s_mul_i32 s48, s47, {15*1024}
        s_min_u32 s48, s48, {800*1024 - 15*1024}
        s_add_u32 s48, s48, {L.W2P}
        """)
        for _ in range(E("PFSL", 0)): k("s_sleep 127")
        for i in range(15):
            vq.op(f"buffer_load_dwordx4 {vr(64+4*(i%16),4)}, v2, {WS}, s48 offen offset:{(i%4)*1024}", "pf")
            if i % 4 == 3: k("s_add_u32 s48, s48, 4096")
    if PFM >= 2:
        k(f"""
        s_mul_i32 s48, s47, 15
        s_min_u32 s48, s48, {16*52 - 15}
        s_mul_i32 s49, s48, {65536 // 52 + 1}
        s_lshr_b32 s49, s49, 16
        s_mul_i32 s41, s49, 52
        s_sub_u32 s48, s48, s41
        s_mul_i32 s49, s49, 140
        s_add_u32 s48, s48, s49
        s_lshl_b32 s48, s48, 10
        s_add_u32 s48, s48, {L.W3P}
        """)
        for i in range(15):
            vq.op(f"buffer_load_dwordx4 {vr(128+4*(i%16),4)}, v2, {WS}, s48 offen offset:{(i%4)*1024}", "pf")
            if i % 4 == 3: k("s_add_u32 s48, s48, 4096")
    k.lab(join0)
    vq.reset()
    if STOP == 0:
        finish(); k.lab(end); k("s_endpgm"); return k

    GX, GW, GA, GT = 16, 96, 156, 176
    VC = 12
    XPRE = E("XPRE", 4)
    def gemm5(stage, pos0, inloop, xone, kbar=None):
        def wread(ks, nt):
            slot = (pos0 + ks * 5 + nt) % NSLOT
            o = slot * 1024
            k(f"ds_read_b128 {vr(GW+(ks%3)*20+4*nt,4)}, v{14 + (o >> 16)} offset:{o & 0xffff}")
        for ks in range(2):
            for nt in range(5): wread(ks, nt)
        xn = [XPRE]
        for ks in range(20):
            if E("PROFG1", 0) == stage and ks in (0, 1, 2, 5, 10, 15): stamp()
            vq.wait(f"x{ks}")
            k(f"s_waitcnt lgkmcnt({5 if ks < 19 else 0})")
            if ks == kbar: k("s_barrier")
            for nt in range(5):
                c = "0" if ks == 0 else vr(GA + 4*nt, 4)
                k(f"v_mfma_f32_16x16x32_bf16 {vr(GA+4*nt,4)}, {vr(GW+(ks%3)*20+4*nt,4)}, {vr(GX+4*ks,4)}, {c}")
                if ks + 2 < 20 and nt >= 1:
                    wread(ks + 2, nt - 1)
                    if nt == 4: wread(ks + 2, 4)
                if nt in (0, 3) and xn[0] < 20: xone(xn[0]); xn[0] += 1
                if nt in (1, 4): inloop(ks, nt)
    def lds_bases():
        k("v_mov_b32 v14, v2")
        k("v_add_u32 v15, 0x10000, v2")
    def fix_bank(text): return text.replace("v16 offset", "v11 offset")

    k(f"""
    s_lshl_b32 s46, s32, 2
    s_add_u32 s46, s46, s30              ; rt (0..15)
    s_lshr_b32 s47, s33, 1
    s_and_b32 s48, s47, 1
    s_lshr_b32 s47, s47, 1
    s_add_u32 s47, s47, 1                ; |shift|
    s_sub_u32 s49, 0, s47
    s_cmp_eq_u32 s48, 1
    s_cselect_b32 s47, s47, s49
    s_lshl_b32 s49, s46, 4
    s_add_u32 s49, s49, 16
    s_add_u32 s49, s49, s47
    v_add_u32 v9, s49, v4
    v_lshrrev_b32 v10, 4, v9
    v_mul_u32_u24 v6, 20480, v10
    v_and_b32 v10, 15, v9
    v_lshl_add_u32 v10, v3, 4, v10
    v_lshl_add_u32 v6, v10, 4, v6
    v_lshlrev_b32 v13, 3, v9
    s_add_u32 s49, s46, s48
    s_lshl_b32 s49, s49, 7
    s_add_u32 s49, s49, s37
    v_bfe_u32 v7, v1, 2, 1
    v_lshlrev_b32 v7, 7, v7
    v_and_b32 v9, 3, v1
    v_lshl_add_u32 v7, v9, 2, v7
    """)
    poll(49)
    stamp()
    def xload1(vaddr, sb, i):
        k(f"s_add_u32 s41, s{sb}, {(i//4)*4096}")
        vq.op(f"buffer_load_dwordx4 {vr(GX+4*i,4)}, v{vaddr}, {WS}, s41 offen offset:{(i%4)*1024} sc1", f"x{i}")
    for i in range(XPRE): xload1(6, 36, i)
    k(f"s_add_u32 s41, s36, {L.G_ST3}")
    vq.op(f"buffer_load_dwordx2 {vr(GT,2)}, v13, {WS}, s41 offen sc1", "st")
    k("v_mov_b32 v14, v2")
    k("v_add_u32 v15, 0x10000, v2")
    k("v_add_u32 v11, 0x20000, v2")
    k("s_barrier")
    w2a = Dma(100, 13, 44, L.W2P, 38, 39)
    def l2pf(base, i, per, first_s):
        if i == 0:
            k(f"""
            s_lshl_b32 s{first_s}, s29, 2
            s_add_u32 s{first_s}, s{first_s}, s30
            s_mul_i32 s{first_s}, s{first_s}, {per*128}
            s_add_u32 s{first_s}, s{first_s}, {base}
            """)
        n = min(64, per - 64 * i)
        if n < 64: k(f"s_mov_b64 exec, {hex((1 << n) - 1)}")
        vq.op(f"buffer_load_dword v{232+i}, v5, {WS}, s{first_s} offen", "pf")
        if n < 64: k("s_mov_b64 exec, -1")
        k(f"s_add_u32 s{first_s}, s{first_s}, 8192")
    st1 = {"w2b": None, "xa": 0}
    def g1_in(ks, nt):
        if ks < E("G1W", 8): return
        if st1["xa"] < 5 and nt == 4 and not E("XALATE", 0):
            i = st1["xa"]; st1["xa"] += 1
            k(f"s_add_u32 s41, s20, {1024*i}")
            vq.op(f"buffer_store_dwordx4 {vr(XAR+4*i,4)}, v2, {WS}, s41 offen sc1", "xas")
            return
        if w2a.left(): w2a.one(); return
        if st1["w2b"] is None: st1["w2b"] = Dma(152, 12, 44, L.W2P + 52 * 1024, 38, 39)
        if st1["w2b"].left(): st1["w2b"].one()
    n0 = len(k.L)
    gemm5(1, 0, g1_in, lambda i: xload1(6, 36, i), kbar=9)
    k.L[n0:] = [x.replace("v16 offset", "v11 offset") if "ds_read_b128" in x else x for x in k.L[n0:]]
    stamp()
    k("s_barrier")
    while st1["xa"] < 5:
        i = st1["xa"]; st1["xa"] += 1
        k(f"s_add_u32 s41, s20, {1024*i}")
        vq.op(f"buffer_store_dwordx4 {vr(XAR+4*i,4)}, v2, {WS}, s41 offen sc1", "xas")
    w2a.some(99)
    if st1["w2b"] is None: st1["w2b"] = Dma(152, 12, 44, L.W2P + 52 * 1024, 38, 39)
    st1["w2b"].some(99)
    w3a = Dma(200, 13, 45, 0, 38, 39)
    w3a.some(E("NW3A", 13))
    RS = GT
    CSR = GT + 4
    k(f"""
    v_lshlrev_b32 v9, 4, v3
    v_add_u32 v9, {SMALL}, v9
    v_mov_b32 v{VC}, {fhex(C1)}
    v_mov_b32 v{VC+1}, {fhex(C0)}
    """)
    for nt in range(5):
        k(f"ds_read_b128 {vr(CSR+4*nt,4)}, v9 offset:{64*nt}")
        k(f"ds_read_b128 {vr(CSR+20+4*nt,4)}, v9 offset:{512+64*nt}")
    vq.wait("st")
    TT = CSR + 40
    k("s_waitcnt lgkmcnt(0)")
    for nt in range(5):
        cs = CSR + 4*nt
        for i in (0, 2):
            k(f"v_pk_add_f32 {vr(cs+i,2)}, {vr(cs+i,2)}, {vr(cs+20+i,2)}")
    ln_gelu_multi(k, vr, [(GA + 4*nt, CSR + 4*nt, RS) for nt in range(5)], CSR + 20, VC)
    g1pk, prs = pack_tiles(k, [GA + 4*nt for nt in range(5)])
    swap_pairs(k, prs)
    k(f"""
    s_mov_b32 s46, s22
    s_lshl_b32 s41, s33, 2
    s_add_u32 s49, s55, s41              ; + j*4
    """)
    def tile_stores(lst, sb):
        return [(f"buffer_store_dwordx4 {vr(r,4)}, v254, {WS}, s{sb} offen offset:{512*i}" if n == 4 else f"buffer_store_dwordx2 {vr(r,2)}, v8, {WS}, s{sb} offen offset:{512*i}") for r, n, i in lst]
    stores(tile_stores(g1pk, 46), 49, L.F_G1)
    lxa = k.newlab("xas"); lxb = k.newlab("xas"); lxc = k.newlab("xas")
    k(f"""
    s_cmp_eq_u32 s21, 0
    s_cbranch_scc1 {lxc}
    v_mov_b32 v9, 3
    v_mov_b32 v10, {L.F_B0}
    s_mov_b64 exec, 1
    s_cmp_eq_u32 s31, 0
    s_cbranch_scc1 {lxa}
    buffer_store_dword v9, v10, {WS}, s21 offen
    s_branch {lxb}
    """)
    k.lab(lxa)
    k(f"buffer_store_dword v9, v10, {WS}, s21 offen sc1")
    k.lab(lxb)
    k("s_mov_b64 exec, -1")
    k.lab(lxc)
    stamp()
    if STOP == 1:
        finish(); k.lab(end); k("s_endpgm"); return k

    k(f"""
    s_sub_u32 s41, s55, s37
    s_lshr_b32 s41, s41, 7               ; rt
    v_bfe_u32 v7, v1, 3, 2               ; 0..3
    v_min_u32 v7, 2, v7
    v_add_u32 v7, s41, v7
    v_subrev_u32 v7, 1, v7
    v_max_i32 v7, 0, v7
    v_min_i32 v7, 15, v7
    v_lshlrev_b32 v7, 7, v7
    v_and_b32 v9, 7, v1
    v_lshl_add_u32 v7, v9, 2, v7
    s_add_u32 s49, s37, {L.F_G1}
    """)
    poll(49)
    stamp()
    k(f"""
    s_mul_i32 s41, s33, 2560
    s_sub_u32 s47, s22, s41
    """)
    k("s_mov_b32 s52, s47")
    for i in range(XPRE): xload1(2, 52, i)
    HBR = GT
    k(f"s_add_u32 s41, s54, {L.G_HBX + 20480}")
    def pair_loads(reg, sb, tag):
        vq.op(f"buffer_load_dwordx4 {vr(reg,4)}, v254, {WS}, s{sb} offen sc1", tag)
        vq.op(f"buffer_load_dwordx4 {vr(reg+4,4)}, v254, {WS}, s{sb} offen offset:1024 sc1", tag)
        vq.op(f"buffer_load_dwordx2 {vr(reg+8,2)}, v8, {WS}, s{sb} offen offset:2048 sc1", tag)
    def pair_src(reg, nt):
        return reg + (nt // 2) * 4 + (nt % 2) * 2
    HB_S = 48
    k("s_mov_b32 s48, s41")
    k(f"""
    s_sub_u32 s41, s55, s37              ; rt*128
    s_lshl_b32 s41, s41, 3               ; rt*1024
    s_add_u32 s46, s41, s36
    s_add_u32 s46, s46, {L.G_ST1}
    """)
    k("s_barrier")
    st2 = {"w3b": None, "hb": False}
    def g2_in(ks, nt):
        if ks < E("G2W", 8): return
        if not st2["hb"]:
            st2["hb"] = True; pair_loads(HBR, 48, "hb"); return
        if w3a.left(): w3a.one(); return
        if ks < 10: return
        if st2["w3b"] is None: st2["w3b"] = Dma(252, 12, 45, 52 * 1024, 38, 39)
        if st2["w3b"].left(): st2["w3b"].one()
    n0 = len(k.L)
    gemm5(2, 100, g2_in, lambda i: xload1(2, 52, i), kbar=9)
    k.L[n0:] = [x.replace("v16 offset", "v11 offset") if "ds_read_b128" in x else x for x in k.L[n0:]]
    stamp()
    k("s_barrier")
    w3a.some(99)
    if st2["w3b"] is None: st2["w3b"] = Dma(252, 12, 45, 52 * 1024, 38, 39)
    st2["w3b"].some(99)
    w3c = Dma(300, 1, 45, 100 * 1024, 38, 39)
    w3c.some(99)
    w3d = Dma(304, 9, 45, 104 * 1024, 38, 39)
    w3d.some(99)
    TT = GT + 12; ONE = GT + 20; A1 = GT + 22
    k(f"""
    v_mov_b32 v{ONE}, 0x3f803f80
    v_mov_b32 v{A1}, 0
    v_mov_b32 v{A1+1}, 0
    """)
    vq.wait("hb")
    swap_pairs(k, [HBR, HBR + 4])
    k("s_nop 1")
    U = GT + 24
    for nt in range(5):
        p = pair_src(HBR, nt)
        k.unpack(U + 4*nt, U + 4*nt + 1, p); k.unpack(U + 4*nt + 2, U + 4*nt + 3, p + 1)
    for nt in range(5):
        z = GA + 4*nt
        for i in (0, 2):
            k(f"v_pk_add_f32 {vr(z+i,2)}, {vr(z+i,2)}, {vr(U+4*nt+i,2)}")
    g2pk, prs = pack_tiles(k, [GA + 4*nt for nt in range(5)])
    for r, n, i in g2pk:
        for q_ in range(n):
            k(f"v_dot2_f32_bf16 v{A1}, v{r+q_}, v{ONE}, v{A1}")
            k(f"v_dot2_f32_bf16 v{A1+1}, v{r+q_}, v{r+q_}, v{A1+1}")
    k("s_nop 1")
    swap_pairs(k, prs)
    k("s_nop 2")
    reduce_g(k, A1, A1 + 1, TT)
    k(f"""
    s_add_u32 s47, s54, {L.G_X1}
    v_lshlrev_b32 v9, 6, v4              ; m*64
    s_lshl_b32 s41, s33, 3
    s_add_u32 s46, s46, s41
    s_lshl_b32 s41, s33, 2
    s_add_u32 s49, s55, s41
    v_mov_b32 v11, v9
    """)
    st = tile_stores(g2pk, 47)
    st.append(f"s_mov_b64 exec, 0xffff\nbuffer_store_dwordx2 {vr(A1,2)}, v11, {WS}, s46 offen\ns_mov_b64 exec, -1")
    stores(st, 49, L.F_G2)
    stamp()
    if STOP == 2:
        finish(); k.lab(end); k("s_endpgm"); return k

    A3, X3, W3, T3 = 16, 72, 160, 216
    XD = 11
    k(f"""
    s_lshl_b32 s46, s34, 3
    s_lshl_b32 s47, s30, 1
    s_add_u32 s46, s46, s47              ; rt0 = 8c + 2w
    s_lshl_b32 s49, s46, 7
    s_add_u32 s49, s49, {L.F_G2}
    v_bfe_u32 v7, v1, 3, 1
    v_lshlrev_b32 v7, 7, v7
    v_and_b32 v9, 7, v1
    v_lshl_add_u32 v7, v9, 2, v7
    v_add_u32 v7, s49, v7
    s_sub_u32 s49, s55, s37
    s_add_u32 s49, s49, {128 + L.F_B0}
    v_and_b32 v9, 3, v1
    v_lshlrev_b32 v9, 2, v9
    v_add_u32 v9, s49, v9                ; xa flags (value 3) of this wave's output tile
    v_and_b32 v10, 16, v1
    v_cmp_ne_u32 vcc, 0, v10
    v_mov_b32 v11, 1
    v_mov_b32 v10, 3
    v_cndmask_b32 v7, v7, v9, vcc
    v_cndmask_b32 v10, v11, v10, vcc
    """)
    poll(37, 10)
    stamp()
    k(f"""
    s_mul_i32 s47, s46, 20480
    s_add_u32 s47, s47, s36
    s_add_u32 s47, s47, {L.G_X1}
    s_add_u32 s48, s47, 20480
    """)
    def x3load(ks):
        for rt in range(2):
            k(f"s_add_u32 s41, s{47+rt}, {(ks//4)*4096}")
            vq.op(f"buffer_load_dwordx4 {vr(X3+((ks%XD)*2+rt)*4,4)}, v2, {WS}, s41 offen offset:{(ks%4)*1024} sc1", f"x{ks}")
    X3PRE = E("X3PRE", 3)
    for ks in range(X3PRE): x3load(ks)
    SP = T3
    k(f"""
    v_lshlrev_b32 v9, 6, v4
    v_lshl_add_u32 v9, v3, 4, v9
    s_lshl_b32 s41, s46, 10
    s_add_u32 s41, s41, s36
    s_add_u32 s41, s41, {L.G_ST1}
    """)
    for rt in range(2):
        vq.op(f"buffer_load_dwordx4 {vr(SP+4*rt,4)}, v9, {WS}, s41 offen offset:{1024*rt} sc1", "st")
    x3n = [X3PRE]
    k(f"""
    s_mul_i32 s52, s46, 55296
    s_mul_i32 s41, s35, 3584
    s_add_u32 s52, s52, s41
    s_add_u32 s52, s52, s36
    s_add_u32 s52, s52, {L.G_H3}
    s_add_u32 s53, s52, 55296
    """)
    EP = 228
    def g3_extra(ks):
        if ks in (10, 11) and not E("H3SC1", 1):
            k("s_mov_b64 exec, 0xfffffff")
            touch(52 + ks - 10, 248)
            k("s_mov_b64 exec, -1")
        if ks in (13, 14):
            off = L.G_XA if ks == 13 else L.G_X1
            k(f"s_add_u32 s48, s54, {off}")
            pair_loads(EP + (ks - 13) * 10, 48, "ep")
    k("s_barrier")
    def w3read(ks, nt):
        slot = (200 + ks * 7 + nt) % NSLOT
        o = slot * 1024
        a = {0: 14, 1: 15, 2: 11}[o >> 16]
        k(f"ds_read_b128 {vr(W3+(ks&1)*28+4*nt,4)}, v{a} offset:{o & 0xffff}")
    k("v_add_u32 v11, 0x20000, v2")
    RS3 = T3 + 8
    n0_ = len(k.L)
    for rt in range(2):
        s_ = SP + 4*rt
        k(f"v_add_f32 v{RS3+2*rt}, v{s_}, v{s_+2}")
        k(f"v_add_f32 v{RS3+2*rt+1}, v{s_+1}, v{s_+3}")
        reduce_g(k, RS3 + 2*rt, RS3 + 2*rt + 1, SP)
        ln_finish(k, RS3 + 2*rt, RS3 + 2*rt + 1, SP, 640)
    stat_ops = k.L[n0_:]; del k.L[n0_:]
    for nt in range(7): w3read(0, nt)
    for ks in range(20):
        assert x3n[0] > ks
        if not E("NOXW", 0): vq.wait(f"x{ks}")
        if E("PROFG3", 0) and ks in (1, 2, 5, 10, 15): stamp()
        for nt in range(7):
            if not E("NOLW", 0): k(f"s_waitcnt lgkmcnt({6 if ks < 19 else 6 - nt})")
            for rt in range(2):
                a = A3 + (rt*7 + nt) * 4
                c = "0" if ks == 0 else vr(a, 4)
                k(f"v_mfma_f32_16x16x32_bf16 {vr(a,4)}, {vr(W3+(ks&1)*28+4*nt,4)}, {vr(X3+((ks%XD)*2+rt)*4,4)}, {c}")
            if ks < 19 and not E("NODS", 0): w3read(ks + 1, nt)
            if nt in (1, 4) and x3n[0] < 20 and x3n[0] < ks + min(XD, E("X3D", 8)) and (nt == 1 or x3n[0] < ks + E("X3D", 8) - 1):
                x3load(x3n[0]); x3n[0] += 1
            if nt in (2, 3, 5) and ks >= E("W4K0", 1) and w4.left(): w4.one()
            if nt == 6 and ks >= E("W4K1", 12) and w4.left(): w4.one()
            if nt == 6: g3_extra(ks)
            if ks >= 5:
                for _ in range(2):
                    if stat_ops: k.L.append(stat_ops.pop(0))
    stamp()
    assert not stat_ops
    CS3 = X3
    TT = W3
    k(f"""
    v_lshlrev_b32 v9, 4, v3
    v_add_u32 v9, {SMALL + 1024}, v9
    v_mov_b32 v{VC}, {fhex(C1)}
    v_mov_b32 v{VC+1}, {fhex(C0)}
    """)
    for nt in range(7):
        k(f"ds_read_b128 {vr(CS3+4*nt,4)}, v9 offset:{64*nt}")
        k(f"ds_read_b128 {vr(CS3+28+4*nt,4)}, v9 offset:{512+64*nt}")
    k("s_waitcnt lgkmcnt(0)")
    for nt in range(7):
        cs = CS3 + 4*nt
        for i in (0, 2):
            k(f"v_pk_add_f32 {vr(cs+i,2)}, {vr(cs+i,2)}, {vr(cs+28+i,2)}")
    k(f"""
    s_lshl_b32 s49, s34, 2
    s_add_u32 s49, s49, s30
    s_lshl_b32 s49, s49, 7
    s_add_u32 s49, s49, s37
    s_lshl_b32 s41, s35, 2
    s_add_u32 s49, s49, s41
    """)
    def st_variants(emit):
        if E("MIXED", 0) or E("H3SC1", 1):
            emit(" sc1"); return
        ls = k.newlab("slow"); lj = k.newlab("sent")
        k("s_cmp_eq_u32 s31, 0"); k(f"s_cbranch_scc1 {ls}")
        emit(""); k(f"s_branch {lj}"); k.lab(ls); emit(" sc1"); k.lab(lj)
    for gi, n0_ in enumerate(range(0, 7, 2)):
        nts = list(range(n0_, min(n0_ + 2, 7)))
        tl = [(A3 + (rt*7 + nt) * 4, CS3 + 4*nt, RS3 + 2*rt) for nt in nts for rt in range(2)]
        ln_gelu_multi(k, vr, tl, TT, VC)
        pks = []
        prs_all = []
        for rt in range(2):
            pk, prs = pack_tiles(k, [A3 + (rt*7 + nt) * 4 for nt in nts])
            pks.append(pk[0]); prs_all += prs
        if prs_all: swap_pairs(k, prs_all)
        done = k.newlab("gs")
        if gi >= 2:
            k("s_cmp_eq_u32 s35, 15"); k(f"s_cbranch_scc1 {done}")
        if gi == 1:
            k("s_cmp_eq_u32 s35, 15")
            k("s_cselect_b32 s46, 0xffff, -1")
            k("s_mov_b32 exec_lo, s46"); k("s_mov_b32 exec_hi, s46")
        def emit(sc, pks=pks, n0_=n0_):
            for rt in range(2):
                r, n, i = pks[rt]
                if n == 4: k(f"buffer_store_dwordx4 {vr(r,4)}, v254, {WS}, s{52+rt} offen offset:{512*n0_}{sc}")
                else: k(f"buffer_store_dwordx2 {vr(r,2)}, v8, {WS}, s{52+rt} offen offset:{512*n0_}{sc}")
        st_variants(emit)
        if gi == 1: k("s_mov_b64 exec, -1")
        k.lab(done)
        if gi == 0: w4.some(99)
    ls = k.newlab("slow"); lj = k.newlab("sent")
    k(f"""
    s_waitcnt vmcnt(0)
    v_mov_b32 v9, 1
    v_mov_b32 v10, {L.F_G3}
    s_mov_b64 exec, 1
    s_cmp_eq_u32 s31, 0
    s_cbranch_scc1 {ls}
    buffer_store_dword v9, v10, {WS}, s49 offen
    s_branch {lj}
    """)
    k.lab(ls)
    k(f"buffer_store_dword v9, v10, {WS}, s49 offen sc1")
    k.lab(lj)
    k("s_mov_b64 exec, -1")
    vq.reset()
    stamp()
    if STOP == 3:
        finish(); k.lab(end); k("s_endpgm"); return k

    A4, X4, WX, T4 = 16, 96, 192, 216
    XD4 = 6
    for i in range(6):
        vq.op(f"buffer_load_dwordx4 {vr(WX+4*i,4)}, v2, {WS}, s40 offen offset:{(i%4)*1024}", "wx")
        if i == 3: k("s_add_u32 s40, s40, 4096")
    k(f"""
    s_and_b32 s41, s32, 1
    s_lshl_b32 s41, s41, 1
    s_lshl_b32 s49, s34, 2
    s_add_u32 s49, s49, s41
    s_lshl_b32 s49, s49, 7
    s_add_u32 s49, s49, s37
    s_lshl_b32 s41, s30, 4
    s_add_u32 s49, s49, s41              ; + 4w flags
    s_add_u32 s49, s49, {L.F_G3}
    v_bfe_u32 v7, v1, 2, 1
    v_lshlrev_b32 v7, 7, v7
    v_and_b32 v9, 3, v1
    v_lshl_add_u32 v7, v9, 2, v7
    """)
    for i in range(4):
        k(f"""
        s_add_u32 s41, s30, {i}
        s_and_b32 s41, s41, 3
        s_lshl_b32 s46, s32, 2
        s_add_u32 s41, s41, s46
        s_mul_i32 s41, s41, 55296
        s_mul_i32 s46, s30, {14*1024}
        s_add_u32 s41, s41, s46
        s_add_u32 s41, s41, s36
        s_add_u32 s{50+i}, s41, {L.G_H3}
        """)
    poll(49)
    stamp()
    def x4load(ks, guard=False):
        for i in range(4):
            k(f"s_add_u32 s41, s{50+i}, {(ks//4)*4096}")
            vq.op(f"buffer_load_dwordx4 {vr(X4+((ks%XD4)*4+i)*4,4)}, v2, {WS}, s41 offen offset:{(ks%4)*1024} sc1", f"x{ks}")
    def x4one(ks, i):
        k(f"s_add_u32 s41, s{50+i}, {(ks//4)*4096}")
        vq.op(f"buffer_load_dwordx4 {vr(X4+((ks%XD4)*4+i)*4,4)}, v2, {WS}, s41 offen offset:{(ks%4)*1024} sc1", f"x{ks}")
    X4PRE = E("X4PRE", 2)
    for ks in range(X4PRE): x4load(ks)
    x4q = [(ks, i) for ks in range(X4PRE, 14) for i in range(4)]
    skip = k.newlab("k4skip")
    def wfrag(idx): return ar(4*idx, 4) if idx < 64 else vr(WX + 4*(idx - 64), 4)
    for ks in range(14):
        if ks == 12:
            k("s_cmp_eq_u32 s30, 3"); k(f"s_cbranch_scc1 {skip}")
        assert not any(q[0] <= ks for q in x4q)
        vq.wait(f"x{ks}")
        for nt in range(5):
            for i in range(4):
                a = A4 + (i*5 + nt) * 4
                c = "0" if ks == 0 else vr(a, 4)
                k(f"v_mfma_f32_16x16x32_bf16 {vr(a,4)}, {wfrag(ks*5+nt)}, {vr(X4+((ks%XD4)*4+i)*4,4)}, {c}")
            for _ in range(2 if (nt in (1, 3) and x4q and x4q[0][0] < ks + E("X4D", 4)) else 1):
                if x4q and x4q[0][0] - XD4 < ks and (nt >= 1 or x4q[0][0] - XD4 < ks - 1):
                    x4one(*x4q.pop(0))
    k.lab(skip)
    stamp()
    k(f"""
    s_waitcnt vmcnt(0)
    s_barrier
    """)
    for i in range(1, 4):
        k(f"""
        s_add_u32 s41, s30, {i}
        s_and_b32 s41, s41, 3
        s_mul_i32 s41, s41, {15*1024}
        s_add_u32 s41, s41, {(i-1)*5*1024}
        v_add_u32 v{9}, s41, v2
        """)
        for nt in range(5):
            k(f"ds_write_b128 v9, {vr(A4+(i*5+nt)*4,4)} offset:{1024*nt}")
    GB = X4
    PB = X4 + 20
    k(f"""
    v_lshlrev_b32 v10, 4, v3
    v_add_u32 v10, {SMALL + 2048}, v10
    """)
    for nt in range(5):
        k(f"ds_read_b128 {vr(GB+4*nt,4)}, v10 offset:{64*nt}")
    k(f"""
    s_mul_i32 s41, s30, {15*1024}
    v_add_u32 v9, s41, v2
    s_waitcnt lgkmcnt(0)
    s_barrier
    """)
    for i in range(15):
        k(f"ds_read_b128 {vr(PB+4*i,4)}, v9 offset:{1024*i}")
    k(f"""
    s_lshl_b32 s46, s32, 2
    s_add_u32 s46, s46, s30
    s_lshl_b32 s46, s46, 4
    s_lshl_b32 s47, s28, 8
    s_add_u32 s46, s46, s47
    v_add_u32 v10, s46, v4
    v_mul_u32_u24 v10, 1280, v10
    v_lshl_add_u32 v10, v3, 3, v10
    s_mul_i32 s47, s33, 160
    """)
    TT = 248
    swap_pairs(k, [EP, EP + 4, EP + 10, EP + 14])
    k("s_waitcnt lgkmcnt(0)")
    for s_ in range(3):
        for nt in range(5):
            z = A4 + 4*nt
            for i in (0, 2):
                k(f"v_pk_add_f32 {vr(z+i,2)}, {vr(z+i,2)}, {vr(PB+(s_*5+nt)*4+i,2)}")
    U = PB
    for nt in range(5):
        p = pair_src(EP + 10, nt)
        k.unpack(U + 4*nt, U + 4*nt + 1, p); k.unpack(U + 4*nt + 2, U + 4*nt + 3, p + 1)
        p = pair_src(EP, nt)
        k.unpack(U + 20 + 4*nt, U + 20 + 4*nt + 1, p); k.unpack(U + 20 + 4*nt + 2, U + 20 + 4*nt + 3, p + 1)
    for nt in range(5):
        z = A4 + 4*nt
        for i in (0, 2):
            k(f"v_pk_add_f32 {vr(z+i,2)}, {vr(z+i,2)}, {vr(U+4*nt+i,2)}")
    for nt in range(5):
        z = A4 + 4*nt
        for i in (0, 2):
            k(f"v_pk_fma_f32 {vr(z+i,2)}, {vr(z+i,2)}, {vr(GB+4*nt+i,2)}, {vr(U+20+4*nt+i,2)}")
    g4pk, prs = pack_tiles(k, [A4 + 4*nt for nt in range(5)])
    swap_pairs(k, prs)
    k("""
    v_and_b32 v9, 1, v3
    v_lshlrev_b32 v9, 5, v9
    v_lshrrev_b32 v11, 1, v3
    v_lshl_add_u32 v9, v11, 4, v9
    v_lshlrev_b32 v11, 3, v3
    v_sub_u32 v11, v10, v11
    v_add_u32 v11, v11, v9
    """)
    osc = " sc1" if E("OUTSC1", 0) else ""
    for r, n, i in g4pk:
        if n == 4: k(f"buffer_store_dwordx4 {vr(r,4)}, v11, {OS}, s47 offen offset:{32*i}{osc}")
        else: k(f"buffer_store_dwordx2 {vr(r,2)}, v10, {OS}, s47 offen offset:{32*i}{osc}")
    stamp()
    finish()
    k.lab(end)
    k("s_endpgm")
    return k

def kernels(Kern, vr):
    return [gen_chain(Kern, vr)]
```

```python
import os, struct
import layout as L
SZ_SD = 2048 * 640 * 2
C0 = -2.0 * 0.7978845608028654 * 1.4426950408889634
C1 = C0 * 0.044715
def fhex(x):
    return "0x%08x" % struct.unpack("<I", struct.pack("<f", x))[0]
E = lambda n, d: int(os.environ.get(n, d))
STOP = E("STOP", 9)
PROF = E("PROF", 0)
NSLOT = 152
SMALL = NSLOT * 1024
YL = 132 * 1024
MODL = 116 * 1024

def ln_finish(k, s1, s2, t, n):
    k(f"""
    v_mul_f32 v{s1}, {fhex(1.0/n)}, v{s1}
    v_mul_f32 v{s2}, {fhex(1.0/n)}, v{s2}
    v_fma_f32 v{s2}, -v{s1}, v{s1}, v{s2}
    v_max_f32 v{s2}, 0, v{s2}
    """)
    k.round2(s1, s2, t)
    k(f"""
    v_add_f32 v{s2}, {fhex(1e-5)}, v{s2}
    v_cvt_pk_bf16_f32 v{t}, v{s2}, v{s2}
    v_lshlrev_b32 v{s2}, 16, v{t}
    v_sqrt_f32 v{s2}, v{s2}
    s_nop 0
    v_cvt_pk_bf16_f32 v{t}, v{s2}, v{s2}
    v_lshlrev_b32 v{s2}, 16, v{t}
    v_rcp_f32 v{s2}, v{s2}
    s_nop 0
    v_mul_f32 v{s1}, v{s1}, v{s2}
    v_sub_f32 v{s1}, 0, v{s1}
    """)

def reduce16(k, a, b):
    for ctl in ("quad_perm:[1,0,3,2]", "quad_perm:[2,3,0,1]", "row_half_mirror", "row_mirror"):
        k("s_nop 0")
        k(f"v_add_f32_dpp v{a}, v{a}, v{a} {ctl} row_mask:0xf bank_mask:0xf")
        k(f"v_add_f32_dpp v{b}, v{b}, v{b} {ctl} row_mask:0xf bank_mask:0xf")

def reduce_g(k, a, b, t):
    for sw in ("v_permlane32_swap_b32", "v_permlane16_swap_b32"):
        k(f"""
        v_mov_b32 v{t}, v{a}
        v_mov_b32 v{t+1}, v{b}
        s_nop 1
        {sw} v{t}, v{a}
        {sw} v{t+1}, v{b}
        s_nop 0
        v_add_f32 v{a}, v{a}, v{t}
        v_add_f32 v{b}, v{b}, v{t+1}
        """)

def gelu4pk(k, vr, z, t, vc):
    for i in (0, 2):
        k(f"v_pk_mul_f32 {vr(t+i,2)}, {vr(z+i,2)}, {vr(z+i,2)}")
    for i in (0, 2):
        k(f"v_pk_fma_f32 {vr(t+i,2)}, {vr(t+i,2)}, {vr(vc,2)}, {vr(vc,2)} op_sel:[0,0,1] op_sel_hi:[1,0,1]")
    for i in (0, 2):
        k(f"v_pk_mul_f32 {vr(t+i,2)}, {vr(t+i,2)}, {vr(z+i,2)}")
    for i in range(4):
        k(f"v_exp_f32 v{t+i}, v{t+i}")
    for i in range(4):
        k(f"v_add_f32 v{t+i}, 1.0, v{t+i}")
    for i in range(4):
        k(f"v_rcp_f32 v{t+i}, v{t+i}")
    k("s_nop 0")
    for i in (0, 2):
        k(f"v_pk_mul_f32 {vr(z+i,2)}, {vr(z+i,2)}, {vr(t+i,2)}")

def ln_gelu_multi(k, vr, tiles, t, vc):
    n = len(tiles)
    T = lambda i: t + 4 * i
    for i, (z, cs, rs) in enumerate(tiles):
        for h in (0, 2):
            k(f"v_pk_mul_f32 {vr(T(i)+h,2)}, {vr(cs+h,2)}, {vr(rs,2)} op_sel_hi:[1,0]")
    for i, (z, cs, rs) in enumerate(tiles):
        for h in (0, 2):
            k(f"v_pk_fma_f32 {vr(z+h,2)}, {vr(z+h,2)}, {vr(rs,2)}, {vr(T(i)+h,2)} op_sel:[0,1,0] op_sel_hi:[1,1,1]")
    for i, (z, cs, rs) in enumerate(tiles):
        for h in (0, 2):
            k(f"v_pk_mul_f32 {vr(T(i)+h,2)}, {vr(z+h,2)}, {vr(z+h,2)}")
    for i, (z, cs, rs) in enumerate(tiles):
        for h in (0, 2):
            k(f"v_pk_fma_f32 {vr(T(i)+h,2)}, {vr(T(i)+h,2)}, {vr(vc,2)}, {vr(vc,2)} op_sel:[0,0,1] op_sel_hi:[1,0,1]")
    for i, (z, cs, rs) in enumerate(tiles):
        for h in (0, 2):
            k(f"v_pk_mul_f32 {vr(T(i)+h,2)}, {vr(T(i)+h,2)}, {vr(z+h,2)}")
    for i in range(n):
        for r in range(4): k(f"v_exp_f32 v{T(i)+r}, v{T(i)+r}")
    for i in range(n):
        for h in (0, 2): k(f"v_pk_add_f32 {vr(T(i)+h,2)}, {vr(T(i)+h,2)}, 1.0 op_sel_hi:[1,0]")
    for i in range(n):
        for r in range(4): k(f"v_rcp_f32 v{T(i)+r}, v{T(i)+r}")
    k("s_nop 0")
    for i, (z, cs, rs) in enumerate(tiles):
        for h in (0, 2):
            k(f"v_pk_mul_f32 {vr(z+h,2)}, {vr(z+h,2)}, {vr(T(i)+h,2)}")

def pack_tiles(k, zs):
    out = []
    i = 0
    prs = []
    while i < len(zs):
        if i + 1 < len(zs):
            a, b = zs[i], zs[i + 1]
            k(f"v_cvt_pk_bf16_f32 v{a}, v{a}, v{a+1}")
            k(f"v_cvt_pk_bf16_f32 v{a+1}, v{a+2}, v{a+3}")
            k(f"v_cvt_pk_bf16_f32 v{a+2}, v{b}, v{b+1}")
            k(f"v_cvt_pk_bf16_f32 v{a+3}, v{b+2}, v{b+3}")
            prs.append(a); out.append((a, 4, i)); i += 2
        else:
            a = zs[i]
            k(f"v_cvt_pk_bf16_f32 v{a}, v{a}, v{a+1}")
            k(f"v_cvt_pk_bf16_f32 v{a+1}, v{a+2}, v{a+3}")
            out.append((a, 2, i)); i += 1
    return out, prs

def swap_pairs(k, prs):
    k("s_nop 1")
    for a in prs:
        k(f"v_permlane16_swap_b32 v{a}, v{a+2}")
        k(f"v_permlane16_swap_b32 v{a+1}, v{a+3}")

class VQ:
    def __init__(self, k): self.k = k; self.q = []
    def op(self, text, tag=None):
        self.k(text); self.q.append(tag)
    def wait(self, tag):
        idx = [i for i, t in enumerate(self.q) if t == tag]
        if not idx: return
        n = len(self.q) - 1 - idx[-1]
        self.k(f"s_waitcnt vmcnt({min(n, 63)})")
        self.q = self.q[idx[-1] + 1:] if n <= 63 else self.q[-63:]
    def drain(self):
        self.k("s_waitcnt vmcnt(0)"); self.q = []
    def reset(self): self.q = []

def gen_chain(Kern, vr):
    k = Kern("k2_kernel", 256, 256, 163840, vgpr=256, sgpr=102, agpr=256)
    ar = lambda a, n: f"a[{a}:{a+n-1}]"
    vq = VQ(k)
    end = "k2_end"
    WS, QS, YS, OS = "s[12:15]", "s[16:19]", "s[20:23]", "s[24:27]"
    nst = [0]
    def stamp():
        if PROF:
            i = nst[0]; nst[0] += 1
            if PROF == 3:
                k(f"s_memtime s[{56+2*i}:{57+2*i}]"); nst[0] += 1
                k(f"s_memrealtime s[{58+2*i}:{59+2*i}]")
            else:
                k(f"{'s_memrealtime' if PROF == 2 else 's_memtime'} s[{56+2*i}:{57+2*i}]")
    def finish(label_end=True):
        k("s_waitcnt vmcnt(0) lgkmcnt(0)")
        if PROF == 2:
            k(f"""
            s_lshl_b32 s41, s2, 2
            s_add_u32 s41, s41, s30
            s_lshl_b32 s41, s41, 7
            s_add_u32 s41, s41, {48 << 20}
            v_mov_b32 v1, 0
            s_mov_b64 exec, 1
            """)
            for i in range(nst[0]):
                k(f"v_mov_b32 v2, s{56+2*i}")
                k(f"buffer_store_dword v2, v1, {WS}, s41 offen offset:{4*i}")
            k(f"v_mov_b32 v2, {nst[0]}")
            k(f"buffer_store_dword v2, v1, {WS}, s41 offen offset:124")
        elif PROF:
            l = k.newlab("prof")
            k(f"""
            s_cmp_lg_u32 s2, {E("PROFWG", 0)}
            s_cbranch_scc1 {l}
            s_cmp_lg_u32 s30, {E("PROFW", 0)}
            s_cbranch_scc1 {l}
            s_load_dwordx2 s[4:5], s[0:1], 112
            s_waitcnt lgkmcnt(0)
            s_mov_b32 s6, 256
            s_mov_b32 s7, 0x00020000
            v_mov_b32 v1, 0
            s_mov_b64 exec, 1
            """)
            for i in range(1, nst[0]):
                k(f"s_sub_u32 s41, s{56+2*i}, s{56 + (2 if (PROF == 3 and i % 2) else 0)}")
                k(f"v_mov_b32 v2, s41")
                k(f"buffer_store_dword v2, v1, s[4:7], 0 offen offset:{4*(i-1)}")
            k.lab(l)
        k("s_endpgm")

    k(f"""
    s_cmp_ge_u32 s2, 256
    s_cbranch_scc1 {end}
    s_load_dwordx2 s[4:5], s[0:1], 0
    s_load_dwordx2 s[6:7], s[0:1], 104
    s_load_dwordx2 s[8:9], s[0:1], 120
    s_getreg_b32 s42, hwreg(HW_REG_XCC_ID, 0, 4)
    v_lshrrev_b32 v2, 6, v0
    v_and_b32 v1, 63, v0
    v_readfirstlane_b32 s30, v2          ; wave
    s_and_b32 s28, s2, 7                 ; group
    s_lshr_b32 s29, s2, 3                ; member
    s_lshr_b32 s32, s29, 3
    s_and_b32 s33, s29, 7                ; j
    s_lshr_b32 s34, s29, 4
    s_and_b32 s35, s29, 15               ; j3
    s_mul_i32 s36, s28, {L.GS}
    s_add_u32 s36, s36, {L.GRP}
    s_lshl_b32 s37, s28, 13
    s_add_u32 s37, s37, {L.FLAGS}
    s_add_u32 s42, s42, 1
    s_mov_b32 s31, 0
    v_lshlrev_b32 v2, 4, v1              ; lane*16
    v_lshrrev_b32 v3, 4, v1              ; g
    v_and_b32 v4, 15, v1                 ; m
    v_lshrrev_b32 v8, 1, v3
    v_lshl_add_u32 v8, v8, 4, v4
    v_and_b32 v9, 1, v3
    v_lshl_add_u32 v8, v8, 1, v9
    v_lshlrev_b32 v8, 3, v8
    v_lshlrev_b32 v5, 7, v1
    v_and_b32 v9, 1, v3
    v_lshlrev_b32 v9, 1, v9
    v_lshrrev_b32 v10, 1, v3
    v_or_b32 v9, v9, v10
    v_lshlrev_b32 v9, 8, v9
    v_lshl_add_u32 v254, v4, 4, v9
    s_waitcnt lgkmcnt(0)
    """)
    stamp()
    k.srd(12, 8, 0x10000000); k.srd(16, 4, SZ_SD); k.srd(24, 6, SZ_SD)
    def publish():
        l = k.newlab()
        k(f"""
        s_cmp_lg_u32 s30, 0
        s_cbranch_scc1 {l}
        s_lshl_b32 s41, s29, 2
        s_add_u32 s41, s41, s37
        v_mov_b32 v9, s42
        v_mov_b32 v10, {L.F_XID}
        s_mov_b64 exec, 1
        buffer_store_dword v9, v10, {WS}, s41 offen sc1
        s_mov_b64 exec, -1
        """)
        k.lab(l)
    if not E("PUBLATE", 0) and not E("NOXID", 0): publish()
    class Dma:
        def __init__(self, p0, n, srcbase_s, srcoff, sm, so):
            self.i = 0; self.n = n; self.sm = sm; self.so = so
            slot0 = p0 % NSLOT
            assert slot0 + 4 * n <= NSLOT
            k(f"""
            s_mul_i32 s{sm}, s30, {n*1024}
            s_add_u32 s{so}, s{sm}, s{srcbase_s}
            s_add_u32 s{so}, s{so}, {srcoff}
            s_add_u32 s{sm}, s{sm}, {slot0*1024}
            """)
        def left(self): return self.n - self.i
        def one(self, tag="w"):
            o = (self.i % 4) * 1024
            k(f"s_mov_b32 m0, s{self.sm}")
            k("s_nop 0")
            if not E("NOWD", 0): vq.op(f"buffer_load_dwordx4 v2, {WS}, s{self.so} offen offset:{o} lds", tag)
            self.i += 1
            if self.i % 4 == 0 and self.i < self.n:
                k(f"s_add_u32 s{self.sm}, s{self.sm}, 4096")
                k(f"s_add_u32 s{self.so}, s{self.so}, 4096")
        def some(self, n, tag="w"):
            for _ in range(min(n, self.left())): self.one(tag)
    class W4:
        def __init__(self): self.i = 0
        def left(self): return 64 - self.i
        def one(self, tag="w4"):
            i = self.i
            if not E("NOW4", 0): vq.op(f"buffer_load_dwordx4 {ar(4*i,4)}, v2, {WS}, s40 offen offset:{(i%4)*1024}", tag)
            self.i += 1
            if self.i % 4 == 0: k("s_add_u32 s40, s40, 4096")
            if self.i == 60:
                k("s_cmp_eq_u32 s30, 3")
                k(f"s_cselect_b32 s41, {60*1024}, 0")
                k("s_sub_u32 s40, s40, s41")
        def some(self, n):
            for _ in range(min(n, self.left())): self.one()
    k(f"""
    s_mul_i32 s44, s33, {100*1024}
    s_mul_i32 s45, s35, {140*1024}
    s_add_u32 s45, s45, {L.W3P}
    s_mul_i32 s40, s33, {280*1024}
    s_mul_i32 s41, s30, {70*1024}
    s_add_u32 s40, s40, s41
    s_add_u32 s40, s40, {L.W4P}
    """)
    w4 = W4()
    def small_vectors():
        lsm1 = k.newlab("sm"); lsm2 = k.newlab("sm"); lsm3 = k.newlab("sm")
        k(f"""
        s_cmp_eq_u32 s30, 1
        s_cbranch_scc1 {lsm1}
        s_cmp_ge_u32 s30, 2
        s_cbranch_scc1 {lsm2}
        s_mul_i32 s41, s33, 320
        s_add_u32 s41, s41, {L.CS1P}
        s_mov_b32 m0, {SMALL}
        s_mov_b64 exec, 0xfffff
        buffer_load_dwordx4 v2, {WS}, s41 offen lds
        s_add_u32 s41, s41, {1792*4}
        s_mov_b32 m0, {SMALL + 512}
        s_nop 0
        buffer_load_dwordx4 v2, {WS}, s41 offen lds
        s_branch {lsm3}
        """)
        k.lab(lsm1)
        k(f"""
        s_mul_i32 s41, s35, 448
        s_add_u32 s41, s41, {L.CS3P}
        s_mov_b32 m0, {SMALL + 1024}
        s_mov_b64 exec, 0xfffffff
        buffer_load_dwordx4 v2, {WS}, s41 offen lds
        s_add_u32 s41, s41, {1792*4}
        s_mov_b32 m0, {SMALL + 1536}
        s_nop 0
        buffer_load_dwordx4 v2, {WS}, s41 offen lds
        s_branch {lsm3}
        """)
        k.lab(lsm2)
        k(f"""
        s_mul_i32 s41, s33, 320
        s_add_u32 s41, s41, {L.MODF + 5*2560}
        s_mov_b32 m0, {SMALL + 2048}
        s_mov_b64 exec, 0xfffff
        buffer_load_dwordx4 v2, {WS}, s41 offen lds
        """)
        k.lab(lsm3)
        k("s_mov_b64 exec, -1")
        vq.q += ['sm']
    k(f"""
    s_lshl_b32 s46, s32, 2
    s_add_u32 s46, s46, s30
    s_mul_i32 s47, s46, 20480
    s_mul_i32 s41, s33, 2560
    s_add_u32 s47, s47, s41
    s_add_u32 s54, s47, s36
    s_lshl_b32 s55, s46, 7
    s_add_u32 s55, s55, s37
    s_mul_i32 s22, s28, 327680
    s_add_u32 s22, s22, s47
    s_add_u32 s22, s22, {L.KVR}
    """)
    def touch_h1s():
        k(f"s_add_u32 s47, s54, {L.G_H1S}")
        k("s_mov_b64 exec, 0xfffff")
        touch(47, 188)
        k("s_mov_b64 exec, -1")

    def poll(sbase, thr=None):
        lp = k.newlab("poll"); ld = k.newlab("go")
        k(f"s_mov_b32 s43, {E('SPIN', 200000)}")
        k.lab(lp)
        k(f"""
        buffer_load_dword v9, v7, {WS}, s{sbase} offen sc1
        s_waitcnt vmcnt(0)
        {"v_cmp_ne_u32 vcc, 0, v9" if thr is None else f"v_cmp_le_u32 vcc, v{thr}, v9"}
        s_sub_u32 s43, s43, 1
        s_cmp_eq_u64 vcc, -1
        s_cbranch_scc1 {ld}
        s_cmp_lg_u32 s43, 0
        s_cbranch_scc1 {lp}
        """)
        k.lab(ld)
        vq.reset()
    def xid_load(reg):
        if E("NOXID", 0): return
        k(f"v_and_b32 v{reg+1}, 31, v1")
        k(f"v_lshlrev_b32 v{reg+1}, 2, v{reg+1}")
        k(f"s_add_u32 s41, s37, {L.F_XID}")
        vq.op(f"buffer_load_dword v{reg}, v{reg+1}, {WS}, s41 offen sc1", "xid")
    def xid_eval(reg):
        if E("NOXID", 0):
            k("s_mov_b32 s31, 1"); return
        vq.wait("xid")
        lp = k.newlab("xp"); ld = k.newlab("xd")
        k(f"s_mov_b32 s43, {E('SPIN', 200000)}")
        k.lab(lp)
        k(f"""
        v_cmp_ne_u32 vcc, 0, v{reg}
        s_sub_u32 s43, s43, 1
        s_cmp_eq_u64 vcc, -1
        s_cbranch_scc1 {ld}
        s_cmp_eq_u32 s43, 0
        s_cbranch_scc1 {ld}
        s_add_u32 s41, s37, {L.F_XID}
        buffer_load_dword v{reg}, v{reg+1}, {WS}, s41 offen sc1
        s_waitcnt vmcnt(0)
        s_branch {lp}
        """)
        k.lab(ld)
        k(f"""
        v_cmp_eq_u32 vcc, s42, v{reg}
        s_nop 1
        s_cmp_eq_u64 vcc, -1
        s_cselect_b32 s31, 1, 0
        """)
        if E("SLOW", 0): k("s_mov_b32 s31, 0")
    def stores(lst, flag_s, flag_off):
        ls = k.newlab("slow"); lj = k.newlab("sent")
        k(f"s_cmp_eq_u32 s31, 0")
        k(f"s_cbranch_scc1 {ls}")
        for sc in ("", " sc1"):
            dsc = " sc1" if E("MIXED", 0) else sc
            for t in lst:
                lines = t.strip("\n").split("\n")
                k("\n".join((x + dsc if x.strip().startswith("buffer_store") else x) for x in lines))
            k(f"""
            s_waitcnt vmcnt(0)
            v_mov_b32 v9, 1
            v_mov_b32 v10, {flag_off}
            s_mov_b64 exec, 1
            buffer_store_dword v9, v10, {WS}, s{flag_s} offen{sc}
            s_mov_b64 exec, -1
            """)
            if sc == "":
                k(f"s_branch {lj}")
                k.lab(ls)
        k.lab(lj)
        vq.reset(); vq.q.append("flag")
    def touch(sreg, dst=9):
        if E("NOTOUCH", 1): return
        k(f"s_cmp_eq_u32 s31, 0")
        k(f"s_cselect_b32 s41, {L.W1P}, s{sreg}")
        vq.op(f"buffer_load_dword v{dst}, v5, {WS}, s41 offen", "touch")

    XR, YR, XF, MT, T = 16, 36, 56, 96, 120
    w1 = Dma(0, 25, 44, L.W1P, 38, 39)
    nob0 = k.newlab("nob0"); join0 = k.newlab("join0")
    k(f"""
    s_cmp_ge_u32 s29, 18
    s_cbranch_scc1 {nob0}
    s_lshl_b32 s46, s28, 8
    s_lshl_b32 s47, s29, 4
    s_add_u32 s46, s46, s47
    s_sub_u32 s46, s46, 16               ; global row of tile row 0 (signed)
    s_lshl_b32 s47, s30, 2
    s_add_u32 s47, s47, s46              ; first row of the wave
    v_add_u32 v11, s47, v3               ; global row
    v_mul_lo_u32 v6, v11, s48
    """.replace("v_mul_lo_u32 v6, v11, s48", "s_movk_i32 s48, 1280\n    v_mul_lo_u32 v6, v11, s48"))
    k("v_lshl_add_u32 v6, v4, 4, v6")
    for t in range(5):
        vq.op(f"buffer_load_dwordx4 {vr(XR+4*t,4)}, v6, {QS}, 0 offen offset:{256*t}", "q")
    if E("PROFQ", 0): stamp()
    k(f"""
    s_mul_i32 s47, s29, 20480
    s_mul_i32 s48, s30, 5120
    s_add_u32 s47, s47, s48
    s_add_u32 s47, s47, s36
    v_add_u32 v12, s47, v2
    s_add_u32 s48, s48, {YL}
    s_mov_b32 m0, s48
    s_nop 0
    """)
    for i in range(4):
        vq.op(f"buffer_load_dwordx4 v12, {WS}, 0 offen offset:{1024*i} lds", "y")
    k(f"""
    s_add_u32 s48, s48, 4096
    s_mov_b32 m0, s48
    s_movk_i32 s47, 4096
    """)
    vq.op(f"buffer_load_dwordx4 v12, {WS}, s47 offen lds", "y")
    k(f"""
    s_lshl_b32 s47, s30, 12
    s_add_u32 s48, s47, {MODL}
    """)
    for i in range(4):
        k(f"""
        s_add_u32 s41, s47, {1024*i}
        s_min_u32 s41, s41, {15360 - 1024}
        s_add_u32 s41, s41, {L.MODF}
        s_add_u32 m0, s48, {1024*i}
        s_nop 0
        """)
        vq.op(f"buffer_load_dwordx4 v2, {WS}, s41 offen lds", "y")
    if E("PUBLATE", 0): publish()
    w4_b0 = E("NW40", 0)
    k(f"""
    v_lshl_add_u32 v15, s30, 2, v3
    v_lshrrev_b32 v7, 1, v15
    v_and_b32 v9, 7, v4
    v_xor_b32 v7, v7, v9
    v_and_b32 v9, 1, v15
    v_lshl_add_u32 v7, v7, 1, v9
    v_lshlrev_b32 v7, 3, v7
    v_lshl_add_u32 v7, v4, 8, v7
    v_add_u32 v7, {YL}, v7
    v_lshlrev_b32 v10, 5, v4
    v_add_u32 v10, {MODL}, v10
    v_lshrrev_b32 v12, 2, v4
    v_and_b32 v13, 3, v4
    v_lshl_add_u32 v13, v13, 4, v15
    v_lshlrev_b32 v13, 4, v13
    v_lshl_add_u32 v6, v12, 10, v13
    s_movk_i32 s48, 2048
    v_cmp_gt_u32 {"s[50:51]"}, s48, v11
    """)
    S1, S2, N1, N2, ONE = T, T + 1, T + 4, T + 5, T + 6
    k(f"""
    v_mov_b32 v{S1}, 0
    v_mov_b32 v{S2}, 0
    v_mov_b32 v{N1}, 0
    v_mov_b32 v{N2}, 0
    v_mov_b32 v{ONE}, 0x3f803f80
    """)
    vq.wait("q")
    stamp()
    for d in range(20):
        k(f"v_dot2_f32_bf16 v{S1}, v{XR+d}, v{ONE}, v{S1}")
        k(f"v_dot2_f32_bf16 v{S2}, v{XR+d}, v{XR+d}, v{S2}")
        k.unpack(XF + 2*d, XF + 2*d + 1, XR + d)
        if d == 2: small_vectors()
        if d >= 4 and d % 2 == 0 and w1.i < E("NW1A", 8): w1.one()
    k("s_nop 1")
    reduce16(k, S1, S2)
    ln_finish(k, S1, S2, T + 2, 640)
    if E("PROFB0", 0): stamp()
    vq.wait("y")
    if E("PROFB0", 0): stamp()
    k("s_barrier")
    for t in range(5):
        k(f"ds_read_b64 {vr(YR+4*t,2)}, v7 offset:{t*4096}")
        k(f"ds_read_b64 {vr(YR+4*t+2,2)}, v7 offset:{t*4096+128}")
    BC = "op_sel:[0,1,0] op_sel_hi:[1,1,0]"
    TP, TY, MT2 = 144, 152, 160
    MTB = lambda t: (MT if t % 2 == 0 else MT2)
    def modread(t, vecs):
        for vi, vec in enumerate(vecs):
            k(f"ds_read_b128 {vr(MTB(t)+8*vi,4)}, v10 offset:{vec*2560+t*512}")
            k(f"ds_read_b128 {vr(MTB(t)+8*vi+4,4)}, v10 offset:{vec*2560+t*512+16}")
    modread(0, (1, 0, 2))
    for t in range(5):
        M = MTB(t)
        if t < 4:
            modread(t + 1, (1, 0, 2)); k("s_waitcnt lgkmcnt(6)")
        else:
            k("s_waitcnt lgkmcnt(0)")
        D4 = range(4)
        e = lambda d: XF + 8*t + 2*d
        for _ in range((E("NW1B", 0) + 4) // 5):
            if w1.i < E("NW1A", 8) + E("NW1B", 0): w1.one()
        for d in D4: k.unpack(TY + 2*d, TY + 2*d + 1, YR + 4*t + d)
        for d in D4: k(f"v_pk_fma_f32 {vr(TP+2*d,2)}, {vr(e(d),2)}, {vr(S1,2)}, {vr(S1,2)} {BC}")
        for d in D4: k(f"v_pk_fma_f32 {vr(TP+2*d,2)}, {vr(TP+2*d,2)}, {vr(M+2*d,2)}, {vr(M+8+2*d,2)}")
        for _ in range((w4_b0 + 4) // 5):
            if w4.i < w4_b0: w4.one()
        for d in D4: k(f"v_pk_mul_f32 {vr(TP+2*d,2)}, {vr(TP+2*d,2)}, {vr(TY+2*d,2)}")
        for d in D4: k(f"v_pk_fma_f32 {vr(e(d),2)}, {vr(M+16+2*d,2)}, {vr(TP+2*d,2)}, {vr(e(d),2)}")
        for d in D4: k(f"v_cvt_pk_bf16_f32 v{XR+4*t+d}, v{e(d)}, v{e(d)+1}")
        for d in D4:
            if E("XARND", 0):
                k(f"v_lshlrev_b32 v{e(d)}, 16, v{XR+4*t+d}")
                k(f"v_and_b32 v{e(d)+1}, 0xffff0000, v{XR+4*t+d}")
            k(f"v_dot2_f32_bf16 v{N1}, v{XR+4*t+d}, v{ONE}, v{N1}")
            k(f"v_dot2_f32_bf16 v{N2}, v{XR+4*t+d}, v{XR+4*t+d}, v{N2}")
    if E("PROFB0", 0): stamp()
    xid_load(190)
    modread(0, (4, 3))
    k("s_nop 1")
    reduce16(k, N1, N2)
    ln_finish(k, N1, N2, T + 2, 640)
    k(f"v_mov_b32 v{S1}, 0")
    k(f"v_mov_b32 v{S2}, 0")
    for t in range(5):
        M = MTB(t)
        if t < 4:
            modread(t + 1, (4, 3)); k("s_waitcnt lgkmcnt(4)")
        else:
            k("s_waitcnt lgkmcnt(0)")
        e = lambda d: XF + 8*t + 2*d
        for d in range(4): k(f"v_pk_fma_f32 {vr(e(d),2)}, {vr(e(d),2)}, {vr(N1,2)}, {vr(N1,2)} {BC}")
        for d in range(4): k(f"v_pk_fma_f32 {vr(e(d),2)}, {vr(e(d),2)}, {vr(M+2*d,2)}, {vr(M+8+2*d,2)}")
        for d in range(4): k(f"v_cvt_pk_bf16_f32 v{YR+4*t+d}, v{e(d)}, v{e(d)+1}")
        for d in range(4):
            k(f"v_dot2_f32_bf16 v{S1}, v{YR+4*t+d}, v{ONE}, v{S1}")
            k(f"v_dot2_f32_bf16 v{S2}, v{YR+4*t+d}, v{YR+4*t+d}, v{S2}")
    k("s_nop 1")
    reduce16(k, S1, S2)
    ln_finish(k, S1, S2, T + 2, 640)
    k(f"""
    v_cndmask_b32 v{S1}, 0, v{S1}, s[50:51]
    v_cndmask_b32 v{S2}, 0, v{S2}, s[50:51]
    s_mul_i32 s46, s29, 20480
    s_add_u32 s46, s46, s36
    s_add_u32 s47, s46, {L.G_XA - 20480}
    s_lshl_b32 s48, s29, 7
    s_add_u32 s48, s48, s36
    s_add_u32 s48, s48, {L.G_ST3}
    v_lshlrev_b32 v12, 3, v15            ; m*8
    s_lshl_b32 s49, s29, 7
    s_add_u32 s49, s49, s37
    s_lshl_b32 s41, s30, 2
    s_add_u32 s49, s49, s41
    """)
    if E("PROFB0", 0): stamp()
    xid_eval(190)
    TL = MODL
    TL = 112 * 1024
    k(f"""
    s_barrier
    v_and_b32 v9, 7, v4
    v_xor_b32 v9, v15, v9                ; m ^ (c&7)
    v_and_b32 v10, 3, v4
    v_lshl_add_u32 v9, v10, 4, v9
    v_lshrrev_b32 v10, 2, v4
    v_lshl_add_u32 v9, v10, 6, v9
    v_lshlrev_b32 v9, 4, v9
    v_add_u32 v9, {TL}, v9
    """)
    for t in range(5):
        k(f"ds_write_b128 v9, {vr(YR+4*t,4)} offset:{4096*t}")
        k(f"ds_write_b128 v9, {vr(XR+4*t,4)} offset:{20480+4096*t}")
    k(f"""
    v_xor_b32 v9, v4, v3
    v_xor_b32 v10, 4, v9
    v_lshl_add_u32 v9, v3, 4, v9
    v_lshl_add_u32 v10, v3, 4, v10
    s_mul_i32 s41, s30, 5120
    s_add_u32 s41, s41, {TL}
    v_lshl_add_u32 v9, v9, 4, s41
    v_lshl_add_u32 v10, v10, 4, s41
    s_cmp_eq_u32 s30, 1
    s_cselect_b32 s41, 1, 0
    s_cmp_eq_u32 s30, 3
    s_cselect_b32 s41, 1, s41
    s_cmp_eq_u32 s41, 1
    v_mov_b32 v11, v9
    s_cbranch_scc0 {"k2_noswap"}
    v_mov_b32 v9, v10
    v_mov_b32 v10, v11
    """)
    k.lab("k2_noswap")
    k(f"""
    s_mul_i32 s41, s30, 5120
    s_add_u32 s46, s46, s41
    s_add_u32 s47, s47, s41
    s_waitcnt lgkmcnt(0)
    s_barrier
    """)
    for i in range(5):
        k(f"ds_read_b128 {vr(YR+4*i,4)}, v{9 + (i & 1)} offset:{1024*i}")
    XAR = 220
    for i in range(5):
        k(f"ds_read_b128 {vr(XAR+4*i,4)}, v{9 + (i & 1)} offset:{20480+1024*i}")
    k("s_add_u32 s52, s46, 4096")
    k(f"""
    s_sub_u32 s41, s29, 1
    s_cmp_lt_u32 s41, 16
    s_cselect_b32 s20, s47, 0x90000000
    """)
    def xa_block(sc):
        _U.n += 1
        lab = f"k2_noxa{_U.n}"
        k(f"s_sub_u32 s41, s29, 1\ns_cmp_ge_u32 s41, 16\ns_cbranch_scc1 {lab}")
        for i in range(5):
            k(f"s_waitcnt lgkmcnt({4-i})")
            k(f"buffer_store_dwordx4 {vr(XR+4*i,4)}, v2, {WS}, s{47 if i < 4 else 53} offen offset:{(i%4)*1024}{sc}")
        k.lab(lab)
    class _U:
        n = 0
    ls = k.newlab("slow"); lj = k.newlab("sent")
    k("s_cmp_eq_u32 s31, 0"); k(f"s_cbranch_scc1 {ls}")
    for sc in ("", " sc1"):
        dsc = " sc1" if E("MIXED", 0) else sc
        for i in range(5):
            k(f"s_waitcnt lgkmcnt({9-i})")
            k(f"buffer_store_dwordx4 {vr(YR+4*i,4)}, v2, {WS}, s{46 if i < 4 else 52} offen offset:{(i%4)*1024}{dsc}")
        k(f"""
        v_cmp_eq_u32 vcc, 0, v4
        s_and_saveexec_b64 s[50:51], vcc
        buffer_store_dwordx2 {vr(S1,2)}, v12, {WS}, s48 offen{dsc}
        s_mov_b64 exec, -1
        """)
        k(f"""
        s_waitcnt vmcnt(0)
        v_mov_b32 v9, 1
        v_mov_b32 v10, {L.F_B0}
        s_mov_b64 exec, 1
        buffer_store_dword v9, v10, {WS}, s49 offen{sc}
        s_mov_b64 exec, -1
        """)
        if sc == "":
            k(f"s_branch {lj}"); k.lab(ls)
    k.lab(lj)
    k("s_mov_b32 s21, s49")
    stamp()
    i0 = w1.i
    w1.some(99)
    k(f"s_branch {join0}")
    w4_done_b0 = w4.i
    k.lab(nob0)
    k("s_mov_b32 s21, 0")
    k("s_mov_b32 s20, 0x90000000")
    w1.i = 0
    k(f"""
    s_mul_i32 s38, s30, {25*1024}
    s_add_u32 s39, s38, s44
    s_add_u32 s39, s39, {L.W1P}
    """)
    if E("PUBLATE", 0): publish()
    if E("XIDFIRST", 1):
        xid_load(190)
        xid_eval(190)
    small_vectors()
    w1.some(99)
    if not E("XIDFIRST", 1):
        xid_load(190)
        xid_eval(190)
    w4.i = 0
    w4.some(w4_done_b0)
    if E("OUTTLB", 1):
        k(f"""
        s_mul_i32 s47, s28, 327680
        s_lshl_b32 s48, s29, 13
        s_add_u32 s47, s47, s48
        v_mov_b32 v101, 0
        s_mov_b64 exec, 1
        buffer_load_dword v102, v101, {OS}, s47 offen
        s_mov_b64 exec, -1
        """)
        if E("GRPTLB", 0):
            k(f"""
            v_lshlrev_b32 v101, 16, v1
            s_mov_b64 exec, {hex((1 << ((L.GS + 65535) // 65536)) - 1)}
            buffer_load_dword v103, v101, {WS}, s36 offen
            s_mov_b64 exec, -1
            """)
    if E("K2TOUCH", 1):
        lt = k.newlab("nt")
        k(f"""
        s_cmp_eq_u32 s31, 0
        s_cbranch_scc1 {lt}
        s_sub_u32 s47, s29, 18
        s_lshl_b32 s47, s47, 2
        s_add_u32 s47, s47, s30              ; 0..55
        s_mul_i32 s48, s47, {6*1024}
        s_min_u32 s48, s48, {327680 - 6*1024}
        s_mul_i32 s49, s28, 327680
        s_add_u32 s48, s48, s49
        s_add_u32 s48, s48, {L.KVR}
        """)
        for i in range(6):
            k(f"buffer_load_dwordx4 {vr(64+4*i,4)}, v2, {WS}, s48 offen offset:{(i%4)*1024}")
            if i == 3: k("s_add_u32 s48, s48, 4096")
        k(f"""
        s_mul_i32 s48, s47, 384
        s_min_u32 s48, s48, {20480 - 384}
        s_add_u32 s48, s48, s36
        s_add_u32 s48, s48, {L.G_ST1}
        s_mov_b64 exec, 7
        buffer_load_dword v100, v5, {WS}, s48 offen
        s_mov_b64 exec, -1
        """)
        k.lab(lt)
    PFM = E("PFM", 0)
    if PFM:
        k(f"""
        s_sub_u32 s47, s29, 18
        s_lshl_b32 s47, s47, 2
        s_add_u32 s47, s47, s30              ; 0..55
        s_mul_i32 s48, s47, {15*1024}
        s_min_u32 s48, s48, {800*1024 - 15*1024}
        s_add_u32 s48, s48, {L.W2P}
        """)
        for _ in range(E("PFSL", 0)): k("s_sleep 127")
        for i in range(15):
            vq.op(f"buffer_load_dwordx4 {vr(64+4*(i%16),4)}, v2, {WS}, s48 offen offset:{(i%4)*1024}", "pf")
            if i % 4 == 3: k("s_add_u32 s48, s48, 4096")
    if PFM >= 2:
        k(f"""
        s_mul_i32 s48, s47, 15
        s_min_u32 s48, s48, {16*52 - 15}
        s_mul_i32 s49, s48, {65536 // 52 + 1}
        s_lshr_b32 s49, s49, 16
        s_mul_i32 s41, s49, 52
        s_sub_u32 s48, s48, s41
        s_mul_i32 s49, s49, 140
        s_add_u32 s48, s48, s49
        s_lshl_b32 s48, s48, 10
        s_add_u32 s48, s48, {L.W3P}
        """)
        for i in range(15):
            vq.op(f"buffer_load_dwordx4 {vr(128+4*(i%16),4)}, v2, {WS}, s48 offen offset:{(i%4)*1024}", "pf")
            if i % 4 == 3: k("s_add_u32 s48, s48, 4096")
    k.lab(join0)
    vq.reset()
    if STOP == 0:
        finish(); k.lab(end); k("s_endpgm"); return k

    GX, GW, GA, GT = 16, 96, 156, 176
    VC = 12
    XPRE = E("XPRE", 4)
    def gemm5(stage, pos0, inloop, xone, kbar=None):
        def wread(ks, nt):
            slot = (pos0 + ks * 5 + nt) % NSLOT
            o = slot * 1024
            k(f"ds_read_b128 {vr(GW+(ks%3)*20+4*nt,4)}, v{14 + (o >> 16)} offset:{o & 0xffff}")
        for ks in range(2):
            for nt in range(5): wread(ks, nt)
        xn = [XPRE]
        for ks in range(20):
            if E("PROFG1", 0) == stage and ks in (0, 1, 2, 5, 10, 15): stamp()
            vq.wait(f"x{ks}")
            k(f"s_waitcnt lgkmcnt({5 if ks < 19 else 0})")
            if ks == kbar: k("s_barrier")
            for nt in range(5):
                c = "0" if ks == 0 else vr(GA + 4*nt, 4)
                k(f"v_mfma_f32_16x16x32_bf16 {vr(GA+4*nt,4)}, {vr(GW+(ks%3)*20+4*nt,4)}, {vr(GX+4*ks,4)}, {c}")
                if ks + 2 < 20 and nt >= 1:
                    wread(ks + 2, nt - 1)
                    if nt == 4: wread(ks + 2, 4)
                if nt in (0, 3) and xn[0] < 20: xone(xn[0]); xn[0] += 1
                if nt in (1, 4): inloop(ks, nt)
    def lds_bases():
        k("v_mov_b32 v14, v2")
        k("v_add_u32 v15, 0x10000, v2")
    def fix_bank(text): return text.replace("v16 offset", "v11 offset")

    k(f"""
    s_lshl_b32 s46, s32, 2
    s_add_u32 s46, s46, s30              ; rt (0..15)
    s_lshr_b32 s47, s33, 1
    s_and_b32 s48, s47, 1
    s_lshr_b32 s47, s47, 1
    s_add_u32 s47, s47, 1                ; |shift|
    s_sub_u32 s49, 0, s47
    s_cmp_eq_u32 s48, 1
    s_cselect_b32 s47, s47, s49
    s_lshl_b32 s49, s46, 4
    s_add_u32 s49, s49, 16
    s_add_u32 s49, s49, s47
    v_add_u32 v9, s49, v4
    v_lshrrev_b32 v10, 4, v9
    v_mul_u32_u24 v6, 20480, v10
    v_and_b32 v10, 15, v9
    v_lshl_add_u32 v10, v3, 4, v10
    v_lshl_add_u32 v6, v10, 4, v6
    v_lshlrev_b32 v13, 3, v9
    s_add_u32 s49, s46, s48
    s_lshl_b32 s49, s49, 7
    s_add_u32 s49, s49, s37
    v_bfe_u32 v7, v1, 2, 1
    v_lshlrev_b32 v7, 7, v7
    v_and_b32 v9, 3, v1
    v_lshl_add_u32 v7, v9, 2, v7
    """)
    poll(49)
    stamp()
    def xload1(vaddr, sb, i):
        k(f"s_add_u32 s41, s{sb}, {(i//4)*4096}")
        vq.op(f"buffer_load_dwordx4 {vr(GX+4*i,4)}, v{vaddr}, {WS}, s41 offen offset:{(i%4)*1024} sc1", f"x{i}")
    for i in range(XPRE): xload1(6, 36, i)
    k(f"s_add_u32 s41, s36, {L.G_ST3}")
    vq.op(f"buffer_load_dwordx2 {vr(GT,2)}, v13, {WS}, s41 offen sc1", "st")
    k("v_mov_b32 v14, v2")
    k("v_add_u32 v15, 0x10000, v2")
    k("v_add_u32 v11, 0x20000, v2")
    k("s_barrier")
    w2a = Dma(100, 13, 44, L.W2P, 38, 39)
    def l2pf(base, i, per, first_s):
        if i == 0:
            k(f"""
            s_lshl_b32 s{first_s}, s29, 2
            s_add_u32 s{first_s}, s{first_s}, s30
            s_mul_i32 s{first_s}, s{first_s}, {per*128}
            s_add_u32 s{first_s}, s{first_s}, {base}
            """)
        n = min(64, per - 64 * i)
        if n < 64: k(f"s_mov_b64 exec, {hex((1 << n) - 1)}")
        vq.op(f"buffer_load_dword v{232+i}, v5, {WS}, s{first_s} offen", "pf")
        if n < 64: k("s_mov_b64 exec, -1")
        k(f"s_add_u32 s{first_s}, s{first_s}, 8192")
    st1 = {"w2b": None, "xa": 0}
    def g1_in(ks, nt):
        if ks < E("G1W", 8): return
        if st1["xa"] < 5 and nt == 4 and not E("XALATE", 0):
            i = st1["xa"]; st1["xa"] += 1
            k(f"s_add_u32 s41, s20, {1024*i}")
            vq.op(f"buffer_store_dwordx4 {vr(XAR+4*i,4)}, v2, {WS}, s41 offen sc1", "xas")
            return
        if w2a.left(): w2a.one(); return
        if st1["w2b"] is None: st1["w2b"] = Dma(152, 12, 44, L.W2P + 52 * 1024, 38, 39)
        if st1["w2b"].left(): st1["w2b"].one()
    n0 = len(k.L)
    gemm5(1, 0, g1_in, lambda i: xload1(6, 36, i), kbar=9)
    k.L[n0:] = [x.replace("v16 offset", "v11 offset") if "ds_read_b128" in x else x for x in k.L[n0:]]
    stamp()
    k("s_barrier")
    while st1["xa"] < 5:
        i = st1["xa"]; st1["xa"] += 1
        k(f"s_add_u32 s41, s20, {1024*i}")
        vq.op(f"buffer_store_dwordx4 {vr(XAR+4*i,4)}, v2, {WS}, s41 offen sc1", "xas")
    w2a.some(99)
    if st1["w2b"] is None: st1["w2b"] = Dma(152, 12, 44, L.W2P + 52 * 1024, 38, 39)
    st1["w2b"].some(99)
    w3a = Dma(200, 13, 45, 0, 38, 39)
    w3a.some(E("NW3A", 13))
    RS = GT
    CSR = GT + 4
    k(f"""
    v_lshlrev_b32 v9, 4, v3
    v_add_u32 v9, {SMALL}, v9
    v_mov_b32 v{VC}, {fhex(C1)}
    v_mov_b32 v{VC+1}, {fhex(C0)}
    """)
    for nt in range(5):
        k(f"ds_read_b128 {vr(CSR+4*nt,4)}, v9 offset:{64*nt}")
        k(f"ds_read_b128 {vr(CSR+20+4*nt,4)}, v9 offset:{512+64*nt}")
    vq.wait("st")
    TT = CSR + 40
    k("s_waitcnt lgkmcnt(0)")
    for nt in range(5):
        cs = CSR + 4*nt
        for i in (0, 2):
            k(f"v_pk_add_f32 {vr(cs+i,2)}, {vr(cs+i,2)}, {vr(cs+20+i,2)}")
    ln_gelu_multi(k, vr, [(GA + 4*nt, CSR + 4*nt, RS) for nt in range(5)], CSR + 20, VC)
    g1pk, prs = pack_tiles(k, [GA + 4*nt for nt in range(5)])
    swap_pairs(k, prs)
    k(f"""
    s_mov_b32 s46, s22
    s_lshl_b32 s41, s33, 2
    s_add_u32 s49, s55, s41              ; + j*4
    """)
    def tile_stores(lst, sb):
        return [(f"buffer_store_dwordx4 {vr(r,4)}, v254, {WS}, s{sb} offen offset:{512*i}" if n == 4 else f"buffer_store_dwordx2 {vr(r,2)}, v8, {WS}, s{sb} offen offset:{512*i}") for r, n, i in lst]
    stores(tile_stores(g1pk, 46), 49, L.F_G1)
    lxa = k.newlab("xas"); lxb = k.newlab("xas"); lxc = k.newlab("xas")
    k(f"""
    s_cmp_eq_u32 s21, 0
    s_cbranch_scc1 {lxc}
    v_mov_b32 v9, 3
    v_mov_b32 v10, {L.F_B0}
    s_mov_b64 exec, 1
    s_cmp_eq_u32 s31, 0
    s_cbranch_scc1 {lxa}
    buffer_store_dword v9, v10, {WS}, s21 offen
    s_branch {lxb}
    """)
    k.lab(lxa)
    k(f"buffer_store_dword v9, v10, {WS}, s21 offen sc1")
    k.lab(lxb)
    k("s_mov_b64 exec, -1")
    k.lab(lxc)
    stamp()
    if STOP == 1:
        finish(); k.lab(end); k("s_endpgm"); return k

    k(f"""
    s_sub_u32 s41, s55, s37
    s_lshr_b32 s41, s41, 7               ; rt
    v_bfe_u32 v7, v1, 3, 2               ; 0..3
    v_min_u32 v7, 2, v7
    v_add_u32 v7, s41, v7
    v_subrev_u32 v7, 1, v7
    v_max_i32 v7, 0, v7
    v_min_i32 v7, 15, v7
    v_lshlrev_b32 v7, 7, v7
    v_and_b32 v9, 7, v1
    v_lshl_add_u32 v7, v9, 2, v7
    s_add_u32 s49, s37, {L.F_G1}
    """)
    poll(49)
    stamp()
    k(f"""
    s_mul_i32 s41, s33, 2560
    s_sub_u32 s47, s22, s41
    """)
    k("s_mov_b32 s52, s47")
    for i in range(XPRE): xload1(2, 52, i)
    HBR = GT
    k(f"s_add_u32 s41, s54, {L.G_HBX + 20480}")
    def pair_loads(reg, sb, tag):
        vq.op(f"buffer_load_dwordx4 {vr(reg,4)}, v254, {WS}, s{sb} offen sc1", tag)
        vq.op(f"buffer_load_dwordx4 {vr(reg+4,4)}, v254, {WS}, s{sb} offen offset:1024 sc1", tag)
        vq.op(f"buffer_load_dwordx2 {vr(reg+8,2)}, v8, {WS}, s{sb} offen offset:2048 sc1", tag)
    def pair_src(reg, nt):
        return reg + (nt // 2) * 4 + (nt % 2) * 2
    HB_S = 48
    k("s_mov_b32 s48, s41")
    k(f"""
    s_sub_u32 s41, s55, s37              ; rt*128
    s_lshl_b32 s41, s41, 3               ; rt*1024
    s_add_u32 s46, s41, s36
    s_add_u32 s46, s46, {L.G_ST1}
    """)
    k("s_barrier")
    st2 = {"w3b": None, "hb": False}
    def g2_in(ks, nt):
        if ks < E("G2W", 8): return
        if not st2["hb"]:
            st2["hb"] = True; pair_loads(HBR, 48, "hb"); return
        if w3a.left(): w3a.one(); return
        if ks < 10: return
        if st2["w3b"] is None: st2["w3b"] = Dma(252, 12, 45, 52 * 1024, 38, 39)
        if st2["w3b"].left(): st2["w3b"].one()
    n0 = len(k.L)
    gemm5(2, 100, g2_in, lambda i: xload1(2, 52, i), kbar=9)
    k.L[n0:] = [x.replace("v16 offset", "v11 offset") if "ds_read_b128" in x else x for x in k.L[n0:]]
    stamp()
    k("s_barrier")
    w3a.some(99)
    if st2["w3b"] is None: st2["w3b"] = Dma(252, 12, 45, 52 * 1024, 38, 39)
    st2["w3b"].some(99)
    w3c = Dma(300, 1, 45, 100 * 1024, 38, 39)
    w3c.some(99)
    w3d = Dma(304, 9, 45, 104 * 1024, 38, 39)
    w3d.some(99)
    TT = GT + 12; ONE = GT + 20; A1 = GT + 22
    k(f"""
    v_mov_b32 v{ONE}, 0x3f803f80
    v_mov_b32 v{A1}, 0
    v_mov_b32 v{A1+1}, 0
    """)
    vq.wait("hb")
    swap_pairs(k, [HBR, HBR + 4])
    k("s_nop 1")
    U = GT + 24
    for nt in range(5):
        p = pair_src(HBR, nt)
        k.unpack(U + 4*nt, U + 4*nt + 1, p); k.unpack(U + 4*nt + 2, U + 4*nt + 3, p + 1)
    for nt in range(5):
        z = GA + 4*nt
        for i in (0, 2):
            k(f"v_pk_add_f32 {vr(z+i,2)}, {vr(z+i,2)}, {vr(U+4*nt+i,2)}")
    g2pk, prs = pack_tiles(k, [GA + 4*nt for nt in range(5)])
    for r, n, i in g2pk:
        for q_ in range(n):
            k(f"v_dot2_f32_bf16 v{A1}, v{r+q_}, v{ONE}, v{A1}")
            k(f"v_dot2_f32_bf16 v{A1+1}, v{r+q_}, v{r+q_}, v{A1+1}")
    k("s_nop 1")
    swap_pairs(k, prs)
    k("s_nop 2")
    reduce_g(k, A1, A1 + 1, TT)
    k(f"""
    s_add_u32 s47, s54, {L.G_X1}
    v_lshlrev_b32 v9, 6, v4              ; m*64
    s_lshl_b32 s41, s33, 3
    s_add_u32 s46, s46, s41
    s_lshl_b32 s41, s33, 2
    s_add_u32 s49, s55, s41
    v_mov_b32 v11, v9
    """)
    st = tile_stores(g2pk, 47)
    st.append(f"s_mov_b64 exec, 0xffff\nbuffer_store_dwordx2 {vr(A1,2)}, v11, {WS}, s46 offen\ns_mov_b64 exec, -1")
    stores(st, 49, L.F_G2)
    stamp()
    if STOP == 2:
        finish(); k.lab(end); k("s_endpgm"); return k

    A3, X3, W3, T3 = 16, 72, 160, 216
    XD = 11
    k(f"""
    s_lshl_b32 s46, s34, 3
    s_lshl_b32 s47, s30, 1
    s_add_u32 s46, s46, s47              ; rt0 = 8c + 2w
    s_lshl_b32 s49, s46, 7
    s_add_u32 s49, s49, {L.F_G2}
    v_bfe_u32 v7, v1, 3, 1
    v_lshlrev_b32 v7, 7, v7
    v_and_b32 v9, 7, v1
    v_lshl_add_u32 v7, v9, 2, v7
    v_add_u32 v7, s49, v7
    s_sub_u32 s49, s55, s37
    s_add_u32 s49, s49, {128 + L.F_B0}
    v_and_b32 v9, 3, v1
    v_lshlrev_b32 v9, 2, v9
    v_add_u32 v9, s49, v9                ; xa flags (value 3) of this wave's output tile
    v_and_b32 v10, 16, v1
    v_cmp_ne_u32 vcc, 0, v10
    v_mov_b32 v11, 1
    v_mov_b32 v10, 3
    v_cndmask_b32 v7, v7, v9, vcc
    v_cndmask_b32 v10, v11, v10, vcc
    """)
    poll(37, 10)
    stamp()
    k(f"""
    s_mul_i32 s47, s46, 20480
    s_add_u32 s47, s47, s36
    s_add_u32 s47, s47, {L.G_X1}
    s_add_u32 s48, s47, 20480
    """)
    def x3load(ks):
        for rt in range(2):
            k(f"s_add_u32 s41, s{47+rt}, {(ks//4)*4096}")
            vq.op(f"buffer_load_dwordx4 {vr(X3+((ks%XD)*2+rt)*4,4)}, v2, {WS}, s41 offen offset:{(ks%4)*1024} sc1", f"x{ks}")
    X3PRE = E("X3PRE", 3)
    for ks in range(X3PRE): x3load(ks)
    SP = T3
    k(f"""
    v_lshlrev_b32 v9, 6, v4
    v_lshl_add_u32 v9, v3, 4, v9
    s_lshl_b32 s41, s46, 10
    s_add_u32 s41, s41, s36
    s_add_u32 s41, s41, {L.G_ST1}
    """)
    for rt in range(2):
        vq.op(f"buffer_load_dwordx4 {vr(SP+4*rt,4)}, v9, {WS}, s41 offen offset:{1024*rt} sc1", "st")
    x3n = [X3PRE]
    k(f"""
    s_mul_i32 s52, s46, 55296
    s_mul_i32 s41, s35, 3584
    s_add_u32 s52, s52, s41
    s_add_u32 s52, s52, s36
    s_add_u32 s52, s52, {L.G_H3}
    s_add_u32 s53, s52, 55296
    """)
    EP = 228
    def g3_extra(ks):
        if ks in (10, 11) and not E("H3SC1", 1):
            k("s_mov_b64 exec, 0xfffffff")
            touch(52 + ks - 10, 248)
            k("s_mov_b64 exec, -1")
        if ks in (13, 14):
            off = L.G_XA if ks == 13 else L.G_X1
            k(f"s_add_u32 s48, s54, {off}")
            pair_loads(EP + (ks - 13) * 10, 48, "ep")
    k("s_barrier")
    def w3read(ks, nt):
        slot = (200 + ks * 7 + nt) % NSLOT
        o = slot * 1024
        a = {0: 14, 1: 15, 2: 11}[o >> 16]
        k(f"ds_read_b128 {vr(W3+(ks&1)*28+4*nt,4)}, v{a} offset:{o & 0xffff}")
    k("v_add_u32 v11, 0x20000, v2")
    RS3 = T3 + 8
    n0_ = len(k.L)
    for rt in range(2):
        s_ = SP + 4*rt
        k(f"v_add_f32 v{RS3+2*rt}, v{s_}, v{s_+2}")
        k(f"v_add_f32 v{RS3+2*rt+1}, v{s_+1}, v{s_+3}")
        reduce_g(k, RS3 + 2*rt, RS3 + 2*rt + 1, SP)
        ln_finish(k, RS3 + 2*rt, RS3 + 2*rt + 1, SP, 640)
    stat_ops = k.L[n0_:]; del k.L[n0_:]
    for nt in range(7): w3read(0, nt)
    for ks in range(20):
        assert x3n[0] > ks
        if not E("NOXW", 0): vq.wait(f"x{ks}")
        if E("PROFG3", 0) and ks in (1, 2, 5, 10, 15): stamp()
        for nt in range(7):
            if not E("NOLW", 0): k(f"s_waitcnt lgkmcnt({6 if ks < 19 else 6 - nt})")
            for rt in range(2):
                a = A3 + (rt*7 + nt) * 4
                c = "0" if ks == 0 else vr(a, 4)
                k(f"v_mfma_f32_16x16x32_bf16 {vr(a,4)}, {vr(W3+(ks&1)*28+4*nt,4)}, {vr(X3+((ks%XD)*2+rt)*4,4)}, {c}")
            if ks < 19 and not E("NODS", 0): w3read(ks + 1, nt)
            if nt in (1, 4) and x3n[0] < 20 and x3n[0] < ks + min(XD, E("X3D", 8)) and (nt == 1 or x3n[0] < ks + E("X3D", 8) - 1):
                x3load(x3n[0]); x3n[0] += 1
            if nt in (2, 3, 5) and ks >= E("W4K0", 1) and w4.left(): w4.one()
            if nt == 6 and ks >= E("W4K1", 12) and w4.left(): w4.one()
            if nt == 6: g3_extra(ks)
            if ks >= 5:
                for _ in range(2):
                    if stat_ops: k.L.append(stat_ops.pop(0))
    stamp()
    assert not stat_ops
    CS3 = X3
    TT = W3
    k(f"""
    v_lshlrev_b32 v9, 4, v3
    v_add_u32 v9, {SMALL + 1024}, v9
    v_mov_b32 v{VC}, {fhex(C1)}
    v_mov_b32 v{VC+1}, {fhex(C0)}
    """)
    for nt in range(7):
        k(f"ds_read_b128 {vr(CS3+4*nt,4)}, v9 offset:{64*nt}")
        k(f"ds_read_b128 {vr(CS3+28+4*nt,4)}, v9 offset:{512+64*nt}")
    k("s_waitcnt lgkmcnt(0)")
    for nt in range(7):
        cs = CS3 + 4*nt
        for i in (0, 2):
            k(f"v_pk_add_f32 {vr(cs+i,2)}, {vr(cs+i,2)}, {vr(cs+28+i,2)}")
    k(f"""
    s_lshl_b32 s49, s34, 2
    s_add_u32 s49, s49, s30
    s_lshl_b32 s49, s49, 7
    s_add_u32 s49, s49, s37
    s_lshl_b32 s41, s35, 2
    s_add_u32 s49, s49, s41
    """)
    def st_variants(emit):
        if E("MIXED", 0) or E("H3SC1", 1):
            emit(" sc1"); return
        ls = k.newlab("slow"); lj = k.newlab("sent")
        k("s_cmp_eq_u32 s31, 0"); k(f"s_cbranch_scc1 {ls}")
        emit(""); k(f"s_branch {lj}"); k.lab(ls); emit(" sc1"); k.lab(lj)
    for gi, n0_ in enumerate(range(0, 7, 2)):
        nts = list(range(n0_, min(n0_ + 2, 7)))
        tl = [(A3 + (rt*7 + nt) * 4, CS3 + 4*nt, RS3 + 2*rt) for nt in nts for rt in range(2)]
        ln_gelu_multi(k, vr, tl, TT, VC)
        pks = []
        prs_all = []
        for rt in range(2):
            pk, prs = pack_tiles(k, [A3 + (rt*7 + nt) * 4 for nt in nts])
            pks.append(pk[0]); prs_all += prs
        if prs_all: swap_pairs(k, prs_all)
        done = k.newlab("gs")
        if gi >= 2:
            k("s_cmp_eq_u32 s35, 15"); k(f"s_cbranch_scc1 {done}")
        if gi == 1:
            k("s_cmp_eq_u32 s35, 15")
            k("s_cselect_b32 s46, 0xffff, -1")
            k("s_mov_b32 exec_lo, s46"); k("s_mov_b32 exec_hi, s46")
        def emit(sc, pks=pks, n0_=n0_):
            for rt in range(2):
                r, n, i = pks[rt]
                if n == 4: k(f"buffer_store_dwordx4 {vr(r,4)}, v254, {WS}, s{52+rt} offen offset:{512*n0_}{sc}")
                else: k(f"buffer_store_dwordx2 {vr(r,2)}, v8, {WS}, s{52+rt} offen offset:{512*n0_}{sc}")
        st_variants(emit)
        if gi == 1: k("s_mov_b64 exec, -1")
        k.lab(done)
        if gi == 0: w4.some(99)
    ls = k.newlab("slow"); lj = k.newlab("sent")
    k(f"""
    s_waitcnt vmcnt(0)
    v_mov_b32 v9, 1
    v_mov_b32 v10, {L.F_G3}
    s_mov_b64 exec, 1
    s_cmp_eq_u32 s31, 0
    s_cbranch_scc1 {ls}
    buffer_store_dword v9, v10, {WS}, s49 offen
    s_branch {lj}
    """)
    k.lab(ls)
    k(f"buffer_store_dword v9, v10, {WS}, s49 offen sc1")
    k.lab(lj)
    k("s_mov_b64 exec, -1")
    vq.reset()
    stamp()
    if STOP == 3:
        finish(); k.lab(end); k("s_endpgm"); return k

    A4, X4, WX, T4 = 16, 96, 192, 216
    XD4 = 6
    for i in range(6):
        vq.op(f"buffer_load_dwordx4 {vr(WX+4*i,4)}, v2, {WS}, s40 offen offset:{(i%4)*1024}", "wx")
        if i == 3: k("s_add_u32 s40, s40, 4096")
    k(f"""
    s_and_b32 s41, s32, 1
    s_lshl_b32 s41, s41, 1
    s_lshl_b32 s49, s34, 2
    s_add_u32 s49, s49, s41
    s_lshl_b32 s49, s49, 7
    s_add_u32 s49, s49, s37
    s_lshl_b32 s41, s30, 4
    s_add_u32 s49, s49, s41              ; + 4w flags
    s_add_u32 s49, s49, {L.F_G3}
    v_bfe_u32 v7, v1, 2, 1
    v_lshlrev_b32 v7, 7, v7
    v_and_b32 v9, 3, v1
    v_lshl_add_u32 v7, v9, 2, v7
    """)
    for i in range(4):
        k(f"""
        s_add_u32 s41, s30, {i}
        s_and_b32 s41, s41, 3
        s_lshl_b32 s46, s32, 2
        s_add_u32 s41, s41, s46
        s_mul_i32 s41, s41, 55296
        s_mul_i32 s46, s30, {14*1024}
        s_add_u32 s41, s41, s46
        s_add_u32 s41, s41, s36
        s_add_u32 s{50+i}, s41, {L.G_H3}
        """)
    poll(49)
    stamp()
    def x4load(ks, guard=False):
        for i in range(4):
            k(f"s_add_u32 s41, s{50+i}, {(ks//4)*4096}")
            vq.op(f"buffer_load_dwordx4 {vr(X4+((ks%XD4)*4+i)*4,4)}, v2, {WS}, s41 offen offset:{(ks%4)*1024} sc1", f"x{ks}")
    def x4one(ks, i):
        k(f"s_add_u32 s41, s{50+i}, {(ks//4)*4096}")
        vq.op(f"buffer_load_dwordx4 {vr(X4+((ks%XD4)*4+i)*4,4)}, v2, {WS}, s41 offen offset:{(ks%4)*1024} sc1", f"x{ks}")
    X4PRE = E("X4PRE", 2)
    for ks in range(X4PRE): x4load(ks)
    x4q = [(ks, i) for ks in range(X4PRE, 14) for i in range(4)]
    skip = k.newlab("k4skip")
    def wfrag(idx): return ar(4*idx, 4) if idx < 64 else vr(WX + 4*(idx - 64), 4)
    for ks in range(14):
        if ks == 12:
            k("s_cmp_eq_u32 s30, 3"); k(f"s_cbranch_scc1 {skip}")
        assert not any(q[0] <= ks for q in x4q)
        vq.wait(f"x{ks}")
        for nt in range(5):
            for i in range(4):
                a = A4 + (i*5 + nt) * 4
                c = "0" if ks == 0 else vr(a, 4)
                k(f"v_mfma_f32_16x16x32_bf16 {vr(a,4)}, {wfrag(ks*5+nt)}, {vr(X4+((ks%XD4)*4+i)*4,4)}, {c}")
            for _ in range(2 if (nt in (1, 3) and x4q and x4q[0][0] < ks + E("X4D", 4)) else 1):
                if x4q and x4q[0][0] - XD4 < ks and (nt >= 1 or x4q[0][0] - XD4 < ks - 1):
                    x4one(*x4q.pop(0))
    k.lab(skip)
    stamp()
    k(f"""
    s_waitcnt vmcnt(0)
    s_barrier
    """)
    for i in range(1, 4):
        k(f"""
        s_add_u32 s41, s30, {i}
        s_and_b32 s41, s41, 3
        s_mul_i32 s41, s41, {15*1024}
        s_add_u32 s41, s41, {(i-1)*5*1024}
        v_add_u32 v{9}, s41, v2
        """)
        for nt in range(5):
            k(f"ds_write_b128 v9, {vr(A4+(i*5+nt)*4,4)} offset:{1024*nt}")
    GB = X4
    PB = X4 + 20
    k(f"""
    v_lshlrev_b32 v10, 4, v3
    v_add_u32 v10, {SMALL + 2048}, v10
    """)
    for nt in range(5):
        k(f"ds_read_b128 {vr(GB+4*nt,4)}, v10 offset:{64*nt}")
    k(f"""
    s_mul_i32 s41, s30, {15*1024}
    v_add_u32 v9, s41, v2
    s_waitcnt lgkmcnt(0)
    s_barrier
    """)
    for i in range(15):
        k(f"ds_read_b128 {vr(PB+4*i,4)}, v9 offset:{1024*i}")
    k(f"""
    s_lshl_b32 s46, s32, 2
    s_add_u32 s46, s46, s30
    s_lshl_b32 s46, s46, 4
    s_lshl_b32 s47, s28, 8
    s_add_u32 s46, s46, s47
    v_add_u32 v10, s46, v4
    v_mul_u32_u24 v10, 1280, v10
    v_lshl_add_u32 v10, v3, 3, v10
    s_mul_i32 s47, s33, 160
    """)
    TT = 248
    swap_pairs(k, [EP, EP + 4, EP + 10, EP + 14])
    k("s_waitcnt lgkmcnt(0)")
    for s_ in range(3):
        for nt in range(5):
            z = A4 + 4*nt
            for i in (0, 2):
                k(f"v_pk_add_f32 {vr(z+i,2)}, {vr(z+i,2)}, {vr(PB+(s_*5+nt)*4+i,2)}")
    U = PB
    for nt in range(5):
        p = pair_src(EP + 10, nt)
        k.unpack(U + 4*nt, U + 4*nt + 1, p); k.unpack(U + 4*nt + 2, U + 4*nt + 3, p + 1)
        p = pair_src(EP, nt)
        k.unpack(U + 20 + 4*nt, U + 20 + 4*nt + 1, p); k.unpack(U + 20 + 4*nt + 2, U + 20 + 4*nt + 3, p + 1)
    for nt in range(5):
        z = A4 + 4*nt
        for i in (0, 2):
            k(f"v_pk_add_f32 {vr(z+i,2)}, {vr(z+i,2)}, {vr(U+4*nt+i,2)}")
    for nt in range(5):
        z = A4 + 4*nt
        for i in (0, 2):
            k(f"v_pk_fma_f32 {vr(z+i,2)}, {vr(z+i,2)}, {vr(GB+4*nt+i,2)}, {vr(U+20+4*nt+i,2)}")
    g4pk, prs = pack_tiles(k, [A4 + 4*nt for nt in range(5)])
    swap_pairs(k, prs)
    k("""
    v_and_b32 v9, 1, v3
    v_lshlrev_b32 v9, 5, v9
    v_lshrrev_b32 v11, 1, v3
    v_lshl_add_u32 v9, v11, 4, v9
    v_lshlrev_b32 v11, 3, v3
    v_sub_u32 v11, v10, v11
    v_add_u32 v11, v11, v9
    """)
    osc = " sc1" if E("OUTSC1", 0) else ""
    for r, n, i in g4pk:
        if n == 4: k(f"buffer_store_dwordx4 {vr(r,4)}, v11, {OS}, s47 offen offset:{32*i}{osc}")
        else: k(f"buffer_store_dwordx2 {vr(r,2)}, v10, {OS}, s47 offen offset:{32*i}{osc}")
    stamp()
    finish()
    k.lab(end)
    k("s_endpgm")
    return k

def kernels(Kern, vr):
    return [gen_chain(Kern, vr)]
```

```python
import os, struct
import layout as L
SZ_SD = 2048 * 640 * 2
C0 = -2.0 * 0.7978845608028654 * 1.4426950408889634
C1 = C0 * 0.044715
def fhex(x):
    return "0x%08x" % struct.unpack("<I", struct.pack("<f", x))[0]
E = lambda n, d: int(os.environ.get(n, d))
STOP = E("STOP", 9)
PROF = E("PROF", 0)
NSLOT = 152
SMALL = NSLOT * 1024
YL = 132 * 1024
MODL = 116 * 1024

def ln_finish(k, s1, s2, t, n):
    k(f"""
    v_mul_f32 v{s1}, {fhex(1.0/n)}, v{s1}
    v_mul_f32 v{s2}, {fhex(1.0/n)}, v{s2}
    v_fma_f32 v{s2}, -v{s1}, v{s1}, v{s2}
    v_max_f32 v{s2}, 0, v{s2}
    """)
    k.round2(s1, s2, t)
    k(f"""
    v_add_f32 v{s2}, {fhex(1e-5)}, v{s2}
    v_cvt_pk_bf16_f32 v{t}, v{s2}, v{s2}
    v_lshlrev_b32 v{s2}, 16, v{t}
    v_sqrt_f32 v{s2}, v{s2}
    s_nop 0
    v_cvt_pk_bf16_f32 v{t}, v{s2}, v{s2}
    v_lshlrev_b32 v{s2}, 16, v{t}
    v_rcp_f32 v{s2}, v{s2}
    s_nop 0
    v_mul_f32 v{s1}, v{s1}, v{s2}
    v_sub_f32 v{s1}, 0, v{s1}
    """)

def reduce16(k, a, b):
    for ctl in ("quad_perm:[1,0,3,2]", "quad_perm:[2,3,0,1]", "row_half_mirror", "row_mirror"):
        k("s_nop 0")
        k(f"v_add_f32_dpp v{a}, v{a}, v{a} {ctl} row_mask:0xf bank_mask:0xf")
        k(f"v_add_f32_dpp v{b}, v{b}, v{b} {ctl} row_mask:0xf bank_mask:0xf")

def reduce_g(k, a, b, t):
    for sw in ("v_permlane32_swap_b32", "v_permlane16_swap_b32"):
        k(f"""
        v_mov_b32 v{t}, v{a}
        v_mov_b32 v{t+1}, v{b}
        s_nop 1
        {sw} v{t}, v{a}
        {sw} v{t+1}, v{b}
        s_nop 0
        v_add_f32 v{a}, v{a}, v{t}
        v_add_f32 v{b}, v{b}, v{t+1}
        """)

def gelu4pk(k, vr, z, t, vc):
    for i in (0, 2):
        k(f"v_pk_mul_f32 {vr(t+i,2)}, {vr(z+i,2)}, {vr(z+i,2)}")
    for i in (0, 2):
        k(f"v_pk_fma_f32 {vr(t+i,2)}, {vr(t+i,2)}, {vr(vc,2)}, {vr(vc,2)} op_sel:[0,0,1] op_sel_hi:[1,0,1]")
    for i in (0, 2):
        k(f"v_pk_mul_f32 {vr(t+i,2)}, {vr(t+i,2)}, {vr(z+i,2)}")
    for i in range(4):
        k(f"v_exp_f32 v{t+i}, v{t+i}")
    for i in range(4):
        k(f"v_add_f32 v{t+i}, 1.0, v{t+i}")
    for i in range(4):
        k(f"v_rcp_f32 v{t+i}, v{t+i}")
    k("s_nop 0")
    for i in (0, 2):
        k(f"v_pk_mul_f32 {vr(z+i,2)}, {vr(z+i,2)}, {vr(t+i,2)}")

def ln_gelu_multi(k, vr, tiles, t, vc):
    n = len(tiles)
    T = lambda i: t + 4 * i
    for i, (z, cs, rs) in enumerate(tiles):
        for h in (0, 2):
            k(f"v_pk_mul_f32 {vr(T(i)+h,2)}, {vr(cs+h,2)}, {vr(rs,2)} op_sel_hi:[1,0]")
    for i, (z, cs, rs) in enumerate(tiles):
        for h in (0, 2):
            k(f"v_pk_fma_f32 {vr(z+h,2)}, {vr(z+h,2)}, {vr(rs,2)}, {vr(T(i)+h,2)} op_sel:[0,1,0] op_sel_hi:[1,1,1]")
    for i, (z, cs, rs) in enumerate(tiles):
        for h in (0, 2):
            k(f"v_pk_mul_f32 {vr(T(i)+h,2)}, {vr(z+h,2)}, {vr(z+h,2)}")
    for i, (z, cs, rs) in enumerate(tiles):
        for h in (0, 2):
            k(f"v_pk_fma_f32 {vr(T(i)+h,2)}, {vr(T(i)+h,2)}, {vr(vc,2)}, {vr(vc,2)} op_sel:[0,0,1] op_sel_hi:[1,0,1]")
    for i, (z, cs, rs) in enumerate(tiles):
        for h in (0, 2):
            k(f"v_pk_mul_f32 {vr(T(i)+h,2)}, {vr(T(i)+h,2)}, {vr(z+h,2)}")
    for i in range(n):
        for r in range(4): k(f"v_exp_f32 v{T(i)+r}, v{T(i)+r}")
    for i in range(n):
        for h in (0, 2): k(f"v_pk_add_f32 {vr(T(i)+h,2)}, {vr(T(i)+h,2)}, 1.0 op_sel_hi:[1,0]")
    for i in range(n):
        for r in range(4): k(f"v_rcp_f32 v{T(i)+r}, v{T(i)+r}")
    k("s_nop 0")
    for i, (z, cs, rs) in enumerate(tiles):
        for h in (0, 2):
            k(f"v_pk_mul_f32 {vr(z+h,2)}, {vr(z+h,2)}, {vr(T(i)+h,2)}")

def pack_tiles(k, zs):
    out = []
    i = 0
    prs = []
    while i < len(zs):
        if i + 1 < len(zs):
            a, b = zs[i], zs[i + 1]
            k(f"v_cvt_pk_bf16_f32 v{a}, v{a}, v{a+1}")
            k(f"v_cvt_pk_bf16_f32 v{a+1}, v{a+2}, v{a+3}")
            k(f"v_cvt_pk_bf16_f32 v{a+2}, v{b}, v{b+1}")
            k(f"v_cvt_pk_bf16_f32 v{a+3}, v{b+2}, v{b+3}")
            prs.append(a); out.append((a, 4, i)); i += 2
        else:
            a = zs[i]
            k(f"v_cvt_pk_bf16_f32 v{a}, v{a}, v{a+1}")
            k(f"v_cvt_pk_bf16_f32 v{a+1}, v{a+2}, v{a+3}")
            out.append((a, 2, i)); i += 1
    return out, prs

def swap_pairs(k, prs):
    k("s_nop 1")
    for a in prs:
        k(f"v_permlane16_swap_b32 v{a}, v{a+2}")
        k(f"v_permlane16_swap_b32 v{a+1}, v{a+3}")

class VQ:
    def __init__(self, k): self.k = k; self.q = []
    def op(self, text, tag=None):
        self.k(text); self.q.append(tag)
    def wait(self, tag):
        idx = [i for i, t in enumerate(self.q) if t == tag]
        if not idx: return
        n = len(self.q) - 1 - idx[-1]
        self.k(f"s_waitcnt vmcnt({min(n, 63)})")
        self.q = self.q[idx[-1] + 1:] if n <= 63 else self.q[-63:]
    def drain(self):
        self.k("s_waitcnt vmcnt(0)"); self.q = []
    def reset(self): self.q = []

def gen_chain(Kern, vr):
    k = Kern("k2_kernel", 256, 256, 163840, vgpr=256, sgpr=102, agpr=256)
    ar = lambda a, n: f"a[{a}:{a+n-1}]"
    vq = VQ(k)
    end = "k2_end"
    WS, QS, YS, OS = "s[12:15]", "s[16:19]", "s[20:23]", "s[24:27]"
    nst = [0]
    def stamp():
        if PROF:
            i = nst[0]; nst[0] += 1
            if PROF == 3:
                k(f"s_memtime s[{56+2*i}:{57+2*i}]"); nst[0] += 1
                k(f"s_memrealtime s[{58+2*i}:{59+2*i}]")
            else:
                k(f"{'s_memrealtime' if PROF == 2 else 's_memtime'} s[{56+2*i}:{57+2*i}]")
    def finish(label_end=True):
        k("s_waitcnt vmcnt(0) lgkmcnt(0)")
        if PROF == 2:
            k(f"""
            s_lshl_b32 s41, s2, 2
            s_add_u32 s41, s41, s30
            s_lshl_b32 s41, s41, 7
            s_add_u32 s41, s41, {48 << 20}
            v_mov_b32 v1, 0
            s_mov_b64 exec, 1
            """)
            for i in range(nst[0]):
                k(f"v_mov_b32 v2, s{56+2*i}")
                k(f"buffer_store_dword v2, v1, {WS}, s41 offen offset:{4*i}")
            k(f"v_mov_b32 v2, {nst[0]}")
            k(f"buffer_store_dword v2, v1, {WS}, s41 offen offset:124")
        elif PROF:
            l = k.newlab("prof")
            k(f"""
            s_cmp_lg_u32 s2, {E("PROFWG", 0)}
            s_cbranch_scc1 {l}
            s_cmp_lg_u32 s30, {E("PROFW", 0)}
            s_cbranch_scc1 {l}
            s_load_dwordx2 s[4:5], s[0:1], 112
            s_waitcnt lgkmcnt(0)
            s_mov_b32 s6, 256
            s_mov_b32 s7, 0x00020000
            v_mov_b32 v1, 0
            s_mov_b64 exec, 1
            """)
            for i in range(1, nst[0]):
                k(f"s_sub_u32 s41, s{56+2*i}, s{56 + (2 if (PROF == 3 and i % 2) else 0)}")
                k(f"v_mov_b32 v2, s41")
                k(f"buffer_store_dword v2, v1, s[4:7], 0 offen offset:{4*(i-1)}")
            k.lab(l)
        k("s_endpgm")

    k(f"""
    s_cmp_ge_u32 s2, 256
    s_cbranch_scc1 {end}
    s_load_dwordx2 s[4:5], s[0:1], 0
    s_load_dwordx2 s[6:7], s[0:1], 104
    s_load_dwordx2 s[8:9], s[0:1], 120
    s_getreg_b32 s42, hwreg(HW_REG_XCC_ID, 0, 4)
    v_lshrrev_b32 v2, 6, v0
    v_and_b32 v1, 63, v0
    v_readfirstlane_b32 s30, v2          ; wave
    s_and_b32 s28, s2, 7                 ; group
    s_lshr_b32 s29, s2, 3                ; member
    s_lshr_b32 s32, s29, 3
    s_and_b32 s33, s29, 7                ; j
    s_lshr_b32 s34, s29, 4
    s_and_b32 s35, s29, 15               ; j3
    s_mul_i32 s36, s28, {L.GS}
    s_add_u32 s36, s36, {L.GRP}
    s_lshl_b32 s37, s28, 13
    s_add_u32 s37, s37, {L.FLAGS}
    s_add_u32 s42, s42, 1
    s_mov_b32 s31, 0
    v_lshlrev_b32 v2, 4, v1              ; lane*16
    v_lshrrev_b32 v3, 4, v1              ; g
    v_and_b32 v4, 15, v1                 ; m
    v_lshrrev_b32 v8, 1, v3
    v_lshl_add_u32 v8, v8, 4, v4
    v_and_b32 v9, 1, v3
    v_lshl_add_u32 v8, v8, 1, v9
    v_lshlrev_b32 v8, 3, v8
    v_lshlrev_b32 v5, 7, v1
    v_and_b32 v9, 1, v3
    v_lshlrev_b32 v9, 1, v9
    v_lshrrev_b32 v10, 1, v3
    v_or_b32 v9, v9, v10
    v_lshlrev_b32 v9, 8, v9
    v_lshl_add_u32 v254, v4, 4, v9
    s_waitcnt lgkmcnt(0)
    """)
    stamp()
    k.srd(12, 8, 0x10000000); k.srd(16, 4, SZ_SD); k.srd(24, 6, SZ_SD)
    def publish():
        l = k.newlab()
        k(f"""
        s_cmp_lg_u32 s30, 0
        s_cbranch_scc1 {l}
        s_lshl_b32 s41, s29, 2
        s_add_u32 s41, s41, s37
        v_mov_b32 v9, s42
        v_mov_b32 v10, {L.F_XID}
        s_mov_b64 exec, 1
        buffer_store_dword v9, v10, {WS}, s41 offen sc1
        s_mov_b64 exec, -1
        """)
        k.lab(l)
    if not E("PUBLATE", 0) and not E("NOXID", 0): publish()
    class Dma:
        def __init__(self, p0, n, srcbase_s, srcoff, sm, so):
            self.i = 0; self.n = n; self.sm = sm; self.so = so
            slot0 = p0 % NSLOT
            assert slot0 + 4 * n <= NSLOT
            k(f"""
            s_mul_i32 s{sm}, s30, {n*1024}
            s_add_u32 s{so}, s{sm}, s{srcbase_s}
            s_add_u32 s{so}, s{so}, {srcoff}
            s_add_u32 s{sm}, s{sm}, {slot0*1024}
            """)
        def left(self): return self.n - self.i
        def one(self, tag="w"):
            o = (self.i % 4) * 1024
            k(f"s_mov_b32 m0, s{self.sm}")
            k("s_nop 0")
            if not E("NOWD", 0): vq.op(f"buffer_load_dwordx4 v2, {WS}, s{self.so} offen offset:{o} lds", tag)
            self.i += 1
            if self.i % 4 == 0 and self.i < self.n:
                k(f"s_add_u32 s{self.sm}, s{self.sm}, 4096")
                k(f"s_add_u32 s{self.so}, s{self.so}, 4096")
        def some(self, n, tag="w"):
            for _ in range(min(n, self.left())): self.one(tag)
    class W4:
        def __init__(self): self.i = 0
        def left(self): return 64 - self.i
        def one(self, tag="w4"):
            i = self.i
            if not E("NOW4", 0): vq.op(f"buffer_load_dwordx4 {ar(4*i,4)}, v2, {WS}, s40 offen offset:{(i%4)*1024}", tag)
            self.i += 1
            if self.i % 4 == 0: k("s_add_u32 s40, s40, 4096")
            if self.i == 60:
                k("s_cmp_eq_u32 s30, 3")
                k(f"s_cselect_b32 s41, {60*1024}, 0")
                k("s_sub_u32 s40, s40, s41")
        def some(self, n):
            for _ in range(min(n, self.left())): self.one()
    k(f"""
    s_mul_i32 s44, s33, {100*1024}
    s_mul_i32 s45, s35, {140*1024}
    s_add_u32 s45, s45, {L.W3P}
    s_mul_i32 s40, s33, {280*1024}
    s_mul_i32 s41, s30, {70*1024}
    s_add_u32 s40, s40, s41
    s_add_u32 s40, s40, {L.W4P}
    """)
    w4 = W4()
    def small_vectors():
        lsm1 = k.newlab("sm"); lsm2 = k.newlab("sm"); lsm3 = k.newlab("sm")
        k(f"""
        s_cmp_eq_u32 s30, 1
        s_cbranch_scc1 {lsm1}
        s_cmp_ge_u32 s30, 2
        s_cbranch_scc1 {lsm2}
        s_mul_i32 s41, s33, 320
        s_add_u32 s41, s41, {L.CS1P}
        s_mov_b32 m0, {SMALL}
        s_mov_b64 exec, 0xfffff
        buffer_load_dwordx4 v2, {WS}, s41 offen lds
        s_add_u32 s41, s41, {1792*4}
        s_mov_b32 m0, {SMALL + 512}
        s_nop 0
        buffer_load_dwordx4 v2, {WS}, s41 offen lds
        s_branch {lsm3}
        """)
        k.lab(lsm1)
        k(f"""
        s_mul_i32 s41, s35, 448
        s_add_u32 s41, s41, {L.CS3P}
        s_mov_b32 m0, {SMALL + 1024}
        s_mov_b64 exec, 0xfffffff
        buffer_load_dwordx4 v2, {WS}, s41 offen lds
        s_add_u32 s41, s41, {1792*4}
        s_mov_b32 m0, {SMALL + 1536}
        s_nop 0
        buffer_load_dwordx4 v2, {WS}, s41 offen lds
        s_branch {lsm3}
        """)
        k.lab(lsm2)
        k(f"""
        s_mul_i32 s41, s33, 320
        s_add_u32 s41, s41, {L.MODF + 5*2560}
        s_mov_b32 m0, {SMALL + 2048}
        s_mov_b64 exec, 0xfffff
        buffer_load_dwordx4 v2, {WS}, s41 offen lds
        """)
        k.lab(lsm3)
        k("s_mov_b64 exec, -1")
        vq.q += ['sm']
    k(f"""
    s_lshl_b32 s46, s32, 2
    s_add_u32 s46, s46, s30
    s_mul_i32 s47, s46, 20480
    s_mul_i32 s41, s33, 2560
    s_add_u32 s47, s47, s41
    s_add_u32 s54, s47, s36
    s_lshl_b32 s55, s46, 7
    s_add_u32 s55, s55, s37
    s_mul_i32 s22, s28, 327680
    s_add_u32 s22, s22, s47
    s_add_u32 s22, s22, {L.KVR}
    """)
    def touch_h1s():
        k(f"s_add_u32 s47, s54, {L.G_H1S}")
        k("s_mov_b64 exec, 0xfffff")
        touch(47, 188)
        k("s_mov_b64 exec, -1")

    def poll(sbase, thr=None):
        lp = k.newlab("poll"); ld = k.newlab("go")
        k(f"s_mov_b32 s43, {E('SPIN', 200000)}")
        k.lab(lp)
        k(f"""
        buffer_load_dword v9, v7, {WS}, s{sbase} offen sc1
        s_waitcnt vmcnt(0)
        {"v_cmp_ne_u32 vcc, 0, v9" if thr is None else f"v_cmp_le_u32 vcc, v{thr}, v9"}
        s_sub_u32 s43, s43, 1
        s_cmp_eq_u64 vcc, -1
        s_cbranch_scc1 {ld}
        s_cmp_lg_u32 s43, 0
        s_cbranch_scc1 {lp}
        """)
        k.lab(ld)
        vq.reset()
    def xid_load(reg):
        if E("NOXID", 0): return
        k(f"v_and_b32 v{reg+1}, 31, v1")
        k(f"v_lshlrev_b32 v{reg+1}, 2, v{reg+1}")
        k(f"s_add_u32 s41, s37, {L.F_XID}")
        vq.op(f"buffer_load_dword v{reg}, v{reg+1}, {WS}, s41 offen sc1", "xid")
    def xid_eval(reg):
        if E("NOXID", 0):
            k("s_mov_b32 s31, 1"); return
        vq.wait("xid")
        lp = k.newlab("xp"); ld = k.newlab("xd")
        k(f"s_mov_b32 s43, {E('SPIN', 200000)}")
        k.lab(lp)
        k(f"""
        v_cmp_ne_u32 vcc, 0, v{reg}
        s_sub_u32 s43, s43, 1
        s_cmp_eq_u64 vcc, -1
        s_cbranch_scc1 {ld}
        s_cmp_eq_u32 s43, 0
        s_cbranch_scc1 {ld}
        s_add_u32 s41, s37, {L.F_XID}
        buffer_load_dword v{reg}, v{reg+1}, {WS}, s41 offen sc1
        s_waitcnt vmcnt(0)
        s_branch {lp}
        """)
        k.lab(ld)
        k(f"""
        v_cmp_eq_u32 vcc, s42, v{reg}
        s_nop 1
        s_cmp_eq_u64 vcc, -1
        s_cselect_b32 s31, 1, 0
        """)
        if E("SLOW", 0): k("s_mov_b32 s31, 0")
    def stores(lst, flag_s, flag_off):
        ls = k.newlab("slow"); lj = k.newlab("sent")
        k(f"s_cmp_eq_u32 s31, 0")
        k(f"s_cbranch_scc1 {ls}")
        for sc in ("", " sc1"):
            dsc = " sc1" if E("MIXED", 0) else sc
            for t in lst:
                lines = t.strip("\n").split("\n")
                k("\n".join((x + dsc if x.strip().startswith("buffer_store") else x) for x in lines))
            k(f"""
            s_waitcnt vmcnt(0)
            v_mov_b32 v9, 1
            v_mov_b32 v10, {flag_off}
            s_mov_b64 exec, 1
            buffer_store_dword v9, v10, {WS}, s{flag_s} offen{sc}
            s_mov_b64 exec, -1
            """)
            if sc == "":
                k(f"s_branch {lj}")
                k.lab(ls)
        k.lab(lj)
        vq.reset(); vq.q.append("flag")
    def touch(sreg, dst=9):
        if E("NOTOUCH", 1): return
        k(f"s_cmp_eq_u32 s31, 0")
        k(f"s_cselect_b32 s41, {L.W1P}, s{sreg}")
        vq.op(f"buffer_load_dword v{dst}, v5, {WS}, s41 offen", "touch")

    XR, YR, XF, MT, T = 16, 36, 56, 96, 120
    w1 = Dma(0, 25, 44, L.W1P, 38, 39)
    nob0 = k.newlab("nob0"); join0 = k.newlab("join0")
    k(f"""
    s_cmp_ge_u32 s29, 18
    s_cbranch_scc1 {nob0}
    s_lshl_b32 s46, s28, 8
    s_lshl_b32 s47, s29, 4
    s_add_u32 s46, s46, s47
    s_sub_u32 s46, s46, 16               ; global row of tile row 0 (signed)
    s_lshl_b32 s47, s30, 2
    s_add_u32 s47, s47, s46              ; first row of the wave
    v_add_u32 v11, s47, v3               ; global row
    v_mul_lo_u32 v6, v11, s48
    """.replace("v_mul_lo_u32 v6, v11, s48", "s_movk_i32 s48, 1280\n    v_mul_lo_u32 v6, v11, s48"))
    k("v_lshl_add_u32 v6, v4, 4, v6")
    for t in range(5):
        vq.op(f"buffer_load_dwordx4 {vr(XR+4*t,4)}, v6, {QS}, 0 offen offset:{256*t}", "q")
    if E("PROFQ", 0): stamp()
    k(f"""
    s_mul_i32 s47, s29, 20480
    s_mul_i32 s48, s30, 5120
    s_add_u32 s47, s47, s48
    s_add_u32 s47, s47, s36
    v_add_u32 v12, s47, v2
    s_add_u32 s48, s48, {YL}
    s_mov_b32 m0, s48
    s_nop 0
    """)
    for i in range(4):
        vq.op(f"buffer_load_dwordx4 v12, {WS}, 0 offen offset:{1024*i} lds", "y")
    k(f"""
    s_add_u32 s48, s48, 4096
    s_mov_b32 m0, s48
    s_movk_i32 s47, 4096
    """)
    vq.op(f"buffer_load_dwordx4 v12, {WS}, s47 offen lds", "y")
    k(f"""
    s_lshl_b32 s47, s30, 12
    s_add_u32 s48, s47, {MODL}
    """)
    for i in range(4):
        k(f"""
        s_add_u32 s41, s47, {1024*i}
        s_min_u32 s41, s41, {15360 - 1024}
        s_add_u32 s41, s41, {L.MODF}
        s_add_u32 m0, s48, {1024*i}
        s_nop 0
        """)
        vq.op(f"buffer_load_dwordx4 v2, {WS}, s41 offen lds", "y")
    if E("PUBLATE", 0): publish()
    w4_b0 = E("NW40", 0)
    k(f"""
    v_lshl_add_u32 v15, s30, 2, v3
    v_lshrrev_b32 v7, 1, v15
    v_and_b32 v9, 7, v4
    v_xor_b32 v7, v7, v9
    v_and_b32 v9, 1, v15
    v_lshl_add_u32 v7, v7, 1, v9
    v_lshlrev_b32 v7, 3, v7
    v_lshl_add_u32 v7, v4, 8, v7
    v_add_u32 v7, {YL}, v7
    v_lshlrev_b32 v10, 5, v4
    v_add_u32 v10, {MODL}, v10
    v_lshrrev_b32 v12, 2, v4
    v_and_b32 v13, 3, v4
    v_lshl_add_u32 v13, v13, 4, v15
    v_lshlrev_b32 v13, 4, v13
    v_lshl_add_u32 v6, v12, 10, v13
    s_movk_i32 s48, 2048
    v_cmp_gt_u32 {"s[50:51]"}, s48, v11
    """)
    S1, S2, N1, N2, ONE = T, T + 1, T + 4, T + 5, T + 6
    k(f"""
    v_mov_b32 v{S1}, 0
    v_mov_b32 v{S2}, 0
    v_mov_b32 v{N1}, 0
    v_mov_b32 v{N2}, 0
    v_mov_b32 v{ONE}, 0x3f803f80
    """)
    vq.wait("q")
    stamp()
    for d in range(20):
        k(f"v_dot2_f32_bf16 v{S1}, v{XR+d}, v{ONE}, v{S1}")
        k(f"v_dot2_f32_bf16 v{S2}, v{XR+d}, v{XR+d}, v{S2}")
        k.unpack(XF + 2*d, XF + 2*d + 1, XR + d)
        if d == 2: small_vectors()
        if d >= 4 and d % 2 == 0 and w1.i < E("NW1A", 8): w1.one()
    k("s_nop 1")
    reduce16(k, S1, S2)
    ln_finish(k, S1, S2, T + 2, 640)
    if E("PROFB0", 0): stamp()
    vq.wait("y")
    if E("PROFB0", 0): stamp()
    k("s_barrier")
    for t in range(5):
        k(f"ds_read_b64 {vr(YR+4*t,2)}, v7 offset:{t*4096}")
        k(f"ds_read_b64 {vr(YR+4*t+2,2)}, v7 offset:{t*4096+128}")
    BC = "op_sel:[0,1,0] op_sel_hi:[1,1,0]"
    TP, TY, MT2 = 144, 152, 160
    MTB = lambda t: (MT if t % 2 == 0 else MT2)
    def modread(t, vecs):
        for vi, vec in enumerate(vecs):
            k(f"ds_read_b128 {vr(MTB(t)+8*vi,4)}, v10 offset:{vec*2560+t*512}")
            k(f"ds_read_b128 {vr(MTB(t)+8*vi+4,4)}, v10 offset:{vec*2560+t*512+16}")
    if E("SPREAD", 0):
        def spread_one():
            if w1.left(): w1.one()
            elif w4.i < E("SPW4", 0): w4.one()
        k.hook = [E("SPREAD", 0), spread_one, 0]
    modread(0, (1, 0, 2))
    for t in range(5):
        M = MTB(t)
        if t < 4:
            modread(t + 1, (1, 0, 2)); k("s_waitcnt lgkmcnt(6)")
        else:
            k("s_waitcnt lgkmcnt(0)")
        D4 = range(4)
        e = lambda d: XF + 8*t + 2*d
        for _ in range((E("NW1B", 0) + 4) // 5):
            if w1.i < E("NW1A", 8) + E("NW1B", 0): w1.one()
        for d in D4: k.unpack(TY + 2*d, TY + 2*d + 1, YR + 4*t + d)
        for d in D4: k(f"v_pk_fma_f32 {vr(TP+2*d,2)}, {vr(e(d),2)}, {vr(S1,2)}, {vr(S1,2)} {BC}")
        for d in D4: k(f"v_pk_fma_f32 {vr(TP+2*d,2)}, {vr(TP+2*d,2)}, {vr(M+2*d,2)}, {vr(M+8+2*d,2)}")
        for _ in range((w4_b0 + 4) // 5):
            if w4.i < w4_b0: w4.one()
        for d in D4: k(f"v_pk_mul_f32 {vr(TP+2*d,2)}, {vr(TP+2*d,2)}, {vr(TY+2*d,2)}")
        for d in D4: k(f"v_pk_fma_f32 {vr(e(d),2)}, {vr(M+16+2*d,2)}, {vr(TP+2*d,2)}, {vr(e(d),2)}")
        for d in D4: k(f"v_cvt_pk_bf16_f32 v{XR+4*t+d}, v{e(d)}, v{e(d)+1}")
        for d in D4:
            if E("XARND", 0):
                k(f"v_lshlrev_b32 v{e(d)}, 16, v{XR+4*t+d}")
                k(f"v_and_b32 v{e(d)+1}, 0xffff0000, v{XR+4*t+d}")
            k(f"v_dot2_f32_bf16 v{N1}, v{XR+4*t+d}, v{ONE}, v{N1}")
            k(f"v_dot2_f32_bf16 v{N2}, v{XR+4*t+d}, v{XR+4*t+d}, v{N2}")
    if E("PROFB0", 0): stamp()
    xid_load(190)
    modread(0, (4, 3))
    k("s_nop 1")
    reduce16(k, N1, N2)
    ln_finish(k, N1, N2, T + 2, 640)
    k(f"v_mov_b32 v{S1}, 0")
    k(f"v_mov_b32 v{S2}, 0")
    for t in range(5):
        M = MTB(t)
        if t < 4:
            modread(t + 1, (4, 3)); k("s_waitcnt lgkmcnt(4)")
        else:
            k("s_waitcnt lgkmcnt(0)")
        e = lambda d: XF + 8*t + 2*d
        for d in range(4): k(f"v_pk_fma_f32 {vr(e(d),2)}, {vr(e(d),2)}, {vr(N1,2)}, {vr(N1,2)} {BC}")
        for d in range(4): k(f"v_pk_fma_f32 {vr(e(d),2)}, {vr(e(d),2)}, {vr(M+2*d,2)}, {vr(M+8+2*d,2)}")
        for d in range(4): k(f"v_cvt_pk_bf16_f32 v{YR+4*t+d}, v{e(d)}, v{e(d)+1}")
        for d in range(4):
            k(f"v_dot2_f32_bf16 v{S1}, v{YR+4*t+d}, v{ONE}, v{S1}")
            k(f"v_dot2_f32_bf16 v{S2}, v{YR+4*t+d}, v{YR+4*t+d}, v{S2}")
    k.hook = None
    k("s_nop 1")
    reduce16(k, S1, S2)
    ln_finish(k, S1, S2, T + 2, 640)
    k(f"""
    v_cndmask_b32 v{S1}, 0, v{S1}, s[50:51]
    v_cndmask_b32 v{S2}, 0, v{S2}, s[50:51]
    s_mul_i32 s46, s29, 20480
    s_add_u32 s46, s46, s36
    s_add_u32 s47, s46, {L.G_XA - 20480}
    s_lshl_b32 s48, s29, 7
    s_add_u32 s48, s48, s36
    s_add_u32 s48, s48, {L.G_ST3}
    v_lshlrev_b32 v12, 3, v15            ; m*8
    s_lshl_b32 s49, s29, 7
    s_add_u32 s49, s49, s37
    s_lshl_b32 s41, s30, 2
    s_add_u32 s49, s49, s41
    """)
    if E("PROFB0", 0): stamp()
    xid_eval(190)
    TL = MODL
    TL = 112 * 1024
    k(f"""
    s_barrier
    v_and_b32 v9, 7, v4
    v_xor_b32 v9, v15, v9                ; m ^ (c&7)
    v_and_b32 v10, 3, v4
    v_lshl_add_u32 v9, v10, 4, v9
    v_lshrrev_b32 v10, 2, v4
    v_lshl_add_u32 v9, v10, 6, v9
    v_lshlrev_b32 v9, 4, v9
    v_add_u32 v9, {TL}, v9
    """)
    for t in range(5):
        k(f"ds_write_b128 v9, {vr(YR+4*t,4)} offset:{4096*t}")
        k(f"ds_write_b128 v9, {vr(XR+4*t,4)} offset:{20480+4096*t}")
    k(f"""
    v_xor_b32 v9, v4, v3
    v_xor_b32 v10, 4, v9
    v_lshl_add_u32 v9, v3, 4, v9
    v_lshl_add_u32 v10, v3, 4, v10
    s_mul_i32 s41, s30, 5120
    s_add_u32 s41, s41, {TL}
    v_lshl_add_u32 v9, v9, 4, s41
    v_lshl_add_u32 v10, v10, 4, s41
    s_cmp_eq_u32 s30, 1
    s_cselect_b32 s41, 1, 0
    s_cmp_eq_u32 s30, 3
    s_cselect_b32 s41, 1, s41
    s_cmp_eq_u32 s41, 1
    v_mov_b32 v11, v9
    s_cbranch_scc0 {"k2_noswap"}
    v_mov_b32 v9, v10
    v_mov_b32 v10, v11
    """)
    k.lab("k2_noswap")
    k(f"""
    s_mul_i32 s41, s30, 5120
    s_add_u32 s46, s46, s41
    s_add_u32 s47, s47, s41
    s_waitcnt lgkmcnt(0)
    s_barrier
    """)
    for i in range(5):
        k(f"ds_read_b128 {vr(YR+4*i,4)}, v{9 + (i & 1)} offset:{1024*i}")
    XAR = 220
    for i in range(5):
        k(f"ds_read_b128 {vr(XAR+4*i,4)}, v{9 + (i & 1)} offset:{20480+1024*i}")
    k("s_add_u32 s52, s46, 4096")
    k(f"""
    s_sub_u32 s41, s29, 1
    s_cmp_lt_u32 s41, 16
    s_cselect_b32 s20, s47, 0x90000000
    """)
    def xa_block(sc):
        _U.n += 1
        lab = f"k2_noxa{_U.n}"
        k(f"s_sub_u32 s41, s29, 1\ns_cmp_ge_u32 s41, 16\ns_cbranch_scc1 {lab}")
        for i in range(5):
            k(f"s_waitcnt lgkmcnt({4-i})")
            k(f"buffer_store_dwordx4 {vr(XR+4*i,4)}, v2, {WS}, s{47 if i < 4 else 53} offen offset:{(i%4)*1024}{sc}")
        k.lab(lab)
    class _U:
        n = 0
    ls = k.newlab("slow"); lj = k.newlab("sent")
    k("s_cmp_eq_u32 s31, 0"); k(f"s_cbranch_scc1 {ls}")
    for sc in ("", " sc1"):
        dsc = " sc1" if E("MIXED", 0) else sc
        for i in range(5):
            k(f"s_waitcnt lgkmcnt({9-i})")
            k(f"buffer_store_dwordx4 {vr(YR+4*i,4)}, v2, {WS}, s{46 if i < 4 else 52} offen offset:{(i%4)*1024}{dsc}")
        k(f"""
        v_cmp_eq_u32 vcc, 0, v4
        s_and_saveexec_b64 s[50:51], vcc
        buffer_store_dwordx2 {vr(S1,2)}, v12, {WS}, s48 offen{dsc}
        s_mov_b64 exec, -1
        """)
        k(f"""
        s_waitcnt vmcnt(0)
        v_mov_b32 v9, 1
        v_mov_b32 v10, {L.F_B0}
        s_mov_b64 exec, 1
        buffer_store_dword v9, v10, {WS}, s49 offen{sc}
        s_mov_b64 exec, -1
        """)
        if sc == "":
            k(f"s_branch {lj}"); k.lab(ls)
    k.lab(lj)
    k("s_mov_b32 s21, s49")
    stamp()
    i0 = w1.i
    w1.some(99)
    k(f"s_branch {join0}")
    w4_done_b0 = w4.i
    k.lab(nob0)
    k("s_mov_b32 s21, 0")
    k("s_mov_b32 s20, 0x90000000")
    w1.i = 0
    k(f"""
    s_mul_i32 s38, s30, {25*1024}
    s_add_u32 s39, s38, s44
    s_add_u32 s39, s39, {L.W1P}
    """)
    if E("PUBLATE", 0): publish()
    if E("XIDFIRST", 1):
        xid_load(190)
        xid_eval(190)
    small_vectors()
    w1.some(99)
    if not E("XIDFIRST", 1):
        xid_load(190)
        xid_eval(190)
    w4.i = 0
    w4.some(w4_done_b0)
    if E("OUTTLB", 1):
        k(f"""
        s_mul_i32 s47, s28, 327680
        s_lshl_b32 s48, s29, 13
        s_add_u32 s47, s47, s48
        v_mov_b32 v101, 0
        s_mov_b64 exec, 1
        buffer_load_dword v102, v101, {OS}, s47 offen
        s_mov_b64 exec, -1
        """)
        if E("GRPTLB", 0):
            k(f"""
            v_lshlrev_b32 v101, 16, v1
            s_mov_b64 exec, {hex((1 << ((L.GS + 65535) // 65536)) - 1)}
            buffer_load_dword v103, v101, {WS}, s36 offen
            s_mov_b64 exec, -1
            """)
    if E("K2TOUCH", 1):
        lt = k.newlab("nt")
        k(f"""
        s_cmp_eq_u32 s31, 0
        s_cbranch_scc1 {lt}
        s_sub_u32 s47, s29, 18
        s_lshl_b32 s47, s47, 2
        s_add_u32 s47, s47, s30              ; 0..55
        s_mul_i32 s48, s47, {6*1024}
        s_min_u32 s48, s48, {327680 - 6*1024}
        s_mul_i32 s49, s28, 327680
        s_add_u32 s48, s48, s49
        s_add_u32 s48, s48, {L.KVR}
        """)
        for i in range(6):
            k(f"buffer_load_dwordx4 {vr(64+4*i,4)}, v2, {WS}, s48 offen offset:{(i%4)*1024}")
            if i == 3: k("s_add_u32 s48, s48, 4096")
        k(f"""
        s_mul_i32 s48, s47, 384
        s_min_u32 s48, s48, {20480 - 384}
        s_add_u32 s48, s48, s36
        s_add_u32 s48, s48, {L.G_ST1}
        s_mov_b64 exec, 7
        buffer_load_dword v100, v5, {WS}, s48 offen
        s_mov_b64 exec, -1
        """)
        k.lab(lt)
    PFM = E("PFM", 0)
    if PFM:
        k(f"""
        s_sub_u32 s47, s29, 18
        s_lshl_b32 s47, s47, 2
        s_add_u32 s47, s47, s30              ; 0..55
        s_mul_i32 s48, s47, {15*1024}
        s_min_u32 s48, s48, {800*1024 - 15*1024}
        s_add_u32 s48, s48, {L.W2P}
        """)
        for _ in range(E("PFSL", 0)): k("s_sleep 127")
        for i in range(15):
            vq.op(f"buffer_load_dwordx4 {vr(64+4*(i%16),4)}, v2, {WS}, s48 offen offset:{(i%4)*1024}", "pf")
            if i % 4 == 3: k("s_add_u32 s48, s48, 4096")
    if PFM >= 2:
        k(f"""
        s_mul_i32 s48, s47, 15
        s_min_u32 s48, s48, {16*52 - 15}
        s_mul_i32 s49, s48, {65536 // 52 + 1}
        s_lshr_b32 s49, s49, 16
        s_mul_i32 s41, s49, 52
        s_sub_u32 s48, s48, s41
        s_mul_i32 s49, s49, 140
        s_add_u32 s48, s48, s49
        s_lshl_b32 s48, s48, 10
        s_add_u32 s48, s48, {L.W3P}
        """)
        for i in range(15):
            vq.op(f"buffer_load_dwordx4 {vr(128+4*(i%16),4)}, v2, {WS}, s48 offen offset:{(i%4)*1024}", "pf")
            if i % 4 == 3: k("s_add_u32 s48, s48, 4096")
    k.lab(join0)
    vq.reset()
    if STOP == 0:
        finish(); k.lab(end); k("s_endpgm"); return k

    GX, GW, GA, GT = 16, 96, 156, 176
    VC = 12
    XPRE = E("XPRE", 4)
    def gemm5(stage, pos0, inloop, xone, kbar=None):
        def wread(ks, nt):
            slot = (pos0 + ks * 5 + nt) % NSLOT
            o = slot * 1024
            k(f"ds_read_b128 {vr(GW+(ks%3)*20+4*nt,4)}, v{14 + (o >> 16)} offset:{o & 0xffff}")
        for ks in range(2):
            for nt in range(5): wread(ks, nt)
        xn = [XPRE]
        for ks in range(20):
            if E("PROFG1", 0) == stage and ks in (0, 1, 2, 5, 10, 15): stamp()
            vq.wait(f"x{ks}")
            k(f"s_waitcnt lgkmcnt({5 if ks < 19 else 0})")
            if ks == kbar: k("s_barrier")
            for nt in range(5):
                c = "0" if ks == 0 else vr(GA + 4*nt, 4)
                k(f"v_mfma_f32_16x16x32_bf16 {vr(GA+4*nt,4)}, {vr(GW+(ks%3)*20+4*nt,4)}, {vr(GX+4*ks,4)}, {c}")
                if ks + 2 < 20 and nt >= 1:
                    wread(ks + 2, nt - 1)
                    if nt == 4: wread(ks + 2, 4)
                if nt in (0, 3) and xn[0] < 20: xone(xn[0]); xn[0] += 1
                if nt in (1, 4): inloop(ks, nt)
    def lds_bases():
        k("v_mov_b32 v14, v2")
        k("v_add_u32 v15, 0x10000, v2")
    def fix_bank(text): return text.replace("v16 offset", "v11 offset")

    k(f"""
    s_lshl_b32 s46, s32, 2
    s_add_u32 s46, s46, s30              ; rt (0..15)
    s_lshr_b32 s47, s33, 1
    s_and_b32 s48, s47, 1
    s_lshr_b32 s47, s47, 1
    s_add_u32 s47, s47, 1                ; |shift|
    s_sub_u32 s49, 0, s47
    s_cmp_eq_u32 s48, 1
    s_cselect_b32 s47, s47, s49
    s_lshl_b32 s49, s46, 4
    s_add_u32 s49, s49, 16
    s_add_u32 s49, s49, s47
    v_add_u32 v9, s49, v4
    v_lshrrev_b32 v10, 4, v9
    v_mul_u32_u24 v6, 20480, v10
    v_and_b32 v10, 15, v9
    v_lshl_add_u32 v10, v3, 4, v10
    v_lshl_add_u32 v6, v10, 4, v6
    v_lshlrev_b32 v13, 3, v9
    s_add_u32 s49, s46, s48
    s_lshl_b32 s49, s49, 7
    s_add_u32 s49, s49, s37
    v_bfe_u32 v7, v1, 2, 1
    v_lshlrev_b32 v7, 7, v7
    v_and_b32 v9, 3, v1
    v_lshl_add_u32 v7, v9, 2, v7
    """)
    poll(49)
    stamp()
    def xload1(vaddr, sb, i):
        k(f"s_add_u32 s41, s{sb}, {(i//4)*4096}")
        vq.op(f"buffer_load_dwordx4 {vr(GX+4*i,4)}, v{vaddr}, {WS}, s41 offen offset:{(i%4)*1024} sc1", f"x{i}")
    for i in range(XPRE): xload1(6, 36, i)
    k(f"s_add_u32 s41, s36, {L.G_ST3}")
    vq.op(f"buffer_load_dwordx2 {vr(GT,2)}, v13, {WS}, s41 offen sc1", "st")
    k("v_mov_b32 v14, v2")
    k("v_add_u32 v15, 0x10000, v2")
    k("v_add_u32 v11, 0x20000, v2")
    k("s_barrier")
    w2a = Dma(100, 13, 44, L.W2P, 38, 39)
    def l2pf(base, i, per, first_s):
        if i == 0:
            k(f"""
            s_lshl_b32 s{first_s}, s29, 2
            s_add_u32 s{first_s}, s{first_s}, s30
            s_mul_i32 s{first_s}, s{first_s}, {per*128}
            s_add_u32 s{first_s}, s{first_s}, {base}
            """)
        n = min(64, per - 64 * i)
        if n < 64: k(f"s_mov_b64 exec, {hex((1 << n) - 1)}")
        vq.op(f"buffer_load_dword v{232+i}, v5, {WS}, s{first_s} offen", "pf")
        if n < 64: k("s_mov_b64 exec, -1")
        k(f"s_add_u32 s{first_s}, s{first_s}, 8192")
    st1 = {"w2b": None, "xa": 0}
    def g1_in(ks, nt):
        if ks < E("G1W", 8): return
        if st1["xa"] < 5 and nt == 4 and not E("XALATE", 0):
            i = st1["xa"]; st1["xa"] += 1
            k(f"s_add_u32 s41, s20, {1024*i}")
            vq.op(f"buffer_store_dwordx4 {vr(XAR+4*i,4)}, v2, {WS}, s41 offen sc1", "xas")
            return
        if w2a.left(): w2a.one(); return
        if st1["w2b"] is None: st1["w2b"] = Dma(152, 12, 44, L.W2P + 52 * 1024, 38, 39)
        if st1["w2b"].left(): st1["w2b"].one()
    n0 = len(k.L)
    gemm5(1, 0, g1_in, lambda i: xload1(6, 36, i), kbar=9)
    k.L[n0:] = [x.replace("v16 offset", "v11 offset") if "ds_read_b128" in x else x for x in k.L[n0:]]
    stamp()
    k("s_barrier")
    while st1["xa"] < 5:
        i = st1["xa"]; st1["xa"] += 1
        k(f"s_add_u32 s41, s20, {1024*i}")
        vq.op(f"buffer_store_dwordx4 {vr(XAR+4*i,4)}, v2, {WS}, s41 offen sc1", "xas")
    w2a.some(99)
    if st1["w2b"] is None: st1["w2b"] = Dma(152, 12, 44, L.W2P + 52 * 1024, 38, 39)
    st1["w2b"].some(99)
    w3a = Dma(200, 13, 45, 0, 38, 39)
    w3a.some(E("NW3A", 13))
    RS = GT
    CSR = GT + 4
    k(f"""
    v_lshlrev_b32 v9, 4, v3
    v_add_u32 v9, {SMALL}, v9
    v_mov_b32 v{VC}, {fhex(C1)}
    v_mov_b32 v{VC+1}, {fhex(C0)}
    """)
    for nt in range(5):
        k(f"ds_read_b128 {vr(CSR+4*nt,4)}, v9 offset:{64*nt}")
        k(f"ds_read_b128 {vr(CSR+20+4*nt,4)}, v9 offset:{512+64*nt}")
    vq.wait("st")
    TT = CSR + 40
    k("s_waitcnt lgkmcnt(0)")
    for nt in range(5):
        cs = CSR + 4*nt
        for i in (0, 2):
            k(f"v_pk_add_f32 {vr(cs+i,2)}, {vr(cs+i,2)}, {vr(cs+20+i,2)}")
    ln_gelu_multi(k, vr, [(GA + 4*nt, CSR + 4*nt, RS) for nt in range(5)], CSR + 20, VC)
    g1pk, prs = pack_tiles(k, [GA + 4*nt for nt in range(5)])
    swap_pairs(k, prs)
    k(f"""
    s_mov_b32 s46, s22
    s_lshl_b32 s41, s33, 2
    s_add_u32 s49, s55, s41              ; + j*4
    """)
    def tile_stores(lst, sb):
        return [(f"buffer_store_dwordx4 {vr(r,4)}, v254, {WS}, s{sb} offen offset:{512*i}" if n == 4 else f"buffer_store_dwordx2 {vr(r,2)}, v8, {WS}, s{sb} offen offset:{512*i}") for r, n, i in lst]
    stores(tile_stores(g1pk, 46), 49, L.F_G1)
    lxa = k.newlab("xas"); lxb = k.newlab("xas"); lxc = k.newlab("xas")
    k(f"""
    s_cmp_eq_u32 s21, 0
    s_cbranch_scc1 {lxc}
    v_mov_b32 v9, 3
    v_mov_b32 v10, {L.F_B0}
    s_mov_b64 exec, 1
    s_cmp_eq_u32 s31, 0
    s_cbranch_scc1 {lxa}
    buffer_store_dword v9, v10, {WS}, s21 offen
    s_branch {lxb}
    """)
    k.lab(lxa)
    k(f"buffer_store_dword v9, v10, {WS}, s21 offen sc1")
    k.lab(lxb)
    k("s_mov_b64 exec, -1")
    k.lab(lxc)
    stamp()
    if STOP == 1:
        finish(); k.lab(end); k("s_endpgm"); return k

    k(f"""
    s_sub_u32 s41, s55, s37
    s_lshr_b32 s41, s41, 7               ; rt
    v_bfe_u32 v7, v1, 3, 2               ; 0..3
    v_min_u32 v7, 2, v7
    v_add_u32 v7, s41, v7
    v_subrev_u32 v7, 1, v7
    v_max_i32 v7, 0, v7
    v_min_i32 v7, 15, v7
    v_lshlrev_b32 v7, 7, v7
    v_and_b32 v9, 7, v1
    v_lshl_add_u32 v7, v9, 2, v7
    s_add_u32 s49, s37, {L.F_G1}
    """)
    poll(49)
    stamp()
    k(f"""
    s_mul_i32 s41, s33, 2560
    s_sub_u32 s47, s22, s41
    """)
    k("s_mov_b32 s52, s47")
    for i in range(XPRE): xload1(2, 52, i)
    HBR = GT
    k(f"s_add_u32 s41, s54, {L.G_HBX + 20480}")
    def pair_loads(reg, sb, tag):
        vq.op(f"buffer_load_dwordx4 {vr(reg,4)}, v254, {WS}, s{sb} offen sc1", tag)
        vq.op(f"buffer_load_dwordx4 {vr(reg+4,4)}, v254, {WS}, s{sb} offen offset:1024 sc1", tag)
        vq.op(f"buffer_load_dwordx2 {vr(reg+8,2)}, v8, {WS}, s{sb} offen offset:2048 sc1", tag)
    def pair_src(reg, nt):
        return reg + (nt // 2) * 4 + (nt % 2) * 2
    HB_S = 48
    k("s_mov_b32 s48, s41")
    k(f"""
    s_sub_u32 s41, s55, s37              ; rt*128
    s_lshl_b32 s41, s41, 3               ; rt*1024
    s_add_u32 s46, s41, s36
    s_add_u32 s46, s46, {L.G_ST1}
    """)
    k("s_barrier")
    st2 = {"w3b": None, "hb": False}
    def g2_in(ks, nt):
        if ks < E("G2W", 8): return
        if not st2["hb"]:
            st2["hb"] = True; pair_loads(HBR, 48, "hb"); return
        if w3a.left(): w3a.one(); return
        if ks < 10: return
        if st2["w3b"] is None: st2["w3b"] = Dma(252, 12, 45, 52 * 1024, 38, 39)
        if st2["w3b"].left(): st2["w3b"].one()
    n0 = len(k.L)
    gemm5(2, 100, g2_in, lambda i: xload1(2, 52, i), kbar=9)
    k.L[n0:] = [x.replace("v16 offset", "v11 offset") if "ds_read_b128" in x else x for x in k.L[n0:]]
    stamp()
    k("s_barrier")
    w3a.some(99)
    if st2["w3b"] is None: st2["w3b"] = Dma(252, 12, 45, 52 * 1024, 38, 39)
    st2["w3b"].some(99)
    w3c = Dma(300, 1, 45, 100 * 1024, 38, 39)
    w3c.some(99)
    w3d = Dma(304, 9, 45, 104 * 1024, 38, 39)
    w3d.some(99)
    TT = GT + 12; ONE = GT + 20; A1 = GT + 22
    k(f"""
    v_mov_b32 v{ONE}, 0x3f803f80
    v_mov_b32 v{A1}, 0
    v_mov_b32 v{A1+1}, 0
    """)
    vq.wait("hb")
    swap_pairs(k, [HBR, HBR + 4])
    k("s_nop 1")
    U = GT + 24
    for nt in range(5):
        p = pair_src(HBR, nt)
        k.unpack(U + 4*nt, U + 4*nt + 1, p); k.unpack(U + 4*nt + 2, U + 4*nt + 3, p + 1)
    for nt in range(5):
        z = GA + 4*nt
        for i in (0, 2):
            k(f"v_pk_add_f32 {vr(z+i,2)}, {vr(z+i,2)}, {vr(U+4*nt+i,2)}")
    g2pk, prs = pack_tiles(k, [GA + 4*nt for nt in range(5)])
    for r, n, i in g2pk:
        for q_ in range(n):
            k(f"v_dot2_f32_bf16 v{A1}, v{r+q_}, v{ONE}, v{A1}")
            k(f"v_dot2_f32_bf16 v{A1+1}, v{r+q_}, v{r+q_}, v{A1+1}")
    k("s_nop 1")
    swap_pairs(k, prs)
    k("s_nop 2")
    reduce_g(k, A1, A1 + 1, TT)
    k(f"""
    s_add_u32 s47, s54, {L.G_X1}
    v_lshlrev_b32 v9, 6, v4              ; m*64
    s_lshl_b32 s41, s33, 3
    s_add_u32 s46, s46, s41
    s_lshl_b32 s41, s33, 2
    s_add_u32 s49, s55, s41
    v_mov_b32 v11, v9
    """)
    st = tile_stores(g2pk, 47)
    st.append(f"s_mov_b64 exec, 0xffff\nbuffer_store_dwordx2 {vr(A1,2)}, v11, {WS}, s46 offen\ns_mov_b64 exec, -1")
    stores(st, 49, L.F_G2)
    stamp()
    if STOP == 2:
        finish(); k.lab(end); k("s_endpgm"); return k

    A3, X3, W3, T3 = 16, 72, 160, 216
    XD = 11
    k(f"""
    s_lshl_b32 s46, s34, 3
    s_lshl_b32 s47, s30, 1
    s_add_u32 s46, s46, s47              ; rt0 = 8c + 2w
    s_lshl_b32 s49, s46, 7
    s_add_u32 s49, s49, {L.F_G2}
    v_bfe_u32 v7, v1, 3, 1
    v_lshlrev_b32 v7, 7, v7
    v_and_b32 v9, 7, v1
    v_lshl_add_u32 v7, v9, 2, v7
    v_add_u32 v7, s49, v7
    s_sub_u32 s49, s55, s37
    s_add_u32 s49, s49, {128 + L.F_B0}
    v_and_b32 v9, 3, v1
    v_lshlrev_b32 v9, 2, v9
    v_add_u32 v9, s49, v9                ; xa flags (value 3) of this wave's output tile
    v_and_b32 v10, 16, v1
    v_cmp_ne_u32 vcc, 0, v10
    v_mov_b32 v11, 1
    v_mov_b32 v10, 3
    v_cndmask_b32 v7, v7, v9, vcc
    v_cndmask_b32 v10, v11, v10, vcc
    """)
    poll(37, 10)
    stamp()
    k(f"""
    s_mul_i32 s47, s46, 20480
    s_add_u32 s47, s47, s36
    s_add_u32 s47, s47, {L.G_X1}
    s_add_u32 s48, s47, 20480
    """)
    def x3load(ks):
        for rt in range(2):
            k(f"s_add_u32 s41, s{47+rt}, {(ks//4)*4096}")
            vq.op(f"buffer_load_dwordx4 {vr(X3+((ks%XD)*2+rt)*4,4)}, v2, {WS}, s41 offen offset:{(ks%4)*1024} sc1", f"x{ks}")
    X3PRE = E("X3PRE", 3)
    for ks in range(X3PRE): x3load(ks)
    SP = T3
    k(f"""
    v_lshlrev_b32 v9, 6, v4
    v_lshl_add_u32 v9, v3, 4, v9
    s_lshl_b32 s41, s46, 10
    s_add_u32 s41, s41, s36
    s_add_u32 s41, s41, {L.G_ST1}
    """)
    for rt in range(2):
        vq.op(f"buffer_load_dwordx4 {vr(SP+4*rt,4)}, v9, {WS}, s41 offen offset:{1024*rt} sc1", "st")
    x3n = [X3PRE]
    k(f"""
    s_mul_i32 s52, s46, 55296
    s_mul_i32 s41, s35, 3584
    s_add_u32 s52, s52, s41
    s_add_u32 s52, s52, s36
    s_add_u32 s52, s52, {L.G_H3}
    s_add_u32 s53, s52, 55296
    """)
    EP = 228
    def g3_extra(ks):
        if ks in (10, 11) and not E("H3SC1", 1):
            k("s_mov_b64 exec, 0xfffffff")
            touch(52 + ks - 10, 248)
            k("s_mov_b64 exec, -1")
        if ks in (13, 14):
            off = L.G_XA if ks == 13 else L.G_X1
            k(f"s_add_u32 s48, s54, {off}")
            pair_loads(EP + (ks - 13) * 10, 48, "ep")
    k("s_barrier")
    def w3read(ks, nt):
        slot = (200 + ks * 7 + nt) % NSLOT
        o = slot * 1024
        a = {0: 14, 1: 15, 2: 11}[o >> 16]
        k(f"ds_read_b128 {vr(W3+(ks&1)*28+4*nt,4)}, v{a} offset:{o & 0xffff}")
    k("v_add_u32 v11, 0x20000, v2")
    RS3 = T3 + 8
    n0_ = len(k.L)
    for rt in range(2):
        s_ = SP + 4*rt
        k(f"v_add_f32 v{RS3+2*rt}, v{s_}, v{s_+2}")
        k(f"v_add_f32 v{RS3+2*rt+1}, v{s_+1}, v{s_+3}")
        reduce_g(k, RS3 + 2*rt, RS3 + 2*rt + 1, SP)
        ln_finish(k, RS3 + 2*rt, RS3 + 2*rt + 1, SP, 640)
    stat_ops = k.L[n0_:]; del k.L[n0_:]
    for nt in range(7): w3read(0, nt)
    for ks in range(20):
        assert x3n[0] > ks
        if not E("NOXW", 0): vq.wait(f"x{ks}")
        if E("PROFG3", 0) and ks in (1, 2, 5, 10, 15): stamp()
        for nt in range(7):
            if not E("NOLW", 0): k(f"s_waitcnt lgkmcnt({6 if ks < 19 else 6 - nt})")
            for rt in range(2):
                a = A3 + (rt*7 + nt) * 4
                c = "0" if ks == 0 else vr(a, 4)
                k(f"v_mfma_f32_16x16x32_bf16 {vr(a,4)}, {vr(W3+(ks&1)*28+4*nt,4)}, {vr(X3+((ks%XD)*2+rt)*4,4)}, {c}")
            if ks < 19 and not E("NODS", 0): w3read(ks + 1, nt)
            if nt in (1, 4) and x3n[0] < 20 and x3n[0] < ks + min(XD, E("X3D", 8)) and (nt == 1 or x3n[0] < ks + E("X3D", 8) - 1):
                x3load(x3n[0]); x3n[0] += 1
            if nt in (2, 3, 5) and ks >= E("W4K0", 1) and w4.left(): w4.one()
            if nt == 6 and ks >= E("W4K1", 12) and w4.left(): w4.one()
            if nt == 6: g3_extra(ks)
            if ks >= 5:
                for _ in range(2):
                    if stat_ops: k.L.append(stat_ops.pop(0))
    stamp()
    assert not stat_ops
    def wx_loads():
        assert w4.left() == 0
        for i in range(6):
            vq.op(f"buffer_load_dwordx4 {vr(192+4*i,4)}, v2, {WS}, s40 offen offset:{(i%4)*1024}", "wx")
            if i == 3: k("s_add_u32 s40, s40, 4096")
    if E("WXEARLY", 0):
        w4.some(99)
        wx_loads()
    CS3 = X3
    TT = W3
    k(f"""
    v_lshlrev_b32 v9, 4, v3
    v_add_u32 v9, {SMALL + 1024}, v9
    v_mov_b32 v{VC}, {fhex(C1)}
    v_mov_b32 v{VC+1}, {fhex(C0)}
    """)
    for nt in range(7):
        k(f"ds_read_b128 {vr(CS3+4*nt,4)}, v9 offset:{64*nt}")
        k(f"ds_read_b128 {vr(CS3+28+4*nt,4)}, v9 offset:{512+64*nt}")
    k("s_waitcnt lgkmcnt(0)")
    for nt in range(7):
        cs = CS3 + 4*nt
        for i in (0, 2):
            k(f"v_pk_add_f32 {vr(cs+i,2)}, {vr(cs+i,2)}, {vr(cs+28+i,2)}")
    k(f"""
    s_lshl_b32 s49, s34, 2
    s_add_u32 s49, s49, s30
    s_lshl_b32 s49, s49, 7
    s_add_u32 s49, s49, s37
    s_lshl_b32 s41, s35, 2
    s_add_u32 s49, s49, s41
    """)
    def st_variants(emit):
        if E("MIXED", 0) or E("H3SC1", 1):
            emit(" sc1"); return
        ls = k.newlab("slow"); lj = k.newlab("sent")
        k("s_cmp_eq_u32 s31, 0"); k(f"s_cbranch_scc1 {ls}")
        emit(""); k(f"s_branch {lj}"); k.lab(ls); emit(" sc1"); k.lab(lj)
    for gi, n0_ in enumerate(range(0, 7, 2)):
        nts = list(range(n0_, min(n0_ + 2, 7)))
        tl = [(A3 + (rt*7 + nt) * 4, CS3 + 4*nt, RS3 + 2*rt) for nt in nts for rt in range(2)]
        ln_gelu_multi(k, vr, tl, TT, VC)
        pks = []
        prs_all = []
        for rt in range(2):
            pk, prs = pack_tiles(k, [A3 + (rt*7 + nt) * 4 for nt in nts])
            pks.append(pk[0]); prs_all += prs
        if prs_all: swap_pairs(k, prs_all)
        done = k.newlab("gs")
        if gi >= 2:
            k("s_cmp_eq_u32 s35, 15"); k(f"s_cbranch_scc1 {done}")
        if gi == 1:
            k("s_cmp_eq_u32 s35, 15")
            k("s_cselect_b32 s46, 0xffff, -1")
            k("s_mov_b32 exec_lo, s46"); k("s_mov_b32 exec_hi, s46")
        def emit(sc, pks=pks, n0_=n0_):
            for rt in range(2):
                r, n, i = pks[rt]
                if n == 4: k(f"buffer_store_dwordx4 {vr(r,4)}, v254, {WS}, s{52+rt} offen offset:{512*n0_}{sc}")
                else: k(f"buffer_store_dwordx2 {vr(r,2)}, v8, {WS}, s{52+rt} offen offset:{512*n0_}{sc}")
        st_variants(emit)
        if gi == 1: k("s_mov_b64 exec, -1")
        k.lab(done)
        if gi == 0: w4.some(99)
    ls = k.newlab("slow"); lj = k.newlab("sent")
    k(f"""
    s_waitcnt vmcnt(0)
    v_mov_b32 v9, 1
    v_mov_b32 v10, {L.F_G3}
    s_mov_b64 exec, 1
    s_cmp_eq_u32 s31, 0
    s_cbranch_scc1 {ls}
    buffer_store_dword v9, v10, {WS}, s49 offen
    s_branch {lj}
    """)
    k.lab(ls)
    k(f"buffer_store_dword v9, v10, {WS}, s49 offen sc1")
    k.lab(lj)
    k("s_mov_b64 exec, -1")
    vq.reset()
    stamp()
    if STOP == 3:
        finish(); k.lab(end); k("s_endpgm"); return k

    A4, X4, WX, T4 = 16, 96, 192, 216
    XD4 = 6
    if not E("WXEARLY", 0): wx_loads()
    k(f"""
    s_and_b32 s41, s32, 1
    s_lshl_b32 s41, s41, 1
    s_lshl_b32 s49, s34, 2
    s_add_u32 s49, s49, s41
    s_lshl_b32 s49, s49, 7
    s_add_u32 s49, s49, s37
    s_lshl_b32 s41, s30, 4
    s_add_u32 s49, s49, s41              ; + 4w flags
    s_add_u32 s49, s49, {L.F_G3}
    v_bfe_u32 v7, v1, 2, 1
    v_lshlrev_b32 v7, 7, v7
    v_and_b32 v9, 3, v1
    v_lshl_add_u32 v7, v9, 2, v7
    """)
    for i in range(4):
        k(f"""
        s_add_u32 s41, s30, {i}
        s_and_b32 s41, s41, 3
        s_lshl_b32 s46, s32, 2
        s_add_u32 s41, s41, s46
        s_mul_i32 s41, s41, 55296
        s_mul_i32 s46, s30, {14*1024}
        s_add_u32 s41, s41, s46
        s_add_u32 s41, s41, s36
        s_add_u32 s{50+i}, s41, {L.G_H3}
        """)
    poll(49)
    stamp()
    def x4load(ks, guard=False):
        for i in range(4):
            k(f"s_add_u32 s41, s{50+i}, {(ks//4)*4096}")
            vq.op(f"buffer_load_dwordx4 {vr(X4+((ks%XD4)*4+i)*4,4)}, v2, {WS}, s41 offen offset:{(ks%4)*1024} sc1", f"x{ks}")
    def x4one(ks, i):
        k(f"s_add_u32 s41, s{50+i}, {(ks//4)*4096}")
        vq.op(f"buffer_load_dwordx4 {vr(X4+((ks%XD4)*4+i)*4,4)}, v2, {WS}, s41 offen offset:{(ks%4)*1024} sc1", f"x{ks}")
    X4PRE = E("X4PRE", 2)
    for ks in range(X4PRE): x4load(ks)
    x4q = [(ks, i) for ks in range(X4PRE, 14) for i in range(4)]
    skip = k.newlab("k4skip")
    def wfrag(idx): return ar(4*idx, 4) if idx < 64 else vr(WX + 4*(idx - 64), 4)
    for ks in range(14):
        if ks == 12:
            k("s_cmp_eq_u32 s30, 3"); k(f"s_cbranch_scc1 {skip}")
        assert not any(q[0] <= ks for q in x4q)
        vq.wait(f"x{ks}")
        for nt in range(5):
            for i in range(4):
                a = A4 + (i*5 + nt) * 4
                c = "0" if ks == 0 else vr(a, 4)
                k(f"v_mfma_f32_16x16x32_bf16 {vr(a,4)}, {wfrag(ks*5+nt)}, {vr(X4+((ks%XD4)*4+i)*4,4)}, {c}")
            for _ in range(2 if (nt in (1, 3) and x4q and x4q[0][0] < ks + E("X4D", 4)) else 1):
                if x4q and x4q[0][0] - XD4 < ks and (nt >= 1 or x4q[0][0] - XD4 < ks - 1):
                    x4one(*x4q.pop(0))
    k.lab(skip)
    stamp()
    k(f"""
    s_waitcnt vmcnt(0)
    s_barrier
    """)
    for i in range(1, 4):
        k(f"""
        s_add_u32 s41, s30, {i}
        s_and_b32 s41, s41, 3
        s_mul_i32 s41, s41, {15*1024}
        s_add_u32 s41, s41, {(i-1)*5*1024}
        v_add_u32 v{9}, s41, v2
        """)
        for nt in range(5):
            k(f"ds_write_b128 v9, {vr(A4+(i*5+nt)*4,4)} offset:{1024*nt}")
    GB = X4
    PB = X4 + 20
    k(f"""
    v_lshlrev_b32 v10, 4, v3
    v_add_u32 v10, {SMALL + 2048}, v10
    """)
    for nt in range(5):
        k(f"ds_read_b128 {vr(GB+4*nt,4)}, v10 offset:{64*nt}")
    k(f"""
    s_mul_i32 s41, s30, {15*1024}
    v_add_u32 v9, s41, v2
    s_waitcnt lgkmcnt(0)
    s_barrier
    """)
    for i in range(15):
        k(f"ds_read_b128 {vr(PB+4*i,4)}, v9 offset:{1024*i}")
    k(f"""
    s_lshl_b32 s46, s32, 2
    s_add_u32 s46, s46, s30
    s_lshl_b32 s46, s46, 4
    s_lshl_b32 s47, s28, 8
    s_add_u32 s46, s46, s47
    v_add_u32 v10, s46, v4
    v_mul_u32_u24 v10, 1280, v10
    v_lshl_add_u32 v10, v3, 3, v10
    s_mul_i32 s47, s33, 160
    """)
    TT = 248
    swap_pairs(k, [EP, EP + 4, EP + 10, EP + 14])
    k("s_waitcnt lgkmcnt(0)")
    for s_ in range(3):
        for nt in range(5):
            z = A4 + 4*nt
            for i in (0, 2):
                k(f"v_pk_add_f32 {vr(z+i,2)}, {vr(z+i,2)}, {vr(PB+(s_*5+nt)*4+i,2)}")
    U = PB
    for nt in range(5):
        p = pair_src(EP + 10, nt)
        k.unpack(U + 4*nt, U + 4*nt + 1, p); k.unpack(U + 4*nt + 2, U + 4*nt + 3, p + 1)
        p = pair_src(EP, nt)
        k.unpack(U + 20 + 4*nt, U + 20 + 4*nt + 1, p); k.unpack(U + 20 + 4*nt + 2, U + 20 + 4*nt + 3, p + 1)
    for nt in range(5):
        z = A4 + 4*nt
        for i in (0, 2):
            k(f"v_pk_add_f32 {vr(z+i,2)}, {vr(z+i,2)}, {vr(U+4*nt+i,2)}")
    for nt in range(5):
        z = A4 + 4*nt
        for i in (0, 2):
            k(f"v_pk_fma_f32 {vr(z+i,2)}, {vr(z+i,2)}, {vr(GB+4*nt+i,2)}, {vr(U+20+4*nt+i,2)}")
    g4pk, prs = pack_tiles(k, [A4 + 4*nt for nt in range(5)])
    swap_pairs(k, prs)
    k("""
    v_and_b32 v9, 1, v3
    v_lshlrev_b32 v9, 5, v9
    v_lshrrev_b32 v11, 1, v3
    v_lshl_add_u32 v9, v11, 4, v9
    v_lshlrev_b32 v11, 3, v3
    v_sub_u32 v11, v10, v11
    v_add_u32 v11, v11, v9
    """)
    osc = " sc1" if E("OUTSC1", 0) else ""
    for r, n, i in g4pk:
        if n == 4: k(f"buffer_store_dwordx4 {vr(r,4)}, v11, {OS}, s47 offen offset:{32*i}{osc}")
        else: k(f"buffer_store_dwordx2 {vr(r,2)}, v10, {OS}, s47 offen offset:{32*i}{osc}")
    stamp()
    finish()
    k.lab(end)
    k("s_endpgm")
    return k

def kernels(Kern, vr):
    return [gen_chain(Kern, vr)]
```

```python
import sys, os
sys.path.insert(0, os.path.dirname(os.path.abspath(__file__)))
import layout as L

NAME = "adaLN_cond__ssm_conv_h3__mixer_s_mlp__prompt"
SZ_SD = 2048 * 640 * 2

class Kern:
    def __init__(self, name, grid, block, lds, vgpr=256, sgpr=102, agpr=0):
        self.name, self.grid, self.block, self.lds = name, grid, block, lds
        self.vgpr, self.sgpr, self.agpr = vgpr, (102 if (os.environ.get("PROF") or os.environ.get("PROFK1")) else sgpr), agpr
        self.L = []
        self.nlab = 0
    def __call__(self, s):
        for ln in s.strip("\n").split("\n"):
            ln = ln.strip()
            if ln:
                self.L.append("    " + ln)
                h = getattr(self, "hook", None)
                if h and ln.startswith("v_"):
                    h[2] += 1
                    if h[2] % h[0] == 0:
                        self.hook = None
                        h[1]()
                        self.hook = h
    def lab(self, s):
        self.L.append(s + ":")
    def newlab(self, p="L"):
        self.nlab += 1
        return f"{self.name}_{p}{self.nlab}"
    def srd(self, d, b, size, off=0):
        if off:
            self(f"s_add_u32 s{d}, s{b}, {off}")
            self(f"s_addc_u32 s{d+1}, s{b+1}, 0")
        else:
            self(f"s_mov_b32 s{d}, s{b}")
            self(f"s_mov_b32 s{d+1}, s{b+1}")
        self(f"s_mov_b32 s{d+2}, {size}")
        self(f"s_mov_b32 s{d+3}, 0x00020000")
    def round2(self, a, b, t):
        self(f"v_cvt_pk_bf16_f32 v{t}, v{a}, v{b}")
        self(f"v_lshlrev_b32 v{a}, 16, v{t}")
        self(f"v_and_b32 v{b}, 0xffff0000, v{t}")
    def unpack(self, lo, hi, src):
        self(f"v_lshlrev_b32 v{lo}, 16, v{src}")
        self(f"v_and_b32 v{hi}, 0xffff0000, v{src}")
    def stamp(self, i):
        if os.environ.get("PROFK1"):
            self(f"s_memtime s[{80+2*i}:{81+2*i}]")
    def stamp_end(self, n):
        if os.environ.get("PROFK1"):
            l = self.newlab("prof")
            self(f"""
            s_waitcnt lgkmcnt(0)
            s_cmp_lg_u32 s2, {int(os.environ.get("PROFWG", "0"))}
            s_cbranch_scc1 {l}
            s_load_dwordx2 s[76:77], s[0:1], 112
            s_waitcnt lgkmcnt(0)
            s_mov_b32 s78, 256
            s_mov_b32 s79, 0x00020000
            v_mov_b32 v1, 0
            """)
            for i in range(n):
                self(f"s_sub_u32 s75, s{80+2*i}, s80")
                self(f"v_mov_b32 v2, s75")
                self(f"buffer_store_dword v2, v1, s[76:79], 0 offen offset:{4*i}")
            self.lab(l)
    def text(self):
        sc = self.name in os.environ.get("SC1", "k1_kernel").split(",")
        Ls = [(l + " sc1" if (sc and l.strip().startswith("buffer_store") and " sc1" not in l and "NOSC" not in l) else l.replace(" NOSC", "")) for l in self.L]
        return (f".globl {self.name}\n.p2align 8\n.type {self.name},@function\n{self.name}:\n" + "\n".join(Ls) + "\n")
    def kd(self):
        acc = (self.vgpr + 3) // 4 * 4
        nfv = self.vgpr if not self.agpr else acc + self.agpr
        return f""".p2align 6
.amdhsa_kernel {self.name}
  .amdhsa_next_free_vgpr {nfv}
  .amdhsa_next_free_sgpr {self.sgpr}
  .amdhsa_accum_offset {acc}
  .amdhsa_group_segment_fixed_size 0
  .amdhsa_kernarg_size 128
  .amdhsa_user_sgpr_count 2
  .amdhsa_user_sgpr_kernarg_segment_ptr 1
  .amdhsa_system_sgpr_workgroup_id_x 1
  .amdhsa_float_denorm_mode_32 3
.end_amdhsa_kernel
"""

def vr(a, n):
    return f"v[{a}:{a+n-1}]"

MERGE = os.environ.get("MERGE", "0") == "1"
CNT_OFF = 128

def signal(k, cnt_sgpr_or_imm):
    l = k.newlab("sig")
    k(f"""
    s_mov_b64 exec, -1
    s_waitcnt vmcnt(0)
    s_barrier
    v_cmp_eq_u32 vcc, 0, v0
    s_and_saveexec_b64 s[42:43], vcc
    s_cbranch_execz {l}
    v_mov_b32 v1, 1
    v_mov_b32 v2, {cnt_sgpr_or_imm}
    buffer_atomic_add v1, v2, s[48:51], 0 offen
    """)
    k.lab(l)
    k("s_endpgm")

def poll(k, voff, target, vtmp):
    l = k.newlab("poll"); d = k.newlab("polld")
    k("s_mov_b32 s52, 0")
    k("s_cmp_lg_u32 s20, 0")
    k(f"s_cbranch_scc1 {d}")
    k.lab(l)
    k(f"""
    buffer_load_dword v{vtmp}, v{voff}, s[48:51], 0 offen sc0 sc1
    s_waitcnt vmcnt(0)
    v_readfirstlane_b32 s53, v{vtmp}
    s_add_u32 s52, s52, 1
    s_cmp_ge_u32 s53, {target}
    s_cbranch_scc1 {d}
    s_cmp_ge_u32 s52, 0x100000
    s_cbranch_scc1 {d}
    s_sleep {int(os.environ.get("SLP", 8))}
    s_branch {l}
    """)
    k.lab(d)
    k("s_barrier")

def emit_pack(k, base, idreg="s2", step=None):
    k(f"""
    s_load_dwordx2 s[10:11], s[0:1], 120   ; ws
    s_load_dwordx8 s[12:19], s[0:1], 56    ; w1 w2 w3 w4
    v_lshrrev_b32 v2, 6, v0
    v_and_b32 v1, 63, v0                   ; lane
    v_readfirstlane_b32 s20, v2
    s_waitcnt lgkmcnt(0)
    """)
    k.srd(28, 10, 0x10000000)
    labs = [k.newlab("pk") for _ in range(4)]
    pend = k.newlab("pke")
    k(f"""
    s_sub_u32 s21, {idreg}, {base}
    v_lshrrev_b32 v3, 3, v0                ; row
    v_and_b32 v4, 7, v0                    ; chunk
    v_mul_u32_u24 v5, 144, v3
    v_lshl_add_u32 v5, v4, 4, v5
    v_and_b32 v6, 15, v1
    v_lshrrev_b32 v7, 4, v1                ; g
    v_lshrrev_b32 v8, 2, v6
    v_lshl_add_u32 v8, v7, 3, v8           ; 8g + (i>>2)
    v_mul_u32_u24 v8, 144, v8
    v_and_b32 v9, 3, v6
    v_lshl_add_u32 v8, v9, 3, v8
    s_lshl_b32 s22, s20, 5
    v_add_u32 v8, s22, v8
    v_lshlrev_b32 v9, 4, v1                ; lane*16
    s_cmp_lt_u32 s21, 10
    s_cbranch_scc1 {labs[0]}
    s_cmp_lt_u32 s21, 20
    s_cbranch_scc1 {labs[1]}
    s_cmp_lt_u32 s21, 48
    s_cbranch_scc1 {labs[2]}
    s_cmp_lt_u32 s21, 78
    s_cbranch_scc1 {labs[3]}
    s_branch {pend}
    """)
    for m in range(4):
        k.lab(labs[m])
        N = [640, 640, 1728, 640][m]; Kd = [640, 640, 640, 1728][m]
        pitch = N * 2
        nks = 10 if m < 3 else 9
        ub = [0, 10, 20, 48][m]
        ncb = N // 64
        npr = (ncb + 1) // 2
        k.srd(24, 12 + 2*m, Kd * N * 2)
        magic = {5: (52429, 18), 14: (4682, 16)}[npr]
        k(f"""
        s_sub_u32 s32, s21, {ub}
        s_mul_i32 s33, s32, {magic[0]}
        s_lshr_b32 s33, s33, {magic[1]}      ; kq
        s_mul_i32 s34, s33, {npr}
        s_sub_u32 s34, s32, s34
        s_lshl_b32 s34, s34, 1
        v_mul_u32_u24 v10, {pitch}, v3
        v_lshl_add_u32 v10, v4, 4, v10
        s_mul_i32 s35, s33, {nks*32*pitch}
        s_lshl_b32 s36, s34, 7
        s_add_u32 s35, s35, s36
        """)
        R = [32, 72]
        for h in range(2):
            for i in range(nks):
                k(f"buffer_load_dwordx4 {vr(R[h]+4*i,4)}, v10, s[24:27], s35 offen offset:{128*h}")
                if i < nks - 1:
                    k(f"s_add_u32 s35, s35, {32*pitch}")
            if h == 0: k(f"s_sub_u32 s35, s35, {(nks-1)*32*pitch}")
        nt_ = 7 if m == 2 else 5
        mg = (9363, 16) if nt_ == 7 else (52429, 18)
        perj = [100, 100, 140, 280][m]
        dconst = [i * nt_ * 1024 for i in range(nks)]
        for h in range(2):
            skip = None
            if h == 1:
                k("s_add_u32 s34, s34, 1")
                k("s_barrier")
            k(f"""
            s_lshl_b32 s36, s34, 2
            s_add_u32 s36, s36, s20             ; ntg
            s_mul_i32 s38, s36, {mg[0]}
            s_lshr_b32 s38, s38, {mg[1]}     ; j
            s_mul_i32 s39, s38, {nt_}
            s_sub_u32 s39, s36, s39          ; nt
            s_mul_i32 s37, s38, {perj}
            s_mul_i32 s40, s33, {nks*nt_}
            s_add_u32 s37, s37, s40
            s_add_u32 s37, s37, s39
            s_lshl_b32 s37, s37, 10
            s_add_u32 s37, s37, {[L.W1P, L.W2P, L.W3P, L.W4P][m]}
            """)
            nst = nks + (1 if m in (0, 2) else 0)
            for i in range(nks):
                n_after = (nks - 1 - i) + (nks if h == 0 else nst)
                k(f"s_waitcnt vmcnt({n_after})")
                k(f"ds_write_b128 v5, {vr(R[h]+4*i,4)} offset:{4608*i}")
            k("s_waitcnt lgkmcnt(0)")
            k("s_barrier")
            for i in range(nks):
                k(f"ds_read_b64_tr_b16 {vr(R[h]+4*i,2)}, v8 offset:{4608*i}")
                k(f"ds_read_b64_tr_b16 {vr(R[h]+4*i+2,2)}, v8 offset:{4608*i+576}")
            if m in (0, 2):
                k("v_mov_b32 v12, 0")
                k("v_mov_b32 v13, 0x3f803f80")
            for i in range(nks):
                k(f"s_waitcnt lgkmcnt({2*(nks-1-i)})" if 2*(nks-1-i) <= 15 else "s_waitcnt lgkmcnt(15)")
                k(f"s_add_u32 s38, s37, {dconst[i]}")
                k(f"buffer_store_dwordx4 {vr(R[h]+4*i,4)}, v9, s[28:31], s38 offen" + (" NOSC" if (os.environ.get("WPLAIN") and str(m) in os.environ.get("WPLAIN")) else ""))
                if m in (0, 2):
                    for d in range(4):
                        k(f"v_dot2_f32_bf16 v12, v{R[h]+4*i+d}, v13, v12")
            if m in (0, 2):
                k(f"""
                s_nop 2
                v_mov_b32 v13, v12
                s_nop 1
                v_permlane32_swap_b32 v13, v12
                v_add_f32 v12, v12, v13
                v_mov_b32 v13, v12
                s_nop 1
                v_permlane16_swap_b32 v13, v12
                v_add_f32 v12, v12, v13
                s_mul_i32 s38, s33, {1792*4}
                s_lshl_b32 s39, s36, 6
                s_add_u32 s38, s38, s39
                s_add_u32 s38, s38, {L.CS3P if m == 2 else L.CS1P}
                v_lshlrev_b32 v14, 2, v1
                v_cmp_gt_u32 vcc, 16, v1
                s_and_saveexec_b64 s[40:41], vcc
                buffer_store_dword v12, v14, s[28:31], s38 offen
                s_mov_b64 exec, -1
                """)
        k("s_endpgm")
    k.lab(pend)
    k("s_endpgm")


WREG = 9472
KVL = 4 * 9472
def gen_k1(k=None):
    NMOD = 60; NPF = 32
    MODFIRST = int(os.environ.get("MODFIRST", 0))
    NSIDE = 96 + NPF + (42 if MODFIRST else NMOD)
    GRID = (160 + NSIDE + 7) // 8 * 8
    k = Kern("k1_kernel", GRID, 256, KVL + 10240, vgpr=256, sgpr=72)
    end = "k1_end"; modl = "k1_modf"
    k(f"""
    s_cmp_ge_u32 s2, {GRID}
    s_cbranch_scc1 {end}
    s_load_dwordx4 s[4:7], s[0:1], 32
    s_load_dwordx2 s[10:11], s[0:1], 120   ; ws
    s_load_dwordx4 s[12:15], s[0:1], 8     ; k, v
    s_load_dwordx2 s[8:9], s[0:1], 24      ; shift_k
    v_lshrrev_b32 v2, 6, v0
    v_and_b32 v1, 63, v0                   ; lane
    v_readfirstlane_b32 s20, v2
    s_sub_u32 s54, s2, 160
    s_cmp_ge_u32 s2, 256
    s_cbranch_scc1 k1_side
    s_and_b32 s55, s2, 7                   ; class
    s_lshr_b32 s56, s2, 3                  ; member
    s_lshl_b32 s57, s55, 9
    s_add_u32 s57, s57, {L.KFL}
    v_mov_b32 v250, 0
    s_waitcnt lgkmcnt(0)
    """)
    k.srd(28, 10, 0x10000000)
    k.stamp(0)
    if os.environ.get("PROFMOD"):
        k(f"""
        s_memrealtime s[62:63]
        s_waitcnt lgkmcnt(0)
        s_lshl_b32 s23, s2, 4
        s_add_u32 s23, s23, {(48 << 20) + 4096}
        v_mov_b32 v12, s62
        s_mov_b64 exec, 1
        buffer_store_dword v12, v250, s[28:31], s23 offen
        s_mov_b64 exec, -1
        """)
    if os.environ.get("PROFKV"): k("s_memrealtime s[62:63]")
    k.srd(16, 12, SZ_SD); k.srd(40, 14, SZ_SD); k.srd(44, 8, 640 * 8)
    KR, VR_, SKR, SKF, KF, KVF, T = 10, 32, 48, 56, 72, 116, 150
    k(f"""
    v_mul_u32_u24 v4, 3277, v0
    v_lshrrev_b32 v4, 16, v4               ; rg
    v_mul_u32_u24 v5, 20, v4
    v_sub_u32 v5, v0, v5                   ; cg
    s_lshl_b32 s21, s56, 6
    v_lshl_add_u32 v6, v4, 3, s21
    v_mul_u32_u24 v6, 1280, v6
    s_mul_i32 s22, s55, 160
    v_lshl_add_u32 v7, v5, 3, s22
    v_add_u32 v6, v6, v7
    v_subrev_u32 v8, 3840, v6
    v_add_u32 v9, 5120, v6
    s_movk_i32 s23, 160
    v_cmp_gt_u32 vcc, s23, v0
    s_and_saveexec_b64 s[60:61], vcc
    s_cbranch_execz k1_kvld
    """)
    for r in range(11):
        if r < 3: k(f"buffer_load_dwordx2 {vr(KR+2*r,2)}, v8, s[16:19], 0 offen offset:{1280*r}")
        elif r < 6: k(f"buffer_load_dwordx2 {vr(KR+2*r,2)}, v6, s[16:19], 0 offen offset:{1280*(r-3)}")
        elif r < 7: k(f"buffer_load_dwordx2 {vr(KR+2*r,2)}, v6, s[16:19], 0 offen offset:3840")
        else: k(f"buffer_load_dwordx2 {vr(KR+2*r,2)}, v9, s[16:19], 0 offen offset:{1280*(r-7)}")
    k(f"v_lshlrev_b32 v{T}, 2, v7")
    k(f"buffer_load_dwordx4 {vr(SKR,4)}, v{T}, s[44:47], 0 offen")
    k(f"buffer_load_dwordx4 {vr(SKR+4,4)}, v{T}, s[44:47], 0 offen offset:16")
    for r in range(8):
        if r < 4: k(f"buffer_load_dwordx2 {vr(VR_+2*r,2)}, v6, s[40:43], 0 offen offset:{1280*r}")
        else: k(f"buffer_load_dwordx2 {vr(VR_+2*r,2)}, v9, s[40:43], 0 offen offset:{1280*(r-4)}")
    k.lab("k1_kvld")
    k("s_mov_b64 exec, -1")
    NTL = 0
    k("buffer_load_dword v251, v250, s[28:31], s57 offen sc1")
    if int(os.environ.get("FLWARM", 1)):
        k("v_and_b32 v249, 31, v1")
        k("v_lshlrev_b32 v249, 2, v249")
        k("buffer_load_dword v249, v249, s[28:31], s57 offen offset:256 sc1")
    NTL += 1 + int(os.environ.get("FLWARM", 1))
    if int(os.environ.get("KVTLB", 0)):
        NTL += 1
        k(f"""
        s_mul_i32 s36, s55, {80*L.KVR_CH}
        v_and_b32 v252, 15, v1
        v_mul_u32_u24 v252, {L.KVR_CH*5}, v252
        v_lshrrev_b32 v253, 4, v1
        v_cmp_eq_u32 vcc, 1, v253
        v_and_b32 v254, 15, v1
        v_mul_u32_u24 v254, 0x60000, v254
        v_add_u32 v254, {L.W1P}, v254
        v_add_u32 v252, s36, v252
        v_cndmask_b32 v252, v252, v254, vcc
        buffer_load_dword v253, v252, s[28:31], 0 offen
        """)
    lnc = k.newlab("nc")
    k.srd(24, 4, 640 * 4096)
    k(f"""
    s_cmp_lt_u32 s56, 12
    s_cbranch_scc1 {lnc}
    s_mul_i32 s58, s55, 20
    s_add_u32 s58, s58, s56
    s_sub_u32 s58, s58, 12
    s_lshl_b32 s21, s58, 2
    s_add_u32 s21, s21, s20                 ; ch
    s_mul_i32 s34, s20, {WREG}
    v_lshlrev_b32 v3, 4, v1                 ; lane*16
    s_lshl_b32 s35, s21, 12                 ; ch*4096
    s_add_u32 s36, s34, 256
    s_mov_b32 m0, s36
    s_nop 0
    """)
    for i in range(4):
        k(f"buffer_load_dwordx4 v3, s[24:27], s35 offen offset:{1024*i} lds")
    k.lab(lnc)
    k(f"""
    s_mov_b64 exec, s[60:61]
    s_movk_i32 s23, 160
    v_cmp_gt_u32 vcc, s23, v0
    s_and_b64 exec, exec, vcc
    s_cbranch_execz k1_kvskip
    """)
    k(f"""
    v_sub_u32 v{T}, 7, v4
    v_and_b32 v{T+1}, 7, v5
    v_xor_b32 v{T}, v{T}, v{T+1}
    v_lshlrev_b32 v{T}, 4, v{T}
    v_lshl_add_u32 v{T}, v5, 9, v{T}
    v_add_u32 v{T}, {KVL}, v{T}
    s_cmp_lt_u32 s56, 12
    s_cbranch_scc1 k1_w8
    s_waitcnt vmcnt({12+NTL})
    s_branch k1_w9
    """)
    k.lab("k1_w8")
    k(f"s_waitcnt vmcnt({8+NTL})")
    k.lab("k1_w9")
    for c in range(4):
        k.unpack(SKF + c, SKF + 4 + c, SKR + 2*c)
        k.unpack(SKF + 8 + c, SKF + 12 + c, SKR + 2*c + 1)
    for r in range(11):
        k.unpack(KF + 4*r, KF + 4*r + 1, KR + 2*r)
        k.unpack(KF + 4*r + 2, KF + 4*r + 3, KR + 2*r + 1)
    for p in range(2):
        for s_ in range(8):
            A = KVF + 4*s_ + 2*p
            k(f"v_pk_mul_f32 {vr(A,2)}, {vr(KF+4*s_+2*p,2)}, {vr(SKF+12+2*p,2)}")
        for j in (2, 1, 0):
            for s_ in range(8):
                A = KVF + 4*s_ + 2*p
                k(f"v_pk_fma_f32 {vr(A,2)}, {vr(KF+4*(s_+3-j)+2*p,2)}, {vr(SKF+4*j+2*p,2)}, {vr(A,2)}")
    for s_ in range(8):
        for p in range(2):
            A = KVF + 4*s_ + 2*p
            k.round2(A, A + 1, T + 4 + (2*s_ + p) % 8)
    k("""
    s_cmp_lt_u32 s56, 12
    s_cbranch_scc1 k1_w0
    s_waitcnt vmcnt(%d)
    s_branch k1_w1
    """ % (4 + NTL))
    k.lab("k1_w0")
    k(f"s_waitcnt vmcnt({NTL})")
    k.lab("k1_w1")
    if os.environ.get("PROFKV"): k("s_memrealtime s[64:65]")
    k.stamp(1)
    for s_ in range(8):
        for p in range(2):
            t_ = KF + 4*s_ + 2*p
            k.unpack(t_, t_ + 1, VR_ + 2*s_ + p)
    for s_ in range(8):
        for p in range(2):
            k(f"v_pk_mul_f32 {vr(KVF+4*s_+2*p,2)}, {vr(KVF+4*s_+2*p,2)}, {vr(KF+4*s_+2*p,2)}")
    O2 = KR
    for c in range(4):
        for d in range(4):
            k(f"v_cvt_pk_bf16_f32 v{O2+4*c+d}, v{KVF+4*(7-2*d)+c}, v{KVF+4*(6-2*d)+c}")
    for c in range(4):
        k(f"ds_write_b128 v{T}, {vr(O2+4*c,4)} offset:{128*c}")
    k.lab("k1_kvskip")
    k(f"""
    s_mov_b64 exec, -1
    v_lshrrev_b32 v{T+1}, 3, v0             ; channel (0..31)
    v_and_b32 v{T+2}, 7, v0                 ; unit
    v_lshrrev_b32 v{T+3}, 2, v{T+1}
    v_and_b32 v{T+3}, 7, v{T+3}
    v_xor_b32 v{T+3}, v{T+3}, v{T+2}
    v_lshlrev_b32 v{T+3}, 4, v{T+3}
    v_lshl_add_u32 v{T+3}, v{T+1}, 7, v{T+3}
    v_add_u32 v{T+3}, {KVL}, v{T+3}
    v_mul_u32_u24 v{T+1}, {L.KVR_CH}, v{T+1}
    v_lshl_add_u32 v{T+4}, v{T+2}, 4, v{T+1}
    s_mul_i32 s36, s55, {80*L.KVR_CH}
    s_add_u32 s36, s36, {L.KVR}
    s_lshl_b32 s37, s56, 7
    s_sub_u32 s38, 3968, s37
    s_add_u32 s38, s38, s36                 ; + 3968 - 128*mi
    s_waitcnt lgkmcnt(0)
    s_barrier
    """)
    k.stamp(2)
    for i in range(3):
        k(f"ds_read_b128 {vr(32+4*i,4)}, v{T+3} offset:{4096*i}")
    for i in range(3):
        if i == 2: k("s_movk_i32 s23, 128\nv_cmp_gt_u32 vcc, s23, v0\ns_and_saveexec_b64 s[60:61], vcc\ns_cbranch_execz k1_st2skip")
        k(f"s_waitcnt lgkmcnt({2-i})")
        k(f"buffer_store_dwordx4 {vr(32+4*i,4)}, v{T+4}, s[28:31], s38 offen sc1")
        k(f"s_add_u32 s38, s38, {32*L.KVR_CH}")
    k.lab("k1_st2skip")
    k("s_mov_b64 exec, -1")
    zl = k.newlab()
    k(f"""
    s_cmp_lg_u32 s56, 0
    s_cbranch_scc1 {zl}
    v_mov_b32 v44, 0
    v_mov_b32 v45, 0
    v_mov_b32 v46, 0
    v_mov_b32 v47, 0
    s_add_u32 s36, s36, 4096
    """)
    for i in range(3):
        if i == 2: k(f"s_movk_i32 s23, 128\nv_cmp_gt_u32 vcc, s23, v0\ns_and_b64 exec, exec, vcc\ns_cbranch_execz {zl}")
        k(f"buffer_store_dwordx4 v[44:47], v{T+4}, s[28:31], s36 offen sc1")
        k(f"s_add_u32 s36, s36, {32*L.KVR_CH}")
    k.lab(zl)
    lfl = k.newlab("kf")
    k(f"""
    s_mov_b64 exec, -1
    s_waitcnt vmcnt(0)
    v_add_u32 v251, 1, v251
    """)
    k.stamp(3)
    if os.environ.get("PROFKV"): k("s_memrealtime s[66:67]")
    k(f"""
    s_barrier
    s_cmp_lg_u32 s20, 0
    s_cbranch_scc1 {lfl}
    s_lshl_b32 s23, s56, 2
    s_add_u32 s23, s23, s57
    s_mov_b64 exec, 1
    buffer_store_dword v251, v250, s[28:31], s23 offen offset:256 NOSC
    buffer_store_dword v251, v250, s[28:31], s23 offen offset:128 sc1
    s_mov_b64 exec, -1
    """)
    k.lab(lfl)
    k(f"""
    s_lshl_b32 s54, s56, 3
    s_add_u32 s54, s54, s55
    """)
    if os.environ.get("PROFKV"):
        lq = k.newlab("pq")
        k(f"""
        s_cmp_ge_u32 s56, 12
        s_cbranch_scc1 {lq}
        s_cmp_lg_u32 s20, 0
        s_cbranch_scc1 {lq}
        s_waitcnt lgkmcnt(0)
        s_lshl_b32 s23, s54, 4
        s_add_u32 s23, s23, {48 << 20}
        v_mov_b32 v12, s62
        v_mov_b32 v13, s64
        v_mov_b32 v14, s66
        v_mov_b32 v15, s66
        s_mov_b64 exec, 1
        buffer_store_dwordx4 v[12:15], v250, s[28:31], s23 offen
        s_mov_b64 exec, -1
        """)
        k.lab(lq)
    k(f"""
    s_cmp_lt_u32 s56, 12
    s_cbranch_scc1 k1_side2
    """)
    k("s_mov_b32 s2, s58")
    if os.environ.get("PRIO", "1") == "1": k("s_setprio 3")
    k.stamp(5)
    k(f"""
    s_lshl_b32 s21, s2, 3
    s_add_u32 s22, s6, s21
    s_addc_u32 s23, s7, 0
    s_load_dwordx2 s[32:33], s[22:23], 0
    s_lshl_b32 s21, s2, 2
    s_add_u32 s21, s21, s20                 ; ch
    s_mul_i32 s34, s20, {WREG}
    v_lshlrev_b32 v3, 4, v1                 ; lane*16
    s_mul_i32 s37, s21, {L.KVR_CH}
    s_add_u32 s37, s37, {L.KVR}
    v_lshrrev_b32 v4, 3, v0
    v_mul_u32_u24 v4, 20480, v4
    s_lshr_b32 s38, s2, 1
    s_and_b32 s38, s38, 7
    v_and_b32 v5, 7, v0
    v_xor_b32 v5, s38, v5
    v_lshl_add_u32 v4, v5, 4, v4            ; (t>>3)*20480 + ((t&7)^sw)*16
    s_lshl_b32 s38, s2, 7                   ; cg*128
    """)
    for i in range(5):
        k(f"""
        v_add_u32 v20, {64*i}, v1
        v_mul_u32_u24 v21, 3856, v20
        v_lshrrev_b32 v21, 16, v21             ; n = q/17
        v_mul_u32_u24 v22, 17, v21
        v_sub_u32 v22, v20, v22                ; e
        v_lshlrev_b32 v22, 4, v22
        v_lshlrev_b32 v21, 8, v21
        v_sub_u32 v22, v22, v21
        v_add_u32 v{23+i}, 3840, v22
        """)
    k(f"""
    v_lshl_add_u32 v5, v1, 2, s34
    v_mov_b32 v6, 0
    ds_write_b32 v5, v6
    v_and_b32 v7, 15, v1                    ; n16
    v_bfe_u32 v8, v1, 4, 1                  ; ph
    v_lshrrev_b32 v9, 5, v1                 ; g
    v_mul_u32_u24 v10, 272, v7
    v_lshl_add_u32 v10, v9, 4, v10
    v_add_u32 v10, s34, v10
    v_add_u32 v10, {4352+4}, v10
    v_lshlrev_b32 v11, 2, v8
    v_sub_u32 v10, v10, v11
    v_and_b32 v12, 7, v1
    v_mul_u32_u24 v13, 272, v12
    v_lshl_add_u32 v13, v9, 4, v13
    v_add_u32 v13, s34, v13
    v_add_u32 v13, {4352+4}, v13
    v_sub_u32 v13, v13, v11                 ; vBP
    v_bfe_u32 v11, v1, 3, 1                 ; a'
    v_lshlrev_b32 v11, 4, v11
    v_sub_u32 v11, 16, v11
    v_and_b32 v14, 31, v1
    v_lshlrev_b32 v14, 3, v14
    v_lshl_add_u32 v14, v9, 4, v14
    v_add_u32 v14, s34, v14
    v_add_u32 v14, 8, v14                   ; vA
    v_cmp_ne_u32 vcc, 0, v12
    v_mov_b32 v16, 0
    s_nop 1
    v_cndmask_b32 v15, v16, -1, vcc
    """)
    k("s_waitcnt lgkmcnt(0)")
    AM_ = 176
    for ks in range(8):
        k(f"ds_read_b64 {vr(AM_+4*ks,2)}, v14 offset:{256*7+32*ks}")
        k(f"ds_read_b64 {vr(AM_+4*ks+2,2)}, v14 offset:{256*7+32*ks+8}")
    lw = k.newlab("kw"); lp = k.newlab("kp"); ld = k.newlab("kd"); lb = k.newlab("kb")
    k(f"""
    s_cmp_lg_u32 s20, 0
    s_cbranch_scc1 {lw}
    v_and_b32 v40, 31, v1
    v_lshlrev_b32 v40, 2, v40
    s_mov_b32 s23, 200000
    """)
    lq4 = k.newlab("kq")
    k("s_mov_b64 s[60:61], 0")
    k.lab(lp)
    k(f"""
    buffer_load_dword v41, v40, s[28:31], s57 offen offset:256 sc1
    s_waitcnt vmcnt(0)
    v_cmp_eq_u32 vcc, v251, v41
    s_sub_u32 s23, s23, 1
    s_or_b64 s[60:61], s[60:61], vcc
    s_cmp_eq_u64 s[60:61], -1
    s_cbranch_scc1 {ld}
    s_and_b32 s21, s23, 3
    s_cmp_lg_u32 s21, 0
    s_cbranch_scc1 {lq4}
    buffer_load_dword v41, v40, s[28:31], s57 offen offset:128 sc1
    s_waitcnt vmcnt(0)
    v_cmp_eq_u32 vcc, v251, v41
    s_nop 1
    s_or_b64 s[60:61], s[60:61], vcc
    s_cmp_eq_u64 s[60:61], -1
    s_cbranch_scc1 {ld}
    """)
    k.lab(lq4)
    k(f"""
    s_sleep {os.environ.get("KSLEEP", 2)}
    s_cmp_lg_u32 s23, 0
    s_cbranch_scc1 {lp}
    """)
    k.lab(ld)
    if os.environ.get("PROFKV"):
        k(f"""
        s_memrealtime s[68:69]
        s_waitcnt lgkmcnt(0)
        s_lshl_b32 s23, s56, 3
        s_add_u32 s23, s23, s55
        s_lshl_b32 s23, s23, 4
        s_add_u32 s23, s23, {48 << 20}
        v_mov_b32 v12, s62
        v_mov_b32 v13, s64
        v_mov_b32 v14, s66
        v_mov_b32 v15, s68
        s_mov_b64 exec, 1
        buffer_store_dwordx4 v[12:15], v250, s[28:31], s23 offen
        s_mov_b64 exec, -1
        """)
    k(f"""
    s_cmp_lg_u32 s56, 12
    s_cbranch_scc1 {lw}
    s_mov_b64 exec, 1
    buffer_store_dword v251, v250, s[28:31], s57 offen sc1
    s_mov_b64 exec, -1
    """)
    k.lab(lw)
    k.stamp(4)
    k("s_barrier")
    for i in range(5):
        k(f"s_add_u32 s36, s34, {4352 + 1024*i}")
        k("s_mov_b32 m0, s36")
        if i == 4: k("s_mov_b64 exec, 0xffff")
        else: k("s_nop 0")
        k(f"buffer_load_dwordx4 v{23+i}, s[28:31], s37 offen sc1 lds")
    k("s_mov_b64 exec, -1")
    k("s_waitcnt vmcnt(0) lgkmcnt(0)")
    B0, B1, BP, AX, AY, AP_, AM, APk = 32, 64, 96, 128, 144, 160, 176, 208
    k.stamp(6)
    def aread(reg, off):
        return f"ds_read_b64 {vr(reg,2)}, v14 offset:{off}\n    ds_read_b64 {vr(reg+2,2)}, v14 offset:{off+8}"
    TB = 16
    for ks in range(8):
        k(f"ds_read2_b32 {vr(B1+4*ks,2)}, v10 offset0:{8*ks} offset1:{8*ks+1}")
        k(f"ds_read2_b32 {vr(B1+4*ks+2,2)}, v10 offset0:{8*ks+2} offset1:{8*ks+3}")
    prd = []
    for ks in range(8):
        prd.append(f"ds_read_b32 v{TB+ks}, v10 offset:{32*ks+16}")
    for ks in range(8):
        prd.append(f"ds_read2_b32 {vr(BP+4*ks,2)}, v13 offset0:{8*ks} offset1:{8*ks+1}")
        prd.append(f"ds_read2_b32 {vr(BP+4*ks+2,2)}, v13 offset0:{8*ks+2} offset1:{8*ks+3}")
        prd.append(f"ds_read_b32 v{TB+8+ks}, v13 offset:{32*ks+16}")
    al0 = []; alp = []
    for ks in range(8):
        for d in range(4):
            hi = B1 + 4*ks + d + 1 if d < 3 else TB + ks
            al0.append(f"v_alignbit_b32 v{B0+4*ks+d}, v{hi}, v{B1+4*ks+d}, 16")
            hi = BP + 4*ks + d + 1 if d < 3 else TB + 8 + ks
            alp.append(f"v_alignbit_b32 v{BP+4*ks+d}, v{hi}, v{BP+4*ks+d}, v11")
    DPP = "row_mask:0xf bank_mask:0xf bound_ctrl:0"
    def mfma(acc, a, b, first):
        c = "0" if first else vr(acc, 16)
        k(f"v_mfma_f32_32x32x16_bf16 {vr(acc,16)}, {vr(a,4)}, {vr(b,4)}, {c}")
    def phase(acc, Areg, Breg, first, reads, late, pad=True, rg=8):
        reads = list(reads); late = list(late)
        for ks in range(8):
            mfma(acc, Areg + 4*ks, Breg + 4*ks, first and ks == 0)
            n = (len(reads) + (rg - 1 - ks)) // (rg - ks) if ks < rg else 0
            for s in reads[:n]:
                k(s)
            reads = reads[n:]
            if ks < 2:
                if pad and late and n < 5:
                    k(f"s_nop {4 - n}")
            else:
                n = (len(late) + (7 - ks)) // (8 - ks)
                for s in late[:n]:
                    k(s)
                late = late[n:]
        assert not late and not reads
    def shift_ops(acc, masked):
        if masked:
            return [f"v_and_b32_dpp v{acc+r}, v{acc+r}, v15 row_shr:1 {DPP}" for r in range(16)]
        return [f"v_mov_b32_dpp v{acc+r}, v{acc+r} row_shr:1 {DPP}" for r in range(16)]
    def areads(reg, off):
        o = []
        for ks in range(8):
            o += aread(reg + 4*ks, off + 32*ks).split("\n")
        return o
    epi_a = f"""v_mul_u32_u24 v16, 272, v7
    v_add_u32 v16, s34, v16
    v_add_u32 v16, {4352 + 36}, v16
    v_lshlrev_b32 v17, 2, v8
    v_sub_u32 v16, v16, v17
    v_lshlrev_b32 v17, 5, v9
    v_sub_u32 v16, v16, v17""".split("\n")
    epi_a += [f"ds_read_b32 v{64+r}, v16 offset:{216 - 64*(r>>2) - 8*(r&3)}" for r in range(16)]
    epi_a += f"""s_lshr_b32 s44, s20, 1
    s_and_b32 s45, s20, 1
    s_cmp_eq_u32 s44, 1
    s_cselect_b32 s44, s33, s32
    s_lshl_b32 s46, s44, 16
    s_and_b32 s47, s44, 0xffff0000
    s_cmp_eq_u32 s45, 1
    s_cselect_b32 s44, s47, s46
    v_mul_u32_u24 v18, 264, v7
    v_lshl_add_u32 v18, v9, 5, v18
    v_lshl_add_u32 v18, v8, 2, v18
    v_add_u32 v18, s34, v18
    v_mul_u32_u24 v17, 264, v2
    v_lshl_add_u32 v17, v1, 2, v17""".split("\n")
    if int(os.environ.get("CODEPF2", 0)):
        epi_a.append("s_getpc_b64 s[50:51]\nK1PC2:\ns_add_u32 s50, s50, k2_kernel-K1PC2\ns_addc_u32 s51, s51, 0")
        epi_a += f"""s_sub_u32 s52, s56, 12
    s_lshl_b32 s52, s52, 2
    s_add_u32 s52, s52, s20
    s_lshl_b32 s52, s52, 10
    s_min_u32 s52, s52, (CODE_END-k2_kernel-1020)&0xfffffff0
    v_add_u32 v19, s52, v3
    global_load_dwordx4 v[28:31], v19, s[50:51]""".split("\n")
    tlb_ops = []
    if int(os.environ.get("YTLB", 1)):
        tlb_ops = [f"v_and_b32 v19, 31, v1", f"s_mov_b32 s50, {L.GS // 4 // 16 * 16}", "v_mul_lo_u32 v19, v19, s50", f"s_mov_b32 s50, {L.GRP}",
                   "buffer_load_dword v28, v19, s[28:31], s50 offen"]
    epi_b = []
    for r in range(16):
        epi_b.append(f"v_and_b32 v{80+r}, 0xffff0000, v{64+r}")
        epi_b.append(f"v_lshlrev_b32 v{64+r}, 16, v{64+r}")
    for q in range(7, -1, -1):
        first = (q == 7)
        k("s_waitcnt lgkmcnt(0)")
        apl = areads(APk, 256*(q+8))
        if first:
            for ks in range(8):
                mfma(AY, AM + 4*ks, B1 + 4*ks, ks == 0)
                if ks == 0:
                    for x in prd[:16]: k(x)
                elif ks == 1:
                    for x in prd[16:]: k(x)
                elif ks == 2:
                    k("s_waitcnt lgkmcnt(15)")
                    k("s_waitcnt lgkmcnt(0)")
                    for x in al0[:4]: k(x)
                else:
                    for x in al0[4 + (ks-3)*6: 4 + (ks-2)*6]: k(x)
            k("s_nop 0")
            phase(AX, AM, B0, True, apl, alp[:16] + shift_ops(AY, False) + alp[16:] + ["s_nop 0"])
        else:
            phase(AY, AM, B1, False, apl, shift_ops(AP_, True))
            if q == 5: phase(AX, AM, B0, False, tlb_ops, shift_ops(AY, False))
            elif q > 0: phase(AX, AM, B0, False, [], shift_ops(AY, False))
            else: phase(AX, AM, B0, False, [], epi_a, pad=False)
        k("s_waitcnt lgkmcnt(0)")
        aml = areads(AM, 256*(q-1)) if q > 0 else []
        phase(AP_, APk, BP, first, aml, shift_ops(AX, False) if q > 0 else epi_b, rg=5, pad=(q > 0))
    k.stamp(7)
    k("s_mov_b32 s48, 0x05040100")
    k("s_mov_b32 s49, 0x07060302")
    k("s_nop 11")
    for r in range(16):
        k(f"v_add_f32_dpp v{AX+r}, v{AP_+r}, v{AX+r} row_shr:8 {DPP}")
    k("""
    s_mov_b32 s42, 0xff00ff00
    s_mov_b32 s43, 0xff00ff00
    s_mov_b64 exec, s[42:43]
    """)
    for r in range(16):
        k(f"v_add_f32 v{AY+r}, v{AP_+r}, v{AY+r}")
    k("s_mov_b64 exec, -1")
    for r in range(16):
        k(f"v_fma_f32 v{AX+r}, v{80+r}, s44, v{AX+r}")
        k(f"v_fma_f32 v{AY+r}, v{64+r}, s44, v{AY+r}")
    for r in range(16):
        k(f"v_cvt_pk_bf16_f32 v{32+r}, v{AX+r}, v{AY+r}")
    for r in range(16):
        k(f"ds_write_b32 v18, v{32+r} offset:{64*(r>>2)+8*(r&3)}")
    k(f"""
    s_waitcnt lgkmcnt(0)
    s_barrier
    """)
    Y = 48
    for e in range(4):
        for c in range(4):
            k(f"ds_read_b32 v{Y+4*e+c}, v17 offset:{c*WREG+1056*e}")
    k("s_waitcnt lgkmcnt(0)")
    O = 96
    for e in range(4):
        for hh in range(2):
            a, b = Y + 4*e + 2*hh, Y + 4*e + 2*hh + 1
            k(f"v_perm_b32 v{O+4*e+hh}, v{b}, v{a}, s48")
            k(f"v_perm_b32 v{O+4*e+2+hh}, v{b}, v{a}, s49")
    k(f"""
    v_lshrrev_b32 v20, 3, v0             ; tt
    v_lshrrev_b32 v21, 4, v20            ; tt>>4
    v_and_b32 v22, 15, v20               ; tt&15
    v_mul_u32_u24 v23, 20480, v20
    v_sub_u32 v23, v4, v23
    s_mov_b32 s40, {L.GS}
    v_mul_lo_u32 v24, v21, s40
    v_add_u32 v24, v24, v23
    v_add_u32 v25, 1, v22
    v_mul_u32_u24 v25, 20480, v25
    v_add_u32 v25, v25, v24
    v_cmp_eq_u32 s[42:43], 15, v22
    v_cmp_eq_u32 s[44:45], 0, v22
    v_add_u32 v26, {2*L.GS}, v24
    v_add_u32 v27, {17*20480}, v24
    v_cndmask_b32 v26, v27, v26, s[42:43]
    v_cmp_ne_u32 vcc, 0, v20
    s_and_b64 s[46:47], s[44:45], vcc
    s_or_b64 s[46:47], s[46:47], s[42:43]
    v_cmp_ne_u32 vcc, 31, v20
    s_and_b64 s[52:53], s[42:43], vcc
    s_or_b64 s[52:53], s[52:53], s[44:45]
    s_or_b64 s[44:45], s[44:45], s[42:43]    ; e = 1, 2
    s_add_u32 s39, s38, {L.GRP}
    """)
    for e in range(4):
        k(f"buffer_store_dwordx4 {vr(O+4*e,4)}, v25, s[28:31], s39 offen" + (" NOSC" if os.environ.get("YPLAIN") else ""))
        hl_ = k.newlab("halo")
        k(f"s_mov_b64 exec, {['s[46:47]', 's[44:45]', 's[44:45]', 's[52:53]'][e]}")
        k(f"s_cbranch_execz {hl_}")
        k(f"s_sub_u32 s41, s39, {L.GS}")
        k(f"buffer_store_dwordx4 {vr(O+4*e,4)}, v26, s[28:31], s41 offen" + (" NOSC" if os.environ.get("YPLAIN") else ""))
        k.lab(hl_)
        k("s_mov_b64 exec, -1")
        k(f"s_add_u32 s39, s39, {2*L.GS}")
    k.stamp(8)
    k("s_waitcnt vmcnt(0)")
    k.stamp_end(9)
    k("s_endpgm")

    k.lab("k1_side")
    k(f"""
    s_cmp_ge_u32 s54, {NSIDE}
    s_cbranch_scc1 {end}
    """)
    def side_wait(cnt):
        sp = k.newlab("sw"); sd = k.newlab("sw")
        k(f"""
        s_cmp_lg_u32 s20, 0
        s_cbranch_scc1 {sd}
        s_and_b32 s55, s2, 7
        s_lshl_b32 s57, s55, 9
        s_add_u32 s57, s57, {L.KFL}
        v_mov_b32 v250, 0
        v_and_b32 v248, 31, v0
        v_lshlrev_b32 v248, 2, v248
        s_waitcnt lgkmcnt(0)
        """)
        k.srd(28, 10, 0x10000000)
        k(f"""
        buffer_load_dword v251, v250, s[28:31], s57 offen sc1
        s_mov_b32 s23, {cnt}
        s_waitcnt vmcnt(0)
        v_add_u32 v251, 1, v251
        """)
        k.lab(sp)
        k(f"""
        buffer_load_dword v249, v248, s[28:31], s57 offen offset:256 sc1
        s_waitcnt vmcnt(0)
        v_cmp_eq_u32 vcc, v251, v249
        s_sub_u32 s23, s23, 1
        s_cmp_eq_u64 vcc, -1
        s_cbranch_scc1 {sd}
        s_sleep {os.environ.get('SSLEEP', 16)}
        s_cmp_lg_u32 s23, 0
        s_cbranch_scc1 {sp}
        """)
        k.lab(sd)
        k("s_barrier")
    if int(os.environ.get("SIDEWAIT", 1)):
        lsx = k.newlab("sx")
        k(f"""
        s_cmp_lt_u32 s54, {96+NPF+int(os.environ.get("NOWAITN", 0))}
        s_cbranch_scc1 {lsx}
        s_mov_b32 s61, s54
        """)
        side_wait(os.environ.get("SWN", 1))
        k("s_mov_b32 s54, s61")
        k.lab(lsx)
    k(f"""
    s_cmp_lt_u32 s54, {96+NPF}
    s_cbranch_scc1 k1_pf
    """)
    if MODFIRST:
        k(f"s_sub_u32 s54, s54, {96+NPF-36}")
        k("s_branch k1_pack0")
        k.lab("k1_side2")
        k(f"""
        s_cmp_lt_u32 s54, {NMOD}
        s_cbranch_scc1 k1_mod0
        s_sub_u32 s54, s54, {NMOD}
        """)
        k.lab("k1_pack0")
        emit_pack(k, 0, "s54", None)
        k.lab("k1_mod0")
    else:
        k("s_branch k1_mod0")
        k.lab("k1_side2")
        emit_pack(k, 0, "s54", None)
        k.lab("k1_mod0")
        k(f"s_sub_u32 s54, s54, {96+NPF}")
    if os.environ.get("PROFMOD"): k("s_memrealtime s[62:63]")
    k("s_waitcnt lgkmcnt(0)")
    k.srd(28, 10, 0x10000000)
    k.lab(modl)
    k("""
    s_load_dwordx4 s[12:15], s[0:1], 88
    s_mov_b32 s32, s54
    v_and_b32 v3, 7, v0              ; cc
    v_lshrrev_b32 v4, 3, v0          ; rsub
    v_lshlrev_b32 v5, 1, v4          ; c offset
    v_mul_u32_u24 v6, 7680, v4
    s_lshl_b32 s36, s32, 7
    v_lshl_add_u32 v7, v3, 4, s36
    v_add_u32 v6, v6, v7
    s_waitcnt lgkmcnt(0)
    """)
    k.srd(16, 12, 1280); k.srd(20, 14, 640 * 7680)
    C, W, A, T = 10, 32, 112, 120
    for it in range(20):
        k(f"buffer_load_ushort v{C+it}, v5, s[16:19], 0 offen offset:{64*it}")
    for it in range(20):
        k(f"s_mov_b32 s37, {it*32*7680}")
        k(f"buffer_load_dwordx4 {vr(W+4*it,4)}, v6, s[20:23], s37 offen")
    k("s_waitcnt vmcnt(20)")
    if os.environ.get("PROFMOD"): k("s_memrealtime s[64:65]")
    for it in range(20):
        k(f"v_lshlrev_b32 v{C+it}, 16, v{C+it}")
        k(f"v_mul_f32 v{T+it}, 0xbfb8aa3b, v{C+it}")
        k(f"v_exp_f32 v{T+it}, v{T+it}")
    for it in range(20):
        k(f"v_add_f32 v{T+it}, 1.0, v{T+it}")
        k(f"v_rcp_f32 v{T+it}, v{T+it}")
    k("s_nop 0")
    for it in range(20):
        k(f"v_mul_f32 v{C+it}, v{C+it}, v{T+it}")
    for it in range(0, 20, 2):
        k.round2(C + it, C + it + 1, T)
    for j in range(8):
        k(f"v_mov_b32 v{A+j}, 0")
    for it in range(20):
        k(f"s_waitcnt vmcnt({19-it})")
        for d in range(4):
            k.unpack(T + 2*d, T + 2*d + 1, W + 4*it + d)
        ce = C + (it & ~1)
        sel = "op_sel:[0,0,0] op_sel_hi:[1,0,1]" if it % 2 == 0 else "op_sel:[0,1,0] op_sel_hi:[1,1,1]"
        for d in range(4):
            k(f"v_pk_fma_f32 {vr(A+2*d,2)}, {vr(T+2*d,2)}, {vr(ce,2)}, {vr(A+2*d,2)} {sel}")
    if os.environ.get("PROFMOD"): k("s_memrealtime s[66:67]")
    k(f"""
    v_lshlrev_b32 v7, 5, v0
    ds_write_b128 v7, {vr(A,4)}
    ds_write_b128 v7, {vr(A+4,4)} offset:16
    s_waitcnt lgkmcnt(0)
    s_barrier
    v_cmp_gt_u32 vcc, 64, v0
    s_and_saveexec_b64 s[42:43], vcc
    s_cbranch_execz {end}
    v_lshlrev_b32 v7, 2, v0
    """)
    for r in range(32):
        k(f"ds_read_b32 v{W+r}, v7 offset:{256*r}")
    k("s_waitcnt lgkmcnt(0)")
    for st in (16, 8, 4, 2, 1):
        for r in range(st):
            k(f"v_add_f32 v{W+r}, v{W+r}, v{W+r+st}")
    a_ = W
    k(f"""
    s_movk_i32 s22, 640
    v_cvt_pk_bf16_f32 v{a_}, v{a_}, v{a_}
    v_lshlrev_b32 v{a_}, 16, v{a_}
    v_add_f32 v{a_+1}, 1.0, v{a_}
    v_cvt_pk_bf16_f32 v{a_+1}, v{a_+1}, v{a_+1}
    v_lshlrev_b32 v{a_+1}, 16, v{a_+1}
    s_lshl_b32 s33, s32, 6
    v_add_u32 v{a_+2}, s33, v0
    v_subrev_u32 v{a_+3}, 640, v{a_+2}
    v_cmp_gt_u32 vcc, 640, v{a_+3}
    v_subrev_u32 v{a_+3}, 2560, v{a_+2}
    v_cmp_gt_u32 s[40:41], s22, v{a_+3}
    s_or_b64 vcc, vcc, s[40:41]
    v_cndmask_b32 v{a_}, v{a_}, v{a_+1}, vcc
    s_lshl_b32 s21, s32, 8
    s_add_u32 s21, s21, {L.MODF}
    buffer_store_dword v{a_}, v7, s[28:31], s21 offen
    """)
    if os.environ.get("PROFMOD"):
        k(f"""
        s_waitcnt vmcnt(0)
        s_memrealtime s[68:69]
        s_waitcnt lgkmcnt(0)
        s_lshl_b32 s23, s32, 4
        s_add_u32 s23, s23, {48 << 20}
        v_mov_b32 v12, s62
        v_mov_b32 v13, s64
        v_mov_b32 v14, s66
        v_mov_b32 v15, s68
        v_mov_b32 v16, 0
        s_mov_b64 exec, 1
        buffer_store_dwordx4 v[12:15], v16, s[28:31], s23 offen
        """)
    k.lab(end)
    k("s_endpgm")
    k.lab("k1_pf")
    WPX = NPF // 8 * 4
    k(f"""
    s_waitcnt lgkmcnt(0)
    s_load_dwordx2 s[4:5], s[0:1], 0
    v_lshlrev_b32 v3, 7, v1          ; lane*128
    v_lshlrev_b32 v1, 4, v1
    s_sub_u32 s24, s54, 96
    s_lshr_b32 s24, s24, 3
    s_lshl_b32 s24, s24, 2
    s_add_u32 s24, s24, s20
    s_and_b32 s22, s2, 7
    s_mul_i32 s21, s24, {327680 // WPX}
    s_mul_i32 s23, s22, 327680
    s_add_u32 s21, s21, s23
    s_waitcnt lgkmcnt(0)
    """)
    k.srd(16, 4, SZ_SD); k.srd(28, 10, 0x10000000)
    zl2 = k.newlab("zf")
    k(f"""
    s_sub_u32 s36, s54, 96
    s_cmp_ge_u32 s36, 16
    s_cbranch_scc1 {zl2}
    s_lshl_b32 s36, s36, 12
    s_add_u32 s36, s36, {L.FLAGS}
    v_lshlrev_b32 v5, 4, v0
    v_mov_b32 v60, 0
    v_mov_b32 v61, 0
    v_mov_b32 v62, 0
    v_mov_b32 v63, 0
    buffer_store_dwordx4 v[60:63], v5, s[28:31], s36 offen
    """)
    k.lab(zl2)
    if int(os.environ.get("ZST", 1)):
        k(f"""
        s_sub_u32 s36, s54, 96
        s_lshr_b32 s36, s36, 3
        s_mul_i32 s36, s36, 5120
        s_and_b32 s37, s2, 7
        s_mul_i32 s37, s37, {L.GS}
        s_add_u32 s36, s36, s37
        s_add_u32 s36, s36, {L.GRP + L.G_ST1}
        v_lshlrev_b32 v5, 4, v0
        v_mov_b32 v60, 0
        v_mov_b32 v61, 0
        v_mov_b32 v62, 0
        v_mov_b32 v63, 0
        buffer_store_dwordx4 v[60:63], v5, s[28:31], s36 offen
        s_add_u32 s36, s36, 4096
        s_cmp_lg_u32 s20, 0
        s_cbranch_scc1 k1_zst
        buffer_store_dwordx4 v[60:63], v5, s[28:31], s36 offen
        """)
        k.lab("k1_zst")
        k(f"""
        s_and_b32 s37, s2, 7
        s_cmp_eq_u32 s37, 0
        s_cselect_b32 s38, {L.GRP}, 0
        s_cmp_eq_u32 s37, 7
        s_cselect_b32 s38, {L.GRP + 7*L.GS + 17*20480}, s38
        s_cmp_eq_u32 s38, 0
        s_cbranch_scc1 k1_zht
        s_sub_u32 s36, s54, 96
        s_lshr_b32 s36, s36, 3
        s_mul_i32 s36, s36, 5120
        s_add_u32 s36, s36, s38
        buffer_store_dwordx4 v[60:63], v5, s[28:31], s36 offen
        s_add_u32 s36, s36, 4096
        s_cmp_lg_u32 s20, 0
        s_cbranch_scc1 k1_zht
        buffer_store_dwordx4 v[60:63], v5, s[28:31], s36 offen
        """)
        k.lab("k1_zht")
    k("s_getpc_b64 s[40:41]")
    k.lab("k1_pcref")
    k(f"""
    s_sub_u32 s40, s40, k1_pcref-k1_kernel
    s_subb_u32 s41, s41, 0
    s_lshl_b32 s42, s24, 12
    """)
    for i in range(4):
        k(f"""
        s_add_u32 s43, s42, {1024*i}
        s_min_u32 s43, s43, (CODE_END-k1_kernel-1020)&0xfffffff0
        v_add_u32 v6, s43, v1
        global_load_dwordx4 {vr(64+4*i,4)}, v6, s[40:41]
        """)
    if int(os.environ.get("PFW2", 1)):
        k("s_mov_b32 s61, s21")
        k("s_mov_b32 s62, s24")
        k("s_waitcnt vmcnt(0)")
        side_wait(os.environ.get("SWN", 1))
        k("s_mov_b32 s21, s61")
        k("s_mov_b32 s24, s62")
        k.srd(28, 10, 0x10000000)
    if int(os.environ.get("CODEPF3", 0)):
        k("s_getpc_b64 s[40:41]")
        k.lab("k1_pcref3")
        k(f"""
        s_add_u32 s40, s40, k2_kernel-k1_pcref3
        s_addc_u32 s41, s41, 0
        s_lshl_b32 s42, s24, 11
        """)
        for i in range(2):
            k(f"""
            s_add_u32 s43, s42, {1024*i}
            s_min_u32 s43, s43, (CODE_END-k2_kernel-1020)&0xfffffff0
            v_add_u32 v6, s43, v1
            global_load_dwordx4 {vr(64+4*i,4)}, v6, s[40:41]
            """)
    for i in range(0 if os.environ.get("NOQPF") else 327680 // WPX // 1024):
        k(f"buffer_load_dwordx4 {vr(8+4*(i%10),4)}, v1, s[16:19], s21 offen offset:{(i%4)*1024}")
        if i % 4 == 3:
            k("s_add_u32 s21, s21, 4096")
    def lines(sreg, n, dst, bits=""):
        i = 0
        while n > 0:
            c = min(64, n)
            if c < 64: k(f"s_mov_b64 exec, {hex((1 << c) - 1) if c <= 31 else None}" if c <= 31 else f"s_mov_b32 exec_hi, {hex((1 << (c - 32)) - 1)}")
            k(f"buffer_load_dword v{dst+i}, v3, s[28:31], s{sreg} offen{bits}")
            if c < 64: k("s_mov_b64 exec, -1")
            else: k(f"s_add_u32 s{sreg}, s{sreg}, 8192")
            n -= c; i += 1
    k(f"""
    s_mul_i32 s22, s22, {L.GS}
    s_add_u32 s22, s22, {L.GRP}
    """)
    if os.environ.get("WARM"):
        k(f"s_mul_i32 s23, s24, {327680 // WPX}\ns_add_u32 s23, s23, s22\ns_add_u32 s23, s23, {L.G_H1S}")
        lines(23, 2560 // WPX, 48)
        k(f"s_mul_i32 s23, s24, {20480 // WPX}\ns_add_u32 s23, s23, s22\ns_add_u32 s23, s23, {L.G_ST1}")
        lines(23, 160 // WPX, 54)
    if os.environ.get("H3W"):
        k(f"s_mul_i32 s23, s24, 27648\ns_add_u32 s23, s23, s22\ns_add_u32 s23, s23, {L.G_H3}")
        lines(23, 216, 54, " nt")
    if os.environ.get("WPF"):
        lp = k.newlab("pfp"); ld = k.newlab("pfd"); le = k.newlab("pfe")
        k(f"""
        v_and_b32 v4, 1, v0
        v_lshlrev_b32 v4, 7, v4
        v_add_u32 v4, {L.FLAGS + L.F_PK + 128}, v4
        v_and_b32 v6, 1, v0
        v_mul_u32_u24 v6, 34, v6
        v_add_u32 v6, 20, v6                            ; targets 20 / 54
        s_mov_b32 s32, 20000
        """)
        k.lab(lp)
        k(f"""
        buffer_load_dword v5, v4, s[28:31], 0 offen sc1
        s_waitcnt vmcnt(0)
        v_cmp_le_u32 vcc, v6, v5
        s_sub_u32 s32, s32, 1
        s_cmp_eq_u64 vcc, -1
        s_cbranch_scc1 {ld}
        s_cmp_eq_u32 s32, 0
        s_cbranch_scc1 {le}
        s_sleep 64
        s_branch {lp}
        """)
        k.lab(ld)
        WPF = os.environ.get("WPF", "23")
        if "1" in WPF:
            k(f"s_mul_i32 s23, s24, 25600\ns_add_u32 s23, s23, {L.W1P}")
            lines(23, 200, 56)
        if "2" in WPF:
            k(f"s_mul_i32 s23, s24, 25600\ns_add_u32 s23, s23, {L.W2P}")
            lines(23, 200, 60)
        if "3" in WPF:
            k(f"s_mul_i32 s23, s24, {70*1024}\ns_add_u32 s23, s23, {L.W3P}")
            lines(23, 560, 64)
        k.lab(le)
    k("s_waitcnt vmcnt(0)")
    k("s_endpgm")
    return k

def build(kerns, path):
    hdr = open("/code/" + NAME + ".s.ref").read().split("\n")
    com = [l for l in hdr if l.startswith(";") and "@launch" not in l and "Override launch" not in l and "grid=ceil" not in l]
    s = "\n".join(com) + "\n"
    for k in kerns:
        s += f"; @launch kernel={k.name} grid=({k.grid},1,1) block=({k.block},1,1) lds={k.lds}\n"
    s += '.amdgcn_target "amdgcn-amd-amdhsa--gfx950"\n.text\n'
    for k in kerns:
        s += k.text()
    s += "CODE_END:\n    s_endpgm\n"
    s += '.section .rodata,"a"\n'
    for k in kerns:
        s += k.kd()
    open(path, "w").write(s)

if __name__ == "__main__":
    out = sys.argv[1] if len(sys.argv) > 1 else "/code/" + NAME + ".s"
    if MERGE:
        k = Kern("k01_kernel", 864, 256, 46080, vgpr=256, sgpr=64)
        if os.environ.get("ORD") == "kvfirst":
            k("""
            s_cmp_ge_u32 s2, 864
            s_cbranch_scc1 k1_end
            s_cmp_lt_u32 s2, 480
            s_cbranch_scc1 k01_k0
            s_sub_u32 s2, s2, 480
            s_branch k01_k1
            """)
        else:
            k("""
            s_cmp_ge_u32 s2, 864
            s_cbranch_scc1 k1_end
            s_cmp_lt_u32 s2, 160
            s_cbranch_scc1 k01_k1
            s_cmp_lt_u32 s2, 600
            s_cbranch_scc1 k01_a
            s_cmp_lt_u32 s2, 819
            s_cbranch_scc1 k01_b
            s_cmp_lt_u32 s2, 824
            s_cbranch_scc1 k1_end
            s_sub_u32 s2, s2, 384
            s_branch k01_k0
            """)
            k.lab("k01_b")
            k("s_sub_u32 s2, s2, 440")
            k("s_branch k01_k1")
            k.lab("k01_a")
            k("s_sub_u32 s2, s2, 160")
        k.lab("k01_k0")
        gen_k0(k)
        k.lab("k01_k1")
        gen_k1(k)
        kerns = [k]
    else:
        kerns = [gen_k1()]
    try:
        import chain
        kerns += chain.kernels(Kern, vr)
    except ImportError:
        pass
    build(kerns, out)
    print("wrote", out)
```

```python
import sys, os
sys.path.insert(0, os.path.dirname(os.path.abspath(__file__)))
import layout as L

NAME = "adaLN_cond__ssm_conv_h3__mixer_s_mlp__prompt"
SZ_SD = 2048 * 640 * 2

class Kern:
    def __init__(self, name, grid, block, lds, vgpr=256, sgpr=102, agpr=0):
        self.name, self.grid, self.block, self.lds = name, grid, block, lds
        self.vgpr, self.sgpr, self.agpr = vgpr, (102 if (os.environ.get("PROF") or os.environ.get("PROFK1")) else sgpr), agpr
        self.L = []
        self.nlab = 0
    def __call__(self, s):
        for ln in s.strip("\n").split("\n"):
            ln = ln.strip()
            if ln:
                self.L.append("    " + ln)
                h = getattr(self, "hook", None)
                if h and ln.startswith("v_"):
                    h[2] += 1
                    if h[2] % h[0] == 0:
                        self.hook = None
                        h[1]()
                        self.hook = h
    def lab(self, s):
        self.L.append(s + ":")
    def newlab(self, p="L"):
        self.nlab += 1
        return f"{self.name}_{p}{self.nlab}"
    def srd(self, d, b, size, off=0):
        if off:
            self(f"s_add_u32 s{d}, s{b}, {off}")
            self(f"s_addc_u32 s{d+1}, s{b+1}, 0")
        else:
            self(f"s_mov_b32 s{d}, s{b}")
            self(f"s_mov_b32 s{d+1}, s{b+1}")
        self(f"s_mov_b32 s{d+2}, {size}")
        self(f"s_mov_b32 s{d+3}, 0x00020000")
    def round2(self, a, b, t):
        self(f"v_cvt_pk_bf16_f32 v{t}, v{a}, v{b}")
        self(f"v_lshlrev_b32 v{a}, 16, v{t}")
        self(f"v_and_b32 v{b}, 0xffff0000, v{t}")
    def unpack(self, lo, hi, src):
        self(f"v_lshlrev_b32 v{lo}, 16, v{src}")
        self(f"v_and_b32 v{hi}, 0xffff0000, v{src}")
    def stamp(self, i):
        if os.environ.get("PROFK1"):
            self(f"s_memtime s[{80+2*i}:{81+2*i}]")
    def stamp_end(self, n):
        if os.environ.get("PROFK1"):
            l = self.newlab("prof")
            self(f"""
            s_waitcnt lgkmcnt(0)
            s_cmp_lg_u32 s2, {int(os.environ.get("PROFWG", "0"))}
            s_cbranch_scc1 {l}
            s_load_dwordx2 s[76:77], s[0:1], 112
            s_waitcnt lgkmcnt(0)
            s_mov_b32 s78, 256
            s_mov_b32 s79, 0x00020000
            v_mov_b32 v1, 0
            """)
            for i in range(n):
                self(f"s_sub_u32 s75, s{80+2*i}, s80")
                self(f"v_mov_b32 v2, s75")
                self(f"buffer_store_dword v2, v1, s[76:79], 0 offen offset:{4*i}")
            self.lab(l)
    def text(self):
        sc = self.name in os.environ.get("SC1", "k1_kernel").split(",")
        Ls = [(l + " sc1" if (sc and l.strip().startswith("buffer_store") and " sc1" not in l and "NOSC" not in l) else l.replace(" NOSC", "")) for l in self.L]
        return (f".globl {self.name}\n.p2align 8\n.type {self.name},@function\n{self.name}:\n" + "\n".join(Ls) + "\n")
    def kd(self):
        acc = (self.vgpr + 3) // 4 * 4
        nfv = self.vgpr if not self.agpr else acc + self.agpr
        return f""".p2align 6
.amdhsa_kernel {self.name}
  .amdhsa_next_free_vgpr {nfv}
  .amdhsa_next_free_sgpr {self.sgpr}
  .amdhsa_accum_offset {acc}
  .amdhsa_group_segment_fixed_size 0
  .amdhsa_kernarg_size 128
  .amdhsa_user_sgpr_count 2
  .amdhsa_user_sgpr_kernarg_segment_ptr 1
  .amdhsa_system_sgpr_workgroup_id_x 1
  .amdhsa_float_denorm_mode_32 3
.end_amdhsa_kernel
"""

def vr(a, n):
    return f"v[{a}:{a+n-1}]"

MERGE = os.environ.get("MERGE", "0") == "1"
CNT_OFF = 128

def signal(k, cnt_sgpr_or_imm):
    l = k.newlab("sig")
    k(f"""
    s_mov_b64 exec, -1
    s_waitcnt vmcnt(0)
    s_barrier
    v_cmp_eq_u32 vcc, 0, v0
    s_and_saveexec_b64 s[42:43], vcc
    s_cbranch_execz {l}
    v_mov_b32 v1, 1
    v_mov_b32 v2, {cnt_sgpr_or_imm}
    buffer_atomic_add v1, v2, s[48:51], 0 offen
    """)
    k.lab(l)
    k("s_endpgm")

def poll(k, voff, target, vtmp):
    l = k.newlab("poll"); d = k.newlab("polld")
    k("s_mov_b32 s52, 0")
    k("s_cmp_lg_u32 s20, 0")
    k(f"s_cbranch_scc1 {d}")
    k.lab(l)
    k(f"""
    buffer_load_dword v{vtmp}, v{voff}, s[48:51], 0 offen sc0 sc1
    s_waitcnt vmcnt(0)
    v_readfirstlane_b32 s53, v{vtmp}
    s_add_u32 s52, s52, 1
    s_cmp_ge_u32 s53, {target}
    s_cbranch_scc1 {d}
    s_cmp_ge_u32 s52, 0x100000
    s_cbranch_scc1 {d}
    s_sleep {int(os.environ.get("SLP", 8))}
    s_branch {l}
    """)
    k.lab(d)
    k("s_barrier")

def emit_pack(k, base, idreg="s2", step=None):
    k(f"""
    s_load_dwordx2 s[10:11], s[0:1], 120   ; ws
    s_load_dwordx8 s[12:19], s[0:1], 56    ; w1 w2 w3 w4
    v_lshrrev_b32 v2, 6, v0
    v_and_b32 v1, 63, v0                   ; lane
    v_readfirstlane_b32 s20, v2
    s_waitcnt lgkmcnt(0)
    """)
    k.srd(28, 10, 0x10000000)
    labs = [k.newlab("pk") for _ in range(4)]
    pend = k.newlab("pke")
    k(f"""
    s_sub_u32 s21, {idreg}, {base}
    v_lshrrev_b32 v3, 3, v0                ; row
    v_and_b32 v4, 7, v0                    ; chunk
    v_mul_u32_u24 v5, 144, v3
    v_lshl_add_u32 v5, v4, 4, v5
    v_and_b32 v6, 15, v1
    v_lshrrev_b32 v7, 4, v1                ; g
    v_lshrrev_b32 v8, 2, v6
    v_lshl_add_u32 v8, v7, 3, v8           ; 8g + (i>>2)
    v_mul_u32_u24 v8, 144, v8
    v_and_b32 v9, 3, v6
    v_lshl_add_u32 v8, v9, 3, v8
    s_lshl_b32 s22, s20, 5
    v_add_u32 v8, s22, v8
    v_lshlrev_b32 v9, 4, v1                ; lane*16
    s_cmp_lt_u32 s21, 10
    s_cbranch_scc1 {labs[0]}
    s_cmp_lt_u32 s21, 20
    s_cbranch_scc1 {labs[1]}
    s_cmp_lt_u32 s21, 48
    s_cbranch_scc1 {labs[2]}
    s_cmp_lt_u32 s21, 78
    s_cbranch_scc1 {labs[3]}
    s_branch {pend}
    """)
    for m in range(4):
        k.lab(labs[m])
        N = [640, 640, 1728, 640][m]; Kd = [640, 640, 640, 1728][m]
        pitch = N * 2
        nks = 10 if m < 3 else 9
        ub = [0, 10, 20, 48][m]
        ncb = N // 64
        npr = (ncb + 1) // 2
        k.srd(24, 12 + 2*m, Kd * N * 2)
        magic = {5: (52429, 18), 14: (4682, 16)}[npr]
        k(f"""
        s_sub_u32 s32, s21, {ub}
        s_mul_i32 s33, s32, {magic[0]}
        s_lshr_b32 s33, s33, {magic[1]}      ; kq
        s_mul_i32 s34, s33, {npr}
        s_sub_u32 s34, s32, s34
        s_lshl_b32 s34, s34, 1
        v_mul_u32_u24 v10, {pitch}, v3
        v_lshl_add_u32 v10, v4, 4, v10
        s_mul_i32 s35, s33, {nks*32*pitch}
        s_lshl_b32 s36, s34, 7
        s_add_u32 s35, s35, s36
        """)
        R = [32, 72]
        for h in range(2):
            for i in range(nks):
                k(f"buffer_load_dwordx4 {vr(R[h]+4*i,4)}, v10, s[24:27], s35 offen offset:{128*h}")
                if i < nks - 1:
                    k(f"s_add_u32 s35, s35, {32*pitch}")
            if h == 0: k(f"s_sub_u32 s35, s35, {(nks-1)*32*pitch}")
        nt_ = 7 if m == 2 else 5
        mg = (9363, 16) if nt_ == 7 else (52429, 18)
        perj = [100, 100, 140, 280][m]
        dconst = [i * nt_ * 1024 for i in range(nks)]
        for h in range(2):
            skip = None
            if h == 1:
                k("s_add_u32 s34, s34, 1")
                k("s_barrier")
            k(f"""
            s_lshl_b32 s36, s34, 2
            s_add_u32 s36, s36, s20             ; ntg
            s_mul_i32 s38, s36, {mg[0]}
            s_lshr_b32 s38, s38, {mg[1]}     ; j
            s_mul_i32 s39, s38, {nt_}
            s_sub_u32 s39, s36, s39          ; nt
            s_mul_i32 s37, s38, {perj}
            s_mul_i32 s40, s33, {nks*nt_}
            s_add_u32 s37, s37, s40
            s_add_u32 s37, s37, s39
            s_lshl_b32 s37, s37, 10
            s_add_u32 s37, s37, {[L.W1P, L.W2P, L.W3P, L.W4P][m]}
            """)
            nst = nks + (1 if m in (0, 2) else 0)
            for i in range(nks):
                n_after = (nks - 1 - i) + (nks if h == 0 else nst)
                k(f"s_waitcnt vmcnt({n_after})")
                k(f"ds_write_b128 v5, {vr(R[h]+4*i,4)} offset:{4608*i}")
            k("s_waitcnt lgkmcnt(0)")
            k("s_barrier")
            for i in range(nks):
                k(f"ds_read_b64_tr_b16 {vr(R[h]+4*i,2)}, v8 offset:{4608*i}")
                k(f"ds_read_b64_tr_b16 {vr(R[h]+4*i+2,2)}, v8 offset:{4608*i+576}")
            if m in (0, 2):
                k("v_mov_b32 v12, 0")
                k("v_mov_b32 v13, 0x3f803f80")
            for i in range(nks):
                k(f"s_waitcnt lgkmcnt({2*(nks-1-i)})" if 2*(nks-1-i) <= 15 else "s_waitcnt lgkmcnt(15)")
                k(f"s_add_u32 s38, s37, {dconst[i]}")
                k(f"buffer_store_dwordx4 {vr(R[h]+4*i,4)}, v9, s[28:31], s38 offen" + (" NOSC" if (os.environ.get("WPLAIN") and str(m) in os.environ.get("WPLAIN")) else ""))
                if m in (0, 2):
                    for d in range(4):
                        k(f"v_dot2_f32_bf16 v12, v{R[h]+4*i+d}, v13, v12")
            if m in (0, 2):
                k(f"""
                s_nop 2
                v_mov_b32 v13, v12
                s_nop 1
                v_permlane32_swap_b32 v13, v12
                v_add_f32 v12, v12, v13
                v_mov_b32 v13, v12
                s_nop 1
                v_permlane16_swap_b32 v13, v12
                v_add_f32 v12, v12, v13
                s_mul_i32 s38, s33, {1792*4}
                s_lshl_b32 s39, s36, 6
                s_add_u32 s38, s38, s39
                s_add_u32 s38, s38, {L.CS3P if m == 2 else L.CS1P}
                v_lshlrev_b32 v14, 2, v1
                v_cmp_gt_u32 vcc, 16, v1
                s_and_saveexec_b64 s[40:41], vcc
                buffer_store_dword v12, v14, s[28:31], s38 offen
                s_mov_b64 exec, -1
                """)
        k("s_endpgm")
    k.lab(pend)
    k("s_endpgm")


WREG = 9472
KVL = 4 * 9472
def gen_k1(k=None):
    NMOD = 60; NPF = 32
    MODFIRST = int(os.environ.get("MODFIRST", 0))
    NSIDE = 96 + NPF + (42 if MODFIRST else NMOD)
    GRID = (160 + NSIDE + 7) // 8 * 8
    k = Kern("k1_kernel", GRID, 256, KVL + 10240, vgpr=256, sgpr=72)
    end = "k1_end"; modl = "k1_modf"
    k(f"""
    s_cmp_ge_u32 s2, {GRID}
    s_cbranch_scc1 {end}
    s_load_dwordx4 s[4:7], s[0:1], 32
    s_load_dwordx2 s[10:11], s[0:1], 120   ; ws
    s_load_dwordx4 s[12:15], s[0:1], 8     ; k, v
    s_load_dwordx2 s[8:9], s[0:1], 24      ; shift_k
    v_lshrrev_b32 v2, 6, v0
    v_and_b32 v1, 63, v0                   ; lane
    v_readfirstlane_b32 s20, v2
    s_sub_u32 s54, s2, 160
    s_cmp_ge_u32 s2, 256
    s_cbranch_scc1 k1_side
    s_and_b32 s55, s2, 7                   ; class
    s_lshr_b32 s56, s2, 3                  ; member
    s_lshl_b32 s57, s55, 9
    s_add_u32 s57, s57, {L.KFL}
    v_mov_b32 v250, 0
    s_waitcnt lgkmcnt(0)
    """)
    k.srd(28, 10, 0x10000000)
    k.stamp(0)
    if os.environ.get("PROFMOD"):
        k(f"""
        s_memrealtime s[62:63]
        s_waitcnt lgkmcnt(0)
        s_lshl_b32 s23, s2, 4
        s_add_u32 s23, s23, {(48 << 20) + 4096}
        v_mov_b32 v12, s62
        s_mov_b64 exec, 1
        buffer_store_dword v12, v250, s[28:31], s23 offen
        s_mov_b64 exec, -1
        """)
    if os.environ.get("PROFKV"): k("s_memrealtime s[62:63]")
    k.srd(16, 12, SZ_SD); k.srd(40, 14, SZ_SD); k.srd(44, 8, 640 * 8)
    KR, VR_, SKR, SKF, KF, KVF, T = 10, 32, 48, 56, 72, 116, 150
    k(f"""
    v_mul_u32_u24 v4, 3277, v0
    v_lshrrev_b32 v4, 16, v4               ; rg
    v_mul_u32_u24 v5, 20, v4
    v_sub_u32 v5, v0, v5                   ; cg
    s_lshl_b32 s21, s56, 6
    v_lshl_add_u32 v6, v4, 3, s21
    v_mul_u32_u24 v6, 1280, v6
    s_mul_i32 s22, s55, 160
    v_lshl_add_u32 v7, v5, 3, s22
    v_add_u32 v6, v6, v7
    v_subrev_u32 v8, 3840, v6
    v_add_u32 v9, 5120, v6
    s_movk_i32 s23, 160
    v_cmp_gt_u32 vcc, s23, v0
    s_and_saveexec_b64 s[60:61], vcc
    s_cbranch_execz k1_kvld
    """)
    for r in range(11):
        if r < 3: k(f"buffer_load_dwordx2 {vr(KR+2*r,2)}, v8, s[16:19], 0 offen offset:{1280*r}")
        elif r < 6: k(f"buffer_load_dwordx2 {vr(KR+2*r,2)}, v6, s[16:19], 0 offen offset:{1280*(r-3)}")
        elif r < 7: k(f"buffer_load_dwordx2 {vr(KR+2*r,2)}, v6, s[16:19], 0 offen offset:3840")
        else: k(f"buffer_load_dwordx2 {vr(KR+2*r,2)}, v9, s[16:19], 0 offen offset:{1280*(r-7)}")
    k(f"v_lshlrev_b32 v{T}, 2, v7")
    k(f"buffer_load_dwordx4 {vr(SKR,4)}, v{T}, s[44:47], 0 offen")
    k(f"buffer_load_dwordx4 {vr(SKR+4,4)}, v{T}, s[44:47], 0 offen offset:16")
    for r in range(8):
        if r < 4: k(f"buffer_load_dwordx2 {vr(VR_+2*r,2)}, v6, s[40:43], 0 offen offset:{1280*r}")
        else: k(f"buffer_load_dwordx2 {vr(VR_+2*r,2)}, v9, s[40:43], 0 offen offset:{1280*(r-4)}")
    k.lab("k1_kvld")
    k("s_mov_b64 exec, -1")
    NTL = 0
    k("buffer_load_dword v251, v250, s[28:31], s57 offen sc1")
    if int(os.environ.get("FLWARM", 1)):
        k("v_and_b32 v249, 31, v1")
        k("v_lshlrev_b32 v249, 2, v249")
        k("buffer_load_dword v249, v249, s[28:31], s57 offen offset:256 sc1")
    NTL += 1 + int(os.environ.get("FLWARM", 1))
    if int(os.environ.get("KVTLB", 0)):
        NTL += 1
        k(f"""
        s_mul_i32 s36, s55, {80*L.KVR_CH}
        v_and_b32 v252, 15, v1
        v_mul_u32_u24 v252, {L.KVR_CH*5}, v252
        v_lshrrev_b32 v253, 4, v1
        v_cmp_eq_u32 vcc, 1, v253
        v_and_b32 v254, 15, v1
        v_mul_u32_u24 v254, 0x60000, v254
        v_add_u32 v254, {L.W1P}, v254
        v_add_u32 v252, s36, v252
        v_cndmask_b32 v252, v252, v254, vcc
        buffer_load_dword v253, v252, s[28:31], 0 offen
        """)
    lnc = k.newlab("nc")
    k.srd(24, 4, 640 * 4096)
    k(f"""
    s_cmp_lt_u32 s56, 12
    s_cbranch_scc1 {lnc}
    s_mul_i32 s58, s55, 20
    s_add_u32 s58, s58, s56
    s_sub_u32 s58, s58, 12
    s_lshl_b32 s21, s58, 3
    s_add_u32 s22, s6, s21
    s_addc_u32 s23, s7, 0
    s_load_dwordx2 s[32:33], s[22:23], 0
    s_lshl_b32 s21, s58, 2
    s_add_u32 s21, s21, s20                 ; ch
    s_mul_i32 s34, s20, {WREG}
    v_lshlrev_b32 v3, 4, v1                 ; lane*16
    s_lshl_b32 s35, s21, 12                 ; ch*4096
    s_add_u32 s36, s34, 256
    s_mov_b32 m0, s36
    s_nop 0
    """)
    for i in range(4):
        k(f"buffer_load_dwordx4 v3, s[24:27], s35 offen offset:{1024*i} lds")
    k.lab(lnc)
    k(f"""
    s_mov_b64 exec, s[60:61]
    s_movk_i32 s23, 160
    v_cmp_gt_u32 vcc, s23, v0
    s_and_b64 exec, exec, vcc
    s_cbranch_execz k1_kvskip
    """)
    k(f"""
    v_sub_u32 v{T}, 7, v4
    v_and_b32 v{T+1}, 7, v5
    v_xor_b32 v{T}, v{T}, v{T+1}
    v_lshlrev_b32 v{T}, 4, v{T}
    v_lshl_add_u32 v{T}, v5, 9, v{T}
    v_add_u32 v{T}, {KVL}, v{T}
    s_cmp_lt_u32 s56, 12
    s_cbranch_scc1 k1_w8
    s_waitcnt vmcnt({12+NTL})
    s_branch k1_w9
    """)
    k.lab("k1_w8")
    k(f"s_waitcnt vmcnt({8+NTL})")
    k.lab("k1_w9")
    for c in range(4):
        k.unpack(SKF + c, SKF + 4 + c, SKR + 2*c)
        k.unpack(SKF + 8 + c, SKF + 12 + c, SKR + 2*c + 1)
    for r in range(11):
        k.unpack(KF + 4*r, KF + 4*r + 1, KR + 2*r)
        k.unpack(KF + 4*r + 2, KF + 4*r + 3, KR + 2*r + 1)
    for p in range(2):
        for s_ in range(8):
            A = KVF + 4*s_ + 2*p
            k(f"v_pk_mul_f32 {vr(A,2)}, {vr(KF+4*s_+2*p,2)}, {vr(SKF+12+2*p,2)}")
        for j in (2, 1, 0):
            for s_ in range(8):
                A = KVF + 4*s_ + 2*p
                k(f"v_pk_fma_f32 {vr(A,2)}, {vr(KF+4*(s_+3-j)+2*p,2)}, {vr(SKF+4*j+2*p,2)}, {vr(A,2)}")
    for s_ in range(8):
        for p in range(2):
            A = KVF + 4*s_ + 2*p
            k.round2(A, A + 1, T + 4 + (2*s_ + p) % 8)
    k("""
    s_cmp_lt_u32 s56, 12
    s_cbranch_scc1 k1_w0
    s_waitcnt vmcnt(%d)
    s_branch k1_w1
    """ % (4 + NTL))
    k.lab("k1_w0")
    k(f"s_waitcnt vmcnt({NTL})")
    k.lab("k1_w1")
    if os.environ.get("PROFKV"): k("s_memrealtime s[64:65]")
    k.stamp(1)
    for s_ in range(8):
        for p in range(2):
            t_ = KF + 4*s_ + 2*p
            k.unpack(t_, t_ + 1, VR_ + 2*s_ + p)
    for s_ in range(8):
        for p in range(2):
            k(f"v_pk_mul_f32 {vr(KVF+4*s_+2*p,2)}, {vr(KVF+4*s_+2*p,2)}, {vr(KF+4*s_+2*p,2)}")
    O2 = KR
    for c in range(4):
        for d in range(4):
            k(f"v_cvt_pk_bf16_f32 v{O2+4*c+d}, v{KVF+4*(7-2*d)+c}, v{KVF+4*(6-2*d)+c}")
    for c in range(4):
        k(f"ds_write_b128 v{T}, {vr(O2+4*c,4)} offset:{128*c}")
    k.lab("k1_kvskip")
    k(f"""
    s_mov_b64 exec, -1
    v_lshrrev_b32 v{T+1}, 3, v0             ; channel (0..31)
    v_and_b32 v{T+2}, 7, v0                 ; unit
    v_lshrrev_b32 v{T+3}, 2, v{T+1}
    v_and_b32 v{T+3}, 7, v{T+3}
    v_xor_b32 v{T+3}, v{T+3}, v{T+2}
    v_lshlrev_b32 v{T+3}, 4, v{T+3}
    v_lshl_add_u32 v{T+3}, v{T+1}, 7, v{T+3}
    v_add_u32 v{T+3}, {KVL}, v{T+3}
    v_mul_u32_u24 v{T+1}, {L.KVR_CH}, v{T+1}
    v_lshl_add_u32 v{T+4}, v{T+2}, 4, v{T+1}
    s_mul_i32 s36, s55, {80*L.KVR_CH}
    s_add_u32 s36, s36, {L.KVR}
    s_lshl_b32 s37, s56, 7
    s_sub_u32 s38, 3968, s37
    s_add_u32 s38, s38, s36                 ; + 3968 - 128*mi
    s_waitcnt lgkmcnt(0)
    s_barrier
    """)
    k.stamp(2)
    for i in range(3):
        k(f"ds_read_b128 {vr(32+4*i,4)}, v{T+3} offset:{4096*i}")
    for i in range(3):
        if i == 2: k("s_movk_i32 s23, 128\nv_cmp_gt_u32 vcc, s23, v0\ns_and_saveexec_b64 s[60:61], vcc\ns_cbranch_execz k1_st2skip")
        k(f"s_waitcnt lgkmcnt({2-i})")
        k(f"buffer_store_dwordx4 {vr(32+4*i,4)}, v{T+4}, s[28:31], s38 offen sc1")
        k(f"s_add_u32 s38, s38, {32*L.KVR_CH}")
    k.lab("k1_st2skip")
    k("s_mov_b64 exec, -1")
    zl = k.newlab()
    k(f"""
    s_cmp_lg_u32 s56, 0
    s_cbranch_scc1 {zl}
    v_mov_b32 v44, 0
    v_mov_b32 v45, 0
    v_mov_b32 v46, 0
    v_mov_b32 v47, 0
    s_add_u32 s36, s36, 4096
    """)
    for i in range(3):
        if i == 2: k(f"s_movk_i32 s23, 128\nv_cmp_gt_u32 vcc, s23, v0\ns_and_b64 exec, exec, vcc\ns_cbranch_execz {zl}")
        k(f"buffer_store_dwordx4 v[44:47], v{T+4}, s[28:31], s36 offen sc1")
        k(f"s_add_u32 s36, s36, {32*L.KVR_CH}")
    k.lab(zl)
    lfl = k.newlab("kf")
    k(f"""
    s_mov_b64 exec, -1
    s_waitcnt vmcnt(0)
    v_add_u32 v251, 1, v251
    """)
    k.stamp(3)
    if os.environ.get("PROFKV"): k("s_memrealtime s[66:67]")
    k(f"""
    s_barrier
    s_cmp_lg_u32 s20, 0
    s_cbranch_scc1 {lfl}
    s_lshl_b32 s23, s56, 2
    s_add_u32 s23, s23, s57
    s_mov_b64 exec, 1
    buffer_store_dword v251, v250, s[28:31], s23 offen offset:256 NOSC
    buffer_store_dword v251, v250, s[28:31], s23 offen offset:128 sc1
    s_mov_b64 exec, -1
    """)
    k.lab(lfl)
    k(f"""
    s_lshl_b32 s54, s56, 3
    s_add_u32 s54, s54, s55
    """)
    if os.environ.get("PROFKV"):
        lq = k.newlab("pq")
        k(f"""
        s_cmp_ge_u32 s56, 12
        s_cbranch_scc1 {lq}
        s_cmp_lg_u32 s20, 0
        s_cbranch_scc1 {lq}
        s_waitcnt lgkmcnt(0)
        s_lshl_b32 s23, s54, 4
        s_add_u32 s23, s23, {48 << 20}
        v_mov_b32 v12, s62
        v_mov_b32 v13, s64
        v_mov_b32 v14, s66
        v_mov_b32 v15, s66
        s_mov_b64 exec, 1
        buffer_store_dwordx4 v[12:15], v250, s[28:31], s23 offen
        s_mov_b64 exec, -1
        """)
        k.lab(lq)
    k(f"""
    s_cmp_lt_u32 s56, 12
    s_cbranch_scc1 k1_side2
    """)
    k("s_mov_b32 s2, s58")
    if os.environ.get("PRIO", "1") == "1": k("s_setprio 3")
    k.stamp(5)
    k(f"""
    s_lshl_b32 s21, s2, 2
    s_add_u32 s21, s21, s20                 ; ch
    s_mul_i32 s34, s20, {WREG}
    v_lshlrev_b32 v3, 4, v1                 ; lane*16
    s_mul_i32 s37, s21, {L.KVR_CH}
    s_add_u32 s37, s37, {L.KVR}
    v_lshrrev_b32 v4, 3, v0
    v_mul_u32_u24 v4, 20480, v4
    s_lshr_b32 s38, s2, 1
    s_and_b32 s38, s38, 7
    v_and_b32 v5, 7, v0
    v_xor_b32 v5, s38, v5
    v_lshl_add_u32 v4, v5, 4, v4            ; (t>>3)*20480 + ((t&7)^sw)*16
    s_lshl_b32 s38, s2, 7                   ; cg*128
    """)
    for i in range(5):
        k(f"""
        v_add_u32 v20, {64*i}, v1
        v_mul_u32_u24 v21, 3856, v20
        v_lshrrev_b32 v21, 16, v21             ; n = q/17
        v_mul_u32_u24 v22, 17, v21
        v_sub_u32 v22, v20, v22                ; e
        v_lshlrev_b32 v22, 4, v22
        v_lshlrev_b32 v21, 8, v21
        v_sub_u32 v22, v22, v21
        v_add_u32 v{23+i}, 3840, v22
        """)
    k(f"""
    v_lshl_add_u32 v5, v1, 2, s34
    v_mov_b32 v6, 0
    ds_write_b32 v5, v6
    v_and_b32 v7, 15, v1                    ; n16
    v_bfe_u32 v8, v1, 4, 1                  ; ph
    v_lshrrev_b32 v9, 5, v1                 ; g
    v_mul_u32_u24 v10, 272, v7
    v_lshl_add_u32 v10, v9, 4, v10
    v_add_u32 v10, s34, v10
    v_add_u32 v10, {4352+4}, v10
    v_lshlrev_b32 v11, 2, v8
    v_sub_u32 v10, v10, v11
    v_and_b32 v12, 7, v1
    v_mul_u32_u24 v13, 272, v12
    v_lshl_add_u32 v13, v9, 4, v13
    v_add_u32 v13, s34, v13
    v_add_u32 v13, {4352+4}, v13
    v_sub_u32 v13, v13, v11                 ; vBP
    v_bfe_u32 v11, v1, 3, 1                 ; a'
    v_lshlrev_b32 v11, 4, v11
    v_sub_u32 v11, 16, v11
    v_and_b32 v14, 31, v1
    v_lshlrev_b32 v14, 3, v14
    v_lshl_add_u32 v14, v9, 4, v14
    v_add_u32 v14, s34, v14
    v_add_u32 v14, 8, v14                   ; vA
    v_cmp_ne_u32 vcc, 0, v12
    v_mov_b32 v16, 0
    s_nop 1
    v_cndmask_b32 v15, v16, -1, vcc
    """)
    k("s_waitcnt lgkmcnt(0)")
    AM_ = 176
    for ks in range(8):
        k(f"ds_read_b64 {vr(AM_+4*ks,2)}, v14 offset:{256*7+32*ks}")
        k(f"ds_read_b64 {vr(AM_+4*ks+2,2)}, v14 offset:{256*7+32*ks+8}")
    lw = k.newlab("kw"); lp = k.newlab("kp"); ld = k.newlab("kd"); lb = k.newlab("kb")
    k(f"""
    s_cmp_lg_u32 s20, 0
    s_cbranch_scc1 {lw}
    v_and_b32 v40, 31, v1
    v_lshlrev_b32 v40, 2, v40
    s_mov_b32 s23, 200000
    """)
    lq4 = k.newlab("kq")
    k("s_mov_b64 s[60:61], 0")
    k.lab(lp)
    k(f"""
    buffer_load_dword v41, v40, s[28:31], s57 offen offset:256 sc1
    s_waitcnt vmcnt(0)
    v_cmp_eq_u32 vcc, v251, v41
    s_sub_u32 s23, s23, 1
    s_or_b64 s[60:61], s[60:61], vcc
    s_cmp_eq_u64 s[60:61], -1
    s_cbranch_scc1 {ld}
    s_and_b32 s21, s23, 3
    s_cmp_lg_u32 s21, 0
    s_cbranch_scc1 {lq4}
    buffer_load_dword v41, v40, s[28:31], s57 offen offset:128 sc1
    s_waitcnt vmcnt(0)
    v_cmp_eq_u32 vcc, v251, v41
    s_nop 1
    s_or_b64 s[60:61], s[60:61], vcc
    s_cmp_eq_u64 s[60:61], -1
    s_cbranch_scc1 {ld}
    """)
    k.lab(lq4)
    k(f"""
    s_sleep {os.environ.get("KSLEEP", 2)}
    s_cmp_lg_u32 s23, 0
    s_cbranch_scc1 {lp}
    """)
    k.lab(ld)
    if os.environ.get("PROFKV"):
        k(f"""
        s_memrealtime s[68:69]
        s_waitcnt lgkmcnt(0)
        s_lshl_b32 s23, s56, 3
        s_add_u32 s23, s23, s55
        s_lshl_b32 s23, s23, 4
        s_add_u32 s23, s23, {48 << 20}
        v_mov_b32 v12, s62
        v_mov_b32 v13, s64
        v_mov_b32 v14, s66
        v_mov_b32 v15, s68
        s_mov_b64 exec, 1
        buffer_store_dwordx4 v[12:15], v250, s[28:31], s23 offen
        s_mov_b64 exec, -1
        """)
    k(f"""
    s_cmp_lg_u32 s56, 12
    s_cbranch_scc1 {lw}
    s_mov_b64 exec, 1
    buffer_store_dword v251, v250, s[28:31], s57 offen sc1
    s_mov_b64 exec, -1
    """)
    k.lab(lw)
    k.stamp(4)
    k("s_barrier")
    for i in range(5):
        k(f"s_add_u32 s36, s34, {4352 + 1024*i}")
        k("s_mov_b32 m0, s36")
        if i == 4: k("s_mov_b64 exec, 0xffff")
        else: k("s_nop 0")
        k(f"buffer_load_dwordx4 v{23+i}, s[28:31], s37 offen sc1 lds")
    k("s_mov_b64 exec, -1")
    k("s_waitcnt vmcnt(0) lgkmcnt(0)")
    B0, B1, BP, AX, AY, AP_, AM, APk = 32, 64, 96, 128, 144, 160, 176, 208
    k.stamp(6)
    def aread(reg, off):
        return f"ds_read_b64 {vr(reg,2)}, v14 offset:{off}\n    ds_read_b64 {vr(reg+2,2)}, v14 offset:{off+8}"
    TB = 16
    for ks in range(8):
        k(f"ds_read2_b32 {vr(B1+4*ks,2)}, v10 offset0:{8*ks} offset1:{8*ks+1}")
        k(f"ds_read2_b32 {vr(B1+4*ks+2,2)}, v10 offset0:{8*ks+2} offset1:{8*ks+3}")
    prd = []
    for ks in range(8):
        prd.append(f"ds_read_b32 v{TB+ks}, v10 offset:{32*ks+16}")
    for ks in range(8):
        prd.append(f"ds_read2_b32 {vr(BP+4*ks,2)}, v13 offset0:{8*ks} offset1:{8*ks+1}")
        prd.append(f"ds_read2_b32 {vr(BP+4*ks+2,2)}, v13 offset0:{8*ks+2} offset1:{8*ks+3}")
        prd.append(f"ds_read_b32 v{TB+8+ks}, v13 offset:{32*ks+16}")
    al0 = []; alp = []
    for ks in range(8):
        for d in range(4):
            hi = B1 + 4*ks + d + 1 if d < 3 else TB + ks
            al0.append(f"v_alignbit_b32 v{B0+4*ks+d}, v{hi}, v{B1+4*ks+d}, 16")
            hi = BP + 4*ks + d + 1 if d < 3 else TB + 8 + ks
            alp.append(f"v_alignbit_b32 v{BP+4*ks+d}, v{hi}, v{BP+4*ks+d}, v11")
    DPP = "row_mask:0xf bank_mask:0xf bound_ctrl:0"
    def mfma(acc, a, b, first):
        c = "0" if first else vr(acc, 16)
        k(f"v_mfma_f32_32x32x16_bf16 {vr(acc,16)}, {vr(a,4)}, {vr(b,4)}, {c}")
    def phase(acc, Areg, Breg, first, reads, late, pad=True, rg=8):
        reads = list(reads); late = list(late)
        for ks in range(8):
            mfma(acc, Areg + 4*ks, Breg + 4*ks, first and ks == 0)
            n = (len(reads) + (rg - 1 - ks)) // (rg - ks) if ks < rg else 0
            for s in reads[:n]:
                k(s)
            reads = reads[n:]
            if ks < 2:
                if pad and late and n < 5:
                    k(f"s_nop {4 - n}")
            else:
                n = (len(late) + (7 - ks)) // (8 - ks)
                for s in late[:n]:
                    k(s)
                late = late[n:]
        assert not late and not reads
    def shift_ops(acc, masked):
        if masked:
            return [f"v_and_b32_dpp v{acc+r}, v{acc+r}, v15 row_shr:1 {DPP}" for r in range(16)]
        return [f"v_mov_b32_dpp v{acc+r}, v{acc+r} row_shr:1 {DPP}" for r in range(16)]
    def areads(reg, off):
        o = []
        for ks in range(8):
            o += aread(reg + 4*ks, off + 32*ks).split("\n")
        return o
    epi_a = f"""v_mul_u32_u24 v16, 272, v7
    v_add_u32 v16, s34, v16
    v_add_u32 v16, {4352 + 36}, v16
    v_lshlrev_b32 v17, 2, v8
    v_sub_u32 v16, v16, v17
    v_lshlrev_b32 v17, 5, v9
    v_sub_u32 v16, v16, v17""".split("\n")
    epi_a += [f"ds_read_b32 v{64+r}, v16 offset:{216 - 64*(r>>2) - 8*(r&3)}" for r in range(16)]
    epi_a += f"""s_lshr_b32 s44, s20, 1
    s_and_b32 s45, s20, 1
    s_cmp_eq_u32 s44, 1
    s_cselect_b32 s44, s33, s32
    s_lshl_b32 s46, s44, 16
    s_and_b32 s47, s44, 0xffff0000
    s_cmp_eq_u32 s45, 1
    s_cselect_b32 s44, s47, s46
    v_mul_u32_u24 v18, 264, v7
    v_lshl_add_u32 v18, v9, 5, v18
    v_lshl_add_u32 v18, v8, 2, v18
    v_add_u32 v18, s34, v18
    v_mul_u32_u24 v17, 264, v2
    v_lshl_add_u32 v17, v1, 2, v17""".split("\n")
    if int(os.environ.get("CODEPF2", 0)):
        epi_a.append("s_getpc_b64 s[50:51]\nK1PC2:\ns_add_u32 s50, s50, k2_kernel-K1PC2\ns_addc_u32 s51, s51, 0")
        epi_a += f"""s_sub_u32 s52, s56, 12
    s_lshl_b32 s52, s52, 2
    s_add_u32 s52, s52, s20
    s_lshl_b32 s52, s52, 10
    s_min_u32 s52, s52, (CODE_END-k2_kernel-1020)&0xfffffff0
    v_add_u32 v19, s52, v3
    global_load_dwordx4 v[28:31], v19, s[50:51]""".split("\n")
    tlb_ops = []
    if int(os.environ.get("YTLB", 1)):
        tlb_ops = [f"v_and_b32 v19, 31, v1", f"s_mov_b32 s50, {L.GS // 4 // 16 * 16}", "v_mul_lo_u32 v19, v19, s50", f"s_mov_b32 s50, {L.GRP}",
                   "buffer_load_dword v28, v19, s[28:31], s50 offen"]
    epi_b = []
    for r in range(16):
        epi_b.append(f"v_and_b32 v{80+r}, 0xffff0000, v{64+r}")
        epi_b.append(f"v_lshlrev_b32 v{64+r}, 16, v{64+r}")
    for q in range(7, -1, -1):
        first = (q == 7)
        k("s_waitcnt lgkmcnt(0)")
        apl = areads(APk, 256*(q+8))
        if first:
            for ks in range(8):
                mfma(AY, AM + 4*ks, B1 + 4*ks, ks == 0)
                if ks == 0:
                    for x in prd[:16]: k(x)
                elif ks == 1:
                    for x in prd[16:]: k(x)
                elif ks == 2:
                    k("s_waitcnt lgkmcnt(15)")
                    k("s_waitcnt lgkmcnt(0)")
                    for x in al0[:4]: k(x)
                else:
                    for x in al0[4 + (ks-3)*6: 4 + (ks-2)*6]: k(x)
            k("s_nop 0")
            phase(AX, AM, B0, True, apl, alp[:16] + shift_ops(AY, False) + alp[16:] + ["s_nop 0"])
        else:
            phase(AY, AM, B1, False, apl, shift_ops(AP_, True))
            if q == 5: phase(AX, AM, B0, False, tlb_ops, shift_ops(AY, False))
            elif q > 0: phase(AX, AM, B0, False, [], shift_ops(AY, False))
            else: phase(AX, AM, B0, False, [], epi_a, pad=False)
        k("s_waitcnt lgkmcnt(0)")
        aml = areads(AM, 256*(q-1)) if q > 0 else []
        phase(AP_, APk, BP, first, aml, shift_ops(AX, False) if q > 0 else epi_b, rg=5, pad=(q > 0))
    k.stamp(7)
    k("s_mov_b32 s48, 0x05040100")
    k("s_mov_b32 s49, 0x07060302")
    k("s_nop 11")
    for r in range(16):
        k(f"v_add_f32_dpp v{AX+r}, v{AP_+r}, v{AX+r} row_shr:8 {DPP}")
    k("""
    s_mov_b32 s42, 0xff00ff00
    s_mov_b32 s43, 0xff00ff00
    s_mov_b64 exec, s[42:43]
    """)
    for r in range(16):
        k(f"v_add_f32 v{AY+r}, v{AP_+r}, v{AY+r}")
    k("s_mov_b64 exec, -1")
    for r in range(16):
        k(f"v_fma_f32 v{AX+r}, v{80+r}, s44, v{AX+r}")
        k(f"v_fma_f32 v{AY+r}, v{64+r}, s44, v{AY+r}")
    for r in range(16):
        k(f"v_cvt_pk_bf16_f32 v{32+r}, v{AX+r}, v{AY+r}")
    for r in range(16):
        k(f"ds_write_b32 v18, v{32+r} offset:{64*(r>>2)+8*(r&3)}")
    k(f"""
    s_waitcnt lgkmcnt(0)
    s_barrier
    """)
    Y = 48
    for e in range(4):
        for c in range(4):
            k(f"ds_read_b32 v{Y+4*e+c}, v17 offset:{c*WREG+1056*e}")
    k("s_waitcnt lgkmcnt(0)")
    O = 96
    for e in range(4):
        for hh in range(2):
            a, b = Y + 4*e + 2*hh, Y + 4*e + 2*hh + 1
            k(f"v_perm_b32 v{O+4*e+hh}, v{b}, v{a}, s48")
            k(f"v_perm_b32 v{O+4*e+2+hh}, v{b}, v{a}, s49")
    k(f"""
    v_lshrrev_b32 v20, 3, v0             ; tt
    v_lshrrev_b32 v21, 4, v20            ; tt>>4
    v_and_b32 v22, 15, v20               ; tt&15
    v_mul_u32_u24 v23, 20480, v20
    v_sub_u32 v23, v4, v23
    s_mov_b32 s40, {L.GS}
    v_mul_lo_u32 v24, v21, s40
    v_add_u32 v24, v24, v23
    v_add_u32 v25, 1, v22
    v_mul_u32_u24 v25, 20480, v25
    v_add_u32 v25, v25, v24
    v_cmp_eq_u32 s[42:43], 15, v22
    v_cmp_eq_u32 s[44:45], 0, v22
    v_add_u32 v26, {2*L.GS}, v24
    v_add_u32 v27, {17*20480}, v24
    v_cndmask_b32 v26, v27, v26, s[42:43]
    v_cmp_ne_u32 vcc, 0, v20
    s_and_b64 s[46:47], s[44:45], vcc
    s_or_b64 s[46:47], s[46:47], s[42:43]
    v_cmp_ne_u32 vcc, 31, v20
    s_and_b64 s[52:53], s[42:43], vcc
    s_or_b64 s[52:53], s[52:53], s[44:45]
    s_or_b64 s[44:45], s[44:45], s[42:43]    ; e = 1, 2
    s_add_u32 s39, s38, {L.GRP}
    """)
    for e in range(4):
        k(f"buffer_store_dwordx4 {vr(O+4*e,4)}, v25, s[28:31], s39 offen" + (" NOSC" if os.environ.get("YPLAIN") else ""))
        hl_ = k.newlab("halo")
        k(f"s_mov_b64 exec, {['s[46:47]', 's[44:45]', 's[44:45]', 's[52:53]'][e]}")
        k(f"s_cbranch_execz {hl_}")
        k(f"s_sub_u32 s41, s39, {L.GS}")
        k(f"buffer_store_dwordx4 {vr(O+4*e,4)}, v26, s[28:31], s41 offen" + (" NOSC" if os.environ.get("YPLAIN") else ""))
        k.lab(hl_)
        k("s_mov_b64 exec, -1")
        k(f"s_add_u32 s39, s39, {2*L.GS}")
    k.stamp(8)
    k("s_waitcnt vmcnt(0)")
    k.stamp_end(9)
    k("s_endpgm")

    k.lab("k1_side")
    k(f"""
    s_cmp_ge_u32 s54, {NSIDE}
    s_cbranch_scc1 {end}
    """)
    def side_wait(cnt):
        sp = k.newlab("sw"); sd = k.newlab("sw")
        k(f"""
        s_cmp_lg_u32 s20, 0
        s_cbranch_scc1 {sd}
        s_and_b32 s55, s2, 7
        s_lshl_b32 s57, s55, 9
        s_add_u32 s57, s57, {L.KFL}
        v_mov_b32 v250, 0
        v_and_b32 v248, 31, v0
        v_lshlrev_b32 v248, 2, v248
        s_waitcnt lgkmcnt(0)
        """)
        k.srd(28, 10, 0x10000000)
        k(f"""
        buffer_load_dword v251, v250, s[28:31], s57 offen sc1
        s_mov_b32 s23, {cnt}
        s_waitcnt vmcnt(0)
        v_add_u32 v251, 1, v251
        """)
        k.lab(sp)
        k(f"""
        buffer_load_dword v249, v248, s[28:31], s57 offen offset:256 sc1
        s_waitcnt vmcnt(0)
        v_cmp_eq_u32 vcc, v251, v249
        s_sub_u32 s23, s23, 1
        s_cmp_eq_u64 vcc, -1
        s_cbranch_scc1 {sd}
        s_sleep {os.environ.get('SSLEEP', 16)}
        s_cmp_lg_u32 s23, 0
        s_cbranch_scc1 {sp}
        """)
        k.lab(sd)
        k("s_barrier")
    if int(os.environ.get("SIDEWAIT", 1)):
        lsx = k.newlab("sx")
        k(f"""
        s_cmp_lt_u32 s54, {96+NPF+int(os.environ.get("NOWAITN", 0))}
        s_cbranch_scc1 {lsx}
        s_mov_b32 s61, s54
        """)
        side_wait(os.environ.get("SWN", 1))
        k("s_mov_b32 s54, s61")
        k.lab(lsx)
    k(f"""
    s_cmp_lt_u32 s54, {96+NPF}
    s_cbranch_scc1 k1_pf
    """)
    if MODFIRST:
        k(f"s_sub_u32 s54, s54, {96+NPF-36}")
        k("s_branch k1_pack0")
        k.lab("k1_side2")
        k(f"""
        s_cmp_lt_u32 s54, {NMOD}
        s_cbranch_scc1 k1_mod0
        s_sub_u32 s54, s54, {NMOD}
        """)
        k.lab("k1_pack0")
        emit_pack(k, 0, "s54", None)
        k.lab("k1_mod0")
    else:
        k("s_branch k1_mod0")
        k.lab("k1_side2")
        emit_pack(k, 0, "s54", None)
        k.lab("k1_mod0")
        k(f"s_sub_u32 s54, s54, {96+NPF}")
    if os.environ.get("PROFMOD"): k("s_memrealtime s[62:63]")
    k("s_waitcnt lgkmcnt(0)")
    k.srd(28, 10, 0x10000000)
    k.lab(modl)
    k("""
    s_load_dwordx4 s[12:15], s[0:1], 88
    s_mov_b32 s32, s54
    v_and_b32 v3, 7, v0              ; cc
    v_lshrrev_b32 v4, 3, v0          ; rsub
    v_lshlrev_b32 v5, 1, v4          ; c offset
    v_mul_u32_u24 v6, 7680, v4
    s_lshl_b32 s36, s32, 7
    v_lshl_add_u32 v7, v3, 4, s36
    v_add_u32 v6, v6, v7
    s_waitcnt lgkmcnt(0)
    """)
    k.srd(16, 12, 1280); k.srd(20, 14, 640 * 7680)
    C, W, A, T = 10, 32, 112, 120
    for it in range(20):
        k(f"buffer_load_ushort v{C+it}, v5, s[16:19], 0 offen offset:{64*it}")
    for it in range(20):
        k(f"s_mov_b32 s37, {it*32*7680}")
        k(f"buffer_load_dwordx4 {vr(W+4*it,4)}, v6, s[20:23], s37 offen")
    k("s_waitcnt vmcnt(20)")
    if os.environ.get("PROFMOD"): k("s_memrealtime s[64:65]")
    for it in range(20):
        k(f"v_lshlrev_b32 v{C+it}, 16, v{C+it}")
        k(f"v_mul_f32 v{T+it}, 0xbfb8aa3b, v{C+it}")
        k(f"v_exp_f32 v{T+it}, v{T+it}")
    for it in range(20):
        k(f"v_add_f32 v{T+it}, 1.0, v{T+it}")
        k(f"v_rcp_f32 v{T+it}, v{T+it}")
    k("s_nop 0")
    for it in range(20):
        k(f"v_mul_f32 v{C+it}, v{C+it}, v{T+it}")
    for it in range(0, 20, 2):
        k.round2(C + it, C + it + 1, T)
    for j in range(8):
        k(f"v_mov_b32 v{A+j}, 0")
    for it in range(20):
        k(f"s_waitcnt vmcnt({19-it})")
        for d in range(4):
            k.unpack(T + 2*d, T + 2*d + 1, W + 4*it + d)
        ce = C + (it & ~1)
        sel = "op_sel:[0,0,0] op_sel_hi:[1,0,1]" if it % 2 == 0 else "op_sel:[0,1,0] op_sel_hi:[1,1,1]"
        for d in range(4):
            k(f"v_pk_fma_f32 {vr(A+2*d,2)}, {vr(T+2*d,2)}, {vr(ce,2)}, {vr(A+2*d,2)} {sel}")
    if os.environ.get("PROFMOD"): k("s_memrealtime s[66:67]")
    k(f"""
    v_lshlrev_b32 v7, 5, v0
    ds_write_b128 v7, {vr(A,4)}
    ds_write_b128 v7, {vr(A+4,4)} offset:16
    s_waitcnt lgkmcnt(0)
    s_barrier
    v_cmp_gt_u32 vcc, 64, v0
    s_and_saveexec_b64 s[42:43], vcc
    s_cbranch_execz {end}
    v_lshlrev_b32 v7, 2, v0
    """)
    for r in range(32):
        k(f"ds_read_b32 v{W+r}, v7 offset:{256*r}")
    k("s_waitcnt lgkmcnt(0)")
    for st in (16, 8, 4, 2, 1):
        for r in range(st):
            k(f"v_add_f32 v{W+r}, v{W+r}, v{W+r+st}")
    a_ = W
    k(f"""
    s_movk_i32 s22, 640
    v_cvt_pk_bf16_f32 v{a_}, v{a_}, v{a_}
    v_lshlrev_b32 v{a_}, 16, v{a_}
    v_add_f32 v{a_+1}, 1.0, v{a_}
    v_cvt_pk_bf16_f32 v{a_+1}, v{a_+1}, v{a_+1}
    v_lshlrev_b32 v{a_+1}, 16, v{a_+1}
    s_lshl_b32 s33, s32, 6
    v_add_u32 v{a_+2}, s33, v0
    v_subrev_u32 v{a_+3}, 640, v{a_+2}
    v_cmp_gt_u32 vcc, 640, v{a_+3}
    v_subrev_u32 v{a_+3}, 2560, v{a_+2}
    v_cmp_gt_u32 s[40:41], s22, v{a_+3}
    s_or_b64 vcc, vcc, s[40:41]
    v_cndmask_b32 v{a_}, v{a_}, v{a_+1}, vcc
    s_lshl_b32 s21, s32, 8
    s_add_u32 s21, s21, {L.MODF}
    buffer_store_dword v{a_}, v7, s[28:31], s21 offen
    """)
    if os.environ.get("PROFMOD"):
        k(f"""
        s_waitcnt vmcnt(0)
        s_memrealtime s[68:69]
        s_waitcnt lgkmcnt(0)
        s_lshl_b32 s23, s32, 4
        s_add_u32 s23, s23, {48 << 20}
        v_mov_b32 v12, s62
        v_mov_b32 v13, s64
        v_mov_b32 v14, s66
        v_mov_b32 v15, s68
        v_mov_b32 v16, 0
        s_mov_b64 exec, 1
        buffer_store_dwordx4 v[12:15], v16, s[28:31], s23 offen
        """)
    k.lab(end)
    k("s_endpgm")
    k.lab("k1_pf")
    WPX = NPF // 8 * 4
    k(f"""
    s_waitcnt lgkmcnt(0)
    s_load_dwordx2 s[4:5], s[0:1], 0
    v_lshlrev_b32 v3, 7, v1          ; lane*128
    v_lshlrev_b32 v1, 4, v1
    s_sub_u32 s24, s54, 96
    s_lshr_b32 s24, s24, 3
    s_lshl_b32 s24, s24, 2
    s_add_u32 s24, s24, s20
    s_and_b32 s22, s2, 7
    s_mul_i32 s21, s24, {327680 // WPX}
    s_mul_i32 s23, s22, 327680
    s_add_u32 s21, s21, s23
    s_waitcnt lgkmcnt(0)
    """)
    k.srd(16, 4, SZ_SD); k.srd(28, 10, 0x10000000)
    zl2 = k.newlab("zf")
    k(f"""
    s_sub_u32 s36, s54, 96
    s_cmp_ge_u32 s36, 16
    s_cbranch_scc1 {zl2}
    s_lshl_b32 s36, s36, 12
    s_add_u32 s36, s36, {L.FLAGS}
    v_lshlrev_b32 v5, 4, v0
    v_mov_b32 v60, 0
    v_mov_b32 v61, 0
    v_mov_b32 v62, 0
    v_mov_b32 v63, 0
    buffer_store_dwordx4 v[60:63], v5, s[28:31], s36 offen
    """)
    k.lab(zl2)
    if int(os.environ.get("ZST", 1)):
        k(f"""
        s_sub_u32 s36, s54, 96
        s_lshr_b32 s36, s36, 3
        s_mul_i32 s36, s36, 5120
        s_and_b32 s37, s2, 7
        s_mul_i32 s37, s37, {L.GS}
        s_add_u32 s36, s36, s37
        s_add_u32 s36, s36, {L.GRP + L.G_ST1}
        v_lshlrev_b32 v5, 4, v0
        v_mov_b32 v60, 0
        v_mov_b32 v61, 0
        v_mov_b32 v62, 0
        v_mov_b32 v63, 0
        buffer_store_dwordx4 v[60:63], v5, s[28:31], s36 offen
        s_add_u32 s36, s36, 4096
        s_cmp_lg_u32 s20, 0
        s_cbranch_scc1 k1_zst
        buffer_store_dwordx4 v[60:63], v5, s[28:31], s36 offen
        """)
        k.lab("k1_zst")
        k(f"""
        s_and_b32 s37, s2, 7
        s_cmp_eq_u32 s37, 0
        s_cselect_b32 s38, {L.GRP}, 0
        s_cmp_eq_u32 s37, 7
        s_cselect_b32 s38, {L.GRP + 7*L.GS + 17*20480}, s38
        s_cmp_eq_u32 s38, 0
        s_cbranch_scc1 k1_zht
        s_sub_u32 s36, s54, 96
        s_lshr_b32 s36, s36, 3
        s_mul_i32 s36, s36, 5120
        s_add_u32 s36, s36, s38
        buffer_store_dwordx4 v[60:63], v5, s[28:31], s36 offen
        s_add_u32 s36, s36, 4096
        s_cmp_lg_u32 s20, 0
        s_cbranch_scc1 k1_zht
        buffer_store_dwordx4 v[60:63], v5, s[28:31], s36 offen
        """)
        k.lab("k1_zht")
    k("s_getpc_b64 s[40:41]")
    k.lab("k1_pcref")
    k(f"""
    s_sub_u32 s40, s40, k1_pcref-k1_kernel
    s_subb_u32 s41, s41, 0
    s_lshl_b32 s42, s24, 12
    """)
    for i in range(4):
        k(f"""
        s_add_u32 s43, s42, {1024*i}
        s_min_u32 s43, s43, (CODE_END-k1_kernel-1020)&0xfffffff0
        v_add_u32 v6, s43, v1
        global_load_dwordx4 {vr(64+4*i,4)}, v6, s[40:41]
        """)
    if int(os.environ.get("PFW2", 1)):
        k("s_mov_b32 s61, s21")
        k("s_mov_b32 s62, s24")
        k("s_waitcnt vmcnt(0)")
        side_wait(os.environ.get("SWN", 1))
        k("s_mov_b32 s21, s61")
        k("s_mov_b32 s24, s62")
        k.srd(28, 10, 0x10000000)
    if int(os.environ.get("CODEPF3", 0)):
        k("s_getpc_b64 s[40:41]")
        k.lab("k1_pcref3")
        k(f"""
        s_add_u32 s40, s40, k2_kernel-k1_pcref3
        s_addc_u32 s41, s41, 0
        s_lshl_b32 s42, s24, 11
        """)
        for i in range(2):
            k(f"""
            s_add_u32 s43, s42, {1024*i}
            s_min_u32 s43, s43, (CODE_END-k2_kernel-1020)&0xfffffff0
            v_add_u32 v6, s43, v1
            global_load_dwordx4 {vr(64+4*i,4)}, v6, s[40:41]
            """)
    for i in range(0 if os.environ.get("NOQPF") else 327680 // WPX // 1024):
        k(f"buffer_load_dwordx4 {vr(8+4*(i%10),4)}, v1, s[16:19], s21 offen offset:{(i%4)*1024}")
        if i % 4 == 3:
            k("s_add_u32 s21, s21, 4096")
    def lines(sreg, n, dst, bits=""):
        i = 0
        while n > 0:
            c = min(64, n)
            if c < 64: k(f"s_mov_b64 exec, {hex((1 << c) - 1) if c <= 31 else None}" if c <= 31 else f"s_mov_b32 exec_hi, {hex((1 << (c - 32)) - 1)}")
            k(f"buffer_load_dword v{dst+i}, v3, s[28:31], s{sreg} offen{bits}")
            if c < 64: k("s_mov_b64 exec, -1")
            else: k(f"s_add_u32 s{sreg}, s{sreg}, 8192")
            n -= c; i += 1
    k(f"""
    s_mul_i32 s22, s22, {L.GS}
    s_add_u32 s22, s22, {L.GRP}
    """)
    if os.environ.get("WARM"):
        k(f"s_mul_i32 s23, s24, {327680 // WPX}\ns_add_u32 s23, s23, s22\ns_add_u32 s23, s23, {L.G_H1S}")
        lines(23, 2560 // WPX, 48)
        k(f"s_mul_i32 s23, s24, {20480 // WPX}\ns_add_u32 s23, s23, s22\ns_add_u32 s23, s23, {L.G_ST1}")
        lines(23, 160 // WPX, 54)
    if os.environ.get("H3W"):
        k(f"s_mul_i32 s23, s24, 27648\ns_add_u32 s23, s23, s22\ns_add_u32 s23, s23, {L.G_H3}")
        lines(23, 216, 54, " nt")
    if os.environ.get("WPF"):
        lp = k.newlab("pfp"); ld = k.newlab("pfd"); le = k.newlab("pfe")
        k(f"""
        v_and_b32 v4, 1, v0
        v_lshlrev_b32 v4, 7, v4
        v_add_u32 v4, {L.FLAGS + L.F_PK + 128}, v4
        v_and_b32 v6, 1, v0
        v_mul_u32_u24 v6, 34, v6
        v_add_u32 v6, 20, v6                            ; targets 20 / 54
        s_mov_b32 s32, 20000
        """)
        k.lab(lp)
        k(f"""
        buffer_load_dword v5, v4, s[28:31], 0 offen sc1
        s_waitcnt vmcnt(0)
        v_cmp_le_u32 vcc, v6, v5
        s_sub_u32 s32, s32, 1
        s_cmp_eq_u64 vcc, -1
        s_cbranch_scc1 {ld}
        s_cmp_eq_u32 s32, 0
        s_cbranch_scc1 {le}
        s_sleep 64
        s_branch {lp}
        """)
        k.lab(ld)
        WPF = os.environ.get("WPF", "23")
        if "1" in WPF:
            k(f"s_mul_i32 s23, s24, 25600\ns_add_u32 s23, s23, {L.W1P}")
            lines(23, 200, 56)
        if "2" in WPF:
            k(f"s_mul_i32 s23, s24, 25600\ns_add_u32 s23, s23, {L.W2P}")
            lines(23, 200, 60)
        if "3" in WPF:
            k(f"s_mul_i32 s23, s24, {70*1024}\ns_add_u32 s23, s23, {L.W3P}")
            lines(23, 560, 64)
        k.lab(le)
    k("s_waitcnt vmcnt(0)")
    k("s_endpgm")
    return k

def build(kerns, path):
    hdr = open("/code/" + NAME + ".s.ref").read().split("\n")
    com = [l for l in hdr if l.startswith(";") and "@launch" not in l and "Override launch" not in l and "grid=ceil" not in l]
    s = "\n".join(com) + "\n"
    for k in kerns:
        s += f"; @launch kernel={k.name} grid=({k.grid},1,1) block=({k.block},1,1) lds={k.lds}\n"
    s += '.amdgcn_target "amdgcn-amd-amdhsa--gfx950"\n.text\n'
    for k in kerns:
        s += k.text()
    s += "CODE_END:\n    s_endpgm\n"
    s += '.section .rodata,"a"\n'
    for k in kerns:
        s += k.kd()
    open(path, "w").write(s)

if __name__ == "__main__":
    out = sys.argv[1] if len(sys.argv) > 1 else "/code/" + NAME + ".s"
    if MERGE:
        k = Kern("k01_kernel", 864, 256, 46080, vgpr=256, sgpr=64)
        if os.environ.get("ORD") == "kvfirst":
            k("""
            s_cmp_ge_u32 s2, 864
            s_cbranch_scc1 k1_end
            s_cmp_lt_u32 s2, 480
            s_cbranch_scc1 k01_k0
            s_sub_u32 s2, s2, 480
            s_branch k01_k1
            """)
        else:
            k("""
            s_cmp_ge_u32 s2, 864
            s_cbranch_scc1 k1_end
            s_cmp_lt_u32 s2, 160
            s_cbranch_scc1 k01_k1
            s_cmp_lt_u32 s2, 600
            s_cbranch_scc1 k01_a
            s_cmp_lt_u32 s2, 819
            s_cbranch_scc1 k01_b
            s_cmp_lt_u32 s2, 824
            s_cbranch_scc1 k1_end
            s_sub_u32 s2, s2, 384
            s_branch k01_k0
            """)
            k.lab("k01_b")
            k("s_sub_u32 s2, s2, 440")
            k("s_branch k01_k1")
            k.lab("k01_a")
            k("s_sub_u32 s2, s2, 160")
        k.lab("k01_k0")
        gen_k0(k)
        k.lab("k01_k1")
        gen_k1(k)
        kerns = [k]
    else:
        kerns = [gen_k1()]
    try:
        import chain
        kerns += chain.kernels(Kern, vr)
    except ImportError:
        pass
    build(kerns, out)
    print("wrote", out)
```

```python
import sys, os
sys.path.insert(0, os.path.dirname(os.path.abspath(__file__)))
import layout as L

NAME = "adaLN_cond__ssm_conv_h3__mixer_s_mlp__prompt"
SZ_SD = 2048 * 640 * 2

class Kern:
    def __init__(self, name, grid, block, lds, vgpr=256, sgpr=102, agpr=0):
        self.name, self.grid, self.block, self.lds = name, grid, block, lds
        self.vgpr, self.sgpr, self.agpr = vgpr, (102 if (os.environ.get("PROF") or os.environ.get("PROFK1")) else sgpr), agpr
        self.L = []
        self.nlab = 0
    def __call__(self, s):
        for ln in s.strip("\n").split("\n"):
            ln = ln.strip()
            if ln:
                self.L.append("    " + ln)
                h = getattr(self, "hook", None)
                if h and ln.startswith("v_"):
                    h[2] += 1
                    if h[2] % h[0] == 0:
                        self.hook = None
                        h[1]()
                        self.hook = h
    def lab(self, s):
        self.L.append(s + ":")
    def newlab(self, p="L"):
        self.nlab += 1
        return f"{self.name}_{p}{self.nlab}"
    def srd(self, d, b, size, off=0):
        if off:
            self(f"s_add_u32 s{d}, s{b}, {off}")
            self(f"s_addc_u32 s{d+1}, s{b+1}, 0")
        else:
            self(f"s_mov_b32 s{d}, s{b}")
            self(f"s_mov_b32 s{d+1}, s{b+1}")
        self(f"s_mov_b32 s{d+2}, {size}")
        self(f"s_mov_b32 s{d+3}, 0x00020000")
    def round2(self, a, b, t):
        self(f"v_cvt_pk_bf16_f32 v{t}, v{a}, v{b}")
        self(f"v_lshlrev_b32 v{a}, 16, v{t}")
        self(f"v_and_b32 v{b}, 0xffff0000, v{t}")
    def unpack(self, lo, hi, src):
        self(f"v_lshlrev_b32 v{lo}, 16, v{src}")
        self(f"v_and_b32 v{hi}, 0xffff0000, v{src}")
    def stamp(self, i):
        if os.environ.get("PROFK1"):
            self(f"s_memtime s[{80+2*i}:{81+2*i}]")
    def stamp_end(self, n):
        if os.environ.get("PROFK1"):
            l = self.newlab("prof")
            self(f"""
            s_waitcnt lgkmcnt(0)
            s_cmp_lg_u32 s2, {int(os.environ.get("PROFWG", "0"))}
            s_cbranch_scc1 {l}
            s_load_dwordx2 s[76:77], s[0:1], 112
            s_waitcnt lgkmcnt(0)
            s_mov_b32 s78, 256
            s_mov_b32 s79, 0x00020000
            v_mov_b32 v1, 0
            """)
            for i in range(n):
                self(f"s_sub_u32 s75, s{80+2*i}, s80")
                self(f"v_mov_b32 v2, s75")
                self(f"buffer_store_dword v2, v1, s[76:79], 0 offen offset:{4*i}")
            self.lab(l)
    def text(self):
        sc = self.name in os.environ.get("SC1", "k1_kernel").split(",")
        Ls = [(l + " sc1" if (sc and l.strip().startswith("buffer_store") and " sc1" not in l and "NOSC" not in l) else l.replace(" NOSC", "")) for l in self.L]
        return (f".globl {self.name}\n.p2align 8\n.type {self.name},@function\n{self.name}:\n" + "\n".join(Ls) + "\n")
    def kd(self):
        acc = (self.vgpr + 3) // 4 * 4
        nfv = self.vgpr if not self.agpr else acc + self.agpr
        return f""".p2align 6
.amdhsa_kernel {self.name}
  .amdhsa_next_free_vgpr {nfv}
  .amdhsa_next_free_sgpr {self.sgpr}
  .amdhsa_accum_offset {acc}
  .amdhsa_group_segment_fixed_size 0
  .amdhsa_kernarg_size 128
  .amdhsa_user_sgpr_count 2
  .amdhsa_user_sgpr_kernarg_segment_ptr 1
  .amdhsa_system_sgpr_workgroup_id_x 1
  .amdhsa_float_denorm_mode_32 3
.end_amdhsa_kernel
"""

def vr(a, n):
    return f"v[{a}:{a+n-1}]"

MERGE = os.environ.get("MERGE", "0") == "1"
CNT_OFF = 128

def signal(k, cnt_sgpr_or_imm):
    l = k.newlab("sig")
    k(f"""
    s_mov_b64 exec, -1
    s_waitcnt vmcnt(0)
    s_barrier
    v_cmp_eq_u32 vcc, 0, v0
    s_and_saveexec_b64 s[42:43], vcc
    s_cbranch_execz {l}
    v_mov_b32 v1, 1
    v_mov_b32 v2, {cnt_sgpr_or_imm}
    buffer_atomic_add v1, v2, s[48:51], 0 offen
    """)
    k.lab(l)
    k("s_endpgm")

def poll(k, voff, target, vtmp):
    l = k.newlab("poll"); d = k.newlab("polld")
    k("s_mov_b32 s52, 0")
    k("s_cmp_lg_u32 s20, 0")
    k(f"s_cbranch_scc1 {d}")
    k.lab(l)
    k(f"""
    buffer_load_dword v{vtmp}, v{voff}, s[48:51], 0 offen sc0 sc1
    s_waitcnt vmcnt(0)
    v_readfirstlane_b32 s53, v{vtmp}
    s_add_u32 s52, s52, 1
    s_cmp_ge_u32 s53, {target}
    s_cbranch_scc1 {d}
    s_cmp_ge_u32 s52, 0x100000
    s_cbranch_scc1 {d}
    s_sleep {int(os.environ.get("SLP", 8))}
    s_branch {l}
    """)
    k.lab(d)
    k("s_barrier")

def emit_pack(k, base, idreg="s2", step=None):
    k(f"""
    s_load_dwordx2 s[10:11], s[0:1], 120   ; ws
    s_load_dwordx8 s[12:19], s[0:1], 56    ; w1 w2 w3 w4
    v_lshrrev_b32 v2, 6, v0
    v_and_b32 v1, 63, v0                   ; lane
    v_readfirstlane_b32 s20, v2
    s_waitcnt lgkmcnt(0)
    """)
    k.srd(28, 10, 0x10000000)
    labs = [k.newlab("pk") for _ in range(4)]
    pend = k.newlab("pke")
    k(f"""
    s_sub_u32 s21, {idreg}, {base}
    v_lshrrev_b32 v3, 3, v0                ; row
    v_and_b32 v4, 7, v0                    ; chunk
    v_mul_u32_u24 v5, 144, v3
    v_lshl_add_u32 v5, v4, 4, v5
    v_and_b32 v6, 15, v1
    v_lshrrev_b32 v7, 4, v1                ; g
    v_lshrrev_b32 v8, 2, v6
    v_lshl_add_u32 v8, v7, 3, v8           ; 8g + (i>>2)
    v_mul_u32_u24 v8, 144, v8
    v_and_b32 v9, 3, v6
    v_lshl_add_u32 v8, v9, 3, v8
    s_lshl_b32 s22, s20, 5
    v_add_u32 v8, s22, v8
    v_lshlrev_b32 v9, 4, v1                ; lane*16
    s_cmp_lt_u32 s21, 10
    s_cbranch_scc1 {labs[0]}
    s_cmp_lt_u32 s21, 20
    s_cbranch_scc1 {labs[1]}
    s_cmp_lt_u32 s21, 48
    s_cbranch_scc1 {labs[2]}
    s_cmp_lt_u32 s21, 78
    s_cbranch_scc1 {labs[3]}
    s_branch {pend}
    """)
    for m in range(4):
        k.lab(labs[m])
        N = [640, 640, 1728, 640][m]; Kd = [640, 640, 640, 1728][m]
        pitch = N * 2
        nks = 10 if m < 3 else 9
        ub = [0, 10, 20, 48][m]
        ncb = N // 64
        npr = (ncb + 1) // 2
        k.srd(24, 12 + 2*m, Kd * N * 2)
        magic = {5: (52429, 18), 14: (4682, 16)}[npr]
        k(f"""
        s_sub_u32 s32, s21, {ub}
        s_mul_i32 s33, s32, {magic[0]}
        s_lshr_b32 s33, s33, {magic[1]}      ; kq
        s_mul_i32 s34, s33, {npr}
        s_sub_u32 s34, s32, s34
        s_lshl_b32 s34, s34, 1
        v_mul_u32_u24 v10, {pitch}, v3
        v_lshl_add_u32 v10, v4, 4, v10
        s_mul_i32 s35, s33, {nks*32*pitch}
        s_lshl_b32 s36, s34, 7
        s_add_u32 s35, s35, s36
        """)
        R = [32, 72]
        for h in range(2):
            for i in range(nks):
                k(f"buffer_load_dwordx4 {vr(R[h]+4*i,4)}, v10, s[24:27], s35 offen offset:{128*h}")
                if i < nks - 1:
                    k(f"s_add_u32 s35, s35, {32*pitch}")
            if h == 0: k(f"s_sub_u32 s35, s35, {(nks-1)*32*pitch}")
        nt_ = 7 if m == 2 else 5
        mg = (9363, 16) if nt_ == 7 else (52429, 18)
        perj = [100, 100, 140, 280][m]
        dconst = [i * nt_ * 1024 for i in range(nks)]
        for h in range(2):
            skip = None
            if h == 1:
                k("s_add_u32 s34, s34, 1")
                k("s_barrier")
            k(f"""
            s_lshl_b32 s36, s34, 2
            s_add_u32 s36, s36, s20             ; ntg
            s_mul_i32 s38, s36, {mg[0]}
            s_lshr_b32 s38, s38, {mg[1]}     ; j
            s_mul_i32 s39, s38, {nt_}
            s_sub_u32 s39, s36, s39          ; nt
            s_mul_i32 s37, s38, {perj}
            s_mul_i32 s40, s33, {nks*nt_}
            s_add_u32 s37, s37, s40
            s_add_u32 s37, s37, s39
            s_lshl_b32 s37, s37, 10
            s_add_u32 s37, s37, {[L.W1P, L.W2P, L.W3P, L.W4P][m]}
            """)
            nst = nks + (1 if m in (0, 2) else 0)
            for i in range(nks):
                n_after = (nks - 1 - i) + (nks if h == 0 else nst)
                k(f"s_waitcnt vmcnt({n_after})")
                k(f"ds_write_b128 v5, {vr(R[h]+4*i,4)} offset:{4608*i}")
            k("s_waitcnt lgkmcnt(0)")
            k("s_barrier")
            for i in range(nks):
                k(f"ds_read_b64_tr_b16 {vr(R[h]+4*i,2)}, v8 offset:{4608*i}")
                k(f"ds_read_b64_tr_b16 {vr(R[h]+4*i+2,2)}, v8 offset:{4608*i+576}")
            if m in (0, 2):
                k("v_mov_b32 v12, 0")
                k("v_mov_b32 v13, 0x3f803f80")
            for i in range(nks):
                k(f"s_waitcnt lgkmcnt({2*(nks-1-i)})" if 2*(nks-1-i) <= 15 else "s_waitcnt lgkmcnt(15)")
                k(f"s_add_u32 s38, s37, {dconst[i]}")
                k(f"buffer_store_dwordx4 {vr(R[h]+4*i,4)}, v9, s[28:31], s38 offen" + (" NOSC" if (os.environ.get("WPLAIN") and str(m) in os.environ.get("WPLAIN")) else ""))
                if m in (0, 2):
                    for d in range(4):
                        k(f"v_dot2_f32_bf16 v12, v{R[h]+4*i+d}, v13, v12")
            if m in (0, 2):
                k(f"""
                s_nop 2
                v_mov_b32 v13, v12
                s_nop 1
                v_permlane32_swap_b32 v13, v12
                v_add_f32 v12, v12, v13
                v_mov_b32 v13, v12
                s_nop 1
                v_permlane16_swap_b32 v13, v12
                v_add_f32 v12, v12, v13
                s_mul_i32 s38, s33, {1792*4}
                s_lshl_b32 s39, s36, 6
                s_add_u32 s38, s38, s39
                s_add_u32 s38, s38, {L.CS3P if m == 2 else L.CS1P}
                v_lshlrev_b32 v14, 2, v1
                v_cmp_gt_u32 vcc, 16, v1
                s_and_saveexec_b64 s[40:41], vcc
                buffer_store_dword v12, v14, s[28:31], s38 offen
                s_mov_b64 exec, -1
                """)
        k("s_endpgm")
    k.lab(pend)
    k("s_endpgm")


WREG = 9472
KVL = 4 * 9472
def gen_k1(k=None):
    NMOD = 60; NPF = 32
    MODFIRST = int(os.environ.get("MODFIRST", 0))
    NSIDE = 96 + NPF + (42 if MODFIRST else NMOD)
    GRID = (160 + NSIDE + 7) // 8 * 8
    k = Kern("k1_kernel", GRID, 256, KVL + 10240, vgpr=256, sgpr=72)
    end = "k1_end"; modl = "k1_modf"
    k(f"""
    s_cmp_ge_u32 s2, {GRID}
    s_cbranch_scc1 {end}
    s_load_dwordx4 s[4:7], s[0:1], 32
    s_load_dwordx2 s[10:11], s[0:1], 120   ; ws
    s_load_dwordx4 s[12:15], s[0:1], 8     ; k, v
    s_load_dwordx2 s[8:9], s[0:1], 24      ; shift_k
    v_lshrrev_b32 v2, 6, v0
    v_and_b32 v1, 63, v0                   ; lane
    v_readfirstlane_b32 s20, v2
    s_sub_u32 s54, s2, 160
    s_cmp_ge_u32 s2, 256
    s_cbranch_scc1 k1_side
    s_and_b32 s55, s2, 7                   ; class
    s_lshr_b32 s56, s2, 3                  ; member
    s_lshl_b32 s57, s55, 9
    s_add_u32 s57, s57, {L.KFL}
    v_mov_b32 v250, 0
    s_waitcnt lgkmcnt(0)
    """)
    k.srd(28, 10, 0x10000000)
    k.stamp(0)
    if os.environ.get("PROFMOD"):
        k(f"""
        s_memrealtime s[62:63]
        s_waitcnt lgkmcnt(0)
        s_lshl_b32 s23, s2, 4
        s_add_u32 s23, s23, {(48 << 20) + 4096}
        v_mov_b32 v12, s62
        s_mov_b64 exec, 1
        buffer_store_dword v12, v250, s[28:31], s23 offen
        s_mov_b64 exec, -1
        """)
    if os.environ.get("PROFKV"): k("s_memrealtime s[62:63]")
    k.srd(16, 12, SZ_SD); k.srd(40, 14, SZ_SD); k.srd(44, 8, 640 * 8)
    KR, VR_, SKR, SKF, KF, KVF, T = 10, 32, 48, 56, 72, 116, 150
    k(f"""
    v_mul_u32_u24 v4, 3277, v0
    v_lshrrev_b32 v4, 16, v4               ; rg
    v_mul_u32_u24 v5, 20, v4
    v_sub_u32 v5, v0, v5                   ; cg
    s_lshl_b32 s21, s56, 6
    v_lshl_add_u32 v6, v4, 3, s21
    v_mul_u32_u24 v6, 1280, v6
    s_mul_i32 s22, s55, 160
    v_lshl_add_u32 v7, v5, 3, s22
    v_add_u32 v6, v6, v7
    v_subrev_u32 v8, 3840, v6
    v_add_u32 v9, 5120, v6
    s_movk_i32 s23, 160
    v_cmp_gt_u32 vcc, s23, v0
    s_and_saveexec_b64 s[60:61], vcc
    s_cbranch_execz k1_kvld
    """)
    for r in range(11):
        if r < 3: k(f"buffer_load_dwordx2 {vr(KR+2*r,2)}, v8, s[16:19], 0 offen offset:{1280*r}")
        elif r < 6: k(f"buffer_load_dwordx2 {vr(KR+2*r,2)}, v6, s[16:19], 0 offen offset:{1280*(r-3)}")
        elif r < 7: k(f"buffer_load_dwordx2 {vr(KR+2*r,2)}, v6, s[16:19], 0 offen offset:3840")
        else: k(f"buffer_load_dwordx2 {vr(KR+2*r,2)}, v9, s[16:19], 0 offen offset:{1280*(r-7)}")
    k(f"v_lshlrev_b32 v{T}, 2, v7")
    k(f"buffer_load_dwordx4 {vr(SKR,4)}, v{T}, s[44:47], 0 offen")
    k(f"buffer_load_dwordx4 {vr(SKR+4,4)}, v{T}, s[44:47], 0 offen offset:16")
    for r in range(8):
        if r < 4: k(f"buffer_load_dwordx2 {vr(VR_+2*r,2)}, v6, s[40:43], 0 offen offset:{1280*r}")
        else: k(f"buffer_load_dwordx2 {vr(VR_+2*r,2)}, v9, s[40:43], 0 offen offset:{1280*(r-4)}")
    k.lab("k1_kvld")
    k("s_mov_b64 exec, -1")
    NTL = 0
    k("buffer_load_dword v251, v250, s[28:31], s57 offen sc1")
    if int(os.environ.get("FLWARM", 1)):
        k("v_and_b32 v249, 31, v1")
        k("v_lshlrev_b32 v249, 2, v249")
        k("buffer_load_dword v249, v249, s[28:31], s57 offen offset:256 sc1")
    NTL += 1 + int(os.environ.get("FLWARM", 1))
    if int(os.environ.get("SELFPF", 1)):
        NSP = int(os.environ.get("SELFPF", 1))
        k("s_getpc_b64 s[62:63]")
        k("s_lshl_b32 s64, s20, 10")
        for i in range(NSP):
            k(f"s_add_u32 s65, s64, {4096*i}")
            k("v_lshlrev_b32 v247, 4, v1")
            k("v_add_u32 v247, s65, v247")
            k(f"global_load_dwordx4 v[{240+4*(i%1)}:{243+4*(i%1)}], v247, s[62:63]")
        NTL += NSP
    if int(os.environ.get("KVTLB", 0)):
        NTL += 1
        k(f"""
        s_mul_i32 s36, s55, {80*L.KVR_CH}
        v_and_b32 v252, 15, v1
        v_mul_u32_u24 v252, {L.KVR_CH*5}, v252
        v_lshrrev_b32 v253, 4, v1
        v_cmp_eq_u32 vcc, 1, v253
        v_and_b32 v254, 15, v1
        v_mul_u32_u24 v254, 0x60000, v254
        v_add_u32 v254, {L.W1P}, v254
        v_add_u32 v252, s36, v252
        v_cndmask_b32 v252, v252, v254, vcc
        buffer_load_dword v253, v252, s[28:31], 0 offen
        """)
    lnc = k.newlab("nc")
    k.srd(24, 4, 640 * 4096)
    k(f"""
    s_cmp_lt_u32 s56, 12
    s_cbranch_scc1 {lnc}
    s_mul_i32 s58, s55, 20
    s_add_u32 s58, s58, s56
    s_sub_u32 s58, s58, 12
    s_lshl_b32 s21, s58, 3
    s_add_u32 s22, s6, s21
    s_addc_u32 s23, s7, 0
    s_load_dwordx2 s[32:33], s[22:23], 0
    s_lshl_b32 s21, s58, 2
    s_add_u32 s21, s21, s20                 ; ch
    s_mul_i32 s34, s20, {WREG}
    v_lshlrev_b32 v3, 4, v1                 ; lane*16
    s_lshl_b32 s35, s21, 12                 ; ch*4096
    s_add_u32 s36, s34, 256
    s_mov_b32 m0, s36
    s_nop 0
    """)
    for i in range(4):
        k(f"buffer_load_dwordx4 v3, s[24:27], s35 offen offset:{1024*i} lds")
    k.lab(lnc)
    k(f"""
    s_mov_b64 exec, s[60:61]
    s_movk_i32 s23, 160
    v_cmp_gt_u32 vcc, s23, v0
    s_and_b64 exec, exec, vcc
    s_cbranch_execz k1_kvskip
    """)
    k(f"""
    v_sub_u32 v{T}, 7, v4
    v_and_b32 v{T+1}, 7, v5
    v_xor_b32 v{T}, v{T}, v{T+1}
    v_lshlrev_b32 v{T}, 4, v{T}
    v_lshl_add_u32 v{T}, v5, 9, v{T}
    v_add_u32 v{T}, {KVL}, v{T}
    s_cmp_lt_u32 s56, 12
    s_cbranch_scc1 k1_w8
    s_waitcnt vmcnt({12+NTL})
    s_branch k1_w9
    """)
    k.lab("k1_w8")
    k(f"s_waitcnt vmcnt({8+NTL})")
    k.lab("k1_w9")
    for c in range(4):
        k.unpack(SKF + c, SKF + 4 + c, SKR + 2*c)
        k.unpack(SKF + 8 + c, SKF + 12 + c, SKR + 2*c + 1)
    for r in range(11):
        k.unpack(KF + 4*r, KF + 4*r + 1, KR + 2*r)
        k.unpack(KF + 4*r + 2, KF + 4*r + 3, KR + 2*r + 1)
    for p in range(2):
        for s_ in range(8):
            A = KVF + 4*s_ + 2*p
            k(f"v_pk_mul_f32 {vr(A,2)}, {vr(KF+4*s_+2*p,2)}, {vr(SKF+12+2*p,2)}")
        for j in (2, 1, 0):
            for s_ in range(8):
                A = KVF + 4*s_ + 2*p
                k(f"v_pk_fma_f32 {vr(A,2)}, {vr(KF+4*(s_+3-j)+2*p,2)}, {vr(SKF+4*j+2*p,2)}, {vr(A,2)}")
    for s_ in range(8):
        for p in range(2):
            A = KVF + 4*s_ + 2*p
            k.round2(A, A + 1, T + 4 + (2*s_ + p) % 8)
    k("""
    s_cmp_lt_u32 s56, 12
    s_cbranch_scc1 k1_w0
    s_waitcnt vmcnt(%d)
    s_branch k1_w1
    """ % (4 + NTL))
    k.lab("k1_w0")
    k(f"s_waitcnt vmcnt({NTL})")
    k.lab("k1_w1")
    if os.environ.get("PROFKV"): k("s_memrealtime s[64:65]")
    k.stamp(1)
    for s_ in range(8):
        for p in range(2):
            t_ = KF + 4*s_ + 2*p
            k.unpack(t_, t_ + 1, VR_ + 2*s_ + p)
    for s_ in range(8):
        for p in range(2):
            k(f"v_pk_mul_f32 {vr(KVF+4*s_+2*p,2)}, {vr(KVF+4*s_+2*p,2)}, {vr(KF+4*s_+2*p,2)}")
    O2 = KR
    for c in range(4):
        for d in range(4):
            k(f"v_cvt_pk_bf16_f32 v{O2+4*c+d}, v{KVF+4*(7-2*d)+c}, v{KVF+4*(6-2*d)+c}")
    for c in range(4):
        k(f"ds_write_b128 v{T}, {vr(O2+4*c,4)} offset:{128*c}")
    k.lab("k1_kvskip")
    k(f"""
    s_mov_b64 exec, -1
    v_lshrrev_b32 v{T+1}, 3, v0             ; channel (0..31)
    v_and_b32 v{T+2}, 7, v0                 ; unit
    v_lshrrev_b32 v{T+3}, 2, v{T+1}
    v_and_b32 v{T+3}, 7, v{T+3}
    v_xor_b32 v{T+3}, v{T+3}, v{T+2}
    v_lshlrev_b32 v{T+3}, 4, v{T+3}
    v_lshl_add_u32 v{T+3}, v{T+1}, 7, v{T+3}
    v_add_u32 v{T+3}, {KVL}, v{T+3}
    v_mul_u32_u24 v{T+1}, {L.KVR_CH}, v{T+1}
    v_lshl_add_u32 v{T+4}, v{T+2}, 4, v{T+1}
    s_mul_i32 s36, s55, {80*L.KVR_CH}
    s_add_u32 s36, s36, {L.KVR}
    s_lshl_b32 s37, s56, 7
    s_sub_u32 s38, 3968, s37
    s_add_u32 s38, s38, s36                 ; + 3968 - 128*mi
    s_waitcnt lgkmcnt(0)
    s_barrier
    """)
    k.stamp(2)
    for i in range(3):
        k(f"ds_read_b128 {vr(32+4*i,4)}, v{T+3} offset:{4096*i}")
    for i in range(3):
        if i == 2: k("s_movk_i32 s23, 128\nv_cmp_gt_u32 vcc, s23, v0\ns_and_saveexec_b64 s[60:61], vcc\ns_cbranch_execz k1_st2skip")
        k(f"s_waitcnt lgkmcnt({2-i})")
        k(f"buffer_store_dwordx4 {vr(32+4*i,4)}, v{T+4}, s[28:31], s38 offen sc1")
        k(f"s_add_u32 s38, s38, {32*L.KVR_CH}")
    k.lab("k1_st2skip")
    k("s_mov_b64 exec, -1")
    zl = k.newlab()
    k(f"""
    s_cmp_lg_u32 s56, 0
    s_cbranch_scc1 {zl}
    v_mov_b32 v44, 0
    v_mov_b32 v45, 0
    v_mov_b32 v46, 0
    v_mov_b32 v47, 0
    s_add_u32 s36, s36, 4096
    """)
    for i in range(3):
        if i == 2: k(f"s_movk_i32 s23, 128\nv_cmp_gt_u32 vcc, s23, v0\ns_and_b64 exec, exec, vcc\ns_cbranch_execz {zl}")
        k(f"buffer_store_dwordx4 v[44:47], v{T+4}, s[28:31], s36 offen sc1")
        k(f"s_add_u32 s36, s36, {32*L.KVR_CH}")
    k.lab(zl)
    lfl = k.newlab("kf")
    k(f"""
    s_mov_b64 exec, -1
    s_waitcnt vmcnt(0)
    v_add_u32 v251, 1, v251
    """)
    k.stamp(3)
    if os.environ.get("PROFKV"): k("s_memrealtime s[66:67]")
    k(f"""
    s_barrier
    s_cmp_lg_u32 s20, 0
    s_cbranch_scc1 {lfl}
    s_lshl_b32 s23, s56, 2
    s_add_u32 s23, s23, s57
    s_mov_b64 exec, 1
    buffer_store_dword v251, v250, s[28:31], s23 offen offset:256 NOSC
    buffer_store_dword v251, v250, s[28:31], s23 offen offset:128 sc1
    s_mov_b64 exec, -1
    """)
    k.lab(lfl)
    k(f"""
    s_lshl_b32 s54, s56, 3
    s_add_u32 s54, s54, s55
    """)
    if os.environ.get("PROFKV"):
        lq = k.newlab("pq")
        k(f"""
        s_cmp_ge_u32 s56, 12
        s_cbranch_scc1 {lq}
        s_cmp_lg_u32 s20, 0
        s_cbranch_scc1 {lq}
        s_waitcnt lgkmcnt(0)
        s_lshl_b32 s23, s54, 4
        s_add_u32 s23, s23, {48 << 20}
        v_mov_b32 v12, s62
        v_mov_b32 v13, s64
        v_mov_b32 v14, s66
        v_mov_b32 v15, s66
        s_mov_b64 exec, 1
        buffer_store_dwordx4 v[12:15], v250, s[28:31], s23 offen
        s_mov_b64 exec, -1
        """)
        k.lab(lq)
    k(f"""
    s_cmp_lt_u32 s56, 12
    s_cbranch_scc1 k1_side2
    """)
    k("s_mov_b32 s2, s58")
    if os.environ.get("PRIO", "1") == "1": k("s_setprio 3")
    k.stamp(5)
    k(f"""
    s_lshl_b32 s21, s2, 2
    s_add_u32 s21, s21, s20                 ; ch
    s_mul_i32 s34, s20, {WREG}
    v_lshlrev_b32 v3, 4, v1                 ; lane*16
    s_mul_i32 s37, s21, {L.KVR_CH}
    s_add_u32 s37, s37, {L.KVR}
    v_lshrrev_b32 v4, 3, v0
    v_mul_u32_u24 v4, 20480, v4
    s_lshr_b32 s38, s2, 1
    s_and_b32 s38, s38, 7
    v_and_b32 v5, 7, v0
    v_xor_b32 v5, s38, v5
    v_lshl_add_u32 v4, v5, 4, v4            ; (t>>3)*20480 + ((t&7)^sw)*16
    s_lshl_b32 s38, s2, 7                   ; cg*128
    """)
    for i in range(5):
        k(f"""
        v_add_u32 v20, {64*i}, v1
        v_mul_u32_u24 v21, 3856, v20
        v_lshrrev_b32 v21, 16, v21             ; n = q/17
        v_mul_u32_u24 v22, 17, v21
        v_sub_u32 v22, v20, v22                ; e
        v_lshlrev_b32 v22, 4, v22
        v_lshlrev_b32 v21, 8, v21
        v_sub_u32 v22, v22, v21
        v_add_u32 v{23+i}, 3840, v22
        """)
    k(f"""
    v_lshl_add_u32 v5, v1, 2, s34
    v_mov_b32 v6, 0
    ds_write_b32 v5, v6
    v_and_b32 v7, 15, v1                    ; n16
    v_bfe_u32 v8, v1, 4, 1                  ; ph
    v_lshrrev_b32 v9, 5, v1                 ; g
    v_mul_u32_u24 v10, 272, v7
    v_lshl_add_u32 v10, v9, 4, v10
    v_add_u32 v10, s34, v10
    v_add_u32 v10, {4352+4}, v10
    v_lshlrev_b32 v11, 2, v8
    v_sub_u32 v10, v10, v11
    v_and_b32 v12, 7, v1
    v_mul_u32_u24 v13, 272, v12
    v_lshl_add_u32 v13, v9, 4, v13
    v_add_u32 v13, s34, v13
    v_add_u32 v13, {4352+4}, v13
    v_sub_u32 v13, v13, v11                 ; vBP
    v_bfe_u32 v11, v1, 3, 1                 ; a'
    v_lshlrev_b32 v11, 4, v11
    v_sub_u32 v11, 16, v11
    v_and_b32 v14, 31, v1
    v_lshlrev_b32 v14, 3, v14
    v_lshl_add_u32 v14, v9, 4, v14
    v_add_u32 v14, s34, v14
    v_add_u32 v14, 8, v14                   ; vA
    v_cmp_ne_u32 vcc, 0, v12
    v_mov_b32 v16, 0
    s_nop 1
    v_cndmask_b32 v15, v16, -1, vcc
    """)
    k("s_waitcnt lgkmcnt(0)")
    AM_ = 176
    for ks in range(8):
        k(f"ds_read_b64 {vr(AM_+4*ks,2)}, v14 offset:{256*7+32*ks}")
        k(f"ds_read_b64 {vr(AM_+4*ks+2,2)}, v14 offset:{256*7+32*ks+8}")
    lw = k.newlab("kw"); lp = k.newlab("kp"); ld = k.newlab("kd"); lb = k.newlab("kb")
    k(f"""
    s_cmp_lg_u32 s20, 0
    s_cbranch_scc1 {lw}
    v_and_b32 v40, 31, v1
    v_lshlrev_b32 v40, 2, v40
    s_mov_b32 s23, 200000
    """)
    lq4 = k.newlab("kq")
    k("s_mov_b64 s[60:61], 0")
    k.lab(lp)
    k(f"""
    buffer_load_dword v41, v40, s[28:31], s57 offen offset:256 sc1
    s_waitcnt vmcnt(0)
    v_cmp_eq_u32 vcc, v251, v41
    s_sub_u32 s23, s23, 1
    s_or_b64 s[60:61], s[60:61], vcc
    s_cmp_eq_u64 s[60:61], -1
    s_cbranch_scc1 {ld}
    s_and_b32 s21, s23, 3
    s_cmp_lg_u32 s21, 0
    s_cbranch_scc1 {lq4}
    buffer_load_dword v41, v40, s[28:31], s57 offen offset:128 sc1
    s_waitcnt vmcnt(0)
    v_cmp_eq_u32 vcc, v251, v41
    s_nop 1
    s_or_b64 s[60:61], s[60:61], vcc
    s_cmp_eq_u64 s[60:61], -1
    s_cbranch_scc1 {ld}
    """)
    k.lab(lq4)
    k(f"""
    s_sleep {os.environ.get("KSLEEP", 2)}
    s_cmp_lg_u32 s23, 0
    s_cbranch_scc1 {lp}
    """)
    k.lab(ld)
    if os.environ.get("PROFKV"):
        k(f"""
        s_memrealtime s[68:69]
        s_waitcnt lgkmcnt(0)
        s_lshl_b32 s23, s56, 3
        s_add_u32 s23, s23, s55
        s_lshl_b32 s23, s23, 4
        s_add_u32 s23, s23, {48 << 20}
        v_mov_b32 v12, s62
        v_mov_b32 v13, s64
        v_mov_b32 v14, s66
        v_mov_b32 v15, s68
        s_mov_b64 exec, 1
        buffer_store_dwordx4 v[12:15], v250, s[28:31], s23 offen
        s_mov_b64 exec, -1
        """)
    k(f"""
    s_cmp_lg_u32 s56, 12
    s_cbranch_scc1 {lw}
    s_mov_b64 exec, 1
    buffer_store_dword v251, v250, s[28:31], s57 offen sc1
    s_mov_b64 exec, -1
    """)
    k.lab(lw)
    k.stamp(4)
    k("s_barrier")
    for i in range(5):
        k(f"s_add_u32 s36, s34, {4352 + 1024*i}")
        k("s_mov_b32 m0, s36")
        if i == 4: k("s_mov_b64 exec, 0xffff")
        else: k("s_nop 0")
        k(f"buffer_load_dwordx4 v{23+i}, s[28:31], s37 offen sc1 lds")
    k("s_mov_b64 exec, -1")
    k("s_waitcnt vmcnt(0) lgkmcnt(0)")
    B0, B1, BP, AX, AY, AP_, AM, APk = 32, 64, 96, 128, 144, 160, 176, 208
    k.stamp(6)
    def aread(reg, off):
        return f"ds_read_b64 {vr(reg,2)}, v14 offset:{off}\n    ds_read_b64 {vr(reg+2,2)}, v14 offset:{off+8}"
    TB = 16
    for ks in range(8):
        k(f"ds_read2_b32 {vr(B1+4*ks,2)}, v10 offset0:{8*ks} offset1:{8*ks+1}")
        k(f"ds_read2_b32 {vr(B1+4*ks+2,2)}, v10 offset0:{8*ks+2} offset1:{8*ks+3}")
    prd = []
    for ks in range(8):
        prd.append(f"ds_read_b32 v{TB+ks}, v10 offset:{32*ks+16}")
    for ks in range(8):
        prd.append(f"ds_read2_b32 {vr(BP+4*ks,2)}, v13 offset0:{8*ks} offset1:{8*ks+1}")
        prd.append(f"ds_read2_b32 {vr(BP+4*ks+2,2)}, v13 offset0:{8*ks+2} offset1:{8*ks+3}")
        prd.append(f"ds_read_b32 v{TB+8+ks}, v13 offset:{32*ks+16}")
    al0 = []; alp = []
    for ks in range(8):
        for d in range(4):
            hi = B1 + 4*ks + d + 1 if d < 3 else TB + ks
            al0.append(f"v_alignbit_b32 v{B0+4*ks+d}, v{hi}, v{B1+4*ks+d}, 16")
            hi = BP + 4*ks + d + 1 if d < 3 else TB + 8 + ks
            alp.append(f"v_alignbit_b32 v{BP+4*ks+d}, v{hi}, v{BP+4*ks+d}, v11")
    DPP = "row_mask:0xf bank_mask:0xf bound_ctrl:0"
    def mfma(acc, a, b, first):
        c = "0" if first else vr(acc, 16)
        k(f"v_mfma_f32_32x32x16_bf16 {vr(acc,16)}, {vr(a,4)}, {vr(b,4)}, {c}")
    def phase(acc, Areg, Breg, first, reads, late, pad=True, rg=8):
        reads = list(reads); late = list(late)
        for ks in range(8):
            mfma(acc, Areg + 4*ks, Breg + 4*ks, first and ks == 0)
            n = (len(reads) + (rg - 1 - ks)) // (rg - ks) if ks < rg else 0
            for s in reads[:n]:
                k(s)
            reads = reads[n:]
            if ks < 2:
                if pad and late and n < 5:
                    k(f"s_nop {4 - n}")
            else:
                n = (len(late) + (7 - ks)) // (8 - ks)
                for s in late[:n]:
                    k(s)
                late = late[n:]
        assert not late and not reads
    def shift_ops(acc, masked):
        if masked:
            return [f"v_and_b32_dpp v{acc+r}, v{acc+r}, v15 row_shr:1 {DPP}" for r in range(16)]
        return [f"v_mov_b32_dpp v{acc+r}, v{acc+r} row_shr:1 {DPP}" for r in range(16)]
    def areads(reg, off):
        o = []
        for ks in range(8):
            o += aread(reg + 4*ks, off + 32*ks).split("\n")
        return o
    epi_a = f"""v_mul_u32_u24 v16, 272, v7
    v_add_u32 v16, s34, v16
    v_add_u32 v16, {4352 + 36}, v16
    v_lshlrev_b32 v17, 2, v8
    v_sub_u32 v16, v16, v17
    v_lshlrev_b32 v17, 5, v9
    v_sub_u32 v16, v16, v17""".split("\n")
    epi_a += [f"ds_read_b32 v{64+r}, v16 offset:{216 - 64*(r>>2) - 8*(r&3)}" for r in range(16)]
    epi_a += f"""s_lshr_b32 s44, s20, 1
    s_and_b32 s45, s20, 1
    s_cmp_eq_u32 s44, 1
    s_cselect_b32 s44, s33, s32
    s_lshl_b32 s46, s44, 16
    s_and_b32 s47, s44, 0xffff0000
    s_cmp_eq_u32 s45, 1
    s_cselect_b32 s44, s47, s46
    v_mul_u32_u24 v18, 264, v7
    v_lshl_add_u32 v18, v9, 5, v18
    v_lshl_add_u32 v18, v8, 2, v18
    v_add_u32 v18, s34, v18
    v_mul_u32_u24 v17, 264, v2
    v_lshl_add_u32 v17, v1, 2, v17""".split("\n")
    if int(os.environ.get("CODEPF2", 0)):
        epi_a.append("s_getpc_b64 s[50:51]\nK1PC2:\ns_add_u32 s50, s50, k2_kernel-K1PC2\ns_addc_u32 s51, s51, 0")
        epi_a += f"""s_sub_u32 s52, s56, 12
    s_lshl_b32 s52, s52, 2
    s_add_u32 s52, s52, s20
    s_lshl_b32 s52, s52, 10
    s_min_u32 s52, s52, (CODE_END-k2_kernel-1020)&0xfffffff0
    v_add_u32 v19, s52, v3
    global_load_dwordx4 v[28:31], v19, s[50:51]""".split("\n")
    tlb_ops = []
    if int(os.environ.get("YTLB", 1)):
        tlb_ops = [f"v_and_b32 v19, 31, v1", f"s_mov_b32 s50, {L.GS // 4 // 16 * 16}", "v_mul_lo_u32 v19, v19, s50", f"s_mov_b32 s50, {L.GRP}",
                   "buffer_load_dword v28, v19, s[28:31], s50 offen"]
    epi_b = []
    for r in range(16):
        epi_b.append(f"v_and_b32 v{80+r}, 0xffff0000, v{64+r}")
        epi_b.append(f"v_lshlrev_b32 v{64+r}, 16, v{64+r}")
    for q in range(7, -1, -1):
        first = (q == 7)
        k("s_waitcnt lgkmcnt(0)")
        apl = areads(APk, 256*(q+8))
        if first:
            for ks in range(8):
                mfma(AY, AM + 4*ks, B1 + 4*ks, ks == 0)
                if ks == 0:
                    for x in prd[:16]: k(x)
                elif ks == 1:
                    for x in prd[16:]: k(x)
                elif ks == 2:
                    k("s_waitcnt lgkmcnt(15)")
                    k("s_waitcnt lgkmcnt(0)")
                    for x in al0[:4]: k(x)
                else:
                    for x in al0[4 + (ks-3)*6: 4 + (ks-2)*6]: k(x)
            k("s_nop 0")
            phase(AX, AM, B0, True, apl, alp[:16] + shift_ops(AY, False) + alp[16:] + ["s_nop 0"])
        else:
            phase(AY, AM, B1, False, apl, shift_ops(AP_, True))
            if q == 5: phase(AX, AM, B0, False, tlb_ops, shift_ops(AY, False))
            elif q > 0: phase(AX, AM, B0, False, [], shift_ops(AY, False))
            else: phase(AX, AM, B0, False, [], epi_a, pad=False)
        k("s_waitcnt lgkmcnt(0)")
        aml = areads(AM, 256*(q-1)) if q > 0 else []
        phase(AP_, APk, BP, first, aml, shift_ops(AX, False) if q > 0 else epi_b, rg=5, pad=(q > 0))
    k.stamp(7)
    k("s_mov_b32 s48, 0x05040100")
    k("s_mov_b32 s49, 0x07060302")
    k("s_nop 11")
    for r in range(16):
        k(f"v_add_f32_dpp v{AX+r}, v{AP_+r}, v{AX+r} row_shr:8 {DPP}")
    k("""
    s_mov_b32 s42, 0xff00ff00
    s_mov_b32 s43, 0xff00ff00
    s_mov_b64 exec, s[42:43]
    """)
    for r in range(16):
        k(f"v_add_f32 v{AY+r}, v{AP_+r}, v{AY+r}")
    k("s_mov_b64 exec, -1")
    for r in range(16):
        k(f"v_fma_f32 v{AX+r}, v{80+r}, s44, v{AX+r}")
        k(f"v_fma_f32 v{AY+r}, v{64+r}, s44, v{AY+r}")
    for r in range(16):
        k(f"v_cvt_pk_bf16_f32 v{32+r}, v{AX+r}, v{AY+r}")
    for r in range(16):
        k(f"ds_write_b32 v18, v{32+r} offset:{64*(r>>2)+8*(r&3)}")
    k(f"""
    s_waitcnt lgkmcnt(0)
    s_barrier
    """)
    Y = 48
    for e in range(4):
        for c in range(4):
            k(f"ds_read_b32 v{Y+4*e+c}, v17 offset:{c*WREG+1056*e}")
    k("s_waitcnt lgkmcnt(0)")
    O = 96
    for e in range(4):
        for hh in range(2):
            a, b = Y + 4*e + 2*hh, Y + 4*e + 2*hh + 1
            k(f"v_perm_b32 v{O+4*e+hh}, v{b}, v{a}, s48")
            k(f"v_perm_b32 v{O+4*e+2+hh}, v{b}, v{a}, s49")
    k(f"""
    v_lshrrev_b32 v20, 3, v0             ; tt
    v_lshrrev_b32 v21, 4, v20            ; tt>>4
    v_and_b32 v22, 15, v20               ; tt&15
    v_mul_u32_u24 v23, 20480, v20
    v_sub_u32 v23, v4, v23
    s_mov_b32 s40, {L.GS}
    v_mul_lo_u32 v24, v21, s40
    v_add_u32 v24, v24, v23
    v_add_u32 v25, 1, v22
    v_mul_u32_u24 v25, 20480, v25
    v_add_u32 v25, v25, v24
    v_cmp_eq_u32 s[42:43], 15, v22
    v_cmp_eq_u32 s[44:45], 0, v22
    v_add_u32 v26, {2*L.GS}, v24
    v_add_u32 v27, {17*20480}, v24
    v_cndmask_b32 v26, v27, v26, s[42:43]
    v_cmp_ne_u32 vcc, 0, v20
    s_and_b64 s[46:47], s[44:45], vcc
    s_or_b64 s[46:47], s[46:47], s[42:43]
    v_cmp_ne_u32 vcc, 31, v20
    s_and_b64 s[52:53], s[42:43], vcc
    s_or_b64 s[52:53], s[52:53], s[44:45]
    s_or_b64 s[44:45], s[44:45], s[42:43]    ; e = 1, 2
    s_add_u32 s39, s38, {L.GRP}
    """)
    for e in range(4):
        k(f"buffer_store_dwordx4 {vr(O+4*e,4)}, v25, s[28:31], s39 offen" + (" NOSC" if os.environ.get("YPLAIN") else ""))
        hl_ = k.newlab("halo")
        k(f"s_mov_b64 exec, {['s[46:47]', 's[44:45]', 's[44:45]', 's[52:53]'][e]}")
        k(f"s_cbranch_execz {hl_}")
        k(f"s_sub_u32 s41, s39, {L.GS}")
        k(f"buffer_store_dwordx4 {vr(O+4*e,4)}, v26, s[28:31], s41 offen" + (" NOSC" if os.environ.get("YPLAIN") else ""))
        k.lab(hl_)
        k("s_mov_b64 exec, -1")
        k(f"s_add_u32 s39, s39, {2*L.GS}")
    k.stamp(8)
    k("s_waitcnt vmcnt(0)")
    k.stamp_end(9)
    k("s_endpgm")

    k.lab("k1_side")
    k(f"""
    s_cmp_ge_u32 s54, {NSIDE}
    s_cbranch_scc1 {end}
    """)
    def side_wait(cnt):
        sp = k.newlab("sw"); sd = k.newlab("sw")
        k(f"""
        s_cmp_lg_u32 s20, 0
        s_cbranch_scc1 {sd}
        s_and_b32 s55, s2, 7
        s_lshl_b32 s57, s55, 9
        s_add_u32 s57, s57, {L.KFL}
        v_mov_b32 v250, 0
        v_and_b32 v248, 31, v0
        v_lshlrev_b32 v248, 2, v248
        s_waitcnt lgkmcnt(0)
        """)
        k.srd(28, 10, 0x10000000)
        k(f"""
        buffer_load_dword v251, v250, s[28:31], s57 offen sc1
        s_mov_b32 s23, {cnt}
        s_waitcnt vmcnt(0)
        v_add_u32 v251, 1, v251
        """)
        k.lab(sp)
        k(f"""
        buffer_load_dword v249, v248, s[28:31], s57 offen offset:256 sc1
        s_waitcnt vmcnt(0)
        v_cmp_eq_u32 vcc, v251, v249
        s_sub_u32 s23, s23, 1
        s_cmp_eq_u64 vcc, -1
        s_cbranch_scc1 {sd}
        s_sleep {os.environ.get('SSLEEP', 16)}
        s_cmp_lg_u32 s23, 0
        s_cbranch_scc1 {sp}
        """)
        k.lab(sd)
        k("s_barrier")
    if int(os.environ.get("SIDEWAIT", 1)):
        lsx = k.newlab("sx")
        k(f"""
        s_cmp_lt_u32 s54, {96+NPF+int(os.environ.get("NOWAITN", 0))}
        s_cbranch_scc1 {lsx}
        s_mov_b32 s61, s54
        """)
        side_wait(os.environ.get("SWN", 1))
        k("s_mov_b32 s54, s61")
        k.lab(lsx)
    k(f"""
    s_cmp_lt_u32 s54, {96+NPF}
    s_cbranch_scc1 k1_pf
    """)
    if MODFIRST:
        k(f"s_sub_u32 s54, s54, {96+NPF-36}")
        k("s_branch k1_pack0")
        k.lab("k1_side2")
        k(f"""
        s_cmp_lt_u32 s54, {NMOD}
        s_cbranch_scc1 k1_mod0
        s_sub_u32 s54, s54, {NMOD}
        """)
        k.lab("k1_pack0")
        emit_pack(k, 0, "s54", None)
        k.lab("k1_mod0")
    else:
        k("s_branch k1_mod0")
        k.lab("k1_side2")
        emit_pack(k, 0, "s54", None)
        k.lab("k1_mod0")
        k(f"s_sub_u32 s54, s54, {96+NPF}")
    if os.environ.get("PROFMOD"): k("s_memrealtime s[62:63]")
    k("s_waitcnt lgkmcnt(0)")
    k.srd(28, 10, 0x10000000)
    k.lab(modl)
    k("""
    s_load_dwordx4 s[12:15], s[0:1], 88
    s_mov_b32 s32, s54
    v_and_b32 v3, 7, v0              ; cc
    v_lshrrev_b32 v4, 3, v0          ; rsub
    v_lshlrev_b32 v5, 1, v4          ; c offset
    v_mul_u32_u24 v6, 7680, v4
    s_lshl_b32 s36, s32, 7
    v_lshl_add_u32 v7, v3, 4, s36
    v_add_u32 v6, v6, v7
    s_waitcnt lgkmcnt(0)
    """)
    k.srd(16, 12, 1280); k.srd(20, 14, 640 * 7680)
    C, W, A, T = 10, 32, 112, 120
    for it in range(20):
        k(f"buffer_load_ushort v{C+it}, v5, s[16:19], 0 offen offset:{64*it}")
    for it in range(20):
        k(f"s_mov_b32 s37, {it*32*7680}")
        k(f"buffer_load_dwordx4 {vr(W+4*it,4)}, v6, s[20:23], s37 offen")
    k("s_waitcnt vmcnt(20)")
    if os.environ.get("PROFMOD"): k("s_memrealtime s[64:65]")
    for it in range(20):
        k(f"v_lshlrev_b32 v{C+it}, 16, v{C+it}")
        k(f"v_mul_f32 v{T+it}, 0xbfb8aa3b, v{C+it}")
        k(f"v_exp_f32 v{T+it}, v{T+it}")
    for it in range(20):
        k(f"v_add_f32 v{T+it}, 1.0, v{T+it}")
        k(f"v_rcp_f32 v{T+it}, v{T+it}")
    k("s_nop 0")
    for it in range(20):
        k(f"v_mul_f32 v{C+it}, v{C+it}, v{T+it}")
    for it in range(0, 20, 2):
        k.round2(C + it, C + it + 1, T)
    for j in range(8):
        k(f"v_mov_b32 v{A+j}, 0")
    for it in range(20):
        k(f"s_waitcnt vmcnt({19-it})")
        for d in range(4):
            k.unpack(T + 2*d, T + 2*d + 1, W + 4*it + d)
        ce = C + (it & ~1)
        sel = "op_sel:[0,0,0] op_sel_hi:[1,0,1]" if it % 2 == 0 else "op_sel:[0,1,0] op_sel_hi:[1,1,1]"
        for d in range(4):
            k(f"v_pk_fma_f32 {vr(A+2*d,2)}, {vr(T+2*d,2)}, {vr(ce,2)}, {vr(A+2*d,2)} {sel}")
    if os.environ.get("PROFMOD"): k("s_memrealtime s[66:67]")
    k(f"""
    v_lshlrev_b32 v7, 5, v0
    ds_write_b128 v7, {vr(A,4)}
    ds_write_b128 v7, {vr(A+4,4)} offset:16
    s_waitcnt lgkmcnt(0)
    s_barrier
    v_cmp_gt_u32 vcc, 64, v0
    s_and_saveexec_b64 s[42:43], vcc
    s_cbranch_execz {end}
    v_lshlrev_b32 v7, 2, v0
    """)
    for r in range(32):
        k(f"ds_read_b32 v{W+r}, v7 offset:{256*r}")
    k("s_waitcnt lgkmcnt(0)")
    for st in (16, 8, 4, 2, 1):
        for r in range(st):
            k(f"v_add_f32 v{W+r}, v{W+r}, v{W+r+st}")
    a_ = W
    k(f"""
    s_movk_i32 s22, 640
    v_cvt_pk_bf16_f32 v{a_}, v{a_}, v{a_}
    v_lshlrev_b32 v{a_}, 16, v{a_}
    v_add_f32 v{a_+1}, 1.0, v{a_}
    v_cvt_pk_bf16_f32 v{a_+1}, v{a_+1}, v{a_+1}
    v_lshlrev_b32 v{a_+1}, 16, v{a_+1}
    s_lshl_b32 s33, s32, 6
    v_add_u32 v{a_+2}, s33, v0
    v_subrev_u32 v{a_+3}, 640, v{a_+2}
    v_cmp_gt_u32 vcc, 640, v{a_+3}
    v_subrev_u32 v{a_+3}, 2560, v{a_+2}
    v_cmp_gt_u32 s[40:41], s22, v{a_+3}
    s_or_b64 vcc, vcc, s[40:41]
    v_cndmask_b32 v{a_}, v{a_}, v{a_+1}, vcc
    s_lshl_b32 s21, s32, 8
    s_add_u32 s21, s21, {L.MODF}
    buffer_store_dword v{a_}, v7, s[28:31], s21 offen
    """)
    if os.environ.get("PROFMOD"):
        k(f"""
        s_waitcnt vmcnt(0)
        s_memrealtime s[68:69]
        s_waitcnt lgkmcnt(0)
        s_lshl_b32 s23, s32, 4
        s_add_u32 s23, s23, {48 << 20}
        v_mov_b32 v12, s62
        v_mov_b32 v13, s64
        v_mov_b32 v14, s66
        v_mov_b32 v15, s68
        v_mov_b32 v16, 0
        s_mov_b64 exec, 1
        buffer_store_dwordx4 v[12:15], v16, s[28:31], s23 offen
        """)
    k.lab(end)
    k("s_endpgm")
    k.lab("k1_pf")
    WPX = NPF // 8 * 4
    k(f"""
    s_waitcnt lgkmcnt(0)
    s_load_dwordx2 s[4:5], s[0:1], 0
    v_lshlrev_b32 v3, 7, v1          ; lane*128
    v_lshlrev_b32 v1, 4, v1
    s_sub_u32 s24, s54, 96
    s_lshr_b32 s24, s24, 3
    s_lshl_b32 s24, s24, 2
    s_add_u32 s24, s24, s20
    s_and_b32 s22, s2, 7
    s_mul_i32 s21, s24, {327680 // WPX}
    s_mul_i32 s23, s22, 327680
    s_add_u32 s21, s21, s23
    s_waitcnt lgkmcnt(0)
    """)
    k.srd(16, 4, SZ_SD); k.srd(28, 10, 0x10000000)
    zl2 = k.newlab("zf")
    k(f"""
    s_sub_u32 s36, s54, 96
    s_cmp_ge_u32 s36, 16
    s_cbranch_scc1 {zl2}
    s_lshl_b32 s36, s36, 12
    s_add_u32 s36, s36, {L.FLAGS}
    v_lshlrev_b32 v5, 4, v0
    v_mov_b32 v60, 0
    v_mov_b32 v61, 0
    v_mov_b32 v62, 0
    v_mov_b32 v63, 0
    buffer_store_dwordx4 v[60:63], v5, s[28:31], s36 offen
    """)
    k.lab(zl2)
    if int(os.environ.get("ZST", 1)):
        k(f"""
        s_sub_u32 s36, s54, 96
        s_lshr_b32 s36, s36, 3
        s_mul_i32 s36, s36, 5120
        s_and_b32 s37, s2, 7
        s_mul_i32 s37, s37, {L.GS}
        s_add_u32 s36, s36, s37
        s_add_u32 s36, s36, {L.GRP + L.G_ST1}
        v_lshlrev_b32 v5, 4, v0
        v_mov_b32 v60, 0
        v_mov_b32 v61, 0
        v_mov_b32 v62, 0
        v_mov_b32 v63, 0
        buffer_store_dwordx4 v[60:63], v5, s[28:31], s36 offen
        s_add_u32 s36, s36, 4096
        s_cmp_lg_u32 s20, 0
        s_cbranch_scc1 k1_zst
        buffer_store_dwordx4 v[60:63], v5, s[28:31], s36 offen
        """)
        k.lab("k1_zst")
        k(f"""
        s_and_b32 s37, s2, 7
        s_cmp_eq_u32 s37, 0
        s_cselect_b32 s38, {L.GRP}, 0
        s_cmp_eq_u32 s37, 7
        s_cselect_b32 s38, {L.GRP + 7*L.GS + 17*20480}, s38
        s_cmp_eq_u32 s38, 0
        s_cbranch_scc1 k1_zht
        s_sub_u32 s36, s54, 96
        s_lshr_b32 s36, s36, 3
        s_mul_i32 s36, s36, 5120
        s_add_u32 s36, s36, s38
        buffer_store_dwordx4 v[60:63], v5, s[28:31], s36 offen
        s_add_u32 s36, s36, 4096
        s_cmp_lg_u32 s20, 0
        s_cbranch_scc1 k1_zht
        buffer_store_dwordx4 v[60:63], v5, s[28:31], s36 offen
        """)
        k.lab("k1_zht")
    k("s_getpc_b64 s[40:41]")
    k.lab("k1_pcref")
    k(f"""
    s_sub_u32 s40, s40, k1_pcref-k1_kernel
    s_subb_u32 s41, s41, 0
    s_lshl_b32 s42, s24, 12
    """)
    for i in range(4):
        k(f"""
        s_add_u32 s43, s42, {1024*i}
        s_min_u32 s43, s43, (CODE_END-k1_kernel-1020)&0xfffffff0
        v_add_u32 v6, s43, v1
        global_load_dwordx4 {vr(64+4*i,4)}, v6, s[40:41]
        """)
    if int(os.environ.get("PFW2", 1)):
        k("s_mov_b32 s61, s21")
        k("s_mov_b32 s62, s24")
        k("s_waitcnt vmcnt(0)")
        side_wait(os.environ.get("SWN", 1))
        k("s_mov_b32 s21, s61")
        k("s_mov_b32 s24, s62")
        k.srd(28, 10, 0x10000000)
    if int(os.environ.get("CODEPF3", 0)):
        k("s_getpc_b64 s[40:41]")
        k.lab("k1_pcref3")
        k(f"""
        s_add_u32 s40, s40, k2_kernel-k1_pcref3
        s_addc_u32 s41, s41, 0
        s_lshl_b32 s42, s24, 11
        """)
        for i in range(2):
            k(f"""
            s_add_u32 s43, s42, {1024*i}
            s_min_u32 s43, s43, (CODE_END-k2_kernel-1020)&0xfffffff0
            v_add_u32 v6, s43, v1
            global_load_dwordx4 {vr(64+4*i,4)}, v6, s[40:41]
            """)
    for i in range(0 if os.environ.get("NOQPF") else 327680 // WPX // 1024):
        k(f"buffer_load_dwordx4 {vr(8+4*(i%10),4)}, v1, s[16:19], s21 offen offset:{(i%4)*1024}")
        if i % 4 == 3:
            k("s_add_u32 s21, s21, 4096")
    def lines(sreg, n, dst, bits=""):
        i = 0
        while n > 0:
            c = min(64, n)
            if c < 64: k(f"s_mov_b64 exec, {hex((1 << c) - 1) if c <= 31 else None}" if c <= 31 else f"s_mov_b32 exec_hi, {hex((1 << (c - 32)) - 1)}")
            k(f"buffer_load_dword v{dst+i}, v3, s[28:31], s{sreg} offen{bits}")
            if c < 64: k("s_mov_b64 exec, -1")
            else: k(f"s_add_u32 s{sreg}, s{sreg}, 8192")
            n -= c; i += 1
    k(f"""
    s_mul_i32 s22, s22, {L.GS}
    s_add_u32 s22, s22, {L.GRP}
    """)
    if os.environ.get("WARM"):
        k(f"s_mul_i32 s23, s24, {327680 // WPX}\ns_add_u32 s23, s23, s22\ns_add_u32 s23, s23, {L.G_H1S}")
        lines(23, 2560 // WPX, 48)
        k(f"s_mul_i32 s23, s24, {20480 // WPX}\ns_add_u32 s23, s23, s22\ns_add_u32 s23, s23, {L.G_ST1}")
        lines(23, 160 // WPX, 54)
    if os.environ.get("H3W"):
        k(f"s_mul_i32 s23, s24, 27648\ns_add_u32 s23, s23, s22\ns_add_u32 s23, s23, {L.G_H3}")
        lines(23, 216, 54, " nt")
    if os.environ.get("WPF"):
        lp = k.newlab("pfp"); ld = k.newlab("pfd"); le = k.newlab("pfe")
        k(f"""
        v_and_b32 v4, 1, v0
        v_lshlrev_b32 v4, 7, v4
        v_add_u32 v4, {L.FLAGS + L.F_PK + 128}, v4
        v_and_b32 v6, 1, v0
        v_mul_u32_u24 v6, 34, v6
        v_add_u32 v6, 20, v6                            ; targets 20 / 54
        s_mov_b32 s32, 20000
        """)
        k.lab(lp)
        k(f"""
        buffer_load_dword v5, v4, s[28:31], 0 offen sc1
        s_waitcnt vmcnt(0)
        v_cmp_le_u32 vcc, v6, v5
        s_sub_u32 s32, s32, 1
        s_cmp_eq_u64 vcc, -1
        s_cbranch_scc1 {ld}
        s_cmp_eq_u32 s32, 0
        s_cbranch_scc1 {le}
        s_sleep 64
        s_branch {lp}
        """)
        k.lab(ld)
        WPF = os.environ.get("WPF", "23")
        if "1" in WPF:
            k(f"s_mul_i32 s23, s24, 25600\ns_add_u32 s23, s23, {L.W1P}")
            lines(23, 200, 56)
        if "2" in WPF:
            k(f"s_mul_i32 s23, s24, 25600\ns_add_u32 s23, s23, {L.W2P}")
            lines(23, 200, 60)
        if "3" in WPF:
            k(f"s_mul_i32 s23, s24, {70*1024}\ns_add_u32 s23, s23, {L.W3P}")
            lines(23, 560, 64)
        k.lab(le)
    k("s_waitcnt vmcnt(0)")
    k("s_endpgm")
    return k

def build(kerns, path):
    hdr = open("/code/" + NAME + ".s.ref").read().split("\n")
    com = [l for l in hdr if l.startswith(";") and "@launch" not in l and "Override launch" not in l and "grid=ceil" not in l]
    s = "\n".join(com) + "\n"
    for k in kerns:
        s += f"; @launch kernel={k.name} grid=({k.grid},1,1) block=({k.block},1,1) lds={k.lds}\n"
    s += '.amdgcn_target "amdgcn-amd-amdhsa--gfx950"\n.text\n'
    for k in kerns:
        s += k.text()
    s += "CODE_END:\n    s_endpgm\n"
    s += '.section .rodata,"a"\n'
    for k in kerns:
        s += k.kd()
    open(path, "w").write(s)

if __name__ == "__main__":
    out = sys.argv[1] if len(sys.argv) > 1 else "/code/" + NAME + ".s"
    if MERGE:
        k = Kern("k01_kernel", 864, 256, 46080, vgpr=256, sgpr=64)
        if os.environ.get("ORD") == "kvfirst":
            k("""
            s_cmp_ge_u32 s2, 864
            s_cbranch_scc1 k1_end
            s_cmp_lt_u32 s2, 480
            s_cbranch_scc1 k01_k0
            s_sub_u32 s2, s2, 480
            s_branch k01_k1
            """)
        else:
            k("""
            s_cmp_ge_u32 s2, 864
            s_cbranch_scc1 k1_end
            s_cmp_lt_u32 s2, 160
            s_cbranch_scc1 k01_k1
            s_cmp_lt_u32 s2, 600
            s_cbranch_scc1 k01_a
            s_cmp_lt_u32 s2, 819
            s_cbranch_scc1 k01_b
            s_cmp_lt_u32 s2, 824
            s_cbranch_scc1 k1_end
            s_sub_u32 s2, s2, 384
            s_branch k01_k0
            """)
            k.lab("k01_b")
            k("s_sub_u32 s2, s2, 440")
            k("s_branch k01_k1")
            k.lab("k01_a")
            k("s_sub_u32 s2, s2, 160")
        k.lab("k01_k0")
        gen_k0(k)
        k.lab("k01_k1")
        gen_k1(k)
        kerns = [k]
    else:
        kerns = [gen_k1()]
    try:
        import chain
        kerns += chain.kernels(Kern, vr)
    except ImportError:
        pass
    build(kerns, out)
    print("wrote", out)
```

```python
import os, struct
import layout as L
SZ_SD = 2048 * 640 * 2
C0 = -2.0 * 0.7978845608028654 * 1.4426950408889634
C1 = C0 * 0.044715
def fhex(x):
    return "0x%08x" % struct.unpack("<I", struct.pack("<f", x))[0]
E = lambda n, d: int(os.environ.get(n, d))
STOP = E("STOP", 9)
PROF = E("PROF", 0)
NSLOT = 152
SMALL = NSLOT * 1024
YL = 132 * 1024
MODL = 116 * 1024

def ln_finish(k, s1, s2, t, n):
    k(f"""
    v_mul_f32 v{s1}, {fhex(1.0/n)}, v{s1}
    v_mul_f32 v{s2}, {fhex(1.0/n)}, v{s2}
    v_fma_f32 v{s2}, -v{s1}, v{s1}, v{s2}
    v_max_f32 v{s2}, 0, v{s2}
    """)
    k.round2(s1, s2, t)
    k(f"""
    v_add_f32 v{s2}, {fhex(1e-5)}, v{s2}
    v_cvt_pk_bf16_f32 v{t}, v{s2}, v{s2}
    v_lshlrev_b32 v{s2}, 16, v{t}
    v_sqrt_f32 v{s2}, v{s2}
    s_nop 0
    v_cvt_pk_bf16_f32 v{t}, v{s2}, v{s2}
    v_lshlrev_b32 v{s2}, 16, v{t}
    v_rcp_f32 v{s2}, v{s2}
    s_nop 0
    v_mul_f32 v{s1}, v{s1}, v{s2}
    v_sub_f32 v{s1}, 0, v{s1}
    """)

def reduce16(k, a, b):
    for ctl in ("quad_perm:[1,0,3,2]", "quad_perm:[2,3,0,1]", "row_half_mirror", "row_mirror"):
        k("s_nop 0")
        k(f"v_add_f32_dpp v{a}, v{a}, v{a} {ctl} row_mask:0xf bank_mask:0xf")
        k(f"v_add_f32_dpp v{b}, v{b}, v{b} {ctl} row_mask:0xf bank_mask:0xf")

def reduce_g(k, a, b, t):
    for sw in ("v_permlane32_swap_b32", "v_permlane16_swap_b32"):
        k(f"""
        v_mov_b32 v{t}, v{a}
        v_mov_b32 v{t+1}, v{b}
        s_nop 1
        {sw} v{t}, v{a}
        {sw} v{t+1}, v{b}
        s_nop 0
        v_add_f32 v{a}, v{a}, v{t}
        v_add_f32 v{b}, v{b}, v{t+1}
        """)

def gelu4pk(k, vr, z, t, vc):
    for i in (0, 2):
        k(f"v_pk_mul_f32 {vr(t+i,2)}, {vr(z+i,2)}, {vr(z+i,2)}")
    for i in (0, 2):
        k(f"v_pk_fma_f32 {vr(t+i,2)}, {vr(t+i,2)}, {vr(vc,2)}, {vr(vc,2)} op_sel:[0,0,1] op_sel_hi:[1,0,1]")
    for i in (0, 2):
        k(f"v_pk_mul_f32 {vr(t+i,2)}, {vr(t+i,2)}, {vr(z+i,2)}")
    for i in range(4):
        k(f"v_exp_f32 v{t+i}, v{t+i}")
    for i in range(4):
        k(f"v_add_f32 v{t+i}, 1.0, v{t+i}")
    for i in range(4):
        k(f"v_rcp_f32 v{t+i}, v{t+i}")
    k("s_nop 0")
    for i in (0, 2):
        k(f"v_pk_mul_f32 {vr(z+i,2)}, {vr(z+i,2)}, {vr(t+i,2)}")

def ln_gelu_multi(k, vr, tiles, t, vc):
    n = len(tiles)
    T = lambda i: t + 4 * i
    for i, (z, cs, rs) in enumerate(tiles):
        for h in (0, 2):
            k(f"v_pk_mul_f32 {vr(T(i)+h,2)}, {vr(cs+h,2)}, {vr(rs,2)} op_sel_hi:[1,0]")
    for i, (z, cs, rs) in enumerate(tiles):
        for h in (0, 2):
            k(f"v_pk_fma_f32 {vr(z+h,2)}, {vr(z+h,2)}, {vr(rs,2)}, {vr(T(i)+h,2)} op_sel:[0,1,0] op_sel_hi:[1,1,1]")
    for i, (z, cs, rs) in enumerate(tiles):
        for h in (0, 2):
            k(f"v_pk_mul_f32 {vr(T(i)+h,2)}, {vr(z+h,2)}, {vr(z+h,2)}")
    for i, (z, cs, rs) in enumerate(tiles):
        for h in (0, 2):
            k(f"v_pk_fma_f32 {vr(T(i)+h,2)}, {vr(T(i)+h,2)}, {vr(vc,2)}, {vr(vc,2)} op_sel:[0,0,1] op_sel_hi:[1,0,1]")
    for i, (z, cs, rs) in enumerate(tiles):
        for h in (0, 2):
            k(f"v_pk_mul_f32 {vr(T(i)+h,2)}, {vr(T(i)+h,2)}, {vr(z+h,2)}")
    for i in range(n):
        for r in range(4): k(f"v_exp_f32 v{T(i)+r}, v{T(i)+r}")
    for i in range(n):
        for h in (0, 2): k(f"v_pk_add_f32 {vr(T(i)+h,2)}, {vr(T(i)+h,2)}, 1.0 op_sel_hi:[1,0]")
    for i in range(n):
        for r in range(4): k(f"v_rcp_f32 v{T(i)+r}, v{T(i)+r}")
    k("s_nop 0")
    for i, (z, cs, rs) in enumerate(tiles):
        for h in (0, 2):
            k(f"v_pk_mul_f32 {vr(z+h,2)}, {vr(z+h,2)}, {vr(T(i)+h,2)}")

def pack_tiles(k, zs):
    out = []
    i = 0
    prs = []
    while i < len(zs):
        if i + 1 < len(zs):
            a, b = zs[i], zs[i + 1]
            k(f"v_cvt_pk_bf16_f32 v{a}, v{a}, v{a+1}")
            k(f"v_cvt_pk_bf16_f32 v{a+1}, v{a+2}, v{a+3}")
            k(f"v_cvt_pk_bf16_f32 v{a+2}, v{b}, v{b+1}")
            k(f"v_cvt_pk_bf16_f32 v{a+3}, v{b+2}, v{b+3}")
            prs.append(a); out.append((a, 4, i)); i += 2
        else:
            a = zs[i]
            k(f"v_cvt_pk_bf16_f32 v{a}, v{a}, v{a+1}")
            k(f"v_cvt_pk_bf16_f32 v{a+1}, v{a+2}, v{a+3}")
            out.append((a, 2, i)); i += 1
    return out, prs

def swap_pairs(k, prs):
    k("s_nop 1")
    for a in prs:
        k(f"v_permlane16_swap_b32 v{a}, v{a+2}")
        k(f"v_permlane16_swap_b32 v{a+1}, v{a+3}")

class VQ:
    def __init__(self, k): self.k = k; self.q = []
    def op(self, text, tag=None):
        self.k(text); self.q.append(tag)
    def wait(self, tag):
        idx = [i for i, t in enumerate(self.q) if t == tag]
        if not idx: return
        n = len(self.q) - 1 - idx[-1]
        self.k(f"s_waitcnt vmcnt({min(n, 63)})")
        self.q = self.q[idx[-1] + 1:] if n <= 63 else self.q[-63:]
    def drain(self):
        self.k("s_waitcnt vmcnt(0)"); self.q = []
    def reset(self): self.q = []

def gen_chain(Kern, vr):
    k = Kern("k2_kernel", 256, 256, 163840, vgpr=256, sgpr=102, agpr=256)
    ar = lambda a, n: f"a[{a}:{a+n-1}]"
    vq = VQ(k)
    end = "k2_end"
    WS, QS, YS, OS = "s[12:15]", "s[16:19]", "s[20:23]", "s[24:27]"
    nst = [0]
    def stamp():
        if PROF:
            i = nst[0]; nst[0] += 1
            if PROF == 3:
                k(f"s_memtime s[{56+2*i}:{57+2*i}]"); nst[0] += 1
                k(f"s_memrealtime s[{58+2*i}:{59+2*i}]")
            else:
                k(f"{'s_memrealtime' if PROF == 2 else 's_memtime'} s[{56+2*i}:{57+2*i}]")
    def finish(label_end=True):
        k("s_waitcnt vmcnt(0) lgkmcnt(0)")
        if PROF == 2:
            k(f"""
            s_lshl_b32 s41, s2, 2
            s_add_u32 s41, s41, s30
            s_lshl_b32 s41, s41, 7
            s_add_u32 s41, s41, {48 << 20}
            v_mov_b32 v1, 0
            s_mov_b64 exec, 1
            """)
            for i in range(nst[0]):
                k(f"v_mov_b32 v2, s{56+2*i}")
                k(f"buffer_store_dword v2, v1, {WS}, s41 offen offset:{4*i}")
            k(f"v_mov_b32 v2, {nst[0]}")
            k(f"buffer_store_dword v2, v1, {WS}, s41 offen offset:124")
        elif PROF:
            l = k.newlab("prof")
            k(f"""
            s_cmp_lg_u32 s2, {E("PROFWG", 0)}
            s_cbranch_scc1 {l}
            s_cmp_lg_u32 s30, {E("PROFW", 0)}
            s_cbranch_scc1 {l}
            s_load_dwordx2 s[4:5], s[0:1], 112
            s_waitcnt lgkmcnt(0)
            s_mov_b32 s6, 256
            s_mov_b32 s7, 0x00020000
            v_mov_b32 v1, 0
            s_mov_b64 exec, 1
            """)
            for i in range(1, nst[0]):
                k(f"s_sub_u32 s41, s{56+2*i}, s{56 + (2 if (PROF == 3 and i % 2) else 0)}")
                k(f"v_mov_b32 v2, s41")
                k(f"buffer_store_dword v2, v1, s[4:7], 0 offen offset:{4*(i-1)}")
            k.lab(l)
        k("s_endpgm")

    k(f"""
    s_cmp_ge_u32 s2, 256
    s_cbranch_scc1 {end}
    s_load_dwordx2 s[4:5], s[0:1], 0
    s_load_dwordx2 s[6:7], s[0:1], 104
    s_load_dwordx2 s[8:9], s[0:1], 120
    s_getreg_b32 s42, hwreg(HW_REG_XCC_ID, 0, 4)
    v_lshrrev_b32 v2, 6, v0
    v_and_b32 v1, 63, v0
    v_readfirstlane_b32 s30, v2          ; wave
    s_and_b32 s28, s2, 7                 ; group
    s_lshr_b32 s29, s2, 3                ; member
    s_lshr_b32 s32, s29, 3
    s_and_b32 s33, s29, 7                ; j
    s_lshr_b32 s34, s29, 4
    s_and_b32 s35, s29, 15               ; j3
    s_mul_i32 s36, s28, {L.GS}
    s_add_u32 s36, s36, {L.GRP}
    s_lshl_b32 s37, s28, 13
    s_add_u32 s37, s37, {L.FLAGS}
    s_add_u32 s42, s42, 1
    s_mov_b32 s31, 0
    v_lshlrev_b32 v2, 4, v1              ; lane*16
    v_lshrrev_b32 v3, 4, v1              ; g
    v_and_b32 v4, 15, v1                 ; m
    v_lshrrev_b32 v8, 1, v3
    v_lshl_add_u32 v8, v8, 4, v4
    v_and_b32 v9, 1, v3
    v_lshl_add_u32 v8, v8, 1, v9
    v_lshlrev_b32 v8, 3, v8
    v_lshlrev_b32 v5, 7, v1
    v_and_b32 v9, 1, v3
    v_lshlrev_b32 v9, 1, v9
    v_lshrrev_b32 v10, 1, v3
    v_or_b32 v9, v9, v10
    v_lshlrev_b32 v9, 8, v9
    v_lshl_add_u32 v254, v4, 4, v9
    s_waitcnt lgkmcnt(0)
    """)
    stamp()
    k.srd(12, 8, 0x10000000); k.srd(16, 4, SZ_SD); k.srd(24, 6, SZ_SD)
    def publish():
        l = k.newlab()
        k(f"""
        s_cmp_lg_u32 s30, 0
        s_cbranch_scc1 {l}
        s_lshl_b32 s41, s29, 2
        s_add_u32 s41, s41, s37
        v_mov_b32 v9, s42
        v_mov_b32 v10, {L.F_XID}
        s_mov_b64 exec, 1
        buffer_store_dword v9, v10, {WS}, s41 offen sc1
        s_mov_b64 exec, -1
        """)
        k.lab(l)
    if not E("PUBLATE", 0) and not E("NOXID", 0): publish()
    class Dma:
        def __init__(self, p0, n, srcbase_s, srcoff, sm, so):
            self.i = 0; self.n = n; self.sm = sm; self.so = so
            slot0 = p0 % NSLOT
            assert slot0 + 4 * n <= NSLOT
            k(f"""
            s_mul_i32 s{sm}, s30, {n*1024}
            s_add_u32 s{so}, s{sm}, s{srcbase_s}
            s_add_u32 s{so}, s{so}, {srcoff}
            s_add_u32 s{sm}, s{sm}, {slot0*1024}
            """)
        def left(self): return self.n - self.i
        def one(self, tag="w"):
            o = (self.i % 4) * 1024
            k(f"s_mov_b32 m0, s{self.sm}")
            k("s_nop 0")
            if not E("NOWD", 0): vq.op(f"buffer_load_dwordx4 v2, {WS}, s{self.so} offen offset:{o} lds", tag)
            self.i += 1
            if self.i % 4 == 0 and self.i < self.n:
                k(f"s_add_u32 s{self.sm}, s{self.sm}, 4096")
                k(f"s_add_u32 s{self.so}, s{self.so}, 4096")
        def some(self, n, tag="w"):
            for _ in range(min(n, self.left())): self.one(tag)
    class W4:
        def __init__(self): self.i = 0
        def left(self): return 64 - self.i
        def one(self, tag="w4"):
            i = self.i
            if not E("NOW4", 0): vq.op(f"buffer_load_dwordx4 {ar(4*i,4)}, v2, {WS}, s40 offen offset:{(i%4)*1024}", tag)
            self.i += 1
            if self.i % 4 == 0: k("s_add_u32 s40, s40, 4096")
            if self.i == 60:
                k("s_cmp_eq_u32 s30, 3")
                k(f"s_cselect_b32 s41, {60*1024}, 0")
                k("s_sub_u32 s40, s40, s41")
        def some(self, n):
            for _ in range(min(n, self.left())): self.one()
    k(f"""
    s_mul_i32 s44, s33, {100*1024}
    s_mul_i32 s45, s35, {140*1024}
    s_add_u32 s45, s45, {L.W3P}
    s_mul_i32 s40, s33, {280*1024}
    s_mul_i32 s41, s30, {70*1024}
    s_add_u32 s40, s40, s41
    s_add_u32 s40, s40, {L.W4P}
    """)
    w4 = W4()
    def small_vectors():
        lsm1 = k.newlab("sm"); lsm2 = k.newlab("sm"); lsm3 = k.newlab("sm")
        k(f"""
        s_cmp_eq_u32 s30, 1
        s_cbranch_scc1 {lsm1}
        s_cmp_ge_u32 s30, 2
        s_cbranch_scc1 {lsm2}
        s_mul_i32 s41, s33, 320
        s_add_u32 s41, s41, {L.CS1P}
        s_mov_b32 m0, {SMALL}
        s_mov_b64 exec, 0xfffff
        buffer_load_dwordx4 v2, {WS}, s41 offen lds
        s_add_u32 s41, s41, {1792*4}
        s_mov_b32 m0, {SMALL + 512}
        s_nop 0
        buffer_load_dwordx4 v2, {WS}, s41 offen lds
        s_branch {lsm3}
        """)
        k.lab(lsm1)
        k(f"""
        s_mul_i32 s41, s35, 448
        s_add_u32 s41, s41, {L.CS3P}
        s_mov_b32 m0, {SMALL + 1024}
        s_mov_b64 exec, 0xfffffff
        buffer_load_dwordx4 v2, {WS}, s41 offen lds
        s_add_u32 s41, s41, {1792*4}
        s_mov_b32 m0, {SMALL + 1536}
        s_nop 0
        buffer_load_dwordx4 v2, {WS}, s41 offen lds
        s_branch {lsm3}
        """)
        k.lab(lsm2)
        k(f"""
        s_mul_i32 s41, s33, 320
        s_add_u32 s41, s41, {L.MODF + 5*2560}
        s_mov_b32 m0, {SMALL + 2048}
        s_mov_b64 exec, 0xfffff
        buffer_load_dwordx4 v2, {WS}, s41 offen lds
        """)
        k.lab(lsm3)
        k("s_mov_b64 exec, -1")
        vq.q += ['sm']
    k(f"""
    s_lshl_b32 s46, s32, 2
    s_add_u32 s46, s46, s30
    s_mul_i32 s47, s46, 20480
    s_mul_i32 s41, s33, 2560
    s_add_u32 s47, s47, s41
    s_add_u32 s54, s47, s36
    s_lshl_b32 s55, s46, 7
    s_add_u32 s55, s55, s37
    s_mul_i32 s22, s28, 327680
    s_add_u32 s22, s22, s47
    s_add_u32 s22, s22, {L.KVR}
    """)
    def touch_h1s():
        k(f"s_add_u32 s47, s54, {L.G_H1S}")
        k("s_mov_b64 exec, 0xfffff")
        touch(47, 188)
        k("s_mov_b64 exec, -1")

    def poll(sbase, thr=None):
        lp = k.newlab("poll"); ld = k.newlab("go")
        k(f"s_mov_b32 s43, {E('SPIN', 200000)}")
        k.lab(lp)
        k(f"""
        buffer_load_dword v9, v7, {WS}, s{sbase} offen sc1
        s_waitcnt vmcnt(0)
        {"v_cmp_ne_u32 vcc, 0, v9" if thr is None else f"v_cmp_le_u32 vcc, v{thr}, v9"}
        s_sub_u32 s43, s43, 1
        s_cmp_eq_u64 vcc, -1
        s_cbranch_scc1 {ld}
        s_cmp_lg_u32 s43, 0
        s_cbranch_scc1 {lp}
        """)
        k.lab(ld)
        vq.reset()
    def xid_load(reg):
        if E("NOXID", 0): return
        k(f"v_and_b32 v{reg+1}, 31, v1")
        k(f"v_lshlrev_b32 v{reg+1}, 2, v{reg+1}")
        k(f"s_add_u32 s41, s37, {L.F_XID}")
        vq.op(f"buffer_load_dword v{reg}, v{reg+1}, {WS}, s41 offen sc1", "xid")
    def xid_eval(reg):
        if E("NOXID", 0):
            k("s_mov_b32 s31, 1"); return
        vq.wait("xid")
        lp = k.newlab("xp"); ld = k.newlab("xd")
        k(f"s_mov_b32 s43, {E('SPIN', 200000)}")
        k.lab(lp)
        k(f"""
        v_cmp_ne_u32 vcc, 0, v{reg}
        s_sub_u32 s43, s43, 1
        s_cmp_eq_u64 vcc, -1
        s_cbranch_scc1 {ld}
        s_cmp_eq_u32 s43, 0
        s_cbranch_scc1 {ld}
        s_add_u32 s41, s37, {L.F_XID}
        buffer_load_dword v{reg}, v{reg+1}, {WS}, s41 offen sc1
        s_waitcnt vmcnt(0)
        s_branch {lp}
        """)
        k.lab(ld)
        k(f"""
        v_cmp_eq_u32 vcc, s42, v{reg}
        s_nop 1
        s_cmp_eq_u64 vcc, -1
        s_cselect_b32 s31, 1, 0
        """)
        if E("SLOW", 0): k("s_mov_b32 s31, 0")
    def stores(lst, flag_s, flag_off):
        ls = k.newlab("slow"); lj = k.newlab("sent")
        k(f"s_cmp_eq_u32 s31, 0")
        k(f"s_cbranch_scc1 {ls}")
        for sc in ("", " sc1"):
            dsc = " sc1" if E("MIXED", 0) else sc
            for t in lst:
                lines = t.strip("\n").split("\n")
                k("\n".join((x + dsc if x.strip().startswith("buffer_store") else x) for x in lines))
            k(f"""
            s_waitcnt vmcnt(0)
            v_mov_b32 v9, 1
            v_mov_b32 v10, {flag_off}
            s_mov_b64 exec, 1
            buffer_store_dword v9, v10, {WS}, s{flag_s} offen{sc}
            s_mov_b64 exec, -1
            """)
            if sc == "":
                k(f"s_branch {lj}")
                k.lab(ls)
        k.lab(lj)
        vq.reset(); vq.q.append("flag")
    def touch(sreg, dst=9):
        if E("NOTOUCH", 1): return
        k(f"s_cmp_eq_u32 s31, 0")
        k(f"s_cselect_b32 s41, {L.W1P}, s{sreg}")
        vq.op(f"buffer_load_dword v{dst}, v5, {WS}, s41 offen", "touch")

    XR, YR, XF, MT, T = 16, 36, 56, 96, 120
    w1 = Dma(0, 25, 44, L.W1P, 38, 39)
    nob0 = k.newlab("nob0"); join0 = k.newlab("join0")
    k(f"""
    s_cmp_ge_u32 s29, 18
    s_cbranch_scc1 {nob0}
    s_lshl_b32 s46, s28, 8
    s_lshl_b32 s47, s29, 4
    s_add_u32 s46, s46, s47
    s_sub_u32 s46, s46, 16               ; global row of tile row 0 (signed)
    s_lshl_b32 s47, s30, 2
    s_add_u32 s47, s47, s46              ; first row of the wave
    v_add_u32 v11, s47, v3               ; global row
    v_mul_lo_u32 v6, v11, s48
    """.replace("v_mul_lo_u32 v6, v11, s48", "s_movk_i32 s48, 1280\n    v_mul_lo_u32 v6, v11, s48"))
    k("v_lshl_add_u32 v6, v4, 4, v6")
    for t in range(5):
        vq.op(f"buffer_load_dwordx4 {vr(XR+4*t,4)}, v6, {QS}, 0 offen offset:{256*t}", "q")
    if E("PROFQ", 0): stamp()
    k(f"""
    s_mul_i32 s47, s29, 20480
    s_mul_i32 s48, s30, 5120
    s_add_u32 s47, s47, s48
    s_add_u32 s47, s47, s36
    v_add_u32 v12, s47, v2
    s_add_u32 s48, s48, {YL}
    s_mov_b32 m0, s48
    s_nop 0
    """)
    for i in range(4):
        vq.op(f"buffer_load_dwordx4 v12, {WS}, 0 offen offset:{1024*i} lds", "y")
    k(f"""
    s_add_u32 s48, s48, 4096
    s_mov_b32 m0, s48
    s_movk_i32 s47, 4096
    """)
    vq.op(f"buffer_load_dwordx4 v12, {WS}, s47 offen lds", "y")
    k(f"""
    s_lshl_b32 s47, s30, 12
    s_add_u32 s48, s47, {MODL}
    """)
    for i in range(4):
        k(f"""
        s_add_u32 s41, s47, {1024*i}
        s_min_u32 s41, s41, {15360 - 1024}
        s_add_u32 s41, s41, {L.MODF}
        s_add_u32 m0, s48, {1024*i}
        s_nop 0
        """)
        vq.op(f"buffer_load_dwordx4 v2, {WS}, s41 offen lds", "y")
    if E("PUBLATE", 0): publish()
    w4_b0 = E("NW40", 0)
    k(f"""
    v_lshl_add_u32 v15, s30, 2, v3
    v_lshrrev_b32 v7, 1, v15
    v_and_b32 v9, 7, v4
    v_xor_b32 v7, v7, v9
    v_and_b32 v9, 1, v15
    v_lshl_add_u32 v7, v7, 1, v9
    v_lshlrev_b32 v7, 3, v7
    v_lshl_add_u32 v7, v4, 8, v7
    v_add_u32 v7, {YL}, v7
    v_lshlrev_b32 v10, 5, v4
    v_add_u32 v10, {MODL}, v10
    v_lshrrev_b32 v12, 2, v4
    v_and_b32 v13, 3, v4
    v_lshl_add_u32 v13, v13, 4, v15
    v_lshlrev_b32 v13, 4, v13
    v_lshl_add_u32 v6, v12, 10, v13
    s_movk_i32 s48, 2048
    v_cmp_gt_u32 {"s[50:51]"}, s48, v11
    """)
    S1, S2, N1, N2, ONE = T, T + 1, T + 4, T + 5, T + 6
    k(f"""
    v_mov_b32 v{S1}, 0
    v_mov_b32 v{S2}, 0
    v_mov_b32 v{N1}, 0
    v_mov_b32 v{N2}, 0
    v_mov_b32 v{ONE}, 0x3f803f80
    """)
    vq.wait("q")
    stamp()
    for d in range(20):
        k(f"v_dot2_f32_bf16 v{S1}, v{XR+d}, v{ONE}, v{S1}")
        k(f"v_dot2_f32_bf16 v{S2}, v{XR+d}, v{XR+d}, v{S2}")
        k.unpack(XF + 2*d, XF + 2*d + 1, XR + d)
        if d == 2: small_vectors()
        if d >= 4 and d % 2 == 0 and w1.i < E("NW1A", 8): w1.one()
    k("s_nop 1")
    reduce16(k, S1, S2)
    ln_finish(k, S1, S2, T + 2, 640)
    if E("PROFB0", 0): stamp()
    vq.wait("y")
    if E("PROFB0", 0): stamp()
    k("s_barrier")
    for t in range(5):
        k(f"ds_read_b64 {vr(YR+4*t,2)}, v7 offset:{t*4096}")
        k(f"ds_read_b64 {vr(YR+4*t+2,2)}, v7 offset:{t*4096+128}")
    BC = "op_sel:[0,1,0] op_sel_hi:[1,1,0]"
    TP, TY, MT2 = 144, 152, 160
    MTB = lambda t: (MT if t % 2 == 0 else MT2)
    def modread(t, vecs):
        for vi, vec in enumerate(vecs):
            k(f"ds_read_b128 {vr(MTB(t)+8*vi,4)}, v10 offset:{vec*2560+t*512}")
            k(f"ds_read_b128 {vr(MTB(t)+8*vi+4,4)}, v10 offset:{vec*2560+t*512+16}")
    if E("SPREAD", 0):
        def spread_one():
            if w1.left(): w1.one()
            elif w4.i < E("SPW4", 0): w4.one()
        k.hook = [E("SPREAD", 0), spread_one, 0]
    modread(0, (1, 0, 2))
    for t in range(5):
        M = MTB(t)
        if t < 4:
            modread(t + 1, (1, 0, 2)); k("s_waitcnt lgkmcnt(6)")
        else:
            k("s_waitcnt lgkmcnt(0)")
        D4 = range(4)
        e = lambda d: XF + 8*t + 2*d
        for _ in range((E("NW1B", 0) + 4) // 5):
            if w1.i < E("NW1A", 8) + E("NW1B", 0): w1.one()
        for d in D4: k.unpack(TY + 2*d, TY + 2*d + 1, YR + 4*t + d)
        for d in D4: k(f"v_pk_fma_f32 {vr(TP+2*d,2)}, {vr(e(d),2)}, {vr(S1,2)}, {vr(S1,2)} {BC}")
        for d in D4: k(f"v_pk_fma_f32 {vr(TP+2*d,2)}, {vr(TP+2*d,2)}, {vr(M+2*d,2)}, {vr(M+8+2*d,2)}")
        for _ in range((w4_b0 + 4) // 5):
            if w4.i < w4_b0: w4.one()
        for d in D4: k(f"v_pk_mul_f32 {vr(TP+2*d,2)}, {vr(TP+2*d,2)}, {vr(TY+2*d,2)}")
        for d in D4: k(f"v_pk_fma_f32 {vr(e(d),2)}, {vr(M+16+2*d,2)}, {vr(TP+2*d,2)}, {vr(e(d),2)}")
        for d in D4: k(f"v_cvt_pk_bf16_f32 v{XR+4*t+d}, v{e(d)}, v{e(d)+1}")
        for d in D4:
            if E("XARND", 0):
                k(f"v_lshlrev_b32 v{e(d)}, 16, v{XR+4*t+d}")
                k(f"v_and_b32 v{e(d)+1}, 0xffff0000, v{XR+4*t+d}")
            k(f"v_dot2_f32_bf16 v{N1}, v{XR+4*t+d}, v{ONE}, v{N1}")
            k(f"v_dot2_f32_bf16 v{N2}, v{XR+4*t+d}, v{XR+4*t+d}, v{N2}")
    if E("PROFB0", 0): stamp()
    xid_load(190)
    modread(0, (4, 3))
    k("s_nop 1")
    reduce16(k, N1, N2)
    ln_finish(k, N1, N2, T + 2, 640)
    k(f"v_mov_b32 v{S1}, 0")
    k(f"v_mov_b32 v{S2}, 0")
    for t in range(5):
        M = MTB(t)
        if t < 4:
            modread(t + 1, (4, 3)); k("s_waitcnt lgkmcnt(4)")
        else:
            k("s_waitcnt lgkmcnt(0)")
        e = lambda d: XF + 8*t + 2*d
        for d in range(4): k(f"v_pk_fma_f32 {vr(e(d),2)}, {vr(e(d),2)}, {vr(N1,2)}, {vr(N1,2)} {BC}")
        for d in range(4): k(f"v_pk_fma_f32 {vr(e(d),2)}, {vr(e(d),2)}, {vr(M+2*d,2)}, {vr(M+8+2*d,2)}")
        for d in range(4): k(f"v_cvt_pk_bf16_f32 v{YR+4*t+d}, v{e(d)}, v{e(d)+1}")
        for d in range(4):
            k(f"v_dot2_f32_bf16 v{S1}, v{YR+4*t+d}, v{ONE}, v{S1}")
            k(f"v_dot2_f32_bf16 v{S2}, v{YR+4*t+d}, v{YR+4*t+d}, v{S2}")
    k.hook = None
    k("s_nop 1")
    reduce16(k, S1, S2)
    ln_finish(k, S1, S2, T + 2, 640)
    k(f"""
    v_cndmask_b32 v{S1}, 0, v{S1}, s[50:51]
    v_cndmask_b32 v{S2}, 0, v{S2}, s[50:51]
    s_mul_i32 s46, s29, 20480
    s_add_u32 s46, s46, s36
    s_add_u32 s47, s46, {L.G_XA - 20480}
    s_lshl_b32 s48, s29, 7
    s_add_u32 s48, s48, s36
    s_add_u32 s48, s48, {L.G_ST3}
    v_lshlrev_b32 v12, 3, v15            ; m*8
    s_lshl_b32 s49, s29, 7
    s_add_u32 s49, s49, s37
    s_lshl_b32 s41, s30, 2
    s_add_u32 s49, s49, s41
    """)
    if E("PROFB0", 0): stamp()
    xid_eval(190)
    TL = MODL
    TL = 112 * 1024
    k(f"""
    s_barrier
    v_and_b32 v9, 7, v4
    v_xor_b32 v9, v15, v9                ; m ^ (c&7)
    v_and_b32 v10, 3, v4
    v_lshl_add_u32 v9, v10, 4, v9
    v_lshrrev_b32 v10, 2, v4
    v_lshl_add_u32 v9, v10, 6, v9
    v_lshlrev_b32 v9, 4, v9
    v_add_u32 v9, {TL}, v9
    """)
    for t in range(5):
        k(f"ds_write_b128 v9, {vr(YR+4*t,4)} offset:{4096*t}")
        k(f"ds_write_b128 v9, {vr(XR+4*t,4)} offset:{20480+4096*t}")
    k(f"""
    v_xor_b32 v9, v4, v3
    v_xor_b32 v10, 4, v9
    v_lshl_add_u32 v9, v3, 4, v9
    v_lshl_add_u32 v10, v3, 4, v10
    s_mul_i32 s41, s30, 5120
    s_add_u32 s41, s41, {TL}
    v_lshl_add_u32 v9, v9, 4, s41
    v_lshl_add_u32 v10, v10, 4, s41
    s_cmp_eq_u32 s30, 1
    s_cselect_b32 s41, 1, 0
    s_cmp_eq_u32 s30, 3
    s_cselect_b32 s41, 1, s41
    s_cmp_eq_u32 s41, 1
    v_mov_b32 v11, v9
    s_cbranch_scc0 {"k2_noswap"}
    v_mov_b32 v9, v10
    v_mov_b32 v10, v11
    """)
    k.lab("k2_noswap")
    k(f"""
    s_mul_i32 s41, s30, 5120
    s_add_u32 s46, s46, s41
    s_add_u32 s47, s47, s41
    s_waitcnt lgkmcnt(0)
    s_barrier
    """)
    for i in range(5):
        k(f"ds_read_b128 {vr(YR+4*i,4)}, v{9 + (i & 1)} offset:{1024*i}")
    XAR = 220
    for i in range(5):
        k(f"ds_read_b128 {vr(XAR+4*i,4)}, v{9 + (i & 1)} offset:{20480+1024*i}")
    k("s_add_u32 s52, s46, 4096")
    k(f"""
    s_sub_u32 s41, s29, 1
    s_cmp_lt_u32 s41, 16
    s_cselect_b32 s20, s47, 0x90000000
    """)
    def xa_block(sc):
        _U.n += 1
        lab = f"k2_noxa{_U.n}"
        k(f"s_sub_u32 s41, s29, 1\ns_cmp_ge_u32 s41, 16\ns_cbranch_scc1 {lab}")
        for i in range(5):
            k(f"s_waitcnt lgkmcnt({4-i})")
            k(f"buffer_store_dwordx4 {vr(XR+4*i,4)}, v2, {WS}, s{47 if i < 4 else 53} offen offset:{(i%4)*1024}{sc}")
        k.lab(lab)
    class _U:
        n = 0
    ls = k.newlab("slow"); lj = k.newlab("sent")
    k("s_cmp_eq_u32 s31, 0"); k(f"s_cbranch_scc1 {ls}")
    for sc in ("", " sc1"):
        dsc = " sc1" if E("MIXED", 0) else sc
        for i in range(5):
            k(f"s_waitcnt lgkmcnt({9-i})")
            k(f"buffer_store_dwordx4 {vr(YR+4*i,4)}, v2, {WS}, s{46 if i < 4 else 52} offen offset:{(i%4)*1024}{dsc}")
        k(f"""
        v_cmp_eq_u32 vcc, 0, v4
        s_and_saveexec_b64 s[50:51], vcc
        buffer_store_dwordx2 {vr(S1,2)}, v12, {WS}, s48 offen{dsc}
        s_mov_b64 exec, -1
        """)
        k(f"""
        s_waitcnt vmcnt(0)
        v_mov_b32 v9, 1
        v_mov_b32 v10, {L.F_B0}
        s_mov_b64 exec, 1
        buffer_store_dword v9, v10, {WS}, s49 offen{sc}
        s_mov_b64 exec, -1
        """)
        if sc == "":
            k(f"s_branch {lj}"); k.lab(ls)
    k.lab(lj)
    k("s_mov_b32 s21, s49")
    stamp()
    i0 = w1.i
    w1.some(99)
    k(f"s_branch {join0}")
    w4_done_b0 = w4.i
    k.lab(nob0)
    if E("K2PF", 1):
        k("s_getpc_b64 s[46:47]")
        k.lab("k2_pcref")
        k(f"""
        s_sub_u32 s46, s46, k2_pcref-k2_kernel
        s_subb_u32 s47, s47, 0
        s_sub_u32 s48, s29, 18
        s_lshl_b32 s48, s48, 2
        s_add_u32 s48, s48, s30
        s_lshl_b32 s48, s48, 10
        s_min_u32 s48, s48, (CODE_END-k2_kernel-1020)&0xfffffff0
        v_add_u32 v104, s48, v2
        global_load_dwordx4 v[108:111], v104, s[46:47]
        """)
    k("s_mov_b32 s21, 0")
    k("s_mov_b32 s20, 0x90000000")
    w1.i = 0
    k(f"""
    s_mul_i32 s38, s30, {25*1024}
    s_add_u32 s39, s38, s44
    s_add_u32 s39, s39, {L.W1P}
    """)
    if E("PUBLATE", 0): publish()
    if E("XIDFIRST", 1):
        xid_load(190)
        xid_eval(190)
    small_vectors()
    w1.some(99)
    if not E("XIDFIRST", 1):
        xid_load(190)
        xid_eval(190)
    w4.i = 0
    w4.some(w4_done_b0)
    if E("OUTTLB", 1):
        k(f"""
        s_mul_i32 s47, s28, 327680
        s_lshl_b32 s48, s29, 13
        s_add_u32 s47, s47, s48
        v_mov_b32 v101, 0
        s_mov_b64 exec, 1
        buffer_load_dword v102, v101, {OS}, s47 offen
        s_mov_b64 exec, -1
        """)
        if E("GRPTLB", 0):
            k(f"""
            v_lshlrev_b32 v101, 16, v1
            s_mov_b64 exec, {hex((1 << ((L.GS + 65535) // 65536)) - 1)}
            buffer_load_dword v103, v101, {WS}, s36 offen
            s_mov_b64 exec, -1
            """)
    if E("K2TOUCH", 1):
        lt = k.newlab("nt")
        k(f"""
        s_cmp_eq_u32 s31, 0
        s_cbranch_scc1 {lt}
        s_sub_u32 s47, s29, 18
        s_lshl_b32 s47, s47, 2
        s_add_u32 s47, s47, s30              ; 0..55
        s_mul_i32 s48, s47, {6*1024}
        s_min_u32 s48, s48, {327680 - 6*1024}
        s_mul_i32 s49, s28, 327680
        s_add_u32 s48, s48, s49
        s_add_u32 s48, s48, {L.KVR}
        """)
        for i in range(6):
            k(f"buffer_load_dwordx4 {vr(64+4*i,4)}, v2, {WS}, s48 offen offset:{(i%4)*1024}")
            if i == 3: k("s_add_u32 s48, s48, 4096")
        k(f"""
        s_mul_i32 s48, s47, 384
        s_min_u32 s48, s48, {20480 - 384}
        s_add_u32 s48, s48, s36
        s_add_u32 s48, s48, {L.G_ST1}
        s_mov_b64 exec, 7
        buffer_load_dword v100, v5, {WS}, s48 offen
        s_mov_b64 exec, -1
        """)
        k.lab(lt)
    PFM = E("PFM", 0)
    if PFM:
        k(f"""
        s_sub_u32 s47, s29, 18
        s_lshl_b32 s47, s47, 2
        s_add_u32 s47, s47, s30              ; 0..55
        s_mul_i32 s48, s47, {15*1024}
        s_min_u32 s48, s48, {800*1024 - 15*1024}
        s_add_u32 s48, s48, {L.W2P}
        """)
        for _ in range(E("PFSL", 0)): k("s_sleep 127")
        for i in range(15):
            vq.op(f"buffer_load_dwordx4 {vr(64+4*(i%16),4)}, v2, {WS}, s48 offen offset:{(i%4)*1024}", "pf")
            if i % 4 == 3: k("s_add_u32 s48, s48, 4096")
    if PFM >= 2:
        k(f"""
        s_mul_i32 s48, s47, 15
        s_min_u32 s48, s48, {16*52 - 15}
        s_mul_i32 s49, s48, {65536 // 52 + 1}
        s_lshr_b32 s49, s49, 16
        s_mul_i32 s41, s49, 52
        s_sub_u32 s48, s48, s41
        s_mul_i32 s49, s49, 140
        s_add_u32 s48, s48, s49
        s_lshl_b32 s48, s48, 10
        s_add_u32 s48, s48, {L.W3P}
        """)
        for i in range(15):
            vq.op(f"buffer_load_dwordx4 {vr(128+4*(i%16),4)}, v2, {WS}, s48 offen offset:{(i%4)*1024}", "pf")
            if i % 4 == 3: k("s_add_u32 s48, s48, 4096")
    k.lab(join0)
    vq.reset()
    if STOP == 0:
        finish(); k.lab(end); k("s_endpgm"); return k

    GX, GW, GA, GT = 16, 96, 156, 176
    VC = 12
    XPRE = E("XPRE", 4)
    def gemm5(stage, pos0, inloop, xone, kbar=None):
        def wread(ks, nt):
            slot = (pos0 + ks * 5 + nt) % NSLOT
            o = slot * 1024
            k(f"ds_read_b128 {vr(GW+(ks%3)*20+4*nt,4)}, v{14 + (o >> 16)} offset:{o & 0xffff}")
        for ks in range(2):
            for nt in range(5): wread(ks, nt)
        xn = [XPRE]
        for ks in range(20):
            if E("PROFG1", 0) == stage and ks in (0, 1, 2, 5, 10, 15): stamp()
            vq.wait(f"x{ks}")
            k(f"s_waitcnt lgkmcnt({5 if ks < 19 else 0})")
            if ks == kbar: k("s_barrier")
            for nt in range(5):
                c = "0" if ks == 0 else vr(GA + 4*nt, 4)
                k(f"v_mfma_f32_16x16x32_bf16 {vr(GA+4*nt,4)}, {vr(GW+(ks%3)*20+4*nt,4)}, {vr(GX+4*ks,4)}, {c}")
                if ks + 2 < 20 and nt >= 1:
                    wread(ks + 2, nt - 1)
                    if nt == 4: wread(ks + 2, 4)
                if nt in (0, 3) and xn[0] < 20: xone(xn[0]); xn[0] += 1
                if nt in (1, 4): inloop(ks, nt)
    def lds_bases():
        k("v_mov_b32 v14, v2")
        k("v_add_u32 v15, 0x10000, v2")
    def fix_bank(text): return text.replace("v16 offset", "v11 offset")

    k(f"""
    s_lshl_b32 s46, s32, 2
    s_add_u32 s46, s46, s30              ; rt (0..15)
    s_lshr_b32 s47, s33, 1
    s_and_b32 s48, s47, 1
    s_lshr_b32 s47, s47, 1
    s_add_u32 s47, s47, 1                ; |shift|
    s_sub_u32 s49, 0, s47
    s_cmp_eq_u32 s48, 1
    s_cselect_b32 s47, s47, s49
    s_lshl_b32 s49, s46, 4
    s_add_u32 s49, s49, 16
    s_add_u32 s49, s49, s47
    v_add_u32 v9, s49, v4
    v_lshrrev_b32 v10, 4, v9
    v_mul_u32_u24 v6, 20480, v10
    v_and_b32 v10, 15, v9
    v_lshl_add_u32 v10, v3, 4, v10
    v_lshl_add_u32 v6, v10, 4, v6
    v_lshlrev_b32 v13, 3, v9
    s_add_u32 s49, s46, s48
    s_lshl_b32 s49, s49, 7
    s_add_u32 s49, s49, s37
    v_bfe_u32 v7, v1, 2, 1
    v_lshlrev_b32 v7, 7, v7
    v_and_b32 v9, 3, v1
    v_lshl_add_u32 v7, v9, 2, v7
    """)
    poll(49)
    stamp()
    def xload1(vaddr, sb, i):
        k(f"s_add_u32 s41, s{sb}, {(i//4)*4096}")
        vq.op(f"buffer_load_dwordx4 {vr(GX+4*i,4)}, v{vaddr}, {WS}, s41 offen offset:{(i%4)*1024} sc1", f"x{i}")
    for i in range(XPRE): xload1(6, 36, i)
    k(f"s_add_u32 s41, s36, {L.G_ST3}")
    vq.op(f"buffer_load_dwordx2 {vr(GT,2)}, v13, {WS}, s41 offen sc1", "st")
    k("v_mov_b32 v14, v2")
    k("v_add_u32 v15, 0x10000, v2")
    k("v_add_u32 v11, 0x20000, v2")
    k("s_barrier")
    w2a = Dma(100, 13, 44, L.W2P, 38, 39)
    def l2pf(base, i, per, first_s):
        if i == 0:
            k(f"""
            s_lshl_b32 s{first_s}, s29, 2
            s_add_u32 s{first_s}, s{first_s}, s30
            s_mul_i32 s{first_s}, s{first_s}, {per*128}
            s_add_u32 s{first_s}, s{first_s}, {base}
            """)
        n = min(64, per - 64 * i)
        if n < 64: k(f"s_mov_b64 exec, {hex((1 << n) - 1)}")
        vq.op(f"buffer_load_dword v{232+i}, v5, {WS}, s{first_s} offen", "pf")
        if n < 64: k("s_mov_b64 exec, -1")
        k(f"s_add_u32 s{first_s}, s{first_s}, 8192")
    st1 = {"w2b": None, "xa": 0}
    def g1_in(ks, nt):
        if ks < E("G1W", 8): return
        if st1["xa"] < 5 and nt == 4 and not E("XALATE", 0):
            i = st1["xa"]; st1["xa"] += 1
            k(f"s_add_u32 s41, s20, {1024*i}")
            vq.op(f"buffer_store_dwordx4 {vr(XAR+4*i,4)}, v2, {WS}, s41 offen sc1", "xas")
            return
        if w2a.left(): w2a.one(); return
        if st1["w2b"] is None: st1["w2b"] = Dma(152, 12, 44, L.W2P + 52 * 1024, 38, 39)
        if st1["w2b"].left(): st1["w2b"].one()
    n0 = len(k.L)
    gemm5(1, 0, g1_in, lambda i: xload1(6, 36, i), kbar=9)
    k.L[n0:] = [x.replace("v16 offset", "v11 offset") if "ds_read_b128" in x else x for x in k.L[n0:]]
    stamp()
    k("s_barrier")
    while st1["xa"] < 5:
        i = st1["xa"]; st1["xa"] += 1
        k(f"s_add_u32 s41, s20, {1024*i}")
        vq.op(f"buffer_store_dwordx4 {vr(XAR+4*i,4)}, v2, {WS}, s41 offen sc1", "xas")
    w2a.some(99)
    if st1["w2b"] is None: st1["w2b"] = Dma(152, 12, 44, L.W2P + 52 * 1024, 38, 39)
    st1["w2b"].some(99)
    w3a = Dma(200, 13, 45, 0, 38, 39)
    w3a.some(E("NW3A", 13))
    RS = GT
    CSR = GT + 4
    k(f"""
    v_lshlrev_b32 v9, 4, v3
    v_add_u32 v9, {SMALL}, v9
    v_mov_b32 v{VC}, {fhex(C1)}
    v_mov_b32 v{VC+1}, {fhex(C0)}
    """)
    for nt in range(5):
        k(f"ds_read_b128 {vr(CSR+4*nt,4)}, v9 offset:{64*nt}")
        k(f"ds_read_b128 {vr(CSR+20+4*nt,4)}, v9 offset:{512+64*nt}")
    vq.wait("st")
    TT = CSR + 40
    k("s_waitcnt lgkmcnt(0)")
    for nt in range(5):
        cs = CSR + 4*nt
        for i in (0, 2):
            k(f"v_pk_add_f32 {vr(cs+i,2)}, {vr(cs+i,2)}, {vr(cs+20+i,2)}")
    ln_gelu_multi(k, vr, [(GA + 4*nt, CSR + 4*nt, RS) for nt in range(5)], CSR + 20, VC)
    g1pk, prs = pack_tiles(k, [GA + 4*nt for nt in range(5)])
    swap_pairs(k, prs)
    k(f"""
    s_mov_b32 s46, s22
    s_lshl_b32 s41, s33, 2
    s_add_u32 s49, s55, s41              ; + j*4
    """)
    def tile_stores(lst, sb):
        return [(f"buffer_store_dwordx4 {vr(r,4)}, v254, {WS}, s{sb} offen offset:{512*i}" if n == 4 else f"buffer_store_dwordx2 {vr(r,2)}, v8, {WS}, s{sb} offen offset:{512*i}") for r, n, i in lst]
    stores(tile_stores(g1pk, 46), 49, L.F_G1)
    lxa = k.newlab("xas"); lxb = k.newlab("xas"); lxc = k.newlab("xas")
    k(f"""
    s_cmp_eq_u32 s21, 0
    s_cbranch_scc1 {lxc}
    v_mov_b32 v9, 3
    v_mov_b32 v10, {L.F_B0}
    s_mov_b64 exec, 1
    s_cmp_eq_u32 s31, 0
    s_cbranch_scc1 {lxa}
    buffer_store_dword v9, v10, {WS}, s21 offen
    s_branch {lxb}
    """)
    k.lab(lxa)
    k(f"buffer_store_dword v9, v10, {WS}, s21 offen sc1")
    k.lab(lxb)
    k("s_mov_b64 exec, -1")
    k.lab(lxc)
    stamp()
    if STOP == 1:
        finish(); k.lab(end); k("s_endpgm"); return k

    k(f"""
    s_sub_u32 s41, s55, s37
    s_lshr_b32 s41, s41, 7               ; rt
    v_bfe_u32 v7, v1, 3, 2               ; 0..3
    v_min_u32 v7, 2, v7
    v_add_u32 v7, s41, v7
    v_subrev_u32 v7, 1, v7
    v_max_i32 v7, 0, v7
    v_min_i32 v7, 15, v7
    v_lshlrev_b32 v7, 7, v7
    v_and_b32 v9, 7, v1
    v_lshl_add_u32 v7, v9, 2, v7
    s_add_u32 s49, s37, {L.F_G1}
    """)
    poll(49)
    stamp()
    k(f"""
    s_mul_i32 s41, s33, 2560
    s_sub_u32 s47, s22, s41
    """)
    k("s_mov_b32 s52, s47")
    for i in range(XPRE): xload1(2, 52, i)
    HBR = GT
    k(f"s_add_u32 s41, s54, {L.G_HBX + 20480}")
    def pair_loads(reg, sb, tag):
        vq.op(f"buffer_load_dwordx4 {vr(reg,4)}, v254, {WS}, s{sb} offen sc1", tag)
        vq.op(f"buffer_load_dwordx4 {vr(reg+4,4)}, v254, {WS}, s{sb} offen offset:1024 sc1", tag)
        vq.op(f"buffer_load_dwordx2 {vr(reg+8,2)}, v8, {WS}, s{sb} offen offset:2048 sc1", tag)
    def pair_src(reg, nt):
        return reg + (nt // 2) * 4 + (nt % 2) * 2
    HB_S = 48
    k("s_mov_b32 s48, s41")
    k(f"""
    s_sub_u32 s41, s55, s37              ; rt*128
    s_lshl_b32 s41, s41, 3               ; rt*1024
    s_add_u32 s46, s41, s36
    s_add_u32 s46, s46, {L.G_ST1}
    """)
    k("s_barrier")
    st2 = {"w3b": None, "hb": False}
    def g2_in(ks, nt):
        if ks < E("G2W", 8): return
        if not st2["hb"]:
            st2["hb"] = True; pair_loads(HBR, 48, "hb"); return
        if w3a.left(): w3a.one(); return
        if ks < 10: return
        if st2["w3b"] is None: st2["w3b"] = Dma(252, 12, 45, 52 * 1024, 38, 39)
        if st2["w3b"].left(): st2["w3b"].one()
    n0 = len(k.L)
    gemm5(2, 100, g2_in, lambda i: xload1(2, 52, i), kbar=9)
    k.L[n0:] = [x.replace("v16 offset", "v11 offset") if "ds_read_b128" in x else x for x in k.L[n0:]]
    stamp()
    k("s_barrier")
    w3a.some(99)
    if st2["w3b"] is None: st2["w3b"] = Dma(252, 12, 45, 52 * 1024, 38, 39)
    st2["w3b"].some(99)
    w3c = Dma(300, 1, 45, 100 * 1024, 38, 39)
    w3c.some(99)
    w3d = Dma(304, 9, 45, 104 * 1024, 38, 39)
    w3d.some(99)
    TT = GT + 12; ONE = GT + 20; A1 = GT + 22
    k(f"""
    v_mov_b32 v{ONE}, 0x3f803f80
    v_mov_b32 v{A1}, 0
    v_mov_b32 v{A1+1}, 0
    """)
    vq.wait("hb")
    swap_pairs(k, [HBR, HBR + 4])
    k("s_nop 1")
    U = GT + 24
    for nt in range(5):
        p = pair_src(HBR, nt)
        k.unpack(U + 4*nt, U + 4*nt + 1, p); k.unpack(U + 4*nt + 2, U + 4*nt + 3, p + 1)
    for nt in range(5):
        z = GA + 4*nt
        for i in (0, 2):
            k(f"v_pk_add_f32 {vr(z+i,2)}, {vr(z+i,2)}, {vr(U+4*nt+i,2)}")
    g2pk, prs = pack_tiles(k, [GA + 4*nt for nt in range(5)])
    for r, n, i in g2pk:
        for q_ in range(n):
            k(f"v_dot2_f32_bf16 v{A1}, v{r+q_}, v{ONE}, v{A1}")
            k(f"v_dot2_f32_bf16 v{A1+1}, v{r+q_}, v{r+q_}, v{A1+1}")
    k("s_nop 1")
    swap_pairs(k, prs)
    k("s_nop 2")
    reduce_g(k, A1, A1 + 1, TT)
    k(f"""
    s_add_u32 s47, s54, {L.G_X1}
    v_lshlrev_b32 v9, 6, v4              ; m*64
    s_lshl_b32 s41, s33, 3
    s_add_u32 s46, s46, s41
    s_lshl_b32 s41, s33, 2
    s_add_u32 s49, s55, s41
    v_mov_b32 v11, v9
    """)
    st = tile_stores(g2pk, 47)
    st.append(f"s_mov_b64 exec, 0xffff\nbuffer_store_dwordx2 {vr(A1,2)}, v11, {WS}, s46 offen\ns_mov_b64 exec, -1")
    stores(st, 49, L.F_G2)
    stamp()
    if STOP == 2:
        finish(); k.lab(end); k("s_endpgm"); return k

    A3, X3, W3, T3 = 16, 72, 160, 216
    XD = 11
    k(f"""
    s_lshl_b32 s46, s34, 3
    s_lshl_b32 s47, s30, 1
    s_add_u32 s46, s46, s47              ; rt0 = 8c + 2w
    s_lshl_b32 s49, s46, 7
    s_add_u32 s49, s49, {L.F_G2}
    v_bfe_u32 v7, v1, 3, 1
    v_lshlrev_b32 v7, 7, v7
    v_and_b32 v9, 7, v1
    v_lshl_add_u32 v7, v9, 2, v7
    v_add_u32 v7, s49, v7
    s_sub_u32 s49, s55, s37
    s_add_u32 s49, s49, {128 + L.F_B0}
    v_and_b32 v9, 3, v1
    v_lshlrev_b32 v9, 2, v9
    v_add_u32 v9, s49, v9                ; xa flags (value 3) of this wave's output tile
    v_and_b32 v10, 16, v1
    v_cmp_ne_u32 vcc, 0, v10
    v_mov_b32 v11, 1
    v_mov_b32 v10, 3
    v_cndmask_b32 v7, v7, v9, vcc
    v_cndmask_b32 v10, v11, v10, vcc
    """)
    poll(37, 10)
    stamp()
    k(f"""
    s_mul_i32 s47, s46, 20480
    s_add_u32 s47, s47, s36
    s_add_u32 s47, s47, {L.G_X1}
    s_add_u32 s48, s47, 20480
    """)
    def x3load(ks):
        for rt in range(2):
            k(f"s_add_u32 s41, s{47+rt}, {(ks//4)*4096}")
            vq.op(f"buffer_load_dwordx4 {vr(X3+((ks%XD)*2+rt)*4,4)}, v2, {WS}, s41 offen offset:{(ks%4)*1024} sc1", f"x{ks}")
    X3PRE = E("X3PRE", 3)
    for ks in range(X3PRE): x3load(ks)
    SP = T3
    k(f"""
    v_lshlrev_b32 v9, 6, v4
    v_lshl_add_u32 v9, v3, 4, v9
    s_lshl_b32 s41, s46, 10
    s_add_u32 s41, s41, s36
    s_add_u32 s41, s41, {L.G_ST1}
    """)
    for rt in range(2):
        vq.op(f"buffer_load_dwordx4 {vr(SP+4*rt,4)}, v9, {WS}, s41 offen offset:{1024*rt} sc1", "st")
    x3n = [X3PRE]
    k(f"""
    s_mul_i32 s52, s46, 55296
    s_mul_i32 s41, s35, 3584
    s_add_u32 s52, s52, s41
    s_add_u32 s52, s52, s36
    s_add_u32 s52, s52, {L.G_H3}
    s_add_u32 s53, s52, 55296
    """)
    EP = 228
    def g3_extra(ks):
        if ks in (10, 11) and not E("H3SC1", 1):
            k("s_mov_b64 exec, 0xfffffff")
            touch(52 + ks - 10, 248)
            k("s_mov_b64 exec, -1")
        if ks in (13, 14):
            off = L.G_XA if ks == 13 else L.G_X1
            k(f"s_add_u32 s48, s54, {off}")
            pair_loads(EP + (ks - 13) * 10, 48, "ep")
    k("s_barrier")
    def w3read(ks, nt):
        slot = (200 + ks * 7 + nt) % NSLOT
        o = slot * 1024
        a = {0: 14, 1: 15, 2: 11}[o >> 16]
        k(f"ds_read_b128 {vr(W3+(ks&1)*28+4*nt,4)}, v{a} offset:{o & 0xffff}")
    k("v_add_u32 v11, 0x20000, v2")
    RS3 = T3 + 8
    n0_ = len(k.L)
    for rt in range(2):
        s_ = SP + 4*rt
        k(f"v_add_f32 v{RS3+2*rt}, v{s_}, v{s_+2}")
        k(f"v_add_f32 v{RS3+2*rt+1}, v{s_+1}, v{s_+3}")
        reduce_g(k, RS3 + 2*rt, RS3 + 2*rt + 1, SP)
        ln_finish(k, RS3 + 2*rt, RS3 + 2*rt + 1, SP, 640)
    stat_ops = k.L[n0_:]; del k.L[n0_:]
    for nt in range(7): w3read(0, nt)
    for ks in range(20):
        assert x3n[0] > ks
        if not E("NOXW", 0): vq.wait(f"x{ks}")
        if E("PROFG3", 0) and ks in (1, 2, 5, 10, 15): stamp()
        for nt in range(7):
            if not E("NOLW", 0): k(f"s_waitcnt lgkmcnt({6 if ks < 19 else 6 - nt})")
            for rt in range(2):
                a = A3 + (rt*7 + nt) * 4
                c = "0" if ks == 0 else vr(a, 4)
                k(f"v_mfma_f32_16x16x32_bf16 {vr(a,4)}, {vr(W3+(ks&1)*28+4*nt,4)}, {vr(X3+((ks%XD)*2+rt)*4,4)}, {c}")
            if ks < 19 and not E("NODS", 0): w3read(ks + 1, nt)
            if nt in (1, 4) and x3n[0] < 20 and x3n[0] < ks + min(XD, E("X3D", 8)) and (nt == 1 or x3n[0] < ks + E("X3D", 8) - 1):
                x3load(x3n[0]); x3n[0] += 1
            if nt in (2, 3, 5) and ks >= E("W4K0", 1) and w4.left(): w4.one()
            if nt == 6 and ks >= E("W4K1", 12) and w4.left(): w4.one()
            if nt == 6: g3_extra(ks)
            if ks >= 5:
                for _ in range(2):
                    if stat_ops: k.L.append(stat_ops.pop(0))
    stamp()
    assert not stat_ops
    def wx_loads():
        assert w4.left() == 0
        for i in range(6):
            vq.op(f"buffer_load_dwordx4 {vr(192+4*i,4)}, v2, {WS}, s40 offen offset:{(i%4)*1024}", "wx")
            if i == 3: k("s_add_u32 s40, s40, 4096")
    if E("WXEARLY", 0):
        w4.some(99)
        wx_loads()
    CS3 = X3
    TT = W3
    k(f"""
    v_lshlrev_b32 v9, 4, v3
    v_add_u32 v9, {SMALL + 1024}, v9
    v_mov_b32 v{VC}, {fhex(C1)}
    v_mov_b32 v{VC+1}, {fhex(C0)}
    """)
    for nt in range(7):
        k(f"ds_read_b128 {vr(CS3+4*nt,4)}, v9 offset:{64*nt}")
        k(f"ds_read_b128 {vr(CS3+28+4*nt,4)}, v9 offset:{512+64*nt}")
    k("s_waitcnt lgkmcnt(0)")
    for nt in range(7):
        cs = CS3 + 4*nt
        for i in (0, 2):
            k(f"v_pk_add_f32 {vr(cs+i,2)}, {vr(cs+i,2)}, {vr(cs+28+i,2)}")
    k(f"""
    s_lshl_b32 s49, s34, 2
    s_add_u32 s49, s49, s30
    s_lshl_b32 s49, s49, 7
    s_add_u32 s49, s49, s37
    s_lshl_b32 s41, s35, 2
    s_add_u32 s49, s49, s41
    """)
    def st_variants(emit):
        if E("MIXED", 0) or E("H3SC1", 1):
            emit(" sc1"); return
        ls = k.newlab("slow"); lj = k.newlab("sent")
        k("s_cmp_eq_u32 s31, 0"); k(f"s_cbranch_scc1 {ls}")
        emit(""); k(f"s_branch {lj}"); k.lab(ls); emit(" sc1"); k.lab(lj)
    for gi, n0_ in enumerate(range(0, 7, 2)):
        nts = list(range(n0_, min(n0_ + 2, 7)))
        tl = [(A3 + (rt*7 + nt) * 4, CS3 + 4*nt, RS3 + 2*rt) for nt in nts for rt in range(2)]
        ln_gelu_multi(k, vr, tl, TT, VC)
        pks = []
        prs_all = []
        for rt in range(2):
            pk, prs = pack_tiles(k, [A3 + (rt*7 + nt) * 4 for nt in nts])
            pks.append(pk[0]); prs_all += prs
        if prs_all: swap_pairs(k, prs_all)
        done = k.newlab("gs")
        if gi >= 2:
            k("s_cmp_eq_u32 s35, 15"); k(f"s_cbranch_scc1 {done}")
        if gi == 1:
            k("s_cmp_eq_u32 s35, 15")
            k("s_cselect_b32 s46, 0xffff, -1")
            k("s_mov_b32 exec_lo, s46"); k("s_mov_b32 exec_hi, s46")
        def emit(sc, pks=pks, n0_=n0_):
            for rt in range(2):
                r, n, i = pks[rt]
                if n == 4: k(f"buffer_store_dwordx4 {vr(r,4)}, v254, {WS}, s{52+rt} offen offset:{512*n0_}{sc}")
                else: k(f"buffer_store_dwordx2 {vr(r,2)}, v8, {WS}, s{52+rt} offen offset:{512*n0_}{sc}")
        st_variants(emit)
        if gi == 1: k("s_mov_b64 exec, -1")
        k.lab(done)
        if gi == 0: w4.some(99)
    ls = k.newlab("slow"); lj = k.newlab("sent")
    k(f"""
    s_waitcnt vmcnt(0)
    v_mov_b32 v9, 1
    v_mov_b32 v10, {L.F_G3}
    s_mov_b64 exec, 1
    s_cmp_eq_u32 s31, 0
    s_cbranch_scc1 {ls}
    buffer_store_dword v9, v10, {WS}, s49 offen
    s_branch {lj}
    """)
    k.lab(ls)
    k(f"buffer_store_dword v9, v10, {WS}, s49 offen sc1")
    k.lab(lj)
    k("s_mov_b64 exec, -1")
    vq.reset()
    stamp()
    if STOP == 3:
        finish(); k.lab(end); k("s_endpgm"); return k

    A4, X4, WX, T4 = 16, 96, 192, 216
    XD4 = 6
    if not E("WXEARLY", 0): wx_loads()
    k(f"""
    s_and_b32 s41, s32, 1
    s_lshl_b32 s41, s41, 1
    s_lshl_b32 s49, s34, 2
    s_add_u32 s49, s49, s41
    s_lshl_b32 s49, s49, 7
    s_add_u32 s49, s49, s37
    s_lshl_b32 s41, s30, 4
    s_add_u32 s49, s49, s41              ; + 4w flags
    s_add_u32 s49, s49, {L.F_G3}
    v_bfe_u32 v7, v1, 2, 1
    v_lshlrev_b32 v7, 7, v7
    v_and_b32 v9, 3, v1
    v_lshl_add_u32 v7, v9, 2, v7
    """)
    for i in range(4):
        k(f"""
        s_add_u32 s41, s30, {i}
        s_and_b32 s41, s41, 3
        s_lshl_b32 s46, s32, 2
        s_add_u32 s41, s41, s46
        s_mul_i32 s41, s41, 55296
        s_mul_i32 s46, s30, {14*1024}
        s_add_u32 s41, s41, s46
        s_add_u32 s41, s41, s36
        s_add_u32 s{50+i}, s41, {L.G_H3}
        """)
    poll(49)
    stamp()
    def x4load(ks, guard=False):
        for i in range(4):
            k(f"s_add_u32 s41, s{50+i}, {(ks//4)*4096}")
            vq.op(f"buffer_load_dwordx4 {vr(X4+((ks%XD4)*4+i)*4,4)}, v2, {WS}, s41 offen offset:{(ks%4)*1024} sc1", f"x{ks}")
    def x4one(ks, i):
        k(f"s_add_u32 s41, s{50+i}, {(ks//4)*4096}")
        vq.op(f"buffer_load_dwordx4 {vr(X4+((ks%XD4)*4+i)*4,4)}, v2, {WS}, s41 offen offset:{(ks%4)*1024} sc1", f"x{ks}")
    X4PRE = E("X4PRE", 2)
    for ks in range(X4PRE): x4load(ks)
    x4q = [(ks, i) for ks in range(X4PRE, 14) for i in range(4)]
    skip = k.newlab("k4skip")
    def wfrag(idx): return ar(4*idx, 4) if idx < 64 else vr(WX + 4*(idx - 64), 4)
    for ks in range(14):
        if ks == 12:
            k("s_cmp_eq_u32 s30, 3"); k(f"s_cbranch_scc1 {skip}")
        assert not any(q[0] <= ks for q in x4q)
        vq.wait(f"x{ks}")
        for nt in range(5):
            for i in range(4):
                a = A4 + (i*5 + nt) * 4
                c = "0" if ks == 0 else vr(a, 4)
                k(f"v_mfma_f32_16x16x32_bf16 {vr(a,4)}, {wfrag(ks*5+nt)}, {vr(X4+((ks%XD4)*4+i)*4,4)}, {c}")
            for _ in range(2 if (nt in (1, 3) and x4q and x4q[0][0] < ks + E("X4D", 4)) else 1):
                if x4q and x4q[0][0] - XD4 < ks and (nt >= 1 or x4q[0][0] - XD4 < ks - 1):
                    x4one(*x4q.pop(0))
    k.lab(skip)
    stamp()
    k(f"""
    s_waitcnt vmcnt(0)
    s_barrier
    """)
    for i in range(1, 4):
        k(f"""
        s_add_u32 s41, s30, {i}
        s_and_b32 s41, s41, 3
        s_mul_i32 s41, s41, {15*1024}
        s_add_u32 s41, s41, {(i-1)*5*1024}
        v_add_u32 v{9}, s41, v2
        """)
        for nt in range(5):
            k(f"ds_write_b128 v9, {vr(A4+(i*5+nt)*4,4)} offset:{1024*nt}")
    GB = X4
    PB = X4 + 20
    k(f"""
    v_lshlrev_b32 v10, 4, v3
    v_add_u32 v10, {SMALL + 2048}, v10
    """)
    for nt in range(5):
        k(f"ds_read_b128 {vr(GB+4*nt,4)}, v10 offset:{64*nt}")
    k(f"""
    s_mul_i32 s41, s30, {15*1024}
    v_add_u32 v9, s41, v2
    s_waitcnt lgkmcnt(0)
    s_barrier
    """)
    for i in range(15):
        k(f"ds_read_b128 {vr(PB+4*i,4)}, v9 offset:{1024*i}")
    k(f"""
    s_lshl_b32 s46, s32, 2
    s_add_u32 s46, s46, s30
    s_lshl_b32 s46, s46, 4
    s_lshl_b32 s47, s28, 8
    s_add_u32 s46, s46, s47
    v_add_u32 v10, s46, v4
    v_mul_u32_u24 v10, 1280, v10
    v_lshl_add_u32 v10, v3, 3, v10
    s_mul_i32 s47, s33, 160
    """)
    TT = 248
    swap_pairs(k, [EP, EP + 4, EP + 10, EP + 14])
    k("s_waitcnt lgkmcnt(0)")
    for s_ in range(3):
        for nt in range(5):
            z = A4 + 4*nt
            for i in (0, 2):
                k(f"v_pk_add_f32 {vr(z+i,2)}, {vr(z+i,2)}, {vr(PB+(s_*5+nt)*4+i,2)}")
    U = PB
    for nt in range(5):
        p = pair_src(EP + 10, nt)
        k.unpack(U + 4*nt, U + 4*nt + 1, p); k.unpack(U + 4*nt + 2, U + 4*nt + 3, p + 1)
        p = pair_src(EP, nt)
        k.unpack(U + 20 + 4*nt, U + 20 + 4*nt + 1, p); k.unpack(U + 20 + 4*nt + 2, U + 20 + 4*nt + 3, p + 1)
    for nt in range(5):
        z = A4 + 4*nt
        for i in (0, 2):
            k(f"v_pk_add_f32 {vr(z+i,2)}, {vr(z+i,2)}, {vr(U+4*nt+i,2)}")
    for nt in range(5):
        z = A4 + 4*nt
        for i in (0, 2):
            k(f"v_pk_fma_f32 {vr(z+i,2)}, {vr(z+i,2)}, {vr(GB+4*nt+i,2)}, {vr(U+20+4*nt+i,2)}")
    g4pk, prs = pack_tiles(k, [A4 + 4*nt for nt in range(5)])
    swap_pairs(k, prs)
    k("""
    v_and_b32 v9, 1, v3
    v_lshlrev_b32 v9, 5, v9
    v_lshrrev_b32 v11, 1, v3
    v_lshl_add_u32 v9, v11, 4, v9
    v_lshlrev_b32 v11, 3, v3
    v_sub_u32 v11, v10, v11
    v_add_u32 v11, v11, v9
    """)
    osc = " sc1" if E("OUTSC1", 0) else ""
    for r, n, i in g4pk:
        if n == 4: k(f"buffer_store_dwordx4 {vr(r,4)}, v11, {OS}, s47 offen offset:{32*i}{osc}")
        else: k(f"buffer_store_dwordx2 {vr(r,2)}, v10, {OS}, s47 offen offset:{32*i}{osc}")
    stamp()
    finish()
    k.lab(end)
    k("s_endpgm")
    return k

def kernels(Kern, vr):
    return [gen_chain(Kern, vr)]
```

```python
import sys, os
sys.path.insert(0, os.path.dirname(os.path.abspath(__file__)))
import layout as L

NAME = "adaLN_cond__ssm_conv_h3__mixer_s_mlp__prompt"
SZ_SD = 2048 * 640 * 2

class Kern:
    def __init__(self, name, grid, block, lds, vgpr=256, sgpr=102, agpr=0):
        self.name, self.grid, self.block, self.lds = name, grid, block, lds
        self.vgpr, self.sgpr, self.agpr = vgpr, (102 if (os.environ.get("PROF") or os.environ.get("PROFK1")) else sgpr), agpr
        self.L = []
        self.nlab = 0
    def __call__(self, s):
        for ln in s.strip("\n").split("\n"):
            ln = ln.strip()
            if ln:
                self.L.append("    " + ln)
                h = getattr(self, "hook", None)
                if h and ln.startswith("v_"):
                    h[2] += 1
                    if h[2] % h[0] == 0:
                        self.hook = None
                        h[1]()
                        self.hook = h
    def lab(self, s):
        self.L.append(s + ":")
    def newlab(self, p="L"):
        self.nlab += 1
        return f"{self.name}_{p}{self.nlab}"
    def srd(self, d, b, size, off=0):
        if off:
            self(f"s_add_u32 s{d}, s{b}, {off}")
            self(f"s_addc_u32 s{d+1}, s{b+1}, 0")
        else:
            self(f"s_mov_b32 s{d}, s{b}")
            self(f"s_mov_b32 s{d+1}, s{b+1}")
        self(f"s_mov_b32 s{d+2}, {size}")
        self(f"s_mov_b32 s{d+3}, 0x00020000")
    def round2(self, a, b, t):
        self(f"v_cvt_pk_bf16_f32 v{t}, v{a}, v{b}")
        self(f"v_lshlrev_b32 v{a}, 16, v{t}")
        self(f"v_and_b32 v{b}, 0xffff0000, v{t}")
    def unpack(self, lo, hi, src):
        self(f"v_lshlrev_b32 v{lo}, 16, v{src}")
        self(f"v_and_b32 v{hi}, 0xffff0000, v{src}")
    def stamp(self, i):
        if os.environ.get("PROFK1"):
            self(f"s_memtime s[{80+2*i}:{81+2*i}]")
    def stamp_end(self, n):
        if os.environ.get("PROFK1"):
            l = self.newlab("prof")
            self(f"""
            s_waitcnt lgkmcnt(0)
            s_cmp_lg_u32 s2, {int(os.environ.get("PROFWG", "0"))}
            s_cbranch_scc1 {l}
            s_load_dwordx2 s[76:77], s[0:1], 112
            s_waitcnt lgkmcnt(0)
            s_mov_b32 s78, 256
            s_mov_b32 s79, 0x00020000
            v_mov_b32 v1, 0
            """)
            for i in range(n):
                self(f"s_sub_u32 s75, s{80+2*i}, s80")
                self(f"v_mov_b32 v2, s75")
                self(f"buffer_store_dword v2, v1, s[76:79], 0 offen offset:{4*i}")
            self.lab(l)
    def text(self):
        sc = self.name in os.environ.get("SC1", "k1_kernel").split(",")
        Ls = [(l + " sc1" if (sc and l.strip().startswith("buffer_store") and " sc1" not in l and "NOSC" not in l) else l.replace(" NOSC", "")) for l in self.L]
        return (f".globl {self.name}\n.p2align 8\n.type {self.name},@function\n{self.name}:\n" + "\n".join(Ls) + "\n")
    def kd(self):
        acc = (self.vgpr + 3) // 4 * 4
        nfv = self.vgpr if not self.agpr else acc + self.agpr
        return f""".p2align 6
.amdhsa_kernel {self.name}
  .amdhsa_next_free_vgpr {nfv}
  .amdhsa_next_free_sgpr {self.sgpr}
  .amdhsa_accum_offset {acc}
  .amdhsa_group_segment_fixed_size 0
  .amdhsa_kernarg_size 128
  .amdhsa_user_sgpr_count 2
  .amdhsa_user_sgpr_kernarg_segment_ptr 1
  .amdhsa_system_sgpr_workgroup_id_x 1
  .amdhsa_float_denorm_mode_32 3
.end_amdhsa_kernel
"""

def vr(a, n):
    return f"v[{a}:{a+n-1}]"

MERGE = os.environ.get("MERGE", "0") == "1"
CNT_OFF = 128

def signal(k, cnt_sgpr_or_imm):
    l = k.newlab("sig")
    k(f"""
    s_mov_b64 exec, -1
    s_waitcnt vmcnt(0)
    s_barrier
    v_cmp_eq_u32 vcc, 0, v0
    s_and_saveexec_b64 s[42:43], vcc
    s_cbranch_execz {l}
    v_mov_b32 v1, 1
    v_mov_b32 v2, {cnt_sgpr_or_imm}
    buffer_atomic_add v1, v2, s[48:51], 0 offen
    """)
    k.lab(l)
    k("s_endpgm")

def poll(k, voff, target, vtmp):
    l = k.newlab("poll"); d = k.newlab("polld")
    k("s_mov_b32 s52, 0")
    k("s_cmp_lg_u32 s20, 0")
    k(f"s_cbranch_scc1 {d}")
    k.lab(l)
    k(f"""
    buffer_load_dword v{vtmp}, v{voff}, s[48:51], 0 offen sc0 sc1
    s_waitcnt vmcnt(0)
    v_readfirstlane_b32 s53, v{vtmp}
    s_add_u32 s52, s52, 1
    s_cmp_ge_u32 s53, {target}
    s_cbranch_scc1 {d}
    s_cmp_ge_u32 s52, 0x100000
    s_cbranch_scc1 {d}
    s_sleep {int(os.environ.get("SLP", 8))}
    s_branch {l}
    """)
    k.lab(d)
    k("s_barrier")

def emit_pack(k, base, idreg="s2", step=None):
    k(f"""
    s_load_dwordx2 s[10:11], s[0:1], 120   ; ws
    s_load_dwordx8 s[12:19], s[0:1], 56    ; w1 w2 w3 w4
    v_lshrrev_b32 v2, 6, v0
    v_and_b32 v1, 63, v0                   ; lane
    v_readfirstlane_b32 s20, v2
    s_waitcnt lgkmcnt(0)
    """)
    k.srd(28, 10, 0x10000000)
    labs = [k.newlab("pk") for _ in range(4)]
    pend = k.newlab("pke")
    k(f"""
    s_sub_u32 s21, {idreg}, {base}
    v_lshrrev_b32 v3, 3, v0                ; row
    v_and_b32 v4, 7, v0                    ; chunk
    v_mul_u32_u24 v5, 144, v3
    v_lshl_add_u32 v5, v4, 4, v5
    v_and_b32 v6, 15, v1
    v_lshrrev_b32 v7, 4, v1                ; g
    v_lshrrev_b32 v8, 2, v6
    v_lshl_add_u32 v8, v7, 3, v8           ; 8g + (i>>2)
    v_mul_u32_u24 v8, 144, v8
    v_and_b32 v9, 3, v6
    v_lshl_add_u32 v8, v9, 3, v8
    s_lshl_b32 s22, s20, 5
    v_add_u32 v8, s22, v8
    v_lshlrev_b32 v9, 4, v1                ; lane*16
    s_cmp_lt_u32 s21, 10
    s_cbranch_scc1 {labs[0]}
    s_cmp_lt_u32 s21, 20
    s_cbranch_scc1 {labs[1]}
    s_cmp_lt_u32 s21, 48
    s_cbranch_scc1 {labs[2]}
    s_cmp_lt_u32 s21, 78
    s_cbranch_scc1 {labs[3]}
    s_branch {pend}
    """)
    for m in range(4):
        k.lab(labs[m])
        N = [640, 640, 1728, 640][m]; Kd = [640, 640, 640, 1728][m]
        pitch = N * 2
        nks = 10 if m < 3 else 9
        ub = [0, 10, 20, 48][m]
        ncb = N // 64
        npr = (ncb + 1) // 2
        k.srd(24, 12 + 2*m, Kd * N * 2)
        magic = {5: (52429, 18), 14: (4682, 16)}[npr]
        k(f"""
        s_sub_u32 s32, s21, {ub}
        s_mul_i32 s33, s32, {magic[0]}
        s_lshr_b32 s33, s33, {magic[1]}      ; kq
        s_mul_i32 s34, s33, {npr}
        s_sub_u32 s34, s32, s34
        s_lshl_b32 s34, s34, 1
        v_mul_u32_u24 v10, {pitch}, v3
        v_lshl_add_u32 v10, v4, 4, v10
        s_mul_i32 s35, s33, {nks*32*pitch}
        s_lshl_b32 s36, s34, 7
        s_add_u32 s35, s35, s36
        """)
        R = [32, 72]
        for h in range(2):
            for i in range(nks):
                k(f"buffer_load_dwordx4 {vr(R[h]+4*i,4)}, v10, s[24:27], s35 offen offset:{128*h}")
                if i < nks - 1:
                    k(f"s_add_u32 s35, s35, {32*pitch}")
            if h == 0: k(f"s_sub_u32 s35, s35, {(nks-1)*32*pitch}")
        nt_ = 7 if m == 2 else 5
        mg = (9363, 16) if nt_ == 7 else (52429, 18)
        perj = [100, 100, 140, 280][m]
        dconst = [i * nt_ * 1024 for i in range(nks)]
        for h in range(2):
            skip = None
            if h == 1:
                k("s_add_u32 s34, s34, 1")
                k("s_barrier")
            k(f"""
            s_lshl_b32 s36, s34, 2
            s_add_u32 s36, s36, s20             ; ntg
            s_mul_i32 s38, s36, {mg[0]}
            s_lshr_b32 s38, s38, {mg[1]}     ; j
            s_mul_i32 s39, s38, {nt_}
            s_sub_u32 s39, s36, s39          ; nt
            s_mul_i32 s37, s38, {perj}
            s_mul_i32 s40, s33, {nks*nt_}
            s_add_u32 s37, s37, s40
            s_add_u32 s37, s37, s39
            s_lshl_b32 s37, s37, 10
            s_add_u32 s37, s37, {[L.W1P, L.W2P, L.W3P, L.W4P][m]}
            """)
            nst = nks + (1 if m in (0, 2) else 0)
            for i in range(nks):
                n_after = (nks - 1 - i) + (nks if h == 0 else nst)
                k(f"s_waitcnt vmcnt({n_after})")
                k(f"ds_write_b128 v5, {vr(R[h]+4*i,4)} offset:{4608*i}")
            k("s_waitcnt lgkmcnt(0)")
            k("s_barrier")
            for i in range(nks):
                k(f"ds_read_b64_tr_b16 {vr(R[h]+4*i,2)}, v8 offset:{4608*i}")
                k(f"ds_read_b64_tr_b16 {vr(R[h]+4*i+2,2)}, v8 offset:{4608*i+576}")
            if m in (0, 2):
                k("v_mov_b32 v12, 0")
                k("v_mov_b32 v13, 0x3f803f80")
            for i in range(nks):
                k(f"s_waitcnt lgkmcnt({2*(nks-1-i)})" if 2*(nks-1-i) <= 15 else "s_waitcnt lgkmcnt(15)")
                k(f"s_add_u32 s38, s37, {dconst[i]}")
                k(f"buffer_store_dwordx4 {vr(R[h]+4*i,4)}, v9, s[28:31], s38 offen" + (" NOSC" if (os.environ.get("WPLAIN") and str(m) in os.environ.get("WPLAIN")) else ""))
                if m in (0, 2):
                    for d in range(4):
                        k(f"v_dot2_f32_bf16 v12, v{R[h]+4*i+d}, v13, v12")
            if m in (0, 2):
                k(f"""
                s_nop 2
                v_mov_b32 v13, v12
                s_nop 1
                v_permlane32_swap_b32 v13, v12
                v_add_f32 v12, v12, v13
                v_mov_b32 v13, v12
                s_nop 1
                v_permlane16_swap_b32 v13, v12
                v_add_f32 v12, v12, v13
                s_mul_i32 s38, s33, {1792*4}
                s_lshl_b32 s39, s36, 6
                s_add_u32 s38, s38, s39
                s_add_u32 s38, s38, {L.CS3P if m == 2 else L.CS1P}
                v_lshlrev_b32 v14, 2, v1
                v_cmp_gt_u32 vcc, 16, v1
                s_and_saveexec_b64 s[40:41], vcc
                buffer_store_dword v12, v14, s[28:31], s38 offen
                s_mov_b64 exec, -1
                """)
        k("s_endpgm")
    k.lab(pend)
    k("s_endpgm")


WREG = 9472
KVL = 4 * 9472
def gen_k1(k=None):
    NMOD = 60; NPF = 32
    MODFIRST = int(os.environ.get("MODFIRST", 0))
    NSIDE = 96 + NPF + (42 if MODFIRST else NMOD)
    GRID = (160 + NSIDE + 7) // 8 * 8
    k = Kern("k1_kernel", GRID, 256, KVL + 10240, vgpr=256, sgpr=72)
    end = "k1_end"; modl = "k1_modf"
    k(f"""
    s_cmp_ge_u32 s2, {GRID}
    s_cbranch_scc1 {end}
    s_load_dwordx4 s[4:7], s[0:1], 32
    s_load_dwordx2 s[10:11], s[0:1], 120   ; ws
    s_load_dwordx4 s[12:15], s[0:1], 8     ; k, v
    s_load_dwordx2 s[8:9], s[0:1], 24      ; shift_k
    v_lshrrev_b32 v2, 6, v0
    v_and_b32 v1, 63, v0                   ; lane
    v_readfirstlane_b32 s20, v2
    s_sub_u32 s54, s2, 160
    s_cmp_ge_u32 s2, 256
    s_cbranch_scc1 k1_side
    s_and_b32 s55, s2, 7                   ; class
    s_lshr_b32 s56, s2, 3                  ; member
    s_lshl_b32 s57, s55, 9
    s_add_u32 s57, s57, {L.KFL}
    v_mov_b32 v250, 0
    s_waitcnt lgkmcnt(0)
    """)
    k.srd(28, 10, 0x10000000)
    k.stamp(0)
    if os.environ.get("PROFMOD"):
        k(f"""
        s_memrealtime s[62:63]
        s_waitcnt lgkmcnt(0)
        s_lshl_b32 s23, s2, 4
        s_add_u32 s23, s23, {(48 << 20) + 4096}
        v_mov_b32 v12, s62
        s_mov_b64 exec, 1
        buffer_store_dword v12, v250, s[28:31], s23 offen
        s_mov_b64 exec, -1
        """)
    if os.environ.get("PROFKV"): k("s_memrealtime s[62:63]")
    k.srd(16, 12, SZ_SD); k.srd(40, 14, SZ_SD); k.srd(44, 8, 640 * 8)
    KR, VR_, SKR, SKF, KF, KVF, T = 10, 32, 48, 56, 72, 116, 150
    k(f"""
    v_mul_u32_u24 v4, 3277, v0
    v_lshrrev_b32 v4, 16, v4               ; rg
    v_mul_u32_u24 v5, 20, v4
    v_sub_u32 v5, v0, v5                   ; cg
    s_lshl_b32 s21, s56, 6
    v_lshl_add_u32 v6, v4, 3, s21
    v_mul_u32_u24 v6, 1280, v6
    s_mul_i32 s22, s55, 160
    v_lshl_add_u32 v7, v5, 3, s22
    v_add_u32 v6, v6, v7
    v_subrev_u32 v8, 3840, v6
    v_add_u32 v9, 5120, v6
    s_movk_i32 s23, 160
    v_cmp_gt_u32 vcc, s23, v0
    s_and_saveexec_b64 s[60:61], vcc
    s_cbranch_execz k1_kvld
    """)
    for r in range(11):
        if r < 3: k(f"buffer_load_dwordx2 {vr(KR+2*r,2)}, v8, s[16:19], 0 offen offset:{1280*r}")
        elif r < 6: k(f"buffer_load_dwordx2 {vr(KR+2*r,2)}, v6, s[16:19], 0 offen offset:{1280*(r-3)}")
        elif r < 7: k(f"buffer_load_dwordx2 {vr(KR+2*r,2)}, v6, s[16:19], 0 offen offset:3840")
        else: k(f"buffer_load_dwordx2 {vr(KR+2*r,2)}, v9, s[16:19], 0 offen offset:{1280*(r-7)}")
    k(f"v_lshlrev_b32 v{T}, 2, v7")
    k(f"buffer_load_dwordx4 {vr(SKR,4)}, v{T}, s[44:47], 0 offen")
    k(f"buffer_load_dwordx4 {vr(SKR+4,4)}, v{T}, s[44:47], 0 offen offset:16")
    for r in range(8):
        if r < 4: k(f"buffer_load_dwordx2 {vr(VR_+2*r,2)}, v6, s[40:43], 0 offen offset:{1280*r}")
        else: k(f"buffer_load_dwordx2 {vr(VR_+2*r,2)}, v9, s[40:43], 0 offen offset:{1280*(r-4)}")
    k.lab("k1_kvld")
    k("s_mov_b64 exec, -1")
    NTL = 0
    k("buffer_load_dword v251, v250, s[28:31], s57 offen sc1")
    if int(os.environ.get("FLWARM", 1)):
        k("v_and_b32 v249, 31, v1")
        k("v_lshlrev_b32 v249, 2, v249")
        k("buffer_load_dword v249, v249, s[28:31], s57 offen offset:256 sc1")
    NTL += 1 + int(os.environ.get("FLWARM", 1))
    if int(os.environ.get("SELFPF", 2)):
        NSP = int(os.environ.get("SELFPF", 2))
        k("s_getpc_b64 s[62:63]")
        k("s_lshl_b32 s64, s20, 10")
        for i in range(NSP):
            k(f"s_add_u32 s65, s64, {4096*i}")
            k("v_lshlrev_b32 v247, 4, v1")
            k("v_add_u32 v247, s65, v247")
            k(f"global_load_dwordx4 v[{240+4*(i%1)}:{243+4*(i%1)}], v247, s[62:63]")
        NTL += NSP
    if int(os.environ.get("KVTLB", 0)):
        NTL += 1
        k(f"""
        s_mul_i32 s36, s55, {80*L.KVR_CH}
        v_and_b32 v252, 15, v1
        v_mul_u32_u24 v252, {L.KVR_CH*5}, v252
        v_lshrrev_b32 v253, 4, v1
        v_cmp_eq_u32 vcc, 1, v253
        v_and_b32 v254, 15, v1
        v_mul_u32_u24 v254, 0x60000, v254
        v_add_u32 v254, {L.W1P}, v254
        v_add_u32 v252, s36, v252
        v_cndmask_b32 v252, v252, v254, vcc
        buffer_load_dword v253, v252, s[28:31], 0 offen
        """)
    lnc = k.newlab("nc")
    k.srd(24, 4, 640 * 4096)
    k(f"""
    s_cmp_lt_u32 s56, 12
    s_cbranch_scc1 {lnc}
    s_mul_i32 s58, s55, 20
    s_add_u32 s58, s58, s56
    s_sub_u32 s58, s58, 12
    s_lshl_b32 s21, s58, 3
    s_add_u32 s22, s6, s21
    s_addc_u32 s23, s7, 0
    s_load_dwordx2 s[32:33], s[22:23], 0
    s_lshl_b32 s21, s58, 2
    s_add_u32 s21, s21, s20                 ; ch
    s_mul_i32 s34, s20, {WREG}
    v_lshlrev_b32 v3, 4, v1                 ; lane*16
    s_lshl_b32 s35, s21, 12                 ; ch*4096
    s_add_u32 s36, s34, 256
    s_mov_b32 m0, s36
    s_nop 0
    """)
    for i in range(4):
        k(f"buffer_load_dwordx4 v3, s[24:27], s35 offen offset:{1024*i} lds")
    k.lab(lnc)
    k(f"""
    s_mov_b64 exec, s[60:61]
    s_movk_i32 s23, 160
    v_cmp_gt_u32 vcc, s23, v0
    s_and_b64 exec, exec, vcc
    s_cbranch_execz k1_kvskip
    """)
    k(f"""
    v_sub_u32 v{T}, 7, v4
    v_and_b32 v{T+1}, 7, v5
    v_xor_b32 v{T}, v{T}, v{T+1}
    v_lshlrev_b32 v{T}, 4, v{T}
    v_lshl_add_u32 v{T}, v5, 9, v{T}
    v_add_u32 v{T}, {KVL}, v{T}
    s_cmp_lt_u32 s56, 12
    s_cbranch_scc1 k1_w8
    s_waitcnt vmcnt({12+NTL})
    s_branch k1_w9
    """)
    k.lab("k1_w8")
    k(f"s_waitcnt vmcnt({8+NTL})")
    k.lab("k1_w9")
    for c in range(4):
        k.unpack(SKF + c, SKF + 4 + c, SKR + 2*c)
        k.unpack(SKF + 8 + c, SKF + 12 + c, SKR + 2*c + 1)
    for r in range(11):
        k.unpack(KF + 4*r, KF + 4*r + 1, KR + 2*r)
        k.unpack(KF + 4*r + 2, KF + 4*r + 3, KR + 2*r + 1)
    for p in range(2):
        for s_ in range(8):
            A = KVF + 4*s_ + 2*p
            k(f"v_pk_mul_f32 {vr(A,2)}, {vr(KF+4*s_+2*p,2)}, {vr(SKF+12+2*p,2)}")
        for j in (2, 1, 0):
            for s_ in range(8):
                A = KVF + 4*s_ + 2*p
                k(f"v_pk_fma_f32 {vr(A,2)}, {vr(KF+4*(s_+3-j)+2*p,2)}, {vr(SKF+4*j+2*p,2)}, {vr(A,2)}")
    for s_ in range(8):
        for p in range(2):
            A = KVF + 4*s_ + 2*p
            k.round2(A, A + 1, T + 4 + (2*s_ + p) % 8)
    k("""
    s_cmp_lt_u32 s56, 12
    s_cbranch_scc1 k1_w0
    s_waitcnt vmcnt(%d)
    s_branch k1_w1
    """ % (4 + NTL))
    k.lab("k1_w0")
    k(f"s_waitcnt vmcnt({NTL})")
    k.lab("k1_w1")
    if os.environ.get("PROFKV"): k("s_memrealtime s[64:65]")
    k.stamp(1)
    for s_ in range(8):
        for p in range(2):
            t_ = KF + 4*s_ + 2*p
            k.unpack(t_, t_ + 1, VR_ + 2*s_ + p)
    for s_ in range(8):
        for p in range(2):
            k(f"v_pk_mul_f32 {vr(KVF+4*s_+2*p,2)}, {vr(KVF+4*s_+2*p,2)}, {vr(KF+4*s_+2*p,2)}")
    O2 = KR
    for c in range(4):
        for d in range(4):
            k(f"v_cvt_pk_bf16_f32 v{O2+4*c+d}, v{KVF+4*(7-2*d)+c}, v{KVF+4*(6-2*d)+c}")
    for c in range(4):
        k(f"ds_write_b128 v{T}, {vr(O2+4*c,4)} offset:{128*c}")
    k.lab("k1_kvskip")
    k(f"""
    s_mov_b64 exec, -1
    v_lshrrev_b32 v{T+1}, 3, v0             ; channel (0..31)
    v_and_b32 v{T+2}, 7, v0                 ; unit
    v_lshrrev_b32 v{T+3}, 2, v{T+1}
    v_and_b32 v{T+3}, 7, v{T+3}
    v_xor_b32 v{T+3}, v{T+3}, v{T+2}
    v_lshlrev_b32 v{T+3}, 4, v{T+3}
    v_lshl_add_u32 v{T+3}, v{T+1}, 7, v{T+3}
    v_add_u32 v{T+3}, {KVL}, v{T+3}
    v_mul_u32_u24 v{T+1}, {L.KVR_CH}, v{T+1}
    v_lshl_add_u32 v{T+4}, v{T+2}, 4, v{T+1}
    s_mul_i32 s36, s55, {80*L.KVR_CH}
    s_add_u32 s36, s36, {L.KVR}
    s_lshl_b32 s37, s56, 7
    s_sub_u32 s38, 3968, s37
    s_add_u32 s38, s38, s36                 ; + 3968 - 128*mi
    s_waitcnt lgkmcnt(0)
    s_barrier
    """)
    k.stamp(2)
    for i in range(3):
        k(f"ds_read_b128 {vr(32+4*i,4)}, v{T+3} offset:{4096*i}")
    for i in range(3):
        if i == 2: k("s_movk_i32 s23, 128\nv_cmp_gt_u32 vcc, s23, v0\ns_and_saveexec_b64 s[60:61], vcc\ns_cbranch_execz k1_st2skip")
        k(f"s_waitcnt lgkmcnt({2-i})")
        k(f"buffer_store_dwordx4 {vr(32+4*i,4)}, v{T+4}, s[28:31], s38 offen sc1")
        k(f"s_add_u32 s38, s38, {32*L.KVR_CH}")
    k.lab("k1_st2skip")
    k("s_mov_b64 exec, -1")
    zl = k.newlab()
    k(f"""
    s_cmp_lg_u32 s56, 0
    s_cbranch_scc1 {zl}
    v_mov_b32 v44, 0
    v_mov_b32 v45, 0
    v_mov_b32 v46, 0
    v_mov_b32 v47, 0
    s_add_u32 s36, s36, 4096
    """)
    for i in range(3):
        if i == 2: k(f"s_movk_i32 s23, 128\nv_cmp_gt_u32 vcc, s23, v0\ns_and_b64 exec, exec, vcc\ns_cbranch_execz {zl}")
        k(f"buffer_store_dwordx4 v[44:47], v{T+4}, s[28:31], s36 offen sc1")
        k(f"s_add_u32 s36, s36, {32*L.KVR_CH}")
    k.lab(zl)
    lfl = k.newlab("kf")
    k(f"""
    s_mov_b64 exec, -1
    s_waitcnt vmcnt(0)
    v_add_u32 v251, 1, v251
    """)
    k.stamp(3)
    if os.environ.get("PROFKV"): k("s_memrealtime s[66:67]")
    k(f"""
    s_barrier
    s_cmp_lg_u32 s20, 0
    s_cbranch_scc1 {lfl}
    s_lshl_b32 s23, s56, 2
    s_add_u32 s23, s23, s57
    s_mov_b64 exec, 1
    buffer_store_dword v251, v250, s[28:31], s23 offen offset:256 NOSC
    buffer_store_dword v251, v250, s[28:31], s23 offen offset:128 sc1
    s_mov_b64 exec, -1
    """)
    k.lab(lfl)
    k(f"""
    s_lshl_b32 s54, s56, 3
    s_add_u32 s54, s54, s55
    """)
    if os.environ.get("PROFKV"):
        lq = k.newlab("pq")
        k(f"""
        s_cmp_ge_u32 s56, 12
        s_cbranch_scc1 {lq}
        s_cmp_lg_u32 s20, 0
        s_cbranch_scc1 {lq}
        s_waitcnt lgkmcnt(0)
        s_lshl_b32 s23, s54, 4
        s_add_u32 s23, s23, {48 << 20}
        v_mov_b32 v12, s62
        v_mov_b32 v13, s64
        v_mov_b32 v14, s66
        v_mov_b32 v15, s66
        s_mov_b64 exec, 1
        buffer_store_dwordx4 v[12:15], v250, s[28:31], s23 offen
        s_mov_b64 exec, -1
        """)
        k.lab(lq)
    k(f"""
    s_cmp_lt_u32 s56, 12
    s_cbranch_scc1 k1_side2
    """)
    k("s_mov_b32 s2, s58")
    if os.environ.get("PRIO", "1") == "1": k("s_setprio 3")
    k.stamp(5)
    k(f"""
    s_lshl_b32 s21, s2, 2
    s_add_u32 s21, s21, s20                 ; ch
    s_mul_i32 s34, s20, {WREG}
    v_lshlrev_b32 v3, 4, v1                 ; lane*16
    s_mul_i32 s37, s21, {L.KVR_CH}
    s_add_u32 s37, s37, {L.KVR}
    v_lshrrev_b32 v4, 3, v0
    v_mul_u32_u24 v4, 20480, v4
    s_lshr_b32 s38, s2, 1
    s_and_b32 s38, s38, 7
    v_and_b32 v5, 7, v0
    v_xor_b32 v5, s38, v5
    v_lshl_add_u32 v4, v5, 4, v4            ; (t>>3)*20480 + ((t&7)^sw)*16
    s_lshl_b32 s38, s2, 7                   ; cg*128
    """)
    for i in range(5):
        k(f"""
        v_add_u32 v20, {64*i}, v1
        v_mul_u32_u24 v21, 3856, v20
        v_lshrrev_b32 v21, 16, v21             ; n = q/17
        v_mul_u32_u24 v22, 17, v21
        v_sub_u32 v22, v20, v22                ; e
        v_lshlrev_b32 v22, 4, v22
        v_lshlrev_b32 v21, 8, v21
        v_sub_u32 v22, v22, v21
        v_add_u32 v{23+i}, 3840, v22
        """)
    k(f"""
    v_lshl_add_u32 v5, v1, 2, s34
    v_mov_b32 v6, 0
    ds_write_b32 v5, v6
    v_and_b32 v7, 15, v1                    ; n16
    v_bfe_u32 v8, v1, 4, 1                  ; ph
    v_lshrrev_b32 v9, 5, v1                 ; g
    v_mul_u32_u24 v10, 272, v7
    v_lshl_add_u32 v10, v9, 4, v10
    v_add_u32 v10, s34, v10
    v_add_u32 v10, {4352+4}, v10
    v_lshlrev_b32 v11, 2, v8
    v_sub_u32 v10, v10, v11
    v_and_b32 v12, 7, v1
    v_mul_u32_u24 v13, 272, v12
    v_lshl_add_u32 v13, v9, 4, v13
    v_add_u32 v13, s34, v13
    v_add_u32 v13, {4352+4}, v13
    v_sub_u32 v13, v13, v11                 ; vBP
    v_bfe_u32 v11, v1, 3, 1                 ; a'
    v_lshlrev_b32 v11, 4, v11
    v_sub_u32 v11, 16, v11
    v_and_b32 v14, 31, v1
    v_lshlrev_b32 v14, 3, v14
    v_lshl_add_u32 v14, v9, 4, v14
    v_add_u32 v14, s34, v14
    v_add_u32 v14, 8, v14                   ; vA
    v_cmp_ne_u32 vcc, 0, v12
    v_mov_b32 v16, 0
    s_nop 1
    v_cndmask_b32 v15, v16, -1, vcc
    """)
    k("s_waitcnt lgkmcnt(0)")
    AM_ = 176
    for ks in range(8):
        k(f"ds_read_b64 {vr(AM_+4*ks,2)}, v14 offset:{256*7+32*ks}")
        k(f"ds_read_b64 {vr(AM_+4*ks+2,2)}, v14 offset:{256*7+32*ks+8}")
    lw = k.newlab("kw"); lp = k.newlab("kp"); ld = k.newlab("kd"); lb = k.newlab("kb")
    k(f"""
    s_cmp_lg_u32 s20, 0
    s_cbranch_scc1 {lw}
    v_and_b32 v40, 31, v1
    v_lshlrev_b32 v40, 2, v40
    s_mov_b32 s23, 200000
    """)
    lq4 = k.newlab("kq")
    k("s_mov_b64 s[60:61], 0")
    k.lab(lp)
    k(f"""
    buffer_load_dword v41, v40, s[28:31], s57 offen offset:256 sc1
    s_waitcnt vmcnt(0)
    v_cmp_eq_u32 vcc, v251, v41
    s_sub_u32 s23, s23, 1
    s_or_b64 s[60:61], s[60:61], vcc
    s_cmp_eq_u64 s[60:61], -1
    s_cbranch_scc1 {ld}
    s_and_b32 s21, s23, 3
    s_cmp_lg_u32 s21, 0
    s_cbranch_scc1 {lq4}
    buffer_load_dword v41, v40, s[28:31], s57 offen offset:128 sc1
    s_waitcnt vmcnt(0)
    v_cmp_eq_u32 vcc, v251, v41
    s_nop 1
    s_or_b64 s[60:61], s[60:61], vcc
    s_cmp_eq_u64 s[60:61], -1
    s_cbranch_scc1 {ld}
    """)
    k.lab(lq4)
    k(f"""
    s_sleep {os.environ.get("KSLEEP", 2)}
    s_cmp_lg_u32 s23, 0
    s_cbranch_scc1 {lp}
    """)
    k.lab(ld)
    if os.environ.get("PROFKV"):
        k(f"""
        s_memrealtime s[68:69]
        s_waitcnt lgkmcnt(0)
        s_lshl_b32 s23, s56, 3
        s_add_u32 s23, s23, s55
        s_lshl_b32 s23, s23, 4
        s_add_u32 s23, s23, {48 << 20}
        v_mov_b32 v12, s62
        v_mov_b32 v13, s64
        v_mov_b32 v14, s66
        v_mov_b32 v15, s68
        s_mov_b64 exec, 1
        buffer_store_dwordx4 v[12:15], v250, s[28:31], s23 offen
        s_mov_b64 exec, -1
        """)
    k(f"""
    s_cmp_lg_u32 s56, 12
    s_cbranch_scc1 {lw}
    s_mov_b64 exec, 1
    buffer_store_dword v251, v250, s[28:31], s57 offen sc1
    s_mov_b64 exec, -1
    """)
    k.lab(lw)
    k.stamp(4)
    k("s_barrier")
    for i in range(5):
        k(f"s_add_u32 s36, s34, {4352 + 1024*i}")
        k("s_mov_b32 m0, s36")
        if i == 4: k("s_mov_b64 exec, 0xffff")
        else: k("s_nop 0")
        k(f"buffer_load_dwordx4 v{23+i}, s[28:31], s37 offen sc1 lds")
    k("s_mov_b64 exec, -1")
    k("s_waitcnt vmcnt(0) lgkmcnt(0)")
    B0, B1, BP, AX, AY, AP_, AM, APk = 32, 64, 96, 128, 144, 160, 176, 208
    k.stamp(6)
    def aread(reg, off):
        return f"ds_read_b64 {vr(reg,2)}, v14 offset:{off}\n    ds_read_b64 {vr(reg+2,2)}, v14 offset:{off+8}"
    TB = 16
    for ks in range(8):
        k(f"ds_read2_b32 {vr(B1+4*ks,2)}, v10 offset0:{8*ks} offset1:{8*ks+1}")
        k(f"ds_read2_b32 {vr(B1+4*ks+2,2)}, v10 offset0:{8*ks+2} offset1:{8*ks+3}")
    prd = []
    for ks in range(8):
        prd.append(f"ds_read_b32 v{TB+ks}, v10 offset:{32*ks+16}")
    for ks in range(8):
        prd.append(f"ds_read2_b32 {vr(BP+4*ks,2)}, v13 offset0:{8*ks} offset1:{8*ks+1}")
        prd.append(f"ds_read2_b32 {vr(BP+4*ks+2,2)}, v13 offset0:{8*ks+2} offset1:{8*ks+3}")
        prd.append(f"ds_read_b32 v{TB+8+ks}, v13 offset:{32*ks+16}")
    al0 = []; alp = []
    for ks in range(8):
        for d in range(4):
            hi = B1 + 4*ks + d + 1 if d < 3 else TB + ks
            al0.append(f"v_alignbit_b32 v{B0+4*ks+d}, v{hi}, v{B1+4*ks+d}, 16")
            hi = BP + 4*ks + d + 1 if d < 3 else TB + 8 + ks
            alp.append(f"v_alignbit_b32 v{BP+4*ks+d}, v{hi}, v{BP+4*ks+d}, v11")
    DPP = "row_mask:0xf bank_mask:0xf bound_ctrl:0"
    def mfma(acc, a, b, first):
        c = "0" if first else vr(acc, 16)
        k(f"v_mfma_f32_32x32x16_bf16 {vr(acc,16)}, {vr(a,4)}, {vr(b,4)}, {c}")
    def phase(acc, Areg, Breg, first, reads, late, pad=True, rg=8):
        reads = list(reads); late = list(late)
        for ks in range(8):
            mfma(acc, Areg + 4*ks, Breg + 4*ks, first and ks == 0)
            n = (len(reads) + (rg - 1 - ks)) // (rg - ks) if ks < rg else 0
            for s in reads[:n]:
                k(s)
            reads = reads[n:]
            if ks < 2:
                if pad and late and n < 5:
                    k(f"s_nop {4 - n}")
            else:
                n = (len(late) + (7 - ks)) // (8 - ks)
                for s in late[:n]:
                    k(s)
                late = late[n:]
        assert not late and not reads
    def shift_ops(acc, masked):
        if masked:
            return [f"v_and_b32_dpp v{acc+r}, v{acc+r}, v15 row_shr:1 {DPP}" for r in range(16)]
        return [f"v_mov_b32_dpp v{acc+r}, v{acc+r} row_shr:1 {DPP}" for r in range(16)]
    def areads(reg, off):
        o = []
        for ks in range(8):
            o += aread(reg + 4*ks, off + 32*ks).split("\n")
        return o
    epi_a = f"""v_mul_u32_u24 v16, 272, v7
    v_add_u32 v16, s34, v16
    v_add_u32 v16, {4352 + 36}, v16
    v_lshlrev_b32 v17, 2, v8
    v_sub_u32 v16, v16, v17
    v_lshlrev_b32 v17, 5, v9
    v_sub_u32 v16, v16, v17""".split("\n")
    epi_a += [f"ds_read_b32 v{64+r}, v16 offset:{216 - 64*(r>>2) - 8*(r&3)}" for r in range(16)]
    epi_a += f"""s_lshr_b32 s44, s20, 1
    s_and_b32 s45, s20, 1
    s_cmp_eq_u32 s44, 1
    s_cselect_b32 s44, s33, s32
    s_lshl_b32 s46, s44, 16
    s_and_b32 s47, s44, 0xffff0000
    s_cmp_eq_u32 s45, 1
    s_cselect_b32 s44, s47, s46
    v_mul_u32_u24 v18, 264, v7
    v_lshl_add_u32 v18, v9, 5, v18
    v_lshl_add_u32 v18, v8, 2, v18
    v_add_u32 v18, s34, v18
    v_mul_u32_u24 v17, 264, v2
    v_lshl_add_u32 v17, v1, 2, v17""".split("\n")
    if int(os.environ.get("CODEPF2", 0)):
        epi_a.append("s_getpc_b64 s[50:51]\nK1PC2:\ns_add_u32 s50, s50, k2_kernel-K1PC2\ns_addc_u32 s51, s51, 0")
        epi_a += f"""s_sub_u32 s52, s56, 12
    s_lshl_b32 s52, s52, 2
    s_add_u32 s52, s52, s20
    s_lshl_b32 s52, s52, 10
    s_min_u32 s52, s52, (CODE_END-k2_kernel-1020)&0xfffffff0
    v_add_u32 v19, s52, v3
    global_load_dwordx4 v[28:31], v19, s[50:51]""".split("\n")
    tlb_ops = []
    if int(os.environ.get("YTLB", 1)):
        tlb_ops = [f"v_and_b32 v19, 31, v1", f"s_mov_b32 s50, {L.GS // 4 // 16 * 16}", "v_mul_lo_u32 v19, v19, s50", f"s_mov_b32 s50, {L.GRP}",
                   "buffer_load_dword v28, v19, s[28:31], s50 offen"]
    epi_b = []
    for r in range(16):
        epi_b.append(f"v_and_b32 v{80+r}, 0xffff0000, v{64+r}")
        epi_b.append(f"v_lshlrev_b32 v{64+r}, 16, v{64+r}")
    for q in range(7, -1, -1):
        first = (q == 7)
        k("s_waitcnt lgkmcnt(0)")
        apl = areads(APk, 256*(q+8))
        if first:
            for ks in range(8):
                mfma(AY, AM + 4*ks, B1 + 4*ks, ks == 0)
                if ks == 0:
                    for x in prd[:16]: k(x)
                elif ks == 1:
                    for x in prd[16:]: k(x)
                elif ks == 2:
                    k("s_waitcnt lgkmcnt(15)")
                    k("s_waitcnt lgkmcnt(0)")
                    for x in al0[:4]: k(x)
                else:
                    for x in al0[4 + (ks-3)*6: 4 + (ks-2)*6]: k(x)
            k("s_nop 0")
            phase(AX, AM, B0, True, apl, alp[:16] + shift_ops(AY, False) + alp[16:] + ["s_nop 0"])
        else:
            phase(AY, AM, B1, False, apl, shift_ops(AP_, True))
            if q == 5: phase(AX, AM, B0, False, tlb_ops, shift_ops(AY, False))
            elif q > 0: phase(AX, AM, B0, False, [], shift_ops(AY, False))
            else: phase(AX, AM, B0, False, [], epi_a, pad=False)
        k("s_waitcnt lgkmcnt(0)")
        aml = areads(AM, 256*(q-1)) if q > 0 else []
        phase(AP_, APk, BP, first, aml, shift_ops(AX, False) if q > 0 else epi_b, rg=5, pad=(q > 0))
    k.stamp(7)
    k("s_mov_b32 s48, 0x05040100")
    k("s_mov_b32 s49, 0x07060302")
    k("s_nop 11")
    for r in range(16):
        k(f"v_add_f32_dpp v{AX+r}, v{AP_+r}, v{AX+r} row_shr:8 {DPP}")
    k("""
    s_mov_b32 s42, 0xff00ff00
    s_mov_b32 s43, 0xff00ff00
    s_mov_b64 exec, s[42:43]
    """)
    for r in range(16):
        k(f"v_add_f32 v{AY+r}, v{AP_+r}, v{AY+r}")
    k("s_mov_b64 exec, -1")
    for r in range(16):
        k(f"v_fma_f32 v{AX+r}, v{80+r}, s44, v{AX+r}")
        k(f"v_fma_f32 v{AY+r}, v{64+r}, s44, v{AY+r}")
    for r in range(16):
        k(f"v_cvt_pk_bf16_f32 v{32+r}, v{AX+r}, v{AY+r}")
    for r in range(16):
        k(f"ds_write_b32 v18, v{32+r} offset:{64*(r>>2)+8*(r&3)}")
    k(f"""
    s_waitcnt lgkmcnt(0)
    s_barrier
    """)
    Y = 48
    for e in range(4):
        for c in range(4):
            k(f"ds_read_b32 v{Y+4*e+c}, v17 offset:{c*WREG+1056*e}")
    k("s_waitcnt lgkmcnt(0)")
    O = 96
    for e in range(4):
        for hh in range(2):
            a, b = Y + 4*e + 2*hh, Y + 4*e + 2*hh + 1
            k(f"v_perm_b32 v{O+4*e+hh}, v{b}, v{a}, s48")
            k(f"v_perm_b32 v{O+4*e+2+hh}, v{b}, v{a}, s49")
    k(f"""
    v_lshrrev_b32 v20, 3, v0             ; tt
    v_lshrrev_b32 v21, 4, v20            ; tt>>4
    v_and_b32 v22, 15, v20               ; tt&15
    v_mul_u32_u24 v23, 20480, v20
    v_sub_u32 v23, v4, v23
    s_mov_b32 s40, {L.GS}
    v_mul_lo_u32 v24, v21, s40
    v_add_u32 v24, v24, v23
    v_add_u32 v25, 1, v22
    v_mul_u32_u24 v25, 20480, v25
    v_add_u32 v25, v25, v24
    v_cmp_eq_u32 s[42:43], 15, v22
    v_cmp_eq_u32 s[44:45], 0, v22
    v_add_u32 v26, {2*L.GS}, v24
    v_add_u32 v27, {17*20480}, v24
    v_cndmask_b32 v26, v27, v26, s[42:43]
    v_cmp_ne_u32 vcc, 0, v20
    s_and_b64 s[46:47], s[44:45], vcc
    s_or_b64 s[46:47], s[46:47], s[42:43]
    v_cmp_ne_u32 vcc, 31, v20
    s_and_b64 s[52:53], s[42:43], vcc
    s_or_b64 s[52:53], s[52:53], s[44:45]
    s_or_b64 s[44:45], s[44:45], s[42:43]    ; e = 1, 2
    s_add_u32 s39, s38, {L.GRP}
    """)
    for e in range(4):
        k(f"buffer_store_dwordx4 {vr(O+4*e,4)}, v25, s[28:31], s39 offen" + (" NOSC" if os.environ.get("YPLAIN") else ""))
        hl_ = k.newlab("halo")
        k(f"s_mov_b64 exec, {['s[46:47]', 's[44:45]', 's[44:45]', 's[52:53]'][e]}")
        k(f"s_cbranch_execz {hl_}")
        k(f"s_sub_u32 s41, s39, {L.GS}")
        k(f"buffer_store_dwordx4 {vr(O+4*e,4)}, v26, s[28:31], s41 offen" + (" NOSC" if os.environ.get("YPLAIN") else ""))
        k.lab(hl_)
        k("s_mov_b64 exec, -1")
        k(f"s_add_u32 s39, s39, {2*L.GS}")
    k.stamp(8)
    k("s_waitcnt vmcnt(0)")
    k.stamp_end(9)
    k("s_endpgm")

    k.lab("k1_side")
    k(f"""
    s_cmp_ge_u32 s54, {NSIDE}
    s_cbranch_scc1 {end}
    """)
    def side_wait(cnt):
        sp = k.newlab("sw"); sd = k.newlab("sw")
        k(f"""
        s_cmp_lg_u32 s20, 0
        s_cbranch_scc1 {sd}
        s_and_b32 s55, s2, 7
        s_lshl_b32 s57, s55, 9
        s_add_u32 s57, s57, {L.KFL}
        v_mov_b32 v250, 0
        v_and_b32 v248, 31, v0
        v_lshlrev_b32 v248, 2, v248
        s_waitcnt lgkmcnt(0)
        """)
        k.srd(28, 10, 0x10000000)
        k(f"""
        buffer_load_dword v251, v250, s[28:31], s57 offen sc1
        s_mov_b32 s23, {cnt}
        s_waitcnt vmcnt(0)
        v_add_u32 v251, 1, v251
        """)
        k.lab(sp)
        k(f"""
        buffer_load_dword v249, v248, s[28:31], s57 offen offset:256 sc1
        s_waitcnt vmcnt(0)
        v_cmp_eq_u32 vcc, v251, v249
        s_sub_u32 s23, s23, 1
        s_cmp_eq_u64 vcc, -1
        s_cbranch_scc1 {sd}
        s_sleep {os.environ.get('SSLEEP', 16)}
        s_cmp_lg_u32 s23, 0
        s_cbranch_scc1 {sp}
        """)
        k.lab(sd)
        k("s_barrier")
    if int(os.environ.get("MODPF", 1)):
        lmp = k.newlab("mp")
        k(f"""
        s_cmp_lt_u32 s54, {96+NPF}
        s_cbranch_scc1 {lmp}
        s_getpc_b64 s[62:63]
        """)
        k.lab("k1_pcm")
        k(f"""
        s_add_u32 s62, s62, k1_modf-k1_pcm
        s_addc_u32 s63, s63, 0
        s_lshl_b32 s64, s20, 10
        v_lshlrev_b32 v247, 4, v1
        v_add_u32 v247, s64, v247
        global_load_dwordx4 v[240:243], v247, s[62:63]
        """)
        k.lab(lmp)
    if int(os.environ.get("SIDEWAIT", 1)):
        lsx = k.newlab("sx")
        k(f"""
        s_cmp_lt_u32 s54, {96+NPF+int(os.environ.get("NOWAITN", 0))}
        s_cbranch_scc1 {lsx}
        s_mov_b32 s61, s54
        """)
        side_wait(os.environ.get("SWN", 1))
        k("s_mov_b32 s54, s61")
        k.lab(lsx)
    k(f"""
    s_cmp_lt_u32 s54, {96+NPF}
    s_cbranch_scc1 k1_pf
    """)
    if MODFIRST:
        k(f"s_sub_u32 s54, s54, {96+NPF-36}")
        k("s_branch k1_pack0")
        k.lab("k1_side2")
        k(f"""
        s_cmp_lt_u32 s54, {NMOD}
        s_cbranch_scc1 k1_mod0
        s_sub_u32 s54, s54, {NMOD}
        """)
        k.lab("k1_pack0")
        emit_pack(k, 0, "s54", None)
        k.lab("k1_mod0")
    else:
        k("s_branch k1_mod0")
        k.lab("k1_side2")
        emit_pack(k, 0, "s54", None)
        k.lab("k1_mod0")
        k(f"s_sub_u32 s54, s54, {96+NPF}")
    if os.environ.get("PROFMOD"): k("s_memrealtime s[62:63]")
    k("s_waitcnt lgkmcnt(0)")
    k.srd(28, 10, 0x10000000)
    k.lab(modl)
    k("""
    s_load_dwordx4 s[12:15], s[0:1], 88
    s_mov_b32 s32, s54
    v_and_b32 v3, 7, v0              ; cc
    v_lshrrev_b32 v4, 3, v0          ; rsub
    v_lshlrev_b32 v5, 1, v4          ; c offset
    v_mul_u32_u24 v6, 7680, v4
    s_lshl_b32 s36, s32, 7
    v_lshl_add_u32 v7, v3, 4, s36
    v_add_u32 v6, v6, v7
    s_waitcnt lgkmcnt(0)
    """)
    k.srd(16, 12, 1280); k.srd(20, 14, 640 * 7680)
    C, W, A, T = 10, 32, 112, 120
    for it in range(20):
        k(f"buffer_load_ushort v{C+it}, v5, s[16:19], 0 offen offset:{64*it}")
    for it in range(20):
        k(f"s_mov_b32 s37, {it*32*7680}")
        k(f"buffer_load_dwordx4 {vr(W+4*it,4)}, v6, s[20:23], s37 offen")
    k("s_waitcnt vmcnt(20)")
    if os.environ.get("PROFMOD"): k("s_memrealtime s[64:65]")
    for it in range(20):
        k(f"v_lshlrev_b32 v{C+it}, 16, v{C+it}")
        k(f"v_mul_f32 v{T+it}, 0xbfb8aa3b, v{C+it}")
        k(f"v_exp_f32 v{T+it}, v{T+it}")
    for it in range(20):
        k(f"v_add_f32 v{T+it}, 1.0, v{T+it}")
        k(f"v_rcp_f32 v{T+it}, v{T+it}")
    k("s_nop 0")
    for it in range(20):
        k(f"v_mul_f32 v{C+it}, v{C+it}, v{T+it}")
    for it in range(0, 20, 2):
        k.round2(C + it, C + it + 1, T)
    for j in range(8):
        k(f"v_mov_b32 v{A+j}, 0")
    for it in range(20):
        k(f"s_waitcnt vmcnt({19-it})")
        for d in range(4):
            k.unpack(T + 2*d, T + 2*d + 1, W + 4*it + d)
        ce = C + (it & ~1)
        sel = "op_sel:[0,0,0] op_sel_hi:[1,0,1]" if it % 2 == 0 else "op_sel:[0,1,0] op_sel_hi:[1,1,1]"
        for d in range(4):
            k(f"v_pk_fma_f32 {vr(A+2*d,2)}, {vr(T+2*d,2)}, {vr(ce,2)}, {vr(A+2*d,2)} {sel}")
    if os.environ.get("PROFMOD"): k("s_memrealtime s[66:67]")
    k(f"""
    v_lshlrev_b32 v7, 5, v0
    ds_write_b128 v7, {vr(A,4)}
    ds_write_b128 v7, {vr(A+4,4)} offset:16
    s_waitcnt lgkmcnt(0)
    s_barrier
    v_cmp_gt_u32 vcc, 64, v0
    s_and_saveexec_b64 s[42:43], vcc
    s_cbranch_execz {end}
    v_lshlrev_b32 v7, 2, v0
    """)
    for r in range(32):
        k(f"ds_read_b32 v{W+r}, v7 offset:{256*r}")
    k("s_waitcnt lgkmcnt(0)")
    for st in (16, 8, 4, 2, 1):
        for r in range(st):
            k(f"v_add_f32 v{W+r}, v{W+r}, v{W+r+st}")
    a_ = W
    k(f"""
    s_movk_i32 s22, 640
    v_cvt_pk_bf16_f32 v{a_}, v{a_}, v{a_}
    v_lshlrev_b32 v{a_}, 16, v{a_}
    v_add_f32 v{a_+1}, 1.0, v{a_}
    v_cvt_pk_bf16_f32 v{a_+1}, v{a_+1}, v{a_+1}
    v_lshlrev_b32 v{a_+1}, 16, v{a_+1}
    s_lshl_b32 s33, s32, 6
    v_add_u32 v{a_+2}, s33, v0
    v_subrev_u32 v{a_+3}, 640, v{a_+2}
    v_cmp_gt_u32 vcc, 640, v{a_+3}
    v_subrev_u32 v{a_+3}, 2560, v{a_+2}
    v_cmp_gt_u32 s[40:41], s22, v{a_+3}
    s_or_b64 vcc, vcc, s[40:41]
    v_cndmask_b32 v{a_}, v{a_}, v{a_+1}, vcc
    s_lshl_b32 s21, s32, 8
    s_add_u32 s21, s21, {L.MODF}
    buffer_store_dword v{a_}, v7, s[28:31], s21 offen
    """)
    if os.environ.get("PROFMOD"):
        k(f"""
        s_waitcnt vmcnt(0)
        s_memrealtime s[68:69]
        s_waitcnt lgkmcnt(0)
        s_lshl_b32 s23, s32, 4
        s_add_u32 s23, s23, {48 << 20}
        v_mov_b32 v12, s62
        v_mov_b32 v13, s64
        v_mov_b32 v14, s66
        v_mov_b32 v15, s68
        v_mov_b32 v16, 0
        s_mov_b64 exec, 1
        buffer_store_dwordx4 v[12:15], v16, s[28:31], s23 offen
        """)
    k.lab(end)
    k("s_endpgm")
    k.lab("k1_pf")
    WPX = NPF // 8 * 4
    k(f"""
    s_waitcnt lgkmcnt(0)
    s_load_dwordx2 s[4:5], s[0:1], 0
    v_lshlrev_b32 v3, 7, v1          ; lane*128
    v_lshlrev_b32 v1, 4, v1
    s_sub_u32 s24, s54, 96
    s_lshr_b32 s24, s24, 3
    s_lshl_b32 s24, s24, 2
    s_add_u32 s24, s24, s20
    s_and_b32 s22, s2, 7
    s_mul_i32 s21, s24, {327680 // WPX}
    s_mul_i32 s23, s22, 327680
    s_add_u32 s21, s21, s23
    s_waitcnt lgkmcnt(0)
    """)
    k.srd(16, 4, SZ_SD); k.srd(28, 10, 0x10000000)
    zl2 = k.newlab("zf")
    k(f"""
    s_sub_u32 s36, s54, 96
    s_cmp_ge_u32 s36, 16
    s_cbranch_scc1 {zl2}
    s_lshl_b32 s36, s36, 12
    s_add_u32 s36, s36, {L.FLAGS}
    v_lshlrev_b32 v5, 4, v0
    v_mov_b32 v60, 0
    v_mov_b32 v61, 0
    v_mov_b32 v62, 0
    v_mov_b32 v63, 0
    buffer_store_dwordx4 v[60:63], v5, s[28:31], s36 offen
    """)
    k.lab(zl2)
    if int(os.environ.get("ZST", 1)):
        k(f"""
        s_sub_u32 s36, s54, 96
        s_lshr_b32 s36, s36, 3
        s_mul_i32 s36, s36, 5120
        s_and_b32 s37, s2, 7
        s_mul_i32 s37, s37, {L.GS}
        s_add_u32 s36, s36, s37
        s_add_u32 s36, s36, {L.GRP + L.G_ST1}
        v_lshlrev_b32 v5, 4, v0
        v_mov_b32 v60, 0
        v_mov_b32 v61, 0
        v_mov_b32 v62, 0
        v_mov_b32 v63, 0
        buffer_store_dwordx4 v[60:63], v5, s[28:31], s36 offen
        s_add_u32 s36, s36, 4096
        s_cmp_lg_u32 s20, 0
        s_cbranch_scc1 k1_zst
        buffer_store_dwordx4 v[60:63], v5, s[28:31], s36 offen
        """)
        k.lab("k1_zst")
        k(f"""
        s_and_b32 s37, s2, 7
        s_cmp_eq_u32 s37, 0
        s_cselect_b32 s38, {L.GRP}, 0
        s_cmp_eq_u32 s37, 7
        s_cselect_b32 s38, {L.GRP + 7*L.GS + 17*20480}, s38
        s_cmp_eq_u32 s38, 0
        s_cbranch_scc1 k1_zht
        s_sub_u32 s36, s54, 96
        s_lshr_b32 s36, s36, 3
        s_mul_i32 s36, s36, 5120
        s_add_u32 s36, s36, s38
        buffer_store_dwordx4 v[60:63], v5, s[28:31], s36 offen
        s_add_u32 s36, s36, 4096
        s_cmp_lg_u32 s20, 0
        s_cbranch_scc1 k1_zht
        buffer_store_dwordx4 v[60:63], v5, s[28:31], s36 offen
        """)
        k.lab("k1_zht")
    k("s_getpc_b64 s[40:41]")
    k.lab("k1_pcref")
    k(f"""
    s_sub_u32 s40, s40, k1_pcref-k1_kernel
    s_subb_u32 s41, s41, 0
    s_lshl_b32 s42, s24, 12
    """)
    for i in range(4):
        k(f"""
        s_add_u32 s43, s42, {1024*i}
        s_min_u32 s43, s43, (CODE_END-k1_kernel-1020)&0xfffffff0
        v_add_u32 v6, s43, v1
        global_load_dwordx4 {vr(64+4*i,4)}, v6, s[40:41]
        """)
    if int(os.environ.get("PFW2", 1)):
        k("s_mov_b32 s61, s21")
        k("s_mov_b32 s62, s24")
        k("s_waitcnt vmcnt(0)")
        side_wait(os.environ.get("SWN", 1))
        k("s_mov_b32 s21, s61")
        k("s_mov_b32 s24, s62")
        k.srd(28, 10, 0x10000000)
    if int(os.environ.get("CODEPF3", 0)):
        k("s_getpc_b64 s[40:41]")
        k.lab("k1_pcref3")
        k(f"""
        s_add_u32 s40, s40, k2_kernel-k1_pcref3
        s_addc_u32 s41, s41, 0
        s_lshl_b32 s42, s24, 11
        """)
        for i in range(2):
            k(f"""
            s_add_u32 s43, s42, {1024*i}
            s_min_u32 s43, s43, (CODE_END-k2_kernel-1020)&0xfffffff0
            v_add_u32 v6, s43, v1
            global_load_dwordx4 {vr(64+4*i,4)}, v6, s[40:41]
            """)
    for i in range(0 if os.environ.get("NOQPF") else 327680 // WPX // 1024):
        k(f"buffer_load_dwordx4 {vr(8+4*(i%10),4)}, v1, s[16:19], s21 offen offset:{(i%4)*1024}")
        if i % 4 == 3:
            k("s_add_u32 s21, s21, 4096")
    def lines(sreg, n, dst, bits=""):
        i = 0
        while n > 0:
            c = min(64, n)
            if c < 64: k(f"s_mov_b64 exec, {hex((1 << c) - 1) if c <= 31 else None}" if c <= 31 else f"s_mov_b32 exec_hi, {hex((1 << (c - 32)) - 1)}")
            k(f"buffer_load_dword v{dst+i}, v3, s[28:31], s{sreg} offen{bits}")
            if c < 64: k("s_mov_b64 exec, -1")
            else: k(f"s_add_u32 s{sreg}, s{sreg}, 8192")
            n -= c; i += 1
    k(f"""
    s_mul_i32 s22, s22, {L.GS}
    s_add_u32 s22, s22, {L.GRP}
    """)
    if os.environ.get("WARM"):
        k(f"s_mul_i32 s23, s24, {327680 // WPX}\ns_add_u32 s23, s23, s22\ns_add_u32 s23, s23, {L.G_H1S}")
        lines(23, 2560 // WPX, 48)
        k(f"s_mul_i32 s23, s24, {20480 // WPX}\ns_add_u32 s23, s23, s22\ns_add_u32 s23, s23, {L.G_ST1}")
        lines(23, 160 // WPX, 54)
    if os.environ.get("H3W"):
        k(f"s_mul_i32 s23, s24, 27648\ns_add_u32 s23, s23, s22\ns_add_u32 s23, s23, {L.G_H3}")
        lines(23, 216, 54, " nt")
    if os.environ.get("WPF"):
        lp = k.newlab("pfp"); ld = k.newlab("pfd"); le = k.newlab("pfe")
        k(f"""
        v_and_b32 v4, 1, v0
        v_lshlrev_b32 v4, 7, v4
        v_add_u32 v4, {L.FLAGS + L.F_PK + 128}, v4
        v_and_b32 v6, 1, v0
        v_mul_u32_u24 v6, 34, v6
        v_add_u32 v6, 20, v6                            ; targets 20 / 54
        s_mov_b32 s32, 20000
        """)
        k.lab(lp)
        k(f"""
        buffer_load_dword v5, v4, s[28:31], 0 offen sc1
        s_waitcnt vmcnt(0)
        v_cmp_le_u32 vcc, v6, v5
        s_sub_u32 s32, s32, 1
        s_cmp_eq_u64 vcc, -1
        s_cbranch_scc1 {ld}
        s_cmp_eq_u32 s32, 0
        s_cbranch_scc1 {le}
        s_sleep 64
        s_branch {lp}
        """)
        k.lab(ld)
        WPF = os.environ.get("WPF", "23")
        if "1" in WPF:
            k(f"s_mul_i32 s23, s24, 25600\ns_add_u32 s23, s23, {L.W1P}")
            lines(23, 200, 56)
        if "2" in WPF:
            k(f"s_mul_i32 s23, s24, 25600\ns_add_u32 s23, s23, {L.W2P}")
            lines(23, 200, 60)
        if "3" in WPF:
            k(f"s_mul_i32 s23, s24, {70*1024}\ns_add_u32 s23, s23, {L.W3P}")
            lines(23, 560, 64)
        k.lab(le)
    k("s_waitcnt vmcnt(0)")
    k("s_endpgm")
    return k

def build(kerns, path):
    hdr = open("/code/" + NAME + ".s.ref").read().split("\n")
    com = [l for l in hdr if l.startswith(";") and "@launch" not in l and "Override launch" not in l and "grid=ceil" not in l]
    s = "\n".join(com) + "\n"
    for k in kerns:
        s += f"; @launch kernel={k.name} grid=({k.grid},1,1) block=({k.block},1,1) lds={k.lds}\n"
    s += '.amdgcn_target "amdgcn-amd-amdhsa--gfx950"\n.text\n'
    for k in kerns:
        s += k.text()
    s += "CODE_END:\n    s_endpgm\n"
    s += '.section .rodata,"a"\n'
    for k in kerns:
        s += k.kd()
    open(path, "w").write(s)

if __name__ == "__main__":
    out = sys.argv[1] if len(sys.argv) > 1 else "/code/" + NAME + ".s"
    if MERGE:
        k = Kern("k01_kernel", 864, 256, 46080, vgpr=256, sgpr=64)
        if os.environ.get("ORD") == "kvfirst":
            k("""
            s_cmp_ge_u32 s2, 864
            s_cbranch_scc1 k1_end
            s_cmp_lt_u32 s2, 480
            s_cbranch_scc1 k01_k0
            s_sub_u32 s2, s2, 480
            s_branch k01_k1
            """)
        else:
            k("""
            s_cmp_ge_u32 s2, 864
            s_cbranch_scc1 k1_end
            s_cmp_lt_u32 s2, 160
            s_cbranch_scc1 k01_k1
            s_cmp_lt_u32 s2, 600
            s_cbranch_scc1 k01_a
            s_cmp_lt_u32 s2, 819
            s_cbranch_scc1 k01_b
            s_cmp_lt_u32 s2, 824
            s_cbranch_scc1 k1_end
            s_sub_u32 s2, s2, 384
            s_branch k01_k0
            """)
            k.lab("k01_b")
            k("s_sub_u32 s2, s2, 440")
            k("s_branch k01_k1")
            k.lab("k01_a")
            k("s_sub_u32 s2, s2, 160")
        k.lab("k01_k0")
        gen_k0(k)
        k.lab("k01_k1")
        gen_k1(k)
        kerns = [k]
    else:
        kerns = [gen_k1()]
    try:
        import chain
        kerns += chain.kernels(Kern, vr)
    except ImportError:
        pass
    build(kerns, out)
    print("wrote", out)
```
